```python
import torch

def _softmax(x, axis=-1):
    return torch.softmax(x, dim=axis)
def _gelu(x):
    return torch.nn.functional.gelu(x, approximate="tanh")
def _silu(x):
    return torch.nn.functional.silu(x)
def _sigmoid(x):
    return torch.sigmoid(x)
def _layernorm(x, axis=-1, eps=1e-5):
    m = x.mean(dim=axis, keepdim=True)
    v = x.var(dim=axis, keepdim=True, unbiased=False)
    return (x - m) / torch.sqrt(v + eps)
def _scatter_add(tgt, idx, src, axis=0):
    return tgt.clone().index_add_(axis, idx, src)
def _segment_sum(src, seg, n):
    out = torch.zeros((n,) + src.shape[1:], dtype=src.dtype)
    return out.index_add_(0, seg, src)
def _pad(x, pw):
    flat = tuple(v for pair in reversed(pw) for v in pair)
    return torch.nn.functional.pad(x, flat)

kernel_name = 'standalone__mha_softmax__near_ridge'

def setup_inputs():

    _w = (lambda a: (lambda t: t.to(torch.bfloat16) if t.is_floating_point() else t)(torch.as_tensor(a)))
    B, H, Sq, Sk, D = 8, 16, 496, 1024, 256
    return {
        "q": _w((lambda *s: torch.randn(*s, dtype=torch.bfloat16) * 0.8)(B, H, Sq, D)),
        "k": _w((lambda *s: torch.randn(*s, dtype=torch.bfloat16) * 0.8)(B, H, Sk, D)),
        "v": _w((lambda *s: torch.randn(*s, dtype=torch.bfloat16) * 0.05)(B, H, Sk, D)),
    }

def reference(q, k, v):
    scale = q.shape[-1] ** -0.5
    scores = torch.einsum("bhqd,bhkd->bhqk", q, k) * scale
    p = _softmax(scores, axis=-1)
    return torch.einsum("bhqk,bhkd->bhqd", p, v)
```

```python
import sys, struct, argparse

KNAME = "standalone__mha_softmax__near_ridge_kernel"

def f32bits(x):
    return struct.unpack("<I", struct.pack("<f", x))[0]

class I:
    __slots__ = ("t", "k", "tag", "need", "n", "skip", "cost")
    def __init__(self, t, k="o", tag=None, need=None, cost=1):
        self.t = t; self.k = k; self.tag = tag; self.need = need; self.n = None; self.skip = False; self.cost = cost

def Qr(qb, dc): b = (qb * 16 + dc) * 4; return f"v[{b}:{b+3}]"
def Sb(par, qb): return 128 + par * 32 + qb * 16
def Sr(par, qb): b = Sb(par, qb); return f"v[{b}:{b+15}]"
def Pr(par, qb, kc): b = Sb(par, qb) + 8 * kc; return f"v[{b}:{b+3}]"
NF = 8
def Fb(f): return 192 + (f % NF) * 4
def Fr(f): b = Fb(f); return f"v[{b}:{b+3}]"
def Or(qb, dt): b = (qb * 8 + dt) * 16; return f"a[{b}:{b+15}]"
vK, vV = 224, 225
vD = [226, 227, 228, 229]
vQO = 230
vM = [231, 232]
vL = [[233, 234], [235, 236]]
vX = [237, 238]
vT = 240
sQ, sK, sV, sO = 4, 8, 12, 16
sC, sKoff, sVoff, sWb, sCnt, sQB1, sThr = 20, 21, 22, 23, 24, 25, 26
PIECE = 1040
TILE = 16 * PIECE
R = 4
VBASE = R * TILE
LDS_BYTES = 2 * R * TILE

def srd(s): return f"s[{s}:{s+3}]"

class Gen:
    def __init__(self, o):
        self.o = o

    def kread(self, u, f):
        slot = (u + 1) % R
        off = slot * TILE + (f >> 2) * 256 + (f & 3) * 32
        return [I(f"ds_read_b128 {Fr(f)}, v{vK} offset:{off}", "ds", tag=(u, f))]

    def vread(self, u, f):
        p = f - 16; kc = p >> 3; dt = p & 7
        slot = u % R
        out = []
        for sec in range(2):
            off = slot * TILE + (2 * sec + 8 * kc) * PIECE + (dt >> 1) * 256 + (dt & 1) * 64
            b = Fb(f) + 2 * sec
            out.append(I(f"ds_read_b64_tr_b16 v[{b}:{b+1}], v{vV} offset:{off}", "ds", tag=(u, f)))
        return out

    def fread(self, u, f):
        if self.o.no_lds: return []
        return self.kread(u, f) if f < 16 else self.vread(u, f)

    def dma(self, which, slot):
        if self.o.no_dma: return []
        base = slot * TILE + (VBASE if which == "V" else 0)
        s = sK if which == "K" else sV
        so = sKoff if which == "K" else sVoff
        out = [I(f"s_add_u32 m0, s{sWb}, {base}", "s")]
        nt = " nt" if self.o.nt else ""
        for j in range(4):
            out.append(I(f"buffer_load_dwordx4 v{vD[j]}, {srd(s)}, s{so} offen offset:{j*PIECE}{nt} lds", "vm"))
        out.append(I(f"s_add_u32 s{so}, s{so}, 16384", "s"))
        return out

    def qk_mfma(self, par, qb, dc):
        c = "0" if dc == 0 else Sr(par, qb)
        return I(f"v_mfma_f32_32x32x16_bf16 {Sr(par,qb)}, {Fr(dc)}, {Qr(qb,dc)}, {c}", "m")

    def pv_mfma(self, par, qb, p):
        kc = p >> 3; dt = p & 7
        return I(f"v_mfma_f32_32x32x16_bf16 {Or(qb,dt)}, {Fr(16+p)}, {Pr(par,qb,kc)}, {Or(qb,dt)}", "m")

    def stream_E(self, par):
        groups = []
        for kc in range(2):
            for qb in range(2):
                b = Sb(par, qb) + 8 * kc
                e = [I(f"v_exp_f32 v{b+j}, v{b+j}", "t", cost=2) for j in range(8)]
                a = [I(f"v_add_f32 v{vL[qb][j&1]}, v{vL[qb][j&1]}, v{b+j}", "v") for j in range(8)]
                c = [I(f"v_cvt_pk_bf16_f32 v{b+j}, v{b+2*j}, v{b+2*j+1}", "v") for j in range(4)]
                g = [e[0], e[1], e[2], a[0], a[1], e[3], c[0], e[4], a[2], a[3], e[5], c[1], e[6], a[4], a[5], e[7], c[2], a[6], a[7], c[3]]
                groups.append(g)
        return groups

    def stream_F(self, par):
        out = []
        for qb in range(2):
            b = Sb(par, qb)
            fm = [I(f"v_fma_f32 v{b+j}, v{b+j}, s{sC}, v{vM[qb]}", "v") for j in range(16)]
            x = vX[qb]
            seq = [fm[0], fm[1], fm[2], fm[3]]
            seq.append(I(f"v_max3_f32 v{x}, v{b}, v{b+1}, v{b+2}", "v"))
            j = 3
            nxt = 4
            while j < 15:
                seq.append(fm[nxt]); nxt += 1
                if nxt < 16: seq.append(fm[nxt]); nxt += 1
                seq.append(I(f"v_max3_f32 v{x}, v{x}, v{b+j}, v{b+j+1}", "v"))
                j += 2
            while nxt < 16:
                seq.append(fm[nxt]); nxt += 1
            out += seq
        out.append(I(f"v_max3_f32 v{vX[0]}, v{vX[0]}, v{Sb(par,0)+15}, v{Sb(par,1)+15}", "v"))
        out.append(I(f"v_max_f32 v{vX[0]}, v{vX[0]}, v{vX[1]}", "v"))
        return out

    def spread(self, gaps, items, g0, g1):
        tot = sum(i.cost for i in items)
        n = g1 - g0 + 1
        acc = 0
        for it in items:
            g = g0 + min(n - 1, int((acc + it.cost * 0.5) * n / tot))
            gaps[g].append(it)
            acc += it.cost

    def wait_frag(self, u, f):
        if self.o.no_lds: return []
        return [I(None, "wl", need=(u, f))]

    def post_barrier_plan(self):
        o = self.o
        res = []
        g = o.bar_gap
        for f in range(0, 16):
            dflt = 64 + 2 * f - o.look
            pos = max(dflt, g)
            if pos > 63: break
            res.append((pos, f))
            g = pos + 1 if o.kcatch == 1 else (pos + (f & 1))
        return res

    def body(self, u, last=False):
        o = self.o
        cur = u & 1; nxt = cur ^ 1
        gaps = [[] for _ in range(64)]
        pre = [[] for _ in range(64)]
        mf = []
        for dc in range(16):
            for qb in range(2): mf.append(self.qk_mfma(nxt, qb, dc))
        for p in range(16):
            for qb in range(2): mf.append(self.pv_mfma(cur, qb, p))
        pb = self.post_barrier_plan()
        done = {f for _, f in pb}
        dsg = [[] for _ in range(64)]
        g_min = 0
        for f in range(32):
            if f in done: continue
            pos = max(2 * f - o.look, g_min)
            dsg[pos] += self.fread(u, f)
            g_min = pos + 1 if f < 16 else pos
        bar = []
        if not o.no_bar:
            bar = [I(f"s_waitcnt vmcnt({o.vm_wait}) lgkmcnt(0)", "w0"), I("s_barrier", "o")]
        dsg[o.bar_gap] = dsg[o.bar_gap] + bar
        for pos, f in pb:
            dsg[pos] += self.fread((u + 1) % R, f)
        for f in range(32):
            if o.pairwait and (f & 1): continue
            ff = f + 1 if o.pairwait else f
            pre[2 * f] += self.wait_frag(u, ff)
        vg = [[] for _ in range(64)]
        if not o.no_sm:
            E = sum(self.stream_E(cur), [])
            self.spread(vg, E, o.e0, o.e1)
            F = self.stream_F(nxt)
            self.spread(vg, F, o.f0, o.f1)
        dg = [[] for _ in range(64)]
        dm = self.dma("K", u % R) + self.dma("V", (u + R - 1) % R)
        if dm: self.spread(dg, dm, o.d0, o.d1)
        out = []
        for g in range(64):
            out += pre[g]
            out.append(mf[g])
            out += dsg[g]
            out += vg[g]
            out += dg[g]
        if not o.no_sm:
            out.append(I(f"v_cmp_lt_f32 vcc, s{sThr}, v{vX[0]}", "v"))
            out.append(I(f"s_cbranch_vccnz L_rare{u}", "s"))
            out.append(I(f"L_back{u}:", "l"))
        return out

    def rare(self, u):
        nxt = (u & 1) ^ 1
        t, t2, f = vT, vT + 1, vT + 2
        out = [I(f"L_rare{u}:", "l"), I("s_nop 15"), I("s_nop 3")]
        for qb in range(2):
            b = Sb(nxt, qb)
            out.append(I(f"v_max3_f32 v{t}, v{b}, v{b+1}, v{b+2}"))
            for j in range(3, 15, 2):
                out.append(I(f"v_max3_f32 v{t}, v{t}, v{b+j}, v{b+j+1}"))
            out.append(I(f"v_max_f32 v{t}, v{t}, v{b+15}"))
            out.append(I(f"v_mov_b32 v{t2}, v{t}"))
            out.append(I("s_nop 1"))
            out.append(I(f"v_permlane32_swap_b32 v{t}, v{t2}"))
            out.append(I("s_nop 1"))
            out.append(I(f"v_max3_f32 v{t}, v{t}, v{t2}, 0"))
            out.append(I(f"v_sub_f32 v{vM[qb]}, v{vM[qb]}, v{t}"))
            for j in range(16):
                out.append(I(f"v_sub_f32 v{b+j}, v{b+j}, v{t}"))
            out.append(I(f"v_exp_f32 v{f}, -v{t}"))
            out.append(I("s_nop 0"))
            for l in vL[qb]:
                out.append(I(f"v_mul_f32 v{l}, v{l}, v{f}"))
            for a0 in range(qb * 128, qb * 128 + 128, 8):
                for k in range(8): out.append(I(f"v_accvgpr_read_b32 v{vT+4+k}, a{a0+k}"))
                for k in range(8): out.append(I(f"v_mul_f32 v{vT+4+k}, v{vT+4+k}, v{f}"))
                for k in range(8): out.append(I(f"v_accvgpr_write_b32 a{a0+k}, v{vT+4+k}"))
        out.append(I("s_nop 1"))
        out.append(I(f"s_branch L_back{u}"))
        return out

    def stamp(self, idx):
        if not self.o.stamps: return []
        return [I(f"s_memtime s[{40+2*idx}:{41+2*idx}]", "sm")]

    def prologue(self):
        o = self.o
        P = []
        a = lambda t, k="o", **kw: P.append(I(t, k, **kw))
        a("s_cmp_ge_u32 s2, 256")
        a("s_cbranch_scc1 L_end")
        a("s_load_dwordx8 s[28:35], s[0:1], 0", "sm")
        if o.stamps:
            a("s_load_dwordx2 s[36:37], s[0:1], 40", "sm")
            a("s_memrealtime s[38:39]", "sm")
        P += self.stamp(0)
        lane, w, t0, t1, t2 = vT, vT + 1, vT + 2, vT + 3, vT + 4
        a(f"v_and_b32 v{lane}, 63, v0")
        a(f"v_lshrrev_b32 v{w}, 6, v0")
        a("s_lshr_b32 s3, s2, 4")
        a("s_lshl_b32 s3, s3, 3")
        a("s_and_b32 s27, s2, 7")
        a("s_add_u32 s3, s3, s27")
        a("s_lshr_b32 s27, s2, 3")
        a("s_and_b32 s27, s27, 1")
        a(f"v_readfirstlane_b32 s{sWb}, v{w}")
        a(f"v_bfe_u32 v{t0}, v{lane}, 3, 1")
        a(f"v_lshlrev_b32 v{t0}, 9, v{t0}")
        a(f"v_lshrrev_b32 v{t1}, 4, v{lane}")
        a(f"v_lshl_add_u32 v{t0}, v{t1}, 7, v{t0}")
        a(f"v_and_b32 v{t1}, 7, v{lane}")
        a(f"v_lshl_add_u32 v{t0}, v{t1}, 4, v{t0}")
        a(f"v_lshrrev_b32 v{t1}, 1, v{w}")
        a(f"v_lshl_add_u32 v{t0}, v{t1}, 13, v{t0}")
        a(f"v_and_b32 v{t1}, 1, v{w}")
        a(f"v_lshl_add_u32 v{vD[0]}, v{t1}, 10, v{t0}")
        for j in range(1, 4):
            a(f"v_add_u32 v{vD[j]}, {j*(2048-PIECE)}, v{vD[0]}")
        a(f"v_and_b32 v{t0}, 31, v{lane}")
        a(f"v_lshl_add_u32 v{t0}, v{w}, 6, v{t0}")
        a(f"s_lshl_b32 s27, s27, 8")
        a(f"v_add_u32 v{t0}, s27, v{t0}")
        a(f"v_lshlrev_b32 v{t0}, 9, v{t0}")
        a(f"v_lshrrev_b32 v{t1}, 5, v{lane}")
        a(f"v_lshl_add_u32 v{vQO}, v{t1}, 4, v{t0}")
        a("s_waitcnt lgkmcnt(0)", "w0")
        a("s_mul_i32 s27, s3, 253952")
        for (s, p) in ((sQ, 28), (sO, 34)):
            a(f"s_add_u32 s{s}, s{p}, s27")
            a(f"s_addc_u32 s{s+1}, s{p+1}, 0")
            a(f"s_mov_b32 s{s+2}, 253952")
            a(f"s_mov_b32 s{s+3}, 0x20000")
        a("s_lshl_b32 s27, s3, 19")
        for (s, p) in ((sK, 30), (sV, 32)):
            a(f"s_add_u32 s{s}, s{p}, s27")
            a(f"s_addc_u32 s{s+1}, s{p+1}, 0")
            a(f"s_mov_b32 s{s+2}, 524288")
            a(f"s_mov_b32 s{s+3}, 0x20000")
        a(f"s_mul_i32 s{sWb}, s{sWb}, {4*PIECE}")
        a(f"s_mov_b32 s{sKoff}, 0")
        a(f"s_mov_b32 s{sVoff}, 0")
        a(f"s_mov_b32 s{sQB1}, 16384")
        def dma_nop(which, slot):
            d = self.dma(which, slot)
            if d: d.insert(1, I("s_nop 0"))
            return d
        P += dma_nop("K", 0)
        qorder = []
        for d4 in range(4):
            for qb in range(2):
                for dc in range(4 * d4, 4 * d4 + 4):
                    qorder.append((qb, dc))
        for (qb, dc) in qorder:
            so = "0" if qb == 0 else f"s{sQB1}"
            a(f"buffer_load_dwordx4 {Qr(qb,dc)}, v{vQO}, {srd(sQ)}, {so} offen offset:{32*dc}", "vm")
        for (wh, sl) in (("K", 1), ("V", 0), ("K", 2), ("V", 1), ("K", 3), ("V", 2)):
            P += dma_nop(wh, sl)
        ndma_after_q = 0 if o.no_dma else 24
        a(f"v_bfe_u32 v{t0}, v{lane}, 2, 2")
        a(f"v_bfe_u32 v{t1}, v{lane}, 4, 1")
        a(f"v_lshl_add_u32 v{t0}, v{t1}, 3, v{t0}")
        a(f"v_bfe_u32 v{t1}, v{lane}, 1, 1")
        a(f"v_lshl_add_u32 v{t0}, v{t1}, 2, v{t0}")
        a(f"v_mul_u32_u24 v{t0}, {PIECE}, v{t0}")
        a(f"v_and_b32 v{t1}, 1, v{lane}")
        a(f"v_lshl_add_u32 v{t0}, v{t1}, 7, v{t0}")
        a(f"v_lshrrev_b32 v{t1}, 5, v{lane}")
        a(f"v_lshl_add_u32 v{vK}, v{t1}, 4, v{t0}")
        a(f"v_bfe_u32 v{t0}, v{lane}, 3, 1")
        a(f"v_lshl_add_u32 v{t0}, v{t0}, 2, v{t1}")
        a(f"v_mul_u32_u24 v{t0}, {PIECE}, v{t0}")
        a(f"v_bfe_u32 v{t1}, v{lane}, 2, 1")
        a(f"v_lshl_add_u32 v{t0}, v{t1}, 7, v{t0}")
        a(f"v_bfe_u32 v{t1}, v{lane}, 4, 1")
        a(f"v_lshl_add_u32 v{t0}, v{t1}, 5, v{t0}")
        a(f"v_and_b32 v{t1}, 1, v{lane}")
        a(f"v_lshl_add_u32 v{t0}, v{t1}, 4, v{t0}")
        a(f"v_bfe_u32 v{t1}, v{lane}, 1, 1")
        a(f"v_lshl_add_u32 v{t0}, v{t1}, 3, v{t0}")
        a(f"v_add_u32 v{vV}, {VBASE}, v{t0}")
        a(f"s_mov_b32 s{sC}, {hex(f32bits(1.4426950408889634/16.0))}")
        a(f"s_mov_b32 s{sThr}, {hex(f32bits(o.thr))}")
        a(f"s_mov_b32 s{sCnt}, 0")
        for qb in range(2):
            for l in vL[qb]: a(f"v_mov_b32 v{l}, 0")
        for r in range(256): a(f"v_accvgpr_write_b32 a{r}, 0")
        a(f"s_waitcnt vmcnt({32+ndma_after_q})")
        a("s_barrier")
        P += self.stamp(1)
        u = R - 1
        LA = 6
        for f in range(LA): P += self.fread(u, f)
        for dc in range(16):
            if dc % 4 == 0:
                left = 32 - 8 * (dc // 4 + 1)
                a(f"s_waitcnt vmcnt({left+ndma_after_q})")
                if dc == 0: P += self.stamp(2)
            P += self.wait_frag(u, dc)
            for qb in range(2): P.append(self.qk_mfma(0, qb, dc))
            if dc + LA < 16: P += self.fread(u, dc + LA)
        P += self.stamp(3)
        a(f"s_waitcnt vmcnt({o.vm_wait}) lgkmcnt(0)", "w0")
        a("s_barrier")
        for pos, f in self.post_barrier_plan():
            P += self.fread(0, f)
        a("s_nop 7")
        t, t2 = vT, vT + 1
        for qb in range(2):
            b = Sb(0, qb)
            a(f"v_max3_f32 v{t}, v{b}, v{b+1}, v{b+2}")
            for j in range(3, 15, 2): a(f"v_max3_f32 v{t}, v{t}, v{b+j}, v{b+j+1}")
            a(f"v_max_f32 v{t}, v{t}, v{b+15}")
            a(f"v_mov_b32 v{t2}, v{t}")
            a("s_nop 1")
            a(f"v_permlane32_swap_b32 v{t}, v{t2}")
            a("s_nop 1")
            a(f"v_max_f32 v{t}, v{t}, v{t2}")
            a(f"v_mul_f32 v{vM[qb]}, s{sC}, v{t}")
            a(f"v_sub_f32 v{vM[qb]}, 0, v{vM[qb]}")
            for j in range(16): a(f"v_fma_f32 v{b+j}, v{b+j}, s{sC}, v{vM[qb]}")
        P += self.stamp(4)
        return P

    def tail(self):
        o = self.o
        u = 3; cur = u & 1
        T = []
        a = lambda t, k="o", **kw: T.append(I(t, k, **kw))
        E = self.stream_E(cur) if not o.no_sm else [[], [], [], []]
        LA = 6
        for f in range(16, 16 + LA): T += self.fread(u, f)
        T += E[0] + E[1]
        a("s_nop 1")
        gaps = [[] for _ in range(32)]
        self.spread(gaps, E[2] + E[3], 0, 14) if not o.no_sm else None
        for p in range(16):
            f = 16 + p
            T += self.wait_frag(u, f)
            if p == 8: a("s_nop 1")
            for qb in range(2):
                T.append(self.pv_mfma(cur, qb, p))
                if qb == 1 and f + LA < 32: T += self.fread(u, f + LA)
                T += gaps[2 * p + qb]
        T += self.stamp(6)
        inv = [vT, vT + 2]
        for qb in range(2):
            t, t2 = inv[qb], inv[qb] + 1
            a(f"v_add_f32 v{t}, v{vL[qb][0]}, v{vL[qb][1]}")
            a(f"v_mov_b32 v{t2}, v{t}")
            a("s_nop 1")
            a(f"v_permlane32_swap_b32 v{t}, v{t2}")
            a("s_nop 1")
            a(f"v_add_f32 v{t}, v{t}, v{t2}")
            a(f"v_rcp_f32 v{t}, v{t}")
        a("s_nop 7")
        stg = 0
        for qb in range(2):
            so = "0" if qb == 0 else f"s{sQB1}"
            for dt in range(8):
                for hf in range(2):
                    a0 = (qb * 8 + dt) * 16 + hf * 8
                    b = stg * 8; stg = (stg + 1) % 16
                    for k in range(8): a(f"v_accvgpr_read_b32 v{b+k}, a{a0+k}")
                    for k in range(0, 8, 2):
                        a(f"v_pk_mul_f32 v[{b+k}:{b+k+1}], v[{b+k}:{b+k+1}], v[{inv[qb]}:{inv[qb]+1}] op_sel_hi:[1,0]")
                    for k in range(4): a(f"v_cvt_pk_bf16_f32 v{b+k}, v{b+2*k}, v{b+2*k+1}")
                    a(f"buffer_store_dwordx4 v[{b}:{b+3}], v{vQO}, {srd(sO)}, {so} offen offset:{64*dt+32*hf}", "vm")
        if o.stamps:
            T += self.stamp(7)
            a("s_waitcnt vmcnt(0)")
            T += self.stamp(8)
            a("s_memrealtime s[58:59]", "sm")
            a("s_getreg_b32 s60, hwreg(HW_REG_XCC_ID)")
            a("s_getreg_b32 s61, hwreg(HW_REG_HW_ID)")
            a("s_waitcnt lgkmcnt(0)")
            a(f"s_mov_b32 s64, s36"); a("s_mov_b32 s65, s37"); a("s_mov_b32 s66, 0x1000000"); a("s_mov_b32 s67, 0x20000")
            a(f"s_lshl_b32 s62, s2, 9")
            a(f"s_mul_hi_u32 s63, s{sWb}, {(2**32)//(4*PIECE)+1}")
            a(f"s_lshl_b32 s63, s63, 7")
            a(f"s_add_u32 s62, s62, s63")
            a(f"v_mov_b32 v1, 0")
            for k in range(24):
                a(f"v_mov_b32 v0, s{38+k}")
                a(f"buffer_store_dword v0, v1, s[64:67], s62 offen offset:{4*k}")
        return T

    def build(self):
        o = self.o
        pro = self.prologue()
        bodies = [self.body(u) for u in range(4)]
        tail = self.tail()
        loop_head = [I("L_loop:", "l")]
        exit_chk = [I(f"s_cmp_eq_u32 s{sCnt}, 7", "s"), I("s_cbranch_scc1 L_tail", "s")]
        back = [I(f"s_add_u32 s{sCnt}, s{sCnt}, 1", "s"), I("s_branch L_loop", "s")]
        loop = loop_head + bodies[0] + bodies[1] + bodies[2] + exit_chk + bodies[3] + back
        part = bodies[0] + bodies[1] + bodies[2]
        tl = [I("L_tail:", "l")] + self.stamp(5) + tail
        trace = pro + loop + loop + part + tl
        self.resolve_waits(trace)
        rares = [] if o.no_sm else sum((self.rare(u) for u in range(4)), [])
        body = pro + [I(".p2align 6" if o.align else "", "l")] + loop + tl + [I("L_end:", "l"), I("s_endpgm")] + rares
        return body

    def resolve_waits(self, trace):
        ds = []
        for it in trace:
            if it.k == "ds": ds.append(it.tag)
            elif it.k == "wl":
                idx = max(j for j, t in enumerate(ds) if t == it.need)
                n = len(ds) - 1 - idx
                assert n <= 15, n
                it.n = n if it.n is None else min(it.n, n)
        needed = set()
        ds = []; done = 0
        for it in trace:
            if it.k == "ds": ds.append(it.tag)
            elif it.k == "w0": done = len(ds)
            elif it.k == "wl":
                idx = max(j for j, t in enumerate(ds) if t == it.need)
                if idx >= done: needed.add(id(it))
                done = max(done, len(ds) - it.n) if id(it) in needed else done
        for it in trace:
            if it.k == "wl":
                it.skip = id(it) not in needed
                it.t = f"s_waitcnt lgkmcnt({it.n})"

    def text(self):
        body = self.build()
        hdr = open("standalone__mha_softmax__near_ridge.s.ref").read().split("\n")
        top = []
        for ln in hdr:
            if ln.startswith("; @launch"): break
            top.append(ln)
        out = top + [f"; @launch grid=(256,1,1) block=(256,1,1) lds={LDS_BYTES}",
                     "; generated by dev/gen.py (hand-written generator; flash-attention forward, 4 waves x 64 q rows)",
                     '.amdgcn_target "amdgcn-amd-amdhsa--gfx950"', ".text", f".globl {KNAME}", ".p2align 8",
                     f".type {KNAME},@function", f"{KNAME}:"]
        for it in body:
            if it.skip or not it.t: continue
            out.append(("" if it.k == "l" else "    ") + it.t)
        out += ['.section .rodata,"a"', ".p2align 6", f".amdhsa_kernel {KNAME}",
                "  .amdhsa_next_free_vgpr 512", "  .amdhsa_next_free_sgpr 96", "  .amdhsa_accum_offset 256",
                "  .amdhsa_group_segment_fixed_size 0", "  .amdhsa_kernarg_size 48", "  .amdhsa_user_sgpr_count 2",
                "  .amdhsa_user_sgpr_kernarg_segment_ptr 1", "  .amdhsa_system_sgpr_workgroup_id_x 1",
                ".end_amdhsa_kernel", ""]
        return "\n".join(out)

def parse(argv):
    p = argparse.ArgumentParser()
    p.add_argument("-o", default="standalone__mha_softmax__near_ridge.s")
    for f in ("no_dma", "no_lds", "no_sm", "no_bar", "stamps", "nt", "pairwait"):
        p.add_argument("--" + f, action="store_true")
    p.add_argument("--align", type=int, default=1)
    p.add_argument("--look", type=int, default=12)
    p.add_argument("--bar_gap", type=int, default=56)
    p.add_argument("--kcatch", type=int, default=1)
    p.add_argument("--vm_wait", type=int, default=16)
    p.add_argument("--e0", type=int, default=0)
    p.add_argument("--e1", type=int, default=43)
    p.add_argument("--f0", type=int, default=44)
    p.add_argument("--f1", type=int, default=63)
    p.add_argument("--d0", type=int, default=0)
    p.add_argument("--d1", type=int, default=23)
    p.add_argument("--thr", type=float, default=8.0)
    return p.parse_args(argv)

if __name__ == "__main__":
    o = parse(sys.argv[1:])
    open(o.o, "w").write(Gen(o).text())
```

```python
import re
def regs(tok):
    tok = tok.strip().lstrip("-")
    m = re.fullmatch(r"([vas])\[(\d+):(\d+)\]", tok)
    if m: return {(m.group(1), i) for i in range(int(m.group(2)), int(m.group(3)) + 1)}
    m = re.fullmatch(r"([vas])(\d+)", tok)
    if m: return {(m.group(1), int(m.group(2)))}
    if tok in ("vcc", "m0", "exec"): return {(tok, 0)}
    return set()
TRANS = ("v_exp_f32", "v_rcp_f32", "v_log_f32", "v_rsq_f32", "v_sqrt_f32")
def parse(t):
    t = t.split(";")[0].strip()
    op, _, rest = t.partition(" ")
    ops = [x.strip() for x in re.split(r",\s*(?![^\[]*\])", rest)] if rest else []
    ops = [x.split(" ")[0] for x in ops]
    d = dict(op=op, w=set(), r=set(), c=set(), cls="o", states=1)
    if op == "s_nop": d["states"] = int(ops[0]) + 1
    if op.startswith("v_mfma"):
        d["cls"] = "m"; d["w"] = regs(ops[0]); d["r"] = regs(ops[1]) | regs(ops[2]); d["c"] = regs(ops[3])
        d["passes"] = 4 if "16x16x32" in op else 8
    elif op.startswith("v_permlane"):
        d["cls"] = "p"; d["w"] = regs(ops[0]) | regs(ops[1]); d["r"] = set(d["w"])
    elif op.startswith("v_"):
        d["cls"] = "t" if op in TRANS else "v"
        d["w"] = regs(ops[0])
        for x in ops[1:]: d["r"] |= regs(x)
        if op.startswith("v_readfirstlane") or op.startswith("v_readlane"): d["cls"] = "rl"
    elif op.startswith("ds_read"):
        d["cls"] = "d"; d["w"] = regs(ops[0]); d["r"] = regs(ops[1])
    elif op.startswith("ds_write"):
        d["cls"] = "d"
        for x in ops: d["r"] |= regs(x)
    elif op.startswith("buffer_load"):
        d["cls"] = "vm"
        if t.rstrip().endswith(" lds"):
            d["lds"] = True
            for x in ops: d["r"] |= regs(x)
            d["r"] |= {("m0", 0)}
        else:
            d["w"] = regs(ops[0])
            for x in ops[1:]: d["r"] |= regs(x)
    elif op.startswith("buffer_store"):
        d["cls"] = "st"; d["data"] = regs(ops[0])
        for x in ops: d["r"] |= regs(x)
    elif op.startswith("s_") and ops and not op.startswith(("s_cmp", "s_cbranch", "s_branch", "s_waitcnt", "s_nop", "s_barrier")):
        d["cls"] = "s"; d["w"] = regs(ops[0])
        for x in ops[1:]: d["r"] |= regs(x)
    return d
def check(lines):
    P = [parse(l) for l in lines]
    errs = []
    VAL = ("v", "t", "p", "rl")
    for i, c in enumerate(P):
        dist = 0
        for j in range(i - 1, max(-1, i - 24), -1):
            p = P[j]
            need = 0
            if p["cls"] == "m":
                n = {4: 8, 8: 12}[p["passes"]]
                if c["cls"] in VAL + ("d", "vm", "st") and (p["w"] & (c["r"] | c["w"])): need = n
                if c["cls"] == "m" and (p["w"] & c["r"]): need = n
                if c["cls"] == "m" and (p["w"] & c["c"]) and p["w"] != c["c"]: need = {4: 6, 8: 10}[p["passes"]]
                if c["cls"] in VAL and (p["c"] & c["w"]): need = max(need, {4: 3, 8: 7}[p["passes"]])
            if p["cls"] in VAL:
                if c["cls"] == "m" and (p["w"] & (c["r"] | c["c"])): need = 2
                if c["cls"] == "p" and (p["w"] & c["r"]): need = max(need, 2)
                if c["cls"] == "rl" and (p["w"] & c["r"]): need = max(need, 1)
                sw = {x for x in p["w"] if x[0] in ("s", "vcc")}
                if sw and c["cls"] in VAL and (sw & c["r"]): need = max(need, 2)
                if sw and c["cls"] in ("vm", "st") and (sw & c["r"]): need = max(need, 5)
            if p["cls"] == "t" and c["cls"] in ("v", "p", "rl") and (p["w"] & c["r"]): need = max(need, 1)
            if p["cls"] == "s" and ("m0", 0) in p["w"] and c.get("lds"): need = max(need, 1)
            if p["cls"] == "st" and len(p["data"]) > 2 and (p["data"] & c["w"]): need = max(need, 2 if c["cls"] in VAL else 1)
            if need > dist: errs.append(f"hazard need {need} have {dist}: [{j}] {lines[j].strip()}  ->  [{i}] {lines[i].strip()}")
            dist += p["states"]
    return errs
```

```python
import sys, struct, argparse
sys.path.insert(0, "dev")
import hz

KNAME = "standalone__mha_softmax__near_ridge_kernel"
MF = "v_mfma_f32_16x16x32_bf16"

def f32bits(x): return struct.unpack("<I", struct.pack("<f", x))[0]
def pol(x): return (" " + x.replace("+", " ")) if x else ""
def srd(s): return f"s[{s}:{s+3}]"

class I:
    __slots__ = ("t", "k", "tag", "need", "n", "skip")
    def __init__(self, t, k="o", tag=None, need=None):
        self.t = t; self.k = k; self.tag = tag; self.need = need; self.n = None; self.skip = False

def Qr(qt, d8): b = (qt * 8 + d8) * 4; return f"v[{b}:{b+3}]"
def Sb(par, qt): return 128 + par * 32 + qt * 8
def Sr(par, qt, kt): b = Sb(par, qt) + 4 * kt; return f"v[{b}:{b+3}]"
def Pr(par, qt): return Sr(par, qt, 0)
NF = 8
def Fb(f): return 192 + (f % NF) * 4
def Fr(f): b = Fb(f); return f"v[{b}:{b+3}]"
def Ob(qt, dt): return (qt * 16 + dt) * 4
def Or(qt, dt): b = Ob(qt, dt); return f"a[{b}:{b+3}]"
vK, vVe, vVo, vD, vQ = 224, 225, 226, 227, 228
vM = [229, 230, 231, 232]
vL = [233, 234, 235, 236]
vX = [237, 238]
vT = 240
sQ, sK, sV, sO = 4, 8, 12, 16
sC, sKoff, sVoff, sWb, sCnt, sThr = 20, 21, 22, 23, 24, 26
sQT = [None, 88, 89, 90]
PIECE = 1088
TILE = 16 * PIECE
R = 4
VBASE = R * TILE
LDS_BYTES = 2 * R * TILE
NG = 128

class Op:
    def __init__(self, name, fn, cost=1, deps=(), t0=0):
        self.name = name; self.fn = fn; self.cost = cost; self.deps = list(deps); self.t0 = t0; self.t = None

class Gen:
    def __init__(self, o):
        self.o = o
        self.plan()

    def fread(self, u, f, part=None):
        if self.o.no_lds: return []
        if f < 16:
            d8 = f >> 1; kt = f & 1
            off = ((u + 1) % R) * TILE + kt * 8 * PIECE + 64 * d8
            return [I(f"ds_read_b128 {Fr(f)}, v{vK} offset:{off}", "ds", tag=(u, f))]
        dt = f - 16
        out = []
        for sec in range(2):
            if part is not None and part != sec: continue
            off = (u % R) * TILE + sec * 8 * PIECE + 64 * (dt >> 1)
            b = Fb(f) + 2 * sec
            out.append(I(f"ds_read_b64_tr_b16 v[{b}:{b+1}], v{vVo if dt & 1 else vVe} offset:{off}", "ds", tag=(u, f)))
        return out

    def dma_m0(self, which, slot, j):
        base = slot * TILE + (VBASE if which == "V" else 0) + (PIECE - 1024) * j
        return I(f"s_add_u32 m0, s{sWb}, {base}", "s")
    def dma_ld(self, which, j):
        s = sK if which == "K" else sV
        so = sKoff if which == "K" else sVoff
        return I(f"buffer_load_dwordx4 v{vD}, {srd(s)}, s{so} offen offset:{j*1024}{pol(self.o.kvpol)} lds", "vm")
    def dma_adv(self, which):
        so = sKoff if which == "K" else sVoff
        return I(f"s_add_u32 s{so}, s{so}, 16384", "s")
    def dma_tile(self, which, slot):
        out = []
        for j in range(4):
            out += [self.dma_m0(which, slot, j), I("s_nop 0"), self.dma_ld(which, j)]
        out.append(self.dma_adv(which))
        return out

    def qk_mfma(self, par, f, qt):
        d8 = f >> 1; kt = f & 1
        c = "0" if d8 == 0 else Sr(par, qt, kt)
        return I(f"{MF} {Sr(par,qt,kt)}, {Fr(f)}, {Qr(qt,d8)}, {c}", "m")
    def pv_mfma(self, par, dt, qt):
        return I(f"{MF} {Or(qt,dt)}, {Fr(16+dt)}, {Pr(par,qt)}, {Or(qt,dt)}", "m")
    def wait_frag(self, u, f):
        if self.o.no_lds: return []
        return [I(None, "wl", need=(u, f))]

    def plan(self):
        o = self.o
        used = [0] * NG
        self.ds_at = [[] for _ in range(NG)]
        g = o.bar_gap + 1
        for f in range(32):
            want = 4 * f - o.look
            if f < 16 and want < 0:
                pos = max(want + NG, g)
                if pos < NG - 1:
                    self.ds_at[pos].append((f, None, True)); used[pos] += 1
                    g = pos + o.kstep
                    continue
                want = 0
            parts = [None] if f < 16 else [0, 1]
            pos = want
            for p in parts:
                while used[pos] > 0: pos += 1
                assert pos < o.bar_gap - 6 or f < 16
                self.ds_at[pos].append((f, p, False)); used[pos] += 1
        self.dma_at = {}
        pos = o.dma0
        for k in range(8):
            while used[pos % NG] > 0 or (pos % NG) in (NG - 1, NG - 2, 0): pos += 1
            self.dma_at[pos % NG] = (k, pos >= NG or pos <= o.bar_gap)
            used[pos % NG] = 2
            pos += o.dmastep
        used[NG - 1] += 1
        for gq in range(o.bar_gap - o.bar_quiet + 1, o.bar_gap + 1): used[gq] = 2
        ops = []
        fm = {}
        for kt in range(2):
            for qt in range(4):
                for r in range(4):
                    k = 4 * kt + r
                    op = Op(f"fma{qt}{k}", (lambda par, qt=qt, k=k: f"v_fma_f32 v{Sb(par,qt)+k}, v{Sb(par,qt)+k}, s{sC}, v{vM[qt]}"), t0=56 + 4 * kt + qt + o.sdelay)
                    fm[(qt, k)] = op; ops.append(op)
        mx = []
        last = []
        for kt in range(2):
            vals = [(qt, 4 * kt + r) for qt in range(4) for r in range(4)]
            x = vX[kt]
            rg = lambda par, v: f"v{Sb(par, v[0]) + v[1]}"
            op = Op(f"mx{kt}0", (lambda par, x=x, a=vals[0], b=vals[1], c=vals[2]: f"v_max3_f32 v{x}, {rg(par,a)}, {rg(par,b)}, {rg(par,c)}"), deps=[fm[v] for v in vals[:3]])
            mx.append(op); prev = op
            for j in range(3, 15, 2):
                op = Op(f"mx{kt}{j}", (lambda par, x=x, a=vals[j], b=vals[j + 1]: f"v_max3_f32 v{x}, v{x}, {rg(par,a)}, {rg(par,b)}"), deps=[prev, fm[vals[j]], fm[vals[j + 1]]])
                mx.append(op); prev = op
            last.append((prev, vals[15]))
        m1 = Op("mxa", (lambda par: f"v_max3_f32 v{vX[0]}, v{vX[0]}, v{Sb(par,3)+3}, v{Sb(par,3)+7}"), deps=[last[0][0], fm[(3, 3)], fm[(3, 7)]])
        m2 = Op("mxb", (lambda par: f"v_max_f32 v{vX[0]}, v{vX[0]}, v{vX[1]}"), deps=[m1, last[1][0]])
        cmp = Op("cmp", (lambda par: f"v_cmp_lt_f32 vcc, s{sThr}, v{vX[0]}"), deps=[m2])
        Fops = ops + mx + [m1, m2, cmp]
        Fprio = mx + [m1, m2, cmp] + ops
        self.va_at = [[] for _ in range(2 * NG)]
        t = 56
        pend = list(Fprio)
        while pend:
            free = 2 - used[t % NG]
            placed = True
            while free > 0 and placed:
                placed = False
                for op in pend:
                    if op.t0 <= t and all(d.t is not None and d.t < t for d in op.deps):
                        op.t = t; self.va_at[t].append(op); pend.remove(op); used[t % NG] += 1; free -= 1; placed = True
                        break
            t += 1
        self.t_cmp = cmp.t
        self.t_br = cmp.t + 1
        while self.t_br % 4 == 3 or ((self.t_br + 1) % NG) in self.dma_at or self.t_br in (o.bar_gap, o.bar_gap - 1): self.t_br += 1
        assert self.t_br < NG - 2
        ex, ad, cv = {}, {}, {}
        Eexp, Epl = [], []
        for qt in range(4):
            for k in range(8):
                ex[(qt, k)] = Op(f"exp{qt}{k}", (lambda par, qt=qt, k=k: f"v_exp_f32 v{Sb(par,qt)+k}, v{Sb(par,qt)+k}"), cost=2, t0=self.t_br)
                Eexp.append(ex[(qt, k)])
            for k in range(8):
                deps = [ex[(qt, k)]] + ([ad[(qt, k - 1)]] if k else [])
                ad[(qt, k)] = Op(f"add{qt}{k}", (lambda par, qt=qt, k=k: f"v_add_f32 v{vL[qt]}, v{vL[qt]}, v{Sb(par,qt)+k}"), deps=deps)
            for j in range(4):
                deps = [ex[(qt, 2 * j)], ex[(qt, 2 * j + 1)], ad[(qt, j)]] + ([cv[(qt, j >> 1)]] if j else [])
                cv[(qt, j)] = Op(f"cvt{qt}{j}", (lambda par, qt=qt, j=j: f"v_cvt_pk_bf16_f32 v{Sb(par,qt)+j}, v{Sb(par,qt)+2*j}, v{Sb(par,qt)+2*j+1}"), deps=deps)
            for k in range(8):
                Epl.append(ad[(qt, k)])
                if k & 1: Epl.append(cv[(qt, k >> 1)])
        t = self.t_br
        rdy = lambda op, t: op.t0 <= t and all(d.t is not None and d.t < t for d in op.deps)
        while Eexp or Epl:
            assert t < NG + 62, "softmax does not fit"
            free = 2 - used[t % NG]
            backlog = sum(1 for op in Epl if all(d.t is not None for d in op.deps if d.cost == 2))
            if free == 2 and Eexp and backlog < o.backlog:
                op = Eexp.pop(0); op.t = t; self.va_at[t].append(op); used[t % NG] += 2
            else:
                for op in list(Epl):
                    if free == 0: break
                    if rdy(op, t):
                        op.t = t; self.va_at[t].append(op); Epl.remove(op); used[t % NG] += 1; free -= 1
                if free == 2 and Eexp:
                    op = Eexp.pop(0); op.t = t; self.va_at[t].append(op); used[t % NG] += 2
            t += 1
        self.t_end = t
        self.used = used
        if o.verbose:
            print("cmp", self.t_cmp, "br", self.t_br, "end", self.t_end - NG, "used", "".join(map(str, used)), file=sys.stderr)

    def dma_desc(self, k, u, prev):
        ub = (u - 1) % R if prev else u
        if k < 4: return ("K", (ub + 1) % R, k)
        return ("V", ub % R, k - 4)

    def gap_fill(self, u, g, valu=True, start_only=False):
        o = self.o
        cur = u & 1; nxt = cur ^ 1
        sc, ds, vm, va = [], [], [], []
        if g % 4 == 3:
            f = (g + 1) // 4
            sc += self.wait_frag(u, f) if f < 32 else self.wait_frag((u + 1) % R, 0)
        if not o.no_bar:
            if g == o.bar_gap - 1: sc.append(I(f"s_waitcnt vmcnt({o.vm_wait}) lgkmcnt(0)", "w0"))
            if g == o.bar_gap: sc.append(I("s_barrier"))
        if not o.no_loop_dma:
            g1 = (g + 1) % NG
            if g1 in self.dma_at:
                k, prev = self.dma_at[g1]
                wh, slot, j = self.dma_desc(k, u, prev)
                sc.append(self.dma_m0(wh, slot, j))
            if g in self.dma_at:
                k, prev = self.dma_at[g]
                wh, slot, j = self.dma_desc(k, u, prev)
                vm.append(self.dma_ld(wh, j))
            g2 = (g - 2) % NG
            if g2 in self.dma_at and self.dma_at[g2][0] % 4 == 3:
                sc.append(self.dma_adv("K" if self.dma_at[g2][0] < 4 else "V"))
        for (f, p, nx) in self.ds_at[g]:
            ds += self.fread((u + 1) % R if nx else u, f, p)
        if valu and not o.no_sm:
            if g == self.t_br:
                sc.append(I(f"s_cbranch_vccnz L_rare{u}", "s"))
                sc.append(I(f"L_back{u}:", "l"))
            for op in self.va_at[g + NG]: va.append(I(op.fn(cur), "v"))
            for op in self.va_at[g]: va.append(I(op.fn(nxt), "v"))
        return sc, ds, vm, va

    def body(self, u):
        cur = u & 1; nxt = cur ^ 1
        out = []
        for g in range(NG):
            f = g >> 2; qt = g & 3
            out.append(self.qk_mfma(nxt, f, qt) if f < 16 else self.pv_mfma(cur, f - 16, qt))
            sc, ds, vm, va = self.gap_fill(u, g)
            if g == NG - 2:
                assert not any(i.k == "s" for i in sc)
                if u == 2: sc.append(I(f"s_cmp_eq_u32 s{sCnt}, 7", "s"))
                if u == 3: sc.append(I(f"s_add_u32 s{sCnt}, s{sCnt}, 1", "s"))
            if g == NG - 1:
                assert not any(i.k == "s" for i in sc)
            out += sc + ds + vm + va
        if u == 2: out.append(I("s_cbranch_scc1 L_tail", "s"))
        if u == 3: out.append(I("s_branch L_loop", "s"))
        return out

    def rowmax4(self, a, b, t, t2):
        a(f"v_max3_f32 v{t}, v{b}, v{b+1}, v{b+2}")
        a(f"v_max3_f32 v{t}, v{t}, v{b+3}, v{b+4}")
        a(f"v_max3_f32 v{t}, v{t}, v{b+5}, v{b+6}")
        a(f"v_max_f32 v{t}, v{t}, v{b+7}")
        self.xl(a, t, t2, "v_max_f32")

    def xl(self, a, t, t2, op):
        for sw in ("v_permlane16_swap_b32", "v_permlane32_swap_b32"):
            a(f"v_mov_b32 v{t2}, v{t}")
            a("s_nop 1")
            a(f"{sw} v{t}, v{t2}")
            a("s_nop 1")
            a(f"{op} v{t}, v{t}, v{t2}")

    def rare(self, u):
        cur = u & 1; nxt = cur ^ 1
        out = [I(f"L_rare{u}:", "l")]
        a = lambda t: out.append(I(t))
        t, t2, f = vT, vT + 1, vT + 2
        a("s_nop 15")
        for qt in range(4):
            b = Sb(nxt, qt)
            self.rowmax4(a, b, t, t2)
            a(f"v_ceil_f32 v{t}, v{t}")
            a(f"v_max_f32 v{t}, 0, v{t}")
            a(f"v_sub_f32 v{vM[qt]}, v{vM[qt]}, v{t}")
            for k in range(8): a(f"v_sub_f32 v{b+k}, v{b+k}, v{t}")
            a(f"v_min_f32 v{t2}, 0x43480000, v{t}")
            a(f"v_cvt_i32_f32 v{t2}, v{t2}")
            a(f"v_sub_u32 v{t2}, 0, v{t2}")
            a(f"v_ldexp_f32 v{f}, 1.0, v{t2}")
            a(f"v_mul_f32 v{vL[qt]}, v{vL[qt]}, v{f}")
            pb = Sb(cur, qt)
            for j in range(4):
                a(f"v_lshlrev_b32 v{vT+4}, 16, v{pb+j}")
                a(f"v_and_b32 v{vT+5}, 0xffff0000, v{pb+j}")
                a(f"v_mul_f32 v{vT+4}, v{vT+4}, v{f}")
                a(f"v_mul_f32 v{vT+5}, v{vT+5}, v{f}")
                a(f"v_cvt_pk_bf16_f32 v{pb+j}, v{vT+4}, v{vT+5}")
            for a0 in range(qt * 64, qt * 64 + 64, 8):
                for k in range(8): a(f"v_accvgpr_read_b32 v{vT+4+k}, a{a0+k}")
                for k in range(8): a(f"v_mul_f32 v{vT+4+k}, v{vT+4+k}, v{f}")
                for k in range(8): a(f"v_accvgpr_write_b32 a{a0+k}, v{vT+4+k}")
        a("s_nop 1")
        a(f"s_branch L_back{u}")
        return out

    def stamp(self, idx):
        if not self.o.stamps: return []
        return [I(f"s_memtime s[{40+2*idx}:{41+2*idx}]", "sm"), I(f"s_memrealtime s[{68+2*idx}:{69+2*idx}]", "sm")]

    def prologue(self):
        o = self.o
        P = []
        a = lambda t, k="o", **kw: P.append(I(t, k, **kw))
        a("s_cmp_ge_u32 s2, 256")
        a("s_cbranch_scc1 L_end")
        a("s_load_dwordx8 s[28:35], s[0:1], 0", "sm")
        if o.stamps:
            a("s_load_dwordx2 s[36:37], s[0:1], 40", "sm")
            a("s_memrealtime s[38:39]", "sm")
        P += self.stamp(0)
        lane, w, t0, t1, t2 = vT, vT + 1, vT + 2, vT + 3, vT + 4
        a(f"v_and_b32 v{lane}, 63, v0")
        a(f"v_lshrrev_b32 v{w}, 6, v0")
        a("s_lshr_b32 s3, s2, 4")
        a("s_lshl_b32 s3, s3, 3")
        a("s_and_b32 s27, s2, 7")
        a("s_add_u32 s3, s3, s27")
        a("s_lshr_b32 s27, s2, 3")
        a("s_and_b32 s27, s27, 1")
        a(f"v_readfirstlane_b32 s{sWb}, v{w}")
        a(f"v_lshrrev_b32 v{t1}, 5, v{lane}")
        a(f"v_lshlrev_b32 v{t1}, 5, v{t1}")
        a(f"v_lshlrev_b32 v{t0}, 4, v0")
        a(f"v_and_b32 v{t2}, 0x3ff, v{t0}")
        a(f"v_xor_b32 v{t2}, v{t2}, v{t1}")
        a(f"v_lshl_add_u32 v{vD}, v{w}, 12, v{t2}")
        a(f"v_and_b32 v{t0}, 15, v{lane}")
        a(f"v_lshl_add_u32 v{t0}, v{w}, 6, v{t0}")
        a(f"s_lshl_b32 s27, s27, 8")
        a(f"v_add_u32 v{t0}, s27, v{t0}")
        a(f"v_lshlrev_b32 v{t0}, 9, v{t0}")
        a(f"v_lshrrev_b32 v{t1}, 4, v{lane}")
        a(f"v_lshl_add_u32 v{vQ}, v{t1}, 4, v{t0}")
        a(f"s_mul_i32 s{sWb}, s{sWb}, {4*PIECE}")
        a(f"s_mov_b32 s{sKoff}, 0")
        a(f"s_mov_b32 s{sVoff}, 0")
        for qt in range(1, 4): a(f"s_mov_b32 s{sQT[qt]}, {qt*8192}")
        a("s_lshl_b32 s25, s3, 19")
        a("s_mul_i32 s27, s3, 253952")
        a("s_waitcnt lgkmcnt(0)", "w0")
        for (s, p) in ((sK, 30), (sV, 32)):
            a(f"s_add_u32 s{s}, s{p}, s25")
            a(f"s_addc_u32 s{s+1}, s{p+1}, 0")
            a(f"s_mov_b32 s{s+2}, 524288")
            a(f"s_mov_b32 s{s+3}, 0x20000")
        for (s, p) in ((sQ, 28), (sO, 34)):
            a(f"s_add_u32 s{s}, s{p}, s27")
            a(f"s_addc_u32 s{s+1}, s{p+1}, 0")
            a(f"s_mov_b32 s{s+2}, 253952")
            a(f"s_mov_b32 s{s+3}, 0x20000")
        P += self.dma_tile("K", 0)
        for d2 in range(4):
            for qt in range(4):
                for d8 in (2 * d2, 2 * d2 + 1):
                    so = "0" if qt == 0 else f"s{sQT[qt]}"
                    a(f"buffer_load_dwordx4 {Qr(qt,d8)}, v{vQ}, {srd(sQ)}, {so} offen offset:{64*d8}{pol(o.qpol)}", "vm")
        a(f"v_bfe_u32 v{t0}, v{lane}, 1, 3")
        a(f"v_mul_u32_u24 v{t0}, {PIECE}, v{t0}")
        a(f"v_and_b32 v{t2}, 1, v{lane}")
        a(f"v_lshl_add_u32 v{t0}, v{t2}, 9, v{t0}")
        a(f"v_lshlrev_b32 v{t2}, 5, v{t2}")
        a(f"v_lshlrev_b32 v{t1}, 4, v{t1}")
        a(f"v_xor_b32 v{t1}, v{t1}, v{t2}")
        a(f"v_add_u32 v{vK}, v{t0}, v{t1}")
        a(f"v_lshrrev_b32 v{t0}, 3, v{lane}")
        a(f"v_mul_u32_u24 v{t0}, {PIECE}, v{t0}")
        a(f"v_bfe_u32 v{t2}, v{lane}, 2, 1")
        a(f"v_lshl_add_u32 v{t0}, v{t2}, 9, v{t0}")
        a(f"v_and_b32 v{t1}, 3, v{lane}")
        a(f"v_lshl_add_u32 v{t0}, v{t1}, 3, v{t0}")
        a(f"v_add_u32 v{t0}, {VBASE}, v{t0}")
        a(f"v_lshl_add_u32 v{vVe}, v{t2}, 5, v{t0}")
        a(f"v_xor_b32 v{t2}, 1, v{t2}")
        a(f"v_lshl_add_u32 v{vVo}, v{t2}, 5, v{t0}")
        a(f"s_mov_b32 s{sC}, {hex(f32bits(1.4426950408889634/16.0))}")
        a(f"s_mov_b32 s{sThr}, {hex(f32bits(o.thr))}")
        a(f"s_mov_b32 s{sCnt}, 0")
        for l in vL: a(f"v_mov_b32 v{l}, 0")
        later = [("K", 1), ("V", 0), ("K", 2), ("V", 1), ("K", 3), ("V", 2)]
        u = R - 1
        LA = 6
        if o.early_kv:
            for (wh, sl) in later: P += self.dma_tile(wh, sl)
            after_q = 24
            for r in range(256): a(f"v_accvgpr_write_b32 a{r}, 0")
            a(f"s_waitcnt vmcnt({32+after_q})")
            a("s_barrier")
            P += self.stamp(1)
            for f in range(LA): P += self.fread(u, f)
            for f in range(16):
                if f % 4 == 0:
                    a(f"s_waitcnt vmcnt({32 - 8*(f//4+1) + after_q})")
                    if f == 0: P += self.stamp(2)
                P += self.wait_frag(u, f)
                for qt in range(4): P.append(self.qk_mfma(0, f, qt))
                if f + LA < 16: P += self.fread(u, f + LA)
        else:
            for (wh, sl) in later[:2]: P += self.dma_tile(wh, sl)
            for r in range(256): a(f"v_accvgpr_write_b32 a{r}, 0")
            a(f"s_waitcnt vmcnt({32+8})")
            a("s_barrier")
            P += self.stamp(1)
            for f in range(LA): P += self.fread(u, f)
            extra = 8
            for f in range(16):
                if f % 4 == 0:
                    a(f"s_waitcnt vmcnt({32 - 8*(f//4+1) + extra})")
                    if f == 0: P += self.stamp(2)
                P += self.wait_frag(u, f)
                for qt in range(4): P.append(self.qk_mfma(0, f, qt))
                if f + LA < 16: P += self.fread(u, f + LA)
                if f % 4 == 3:
                    wh, sl = later[2 + f // 4]
                    P += self.dma_tile(wh, sl); extra += 4
        P += self.stamp(3)
        for g in range(o.bar_gap - 1, NG):
            sc, ds, vm, va = self.gap_fill(u, g, valu=False)
            sc = [i for i in sc if not (i.k == "wl" and i.need[0] == u)]
            if g == NG - 1: last_wait = sc; sc = []
            P += sc + ds
            if vm: P.append(I("s_nop 0"))
            P += vm
        a("s_nop 3")
        for qt in range(4):
            b = Sb(0, qt); t, t2 = vT + 2 * qt, vT + 2 * qt + 1
            self.rowmax4(a, b, t, t2)
            a(f"v_mul_f32 v{vM[qt]}, s{sC}, v{t}")
            a(f"v_sub_f32 v{vM[qt]}, 0, v{vM[qt]}")
            for k in range(8): a(f"v_fma_f32 v{b+k}, v{b+k}, s{sC}, v{vM[qt]}")
        if not o.no_sm:
            prev_t = False
            for t in range(self.t_br, NG):
                for op in self.va_at[t]:
                    if prev_t and op.cost == 1: a("s_nop 0")
                    a(op.fn(0), "v"); prev_t = op.cost == 2
        P += last_wait
        P += self.stamp(4)
        return P

    def tail(self):
        o = self.o
        u = 3; cur = u & 1
        T = []
        a = lambda t, k="o", **kw: T.append(I(t, k, **kw))
        LA = 6
        for f in range(16, 16 + LA): T += self.fread(u, f)
        if not o.no_sm:
            prev_t = False
            for t in range(NG, 2 * NG):
                for op in self.va_at[t]:
                    if prev_t and op.cost == 1: a("s_nop 0")
                    a(op.fn(cur), "v"); prev_t = op.cost == 2
        a("s_nop 1")
        fill = []
        fa = lambda t: fill.append(I(t))
        inv = [vT + 2 * qt for qt in range(4)]
        for qt in range(4):
            t, t2 = inv[qt], inv[qt] + 1
            fa(f"v_mov_b32 v{t}, v{vL[qt]}")
            self.xl(fa, t, t2, "v_add_f32")
            fa(f"v_rcp_f32 v{t}, v{t}")
        fa(f"v_bfe_u32 v{vT+8}, v{vQ}, 4, 1")
        fa(f"v_bfe_u32 v{vT+9}, v{vQ}, 5, 1")
        fa(f"v_and_b32 v{vQ}, 0xffffffcf, v{vQ}")
        fa(f"v_lshl_or_b32 v{vQ}, v{vT+8}, 5, v{vQ}")
        fa(f"v_lshl_or_b32 v{vQ}, v{vT+9}, 4, v{vQ}")
        for dt in range(16):
            f = 16 + dt
            T += self.wait_frag(u, f)
            for qt in range(4):
                T.append(self.pv_mfma(cur, dt, qt))
                if qt < 2 and f + LA < 32: T += self.fread(u, f + LA, qt)
                if fill: T.append(fill.pop(0))
        T += fill
        T += self.stamp(6)
        stg = 0
        for Tt in range(8):
            for qt in range(4):
                so = "0" if qt == 0 else f"s{sQT[qt]}"
                a0 = Ob(qt, 2 * Tt)
                b = stg * 8; stg = (stg + 1) % 16
                for k in range(8): a(f"v_accvgpr_read_b32 v{b+k}, a{a0+k}")
                for k in range(0, 8, 2):
                    a(f"v_pk_mul_f32 v[{b+k}:{b+k+1}], v[{b+k}:{b+k+1}], v[{inv[qt]}:{inv[qt]+1}] op_sel_hi:[1,0]")
                for k in range(4): a(f"v_cvt_pk_bf16_f32 v{b+k}, v{b+2*k}, v{b+2*k+1}")
                a("s_nop 0")
                a(f"v_permlane16_swap_b32 v{b}, v{b+2}")
                a(f"v_permlane16_swap_b32 v{b+1}, v{b+3}")
                a(f"buffer_store_dwordx4 v[{b}:{b+3}], v{vQ}, {srd(sO)}, {so} offen offset:{64*Tt}{pol(o.opol)}", "vm")
        if o.stamps:
            T += self.stamp(7)
            a("s_waitcnt vmcnt(0)")
            T += self.stamp(8)
            a("s_memrealtime s[58:59]", "sm")
            a("s_getreg_b32 s60, hwreg(HW_REG_XCC_ID)")
            a("s_getreg_b32 s61, hwreg(HW_REG_HW_ID)")
            a("s_waitcnt lgkmcnt(0)")
            a(f"s_mov_b32 s64, s36"); a("s_mov_b32 s65, s37"); a("s_mov_b32 s66, 0x1000000"); a("s_mov_b32 s67, 0x20000")
            a(f"s_lshl_b32 s62, s2, 10")
            a(f"s_mul_hi_u32 s63, s{sWb}, {(2**32)//(4*PIECE)+1}")
            a(f"s_lshl_b32 s63, s63, 8")
            a(f"s_add_u32 s62, s62, s63")
            a(f"v_mov_b32 v1, 0")
            for k in range(24):
                a(f"v_mov_b32 v0, s{38+k}")
                a(f"buffer_store_dword v0, v1, s[64:67], s62 offen offset:{4*k}")
            for k in range(18):
                a(f"v_mov_b32 v0, s{68+k}")
                a(f"buffer_store_dword v0, v1, s[64:67], s62 offen offset:{128+4*k}")
        return T

    def build(self):
        o = self.o
        pro = self.prologue()
        bodies = [self.body(u) for u in range(4)]
        tail = self.tail()
        loop = [I("L_loop:", "l")] + sum(bodies, [])
        part = bodies[0] + bodies[1] + bodies[2]
        tl = [I("L_tail:", "l")] + self.stamp(5) + tail
        trace = pro + loop + loop + part + tl
        self.resolve_waits(trace)
        lines = [it.t for it in trace if it.t and not it.skip and it.k != "l"]
        errs = hz.check(lines)
        rares = [] if o.no_sm else [self.rare(u) for u in range(4)]
        for r in rares: errs += hz.check([it.t for it in r if it.k != "l"])
        for e in sorted(set(errs))[:20]: print(e, file=sys.stderr)
        assert not errs, "hazards"
        body = pro + [I(".p2align 6" if o.align else "", "l")] + loop + tl + [I("L_end:", "l"), I("s_endpgm")] + sum(rares, [])
        return body

    def resolve_waits(self, trace):
        ds = []
        for it in trace:
            if it.k == "ds": ds.append(it.tag)
            elif it.k == "wl":
                idx = max(j for j, t in enumerate(ds) if t == it.need)
                n = len(ds) - 1 - idx
                assert n <= 15, n
                it.n = n if it.n is None else min(it.n, n)
        needed = set()
        ds = []; done = 0
        for it in trace:
            if it.k == "ds": ds.append(it.tag)
            elif it.k == "w0": done = len(ds)
            elif it.k == "wl":
                idx = max(j for j, t in enumerate(ds) if t == it.need)
                if idx >= done: needed.add(id(it))
                done = max(done, len(ds) - it.n) if id(it) in needed else done
        for it in trace:
            if it.k == "wl":
                it.skip = id(it) not in needed
                it.t = f"s_waitcnt lgkmcnt({it.n})"

    def text(self):
        body = self.build()
        hdr = open("standalone__mha_softmax__near_ridge.s.ref").read().split("\n")
        top = []
        for ln in hdr:
            if ln.startswith("; @launch"): break
            top.append(ln)
        out = top + [f"; @launch grid=(256,1,1) block=(256,1,1) lds={LDS_BYTES}",
                     "; generated by my own generator script (flash-attention forward, 4 waves x 64 q rows, 32-key tiles)",
                     '.amdgcn_target "amdgcn-amd-amdhsa--gfx950"', ".text", f".globl {KNAME}", ".p2align 8",
                     f".type {KNAME},@function", f"{KNAME}:"]
        for it in body:
            if it.skip or not it.t: continue
            out.append(("" if it.k == "l" else "    ") + it.t)
        out += ['.section .rodata,"a"', ".p2align 6", f".amdhsa_kernel {KNAME}",
                "  .amdhsa_next_free_vgpr 512", "  .amdhsa_next_free_sgpr 96", "  .amdhsa_accum_offset 256",
                "  .amdhsa_group_segment_fixed_size 0", "  .amdhsa_kernarg_size 48", "  .amdhsa_user_sgpr_count 2",
                "  .amdhsa_user_sgpr_kernarg_segment_ptr 1", "  .amdhsa_system_sgpr_workgroup_id_x 1",
                ".end_amdhsa_kernel", ""]
        return "\n".join(out)

def parse(argv):
    p = argparse.ArgumentParser()
    p.add_argument("-o", default="standalone__mha_softmax__near_ridge.s")
    for f in ("no_lds", "no_sm", "no_bar", "no_loop_dma", "stamps", "verbose", "early_kv"):
        p.add_argument("--" + f, action="store_true")
    p.add_argument("--align", type=int, default=1)
    p.add_argument("--look", type=int, default=24)
    p.add_argument("--bar_gap", type=int, default=113)
    p.add_argument("--bar_quiet", type=int, default=1)
    p.add_argument("--kstep", type=int, default=2)
    p.add_argument("--vm_wait", type=int, default=16)
    p.add_argument("--dma0", type=int, default=2)
    p.add_argument("--dmastep", type=int, default=4)
    p.add_argument("--sdelay", type=int, default=5)
    p.add_argument("--backlog", type=int, default=5)
    p.add_argument("--thr", type=float, default=8.0)
    p.add_argument("--kvpol", default="nt")
    p.add_argument("--qpol", default="nt")
    p.add_argument("--opol", default="")
    return p.parse_args(argv)

if __name__ == "__main__":
    o = parse(sys.argv[1:])
    open(o.o, "w").write(Gen(o).text())
```

```python
import sys, struct, argparse
sys.path.insert(0, "dev")
import hz

KNAME = "standalone__mha_softmax__near_ridge_kernel"
MF = "v_mfma_f32_16x16x32_bf16"

def f32bits(x): return struct.unpack("<I", struct.pack("<f", x))[0]
def pol(x): return (" " + x.replace("+", " ")) if x else ""
def srd(s): return f"s[{s}:{s+3}]"

class I:
    __slots__ = ("t", "k", "tag", "need", "n", "skip")
    def __init__(self, t, k="o", tag=None, need=None):
        self.t = t; self.k = k; self.tag = tag; self.need = need; self.n = None; self.skip = False

def Qr(qt, d8): b = (qt * 8 + d8) * 4; return f"v[{b}:{b+3}]"
def Sb(par, qt): return 128 + par * 32 + qt * 8
def Sr(par, qt, kt): b = Sb(par, qt) + 4 * kt; return f"v[{b}:{b+3}]"
def Pr(par, qt): return Sr(par, qt, 0)
NF = 8
def Fb(f): return 192 + (f % NF) * 4
def Fr(f): b = Fb(f); return f"v[{b}:{b+3}]"
def Ob(qt, dt): return (qt * 16 + dt) * 4
def Or(qt, dt): b = Ob(qt, dt); return f"a[{b}:{b+3}]"
vK, vVe, vVo, vD, vQ = 224, 225, 226, 227, 228
vM = [229, 230, 231, 232]
vL = [233, 234, 235, 236]
vX = [237, 238]
vT = 240
sQ, sK, sV, sO = 4, 8, 12, 16
sC, sKoff, sVoff, sWb, sCnt, sThr = 20, 21, 22, 23, 24, 26
sQT = [None, 88, 89, 90]
PIECE = 1088
TILE = 16 * PIECE
R = 4
VBASE = R * TILE
LDS_BYTES = 2 * R * TILE
NG = 128

class Op:
    def __init__(self, name, fn, cost=1, deps=(), t0=0):
        self.name = name; self.fn = fn; self.cost = cost; self.deps = list(deps); self.t0 = t0; self.t = None

class Gen:
    def __init__(self, o):
        self.o = o
        self.plan()

    def fread(self, u, f, part=None):
        if self.o.no_lds: return []
        if f < 16:
            d8 = f >> 1; kt = f & 1
            off = ((u + 1) % R) * TILE + kt * 8 * PIECE + 64 * d8
            return [I(f"ds_read_b128 {Fr(f)}, v{vK} offset:{off}", "ds", tag=(u, f))]
        dt = f - 16
        out = []
        for sec in range(2):
            if part is not None and part != sec: continue
            off = (u % R) * TILE + sec * 8 * PIECE + 64 * (dt >> 1)
            b = Fb(f) + 2 * sec
            out.append(I(f"ds_read_b64_tr_b16 v[{b}:{b+1}], v{vVo if dt & 1 else vVe} offset:{off}", "ds", tag=(u, f)))
        return out

    def dma_m0(self, which, slot, j):
        base = slot * TILE + (VBASE if which == "V" else 0) + (PIECE - 1024) * j
        return I(f"s_add_u32 m0, s{sWb}, {base}", "s")
    def dma_ld(self, which, j):
        s = sK if which == "K" else sV
        so = sKoff if which == "K" else sVoff
        return I(f"buffer_load_dwordx4 v{vD}, {srd(s)}, s{so} offen offset:{j*1024}{pol(self.o.kvpol)} lds", "vm")
    def dma_adv(self, which):
        so = sKoff if which == "K" else sVoff
        return I(f"s_add_u32 s{so}, s{so}, 16384", "s")
    def dma_tile(self, which, slot):
        out = []
        for j in range(4):
            out += [self.dma_m0(which, slot, j), I("s_nop 0"), self.dma_ld(which, j)]
        out.append(self.dma_adv(which))
        return out

    def qk_mfma(self, par, f, qt):
        d8 = f >> 1; kt = f & 1
        c = "0" if d8 == 0 else Sr(par, qt, kt)
        return I(f"{MF} {Sr(par,qt,kt)}, {Fr(f)}, {Qr(qt,d8)}, {c}", "m")
    def pv_mfma(self, par, dt, qt):
        return I(f"{MF} {Or(qt,dt)}, {Fr(16+dt)}, {Pr(par,qt)}, {Or(qt,dt)}", "m")
    def wait_frag(self, u, f):
        if self.o.no_lds: return []
        return [I(None, "wl", need=(u, f))]

    def plan(self):
        o = self.o
        used = [0] * NG
        self.ds_at = [[] for _ in range(NG)]
        g = o.bar_gap + 1
        for f in range(32):
            want = 4 * f - o.look
            if f < 16 and want < 0:
                pos = max(want + NG, g)
                if pos < NG - 1:
                    self.ds_at[pos].append((f, None, True)); used[pos] += 1
                    g = pos + o.kstep
                    continue
                want = 0
            parts = [None] if f < 16 else [0, 1]
            pos = want
            for p in parts:
                while used[pos] > 0: pos += 1
                assert pos < o.bar_gap - 6 or f < 16
                self.ds_at[pos].append((f, p, False)); used[pos] += 1
        self.dma_at = {}
        pos = o.dma0
        for k in range(8):
            while used[pos % NG] > 0 or (pos % NG) in (NG - 1, NG - 2, 0): pos += 1
            self.dma_at[pos % NG] = (k, pos >= NG or pos <= o.bar_gap)
            used[pos % NG] = 2
            pos += o.dmastep
        used[NG - 1] += 1
        for gq in range(o.bar_gap - o.bar_quiet + 1, o.bar_gap + 1): used[gq] = 2
        ops = []
        fm = {}
        for kt in range(2):
            for qt in range(4):
                for r in range(4):
                    k = 4 * kt + r
                    op = Op(f"fma{qt}{k}", (lambda par, qt=qt, k=k: f"v_fma_f32 v{Sb(par,qt)+k}, v{Sb(par,qt)+k}, s{sC}, v{vM[qt]}"), t0=56 + 4 * kt + qt + o.sdelay)
                    fm[(qt, k)] = op; ops.append(op)
        mx = []
        last = []
        for kt in range(2):
            vals = [(qt, 4 * kt + r) for qt in range(4) for r in range(4)]
            x = vX[kt]
            rg = lambda par, v: f"v{Sb(par, v[0]) + v[1]}"
            op = Op(f"mx{kt}0", (lambda par, x=x, a=vals[0], b=vals[1], c=vals[2]: f"v_max3_f32 v{x}, {rg(par,a)}, {rg(par,b)}, {rg(par,c)}"), deps=[fm[v] for v in vals[:3]])
            mx.append(op); prev = op
            for j in range(3, 15, 2):
                op = Op(f"mx{kt}{j}", (lambda par, x=x, a=vals[j], b=vals[j + 1]: f"v_max3_f32 v{x}, v{x}, {rg(par,a)}, {rg(par,b)}"), deps=[prev, fm[vals[j]], fm[vals[j + 1]]])
                mx.append(op); prev = op
            last.append((prev, vals[15]))
        m1 = Op("mxa", (lambda par: f"v_max3_f32 v{vX[0]}, v{vX[0]}, v{Sb(par,3)+3}, v{Sb(par,3)+7}"), deps=[last[0][0], fm[(3, 3)], fm[(3, 7)]])
        m2 = Op("mxb", (lambda par: f"v_max_f32 v{vX[0]}, v{vX[0]}, v{vX[1]}"), deps=[m1, last[1][0]])
        cmp = Op("cmp", (lambda par: f"v_cmp_lt_f32 vcc, s{sThr}, v{vX[0]}"), deps=[m2])
        Fops = ops + mx + [m1, m2, cmp]
        Fprio = mx + [m1, m2, cmp] + ops
        self.va_at = [[] for _ in range(2 * NG)]
        t = 56
        pend = list(Fprio)
        while pend:
            free = 2 - used[t % NG]
            placed = True
            while free > 0 and placed:
                placed = False
                for op in pend:
                    if op.t0 <= t and all(d.t is not None and d.t < t for d in op.deps):
                        op.t = t; self.va_at[t].append(op); pend.remove(op); used[t % NG] += 1; free -= 1; placed = True
                        break
            t += 1
        self.t_cmp = cmp.t
        self.t_br = cmp.t + 1
        while self.t_br % 4 == 3 or ((self.t_br + 1) % NG) in self.dma_at or self.t_br in (o.bar_gap, o.bar_gap - 1): self.t_br += 1
        assert self.t_br < NG - 2
        ex, ad, cv = {}, {}, {}
        Eexp, Epl = [], []
        for qt in range(4):
            for k in range(8):
                ex[(qt, k)] = Op(f"exp{qt}{k}", (lambda par, qt=qt, k=k: f"v_exp_f32 v{Sb(par,qt)+k}, v{Sb(par,qt)+k}"), cost=2, t0=self.t_br)
                Eexp.append(ex[(qt, k)])
            for k in range(8):
                deps = [ex[(qt, k)]] + ([ad[(qt, k - 1)]] if k else [])
                ad[(qt, k)] = Op(f"add{qt}{k}", (lambda par, qt=qt, k=k: f"v_add_f32 v{vL[qt]}, v{vL[qt]}, v{Sb(par,qt)+k}"), deps=deps)
            for j in range(4):
                deps = [ex[(qt, 2 * j)], ex[(qt, 2 * j + 1)], ad[(qt, j)]] + ([cv[(qt, j >> 1)]] if j else [])
                cv[(qt, j)] = Op(f"cvt{qt}{j}", (lambda par, qt=qt, j=j: f"v_cvt_pk_bf16_f32 v{Sb(par,qt)+j}, v{Sb(par,qt)+2*j}, v{Sb(par,qt)+2*j+1}"), deps=deps)
            for k in range(8):
                Epl.append(ad[(qt, k)])
                if k & 1: Epl.append(cv[(qt, k >> 1)])
        t = self.t_br
        rdy = lambda op, t: op.t0 <= t and all(d.t is not None and d.t < t for d in op.deps)
        while Eexp or Epl:
            assert t < NG + 62, "softmax does not fit"
            free = 2 - used[t % NG]
            backlog = sum(1 for op in Epl if all(d.t is not None for d in op.deps if d.cost == 2))
            if free == 2 and Eexp and backlog < o.backlog:
                op = Eexp.pop(0); op.t = t; self.va_at[t].append(op); used[t % NG] += 2
            else:
                for op in list(Epl):
                    if free == 0: break
                    if rdy(op, t):
                        op.t = t; self.va_at[t].append(op); Epl.remove(op); used[t % NG] += 1; free -= 1
                if free == 2 and Eexp:
                    op = Eexp.pop(0); op.t = t; self.va_at[t].append(op); used[t % NG] += 2
            t += 1
        self.t_end = t
        self.used = used
        if o.verbose:
            print("cmp", self.t_cmp, "br", self.t_br, "end", self.t_end - NG, "used", "".join(map(str, used)), file=sys.stderr)

    def dma_desc(self, k, u, prev):
        ub = (u - 1) % R if prev else u
        if k < 4: return ("K", (ub + 1) % R, k)
        return ("V", ub % R, k - 4)

    def gap_fill(self, u, g, valu=True, start_only=False):
        o = self.o
        cur = u & 1; nxt = cur ^ 1
        sc, ds, vm, va = [], [], [], []
        if g % 4 == 3:
            f = (g + 1) // 4
            sc += self.wait_frag(u, f) if f < 32 else self.wait_frag((u + 1) % R, 0)
        if not o.no_bar:
            if g == o.bar_gap - 1: sc.append(I(f"s_waitcnt vmcnt({o.vm_wait}) lgkmcnt(0)", "w0"))
            if g == o.bar_gap: sc.append(I("s_barrier"))
        if not o.no_loop_dma:
            g1 = (g + 1) % NG
            if g1 in self.dma_at:
                k, prev = self.dma_at[g1]
                wh, slot, j = self.dma_desc(k, u, prev)
                sc.append(self.dma_m0(wh, slot, j))
            if g in self.dma_at:
                k, prev = self.dma_at[g]
                wh, slot, j = self.dma_desc(k, u, prev)
                vm.append(self.dma_ld(wh, j))
            g2 = (g - 2) % NG
            if g2 in self.dma_at and self.dma_at[g2][0] % 4 == 3:
                sc.append(self.dma_adv("K" if self.dma_at[g2][0] < 4 else "V"))
        for (f, p, nx) in self.ds_at[g]:
            ds += self.fread((u + 1) % R if nx else u, f, p)
        if valu and not o.no_sm:
            if g == self.t_br:
                sc.append(I(f"s_cbranch_vccnz L_rare{u}", "s"))
                sc.append(I(f"L_back{u}:", "l"))
            for op in self.va_at[g + NG]: va.append(I(op.fn(cur), "v"))
            for op in self.va_at[g]: va.append(I(op.fn(nxt), "v"))
        return sc, ds, vm, va

    def body(self, u):
        cur = u & 1; nxt = cur ^ 1
        out = []
        for g in range(NG):
            f = g >> 2; qt = g & 3
            out.append(self.qk_mfma(nxt, f, qt) if f < 16 else self.pv_mfma(cur, f - 16, qt))
            sc, ds, vm, va = self.gap_fill(u, g)
            if g == NG - 2:
                assert not any(i.k == "s" for i in sc)
                if u == 2: sc.append(I(f"s_cmp_eq_u32 s{sCnt}, 7", "s"))
                if u == 3: sc.append(I(f"s_add_u32 s{sCnt}, s{sCnt}, 1", "s"))
            if g == NG - 1:
                assert not any(i.k == "s" for i in sc)
            out += sc + ds + vm + va
        if u == 2: out.append(I("s_cbranch_scc1 L_tail", "s"))
        if u == 3: out.append(I("s_branch L_loop", "s"))
        return out

    def rowmax4(self, a, b, t, t2):
        a(f"v_max3_f32 v{t}, v{b}, v{b+1}, v{b+2}")
        a(f"v_max3_f32 v{t}, v{t}, v{b+3}, v{b+4}")
        a(f"v_max3_f32 v{t}, v{t}, v{b+5}, v{b+6}")
        a(f"v_max_f32 v{t}, v{t}, v{b+7}")
        self.xl(a, t, t2, "v_max_f32")

    def xl(self, a, t, t2, op):
        for sw in ("v_permlane16_swap_b32", "v_permlane32_swap_b32"):
            a(f"v_mov_b32 v{t2}, v{t}")
            a("s_nop 1")
            a(f"{sw} v{t}, v{t2}")
            a("s_nop 1")
            a(f"{op} v{t}, v{t}, v{t2}")

    def rare(self, u):
        cur = u & 1; nxt = cur ^ 1
        out = [I(f"L_rare{u}:", "l")]
        a = lambda t: out.append(I(t))
        t, t2, f = vT, vT + 1, vT + 2
        a("s_nop 15")
        for qt in range(4):
            b = Sb(nxt, qt)
            self.rowmax4(a, b, t, t2)
            a(f"v_ceil_f32 v{t}, v{t}")
            a(f"v_max_f32 v{t}, 0, v{t}")
            a(f"v_sub_f32 v{vM[qt]}, v{vM[qt]}, v{t}")
            for k in range(8): a(f"v_sub_f32 v{b+k}, v{b+k}, v{t}")
            a(f"v_min_f32 v{t2}, 0x43480000, v{t}")
            a(f"v_cvt_i32_f32 v{t2}, v{t2}")
            a(f"v_sub_u32 v{t2}, 0, v{t2}")
            a(f"v_ldexp_f32 v{f}, 1.0, v{t2}")
            a(f"v_mul_f32 v{vL[qt]}, v{vL[qt]}, v{f}")
            pb = Sb(cur, qt)
            for j in range(4):
                a(f"v_lshlrev_b32 v{vT+4}, 16, v{pb+j}")
                a(f"v_and_b32 v{vT+5}, 0xffff0000, v{pb+j}")
                a(f"v_mul_f32 v{vT+4}, v{vT+4}, v{f}")
                a(f"v_mul_f32 v{vT+5}, v{vT+5}, v{f}")
                a(f"v_cvt_pk_bf16_f32 v{pb+j}, v{vT+4}, v{vT+5}")
            for a0 in range(qt * 64, qt * 64 + 64, 8):
                for k in range(8): a(f"v_accvgpr_read_b32 v{vT+4+k}, a{a0+k}")
                for k in range(8): a(f"v_mul_f32 v{vT+4+k}, v{vT+4+k}, v{f}")
                for k in range(8): a(f"v_accvgpr_write_b32 a{a0+k}, v{vT+4+k}")
        a("s_nop 1")
        a(f"s_branch L_back{u}")
        return out

    def stamp(self, idx):
        if not self.o.stamps: return []
        return [I(f"s_memtime s[{40+2*idx}:{41+2*idx}]", "sm"), I(f"s_memrealtime s[{68+2*idx}:{69+2*idx}]", "sm")]

    def prologue(self):
        o = self.o
        P = []
        a = lambda t, k="o", **kw: P.append(I(t, k, **kw))
        a("s_cmp_ge_u32 s2, 256")
        a("s_cbranch_scc1 L_end")
        a("s_load_dwordx8 s[28:35], s[0:1], 0", "sm")
        if o.stamps:
            a(f"s_load_dwordx2 s[36:37], s[0:1], {32 if o.dbg else 40}", "sm")
            a("s_memrealtime s[38:39]", "sm")
        P += self.stamp(0)
        lane, w, t0, t1, t2 = vT, vT + 1, vT + 2, vT + 3, vT + 4
        a(f"v_and_b32 v{lane}, 63, v0")
        a(f"v_lshrrev_b32 v{w}, 6, v0")
        a("s_lshr_b32 s3, s2, 4")
        a("s_lshl_b32 s3, s3, 3")
        a("s_and_b32 s27, s2, 7")
        a("s_add_u32 s3, s3, s27")
        a("s_lshr_b32 s27, s2, 3")
        a("s_and_b32 s27, s27, 1")
        a(f"v_readfirstlane_b32 s{sWb}, v{w}")
        a(f"v_lshrrev_b32 v{t1}, 5, v{lane}")
        a(f"v_lshlrev_b32 v{t1}, 5, v{t1}")
        a(f"v_lshlrev_b32 v{t0}, 4, v0")
        a(f"v_and_b32 v{t2}, 0x3ff, v{t0}")
        a(f"v_xor_b32 v{t2}, v{t2}, v{t1}")
        a(f"v_lshl_add_u32 v{vD}, v{w}, 12, v{t2}")
        a(f"v_and_b32 v{t0}, 15, v{lane}")
        a(f"v_lshl_add_u32 v{t0}, v{w}, 6, v{t0}")
        a(f"s_lshl_b32 s27, s27, 8")
        a(f"v_add_u32 v{t0}, s27, v{t0}")
        a(f"v_lshlrev_b32 v{t0}, 9, v{t0}")
        a(f"v_lshrrev_b32 v{t1}, 4, v{lane}")
        a(f"v_lshl_add_u32 v{vQ}, v{t1}, 4, v{t0}")
        a(f"s_mul_i32 s{sWb}, s{sWb}, {4*PIECE}")
        a(f"s_mov_b32 s{sKoff}, 0")
        a(f"s_mov_b32 s{sVoff}, 0")
        for qt in range(1, 4): a(f"s_mov_b32 s{sQT[qt]}, {qt*8192}")
        a("s_lshl_b32 s25, s3, 19")
        a("s_mul_i32 s27, s3, 253952")
        a("s_waitcnt lgkmcnt(0)", "w0")
        for (s, p) in ((sK, 30), (sV, 32)):
            a(f"s_add_u32 s{s}, s{p}, s25")
            a(f"s_addc_u32 s{s+1}, s{p+1}, 0")
            a(f"s_mov_b32 s{s+2}, 524288")
            a(f"s_mov_b32 s{s+3}, 0x20000")
        for (s, p) in ((sQ, 28), (sO, 34)):
            a(f"s_add_u32 s{s}, s{p}, s27")
            a(f"s_addc_u32 s{s+1}, s{p+1}, 0")
            a(f"s_mov_b32 s{s+2}, 253952")
            a(f"s_mov_b32 s{s+3}, 0x20000")
        P += self.dma_tile("K", 0)
        for d2 in range(4):
            for qt in range(4):
                for d8 in (2 * d2, 2 * d2 + 1):
                    so = "0" if qt == 0 else f"s{sQT[qt]}"
                    a(f"buffer_load_dwordx4 {Qr(qt,d8)}, v{vQ}, {srd(sQ)}, {so} offen offset:{64*d8}{pol(o.qpol)}", "vm")
        a(f"v_bfe_u32 v{t0}, v{lane}, 1, 3")
        a(f"v_mul_u32_u24 v{t0}, {PIECE}, v{t0}")
        a(f"v_and_b32 v{t2}, 1, v{lane}")
        a(f"v_lshl_add_u32 v{t0}, v{t2}, 9, v{t0}")
        a(f"v_lshlrev_b32 v{t2}, 5, v{t2}")
        a(f"v_lshlrev_b32 v{t1}, 4, v{t1}")
        a(f"v_xor_b32 v{t1}, v{t1}, v{t2}")
        a(f"v_add_u32 v{vK}, v{t0}, v{t1}")
        a(f"v_lshrrev_b32 v{t0}, 3, v{lane}")
        a(f"v_mul_u32_u24 v{t0}, {PIECE}, v{t0}")
        a(f"v_bfe_u32 v{t2}, v{lane}, 2, 1")
        a(f"v_lshl_add_u32 v{t0}, v{t2}, 9, v{t0}")
        a(f"v_and_b32 v{t1}, 3, v{lane}")
        a(f"v_lshl_add_u32 v{t0}, v{t1}, 3, v{t0}")
        a(f"v_add_u32 v{t0}, {VBASE}, v{t0}")
        a(f"v_lshl_add_u32 v{vVe}, v{t2}, 5, v{t0}")
        a(f"v_xor_b32 v{t2}, 1, v{t2}")
        a(f"v_lshl_add_u32 v{vVo}, v{t2}, 5, v{t0}")
        a(f"s_mov_b32 s{sC}, {hex(f32bits(1.4426950408889634/16.0))}")
        a(f"s_mov_b32 s{sThr}, {hex(f32bits(o.thr))}")
        a(f"s_mov_b32 s{sCnt}, 0")
        for l in vL: a(f"v_mov_b32 v{l}, 0")
        later = [("K", 1), ("V", 0), ("K", 2), ("V", 1), ("K", 3), ("V", 2)]
        u = R - 1
        LA = 6
        if o.early_kv:
            for (wh, sl) in later: P += self.dma_tile(wh, sl)
            after_q = 24
            for r in range(256): a(f"v_accvgpr_write_b32 a{r}, 0")
            a(f"s_waitcnt vmcnt({32+after_q})")
            a("s_barrier")
            P += self.stamp(1)
            for f in range(LA): P += self.fread(u, f)
            for f in range(16):
                if f % 4 == 0:
                    a(f"s_waitcnt vmcnt({32 - 8*(f//4+1) + after_q})")
                    if f == 0: P += self.stamp(2)
                P += self.wait_frag(u, f)
                for qt in range(4): P.append(self.qk_mfma(0, f, qt))
                if f + LA < 16: P += self.fread(u, f + LA)
        else:
            for (wh, sl) in later[:2]: P += self.dma_tile(wh, sl)
            for r in range(256): a(f"v_accvgpr_write_b32 a{r}, 0")
            a(f"s_waitcnt vmcnt({32+8})")
            a("s_barrier")
            P += self.stamp(1)
            for f in range(LA): P += self.fread(u, f)
            extra = 8
            for f in range(16):
                if f % 4 == 0:
                    a(f"s_waitcnt vmcnt({32 - 8*(f//4+1) + extra})")
                    if f == 0: P += self.stamp(2)
                P += self.wait_frag(u, f)
                for qt in range(4): P.append(self.qk_mfma(0, f, qt))
                if f + LA < 16: P += self.fread(u, f + LA)
                if f % 4 == 3:
                    wh, sl = later[2 + f // 4]
                    P += self.dma_tile(wh, sl); extra += 4
        P += self.stamp(3)
        for g in range(o.bar_gap - 1, NG):
            sc, ds, vm, va = self.gap_fill(u, g, valu=False)
            sc = [i for i in sc if not (i.k == "wl" and i.need[0] == u)]
            if g == NG - 1: last_wait = sc; sc = []
            P += sc + ds
            if vm: P.append(I("s_nop 0"))
            P += vm
        a("s_nop 3")
        for qt in range(4):
            b = Sb(0, qt); t, t2 = vT + 2 * qt, vT + 2 * qt + 1
            self.rowmax4(a, b, t, t2)
            a(f"v_mul_f32 v{vM[qt]}, s{sC}, v{t}")
            a(f"v_sub_f32 v{vM[qt]}, 0, v{vM[qt]}")
            for k in range(8): a(f"v_fma_f32 v{b+k}, v{b+k}, s{sC}, v{vM[qt]}")
        if not o.no_sm:
            prev_t = False
            for t in range(self.t_br, NG):
                for op in self.va_at[t]:
                    if prev_t and op.cost == 1: a("s_nop 0")
                    a(op.fn(0), "v"); prev_t = op.cost == 2
        P += last_wait
        P += self.stamp(4)
        return P

    def tail(self):
        o = self.o
        u = 3; cur = u & 1
        T = []
        a = lambda t, k="o", **kw: T.append(I(t, k, **kw))
        LA = 6
        for f in range(16, 16 + LA): T += self.fread(u, f)
        if not o.no_sm:
            prev_t = False
            for t in range(NG, 2 * NG):
                for op in self.va_at[t]:
                    if prev_t and op.cost == 1: a("s_nop 0")
                    a(op.fn(cur), "v"); prev_t = op.cost == 2
        a("s_nop 1")
        fill = []
        fa = lambda t: fill.append(I(t))
        inv = [vT + 2 * qt for qt in range(4)]
        for qt in range(4):
            t, t2 = inv[qt], inv[qt] + 1
            fa(f"v_mov_b32 v{t}, v{vL[qt]}")
            self.xl(fa, t, t2, "v_add_f32")
            fa(f"v_rcp_f32 v{t}, v{t}")
        fa(f"v_bfe_u32 v{vT+8}, v{vQ}, 4, 1")
        fa(f"v_bfe_u32 v{vT+9}, v{vQ}, 5, 1")
        fa(f"v_and_b32 v{vQ}, 0xffffffcf, v{vQ}")
        fa(f"v_lshl_or_b32 v{vQ}, v{vT+8}, 5, v{vQ}")
        fa(f"v_lshl_or_b32 v{vQ}, v{vT+9}, 4, v{vQ}")
        for dt in range(16):
            f = 16 + dt
            T += self.wait_frag(u, f)
            for qt in range(4):
                T.append(self.pv_mfma(cur, dt, qt))
                if qt < 2 and f + LA < 32: T += self.fread(u, f + LA, qt)
                if fill: T.append(fill.pop(0))
        T += fill
        T += self.stamp(6)
        stg = 0
        for Tt in range(8):
            for qt in range(4):
                so = "0" if qt == 0 else f"s{sQT[qt]}"
                a0 = Ob(qt, 2 * Tt)
                b = stg * 8; stg = (stg + 1) % 16
                for k in range(8): a(f"v_accvgpr_read_b32 v{b+k}, a{a0+k}")
                for k in range(0, 8, 2):
                    a(f"v_pk_mul_f32 v[{b+k}:{b+k+1}], v[{b+k}:{b+k+1}], v[{inv[qt]}:{inv[qt]+1}] op_sel_hi:[1,0]")
                for k in range(4): a(f"v_cvt_pk_bf16_f32 v{b+k}, v{b+2*k}, v{b+2*k+1}")
                a("s_nop 0")
                a(f"v_permlane16_swap_b32 v{b}, v{b+2}")
                a(f"v_permlane16_swap_b32 v{b+1}, v{b+3}")
                a(f"buffer_store_dwordx4 v[{b}:{b+3}], v{vQ}, {srd(sO)}, {so} offen offset:{64*Tt}{pol(o.opol)}", "vm")
        if o.stamps:
            T += self.stamp(7)
            a("s_waitcnt vmcnt(0)")
            T += self.stamp(8)
            a("s_memrealtime s[58:59]", "sm")
            a("s_getreg_b32 s60, hwreg(HW_REG_XCC_ID)")
            a("s_getreg_b32 s61, hwreg(HW_REG_HW_ID)")
            a("s_waitcnt lgkmcnt(0)")
            a(f"s_mov_b32 s64, s36"); a("s_mov_b32 s65, s37"); a(f"s_mov_b32 s66, {256 if o.dbg else 0x1000000}"); a("s_mov_b32 s67, 0x20000")
            if o.dbg:
                a("s_cmp_lg_u32 s2, 37"); a("s_cbranch_scc1 L_end")
                a(f"s_cmp_lg_u32 s{sWb}, 0"); a("s_cbranch_scc1 L_end")
                a("v_mov_b32 v1, 0")
                for k in range(8):
                    a(f"s_sub_u32 s62, s{42+2*k}, s{40+2*k}"); a("v_mov_b32 v0, s62")
                    a(f"buffer_store_dword v0, v1, s[64:67], 0 offen offset:{4*k}")
                    a(f"s_sub_u32 s62, s{70+2*k}, s{68+2*k}"); a("v_mov_b32 v0, s62")
                    a(f"buffer_store_dword v0, v1, s[64:67], 0 offen offset:{32+4*k}")
                return T
            a(f"s_lshl_b32 s62, s2, 10")
            a(f"s_mul_hi_u32 s63, s{sWb}, {(2**32)//(4*PIECE)+1}")
            a(f"s_lshl_b32 s63, s63, 8")
            a(f"s_add_u32 s62, s62, s63")
            a(f"v_mov_b32 v1, 0")
            for k in range(24):
                a(f"v_mov_b32 v0, s{38+k}")
                a(f"buffer_store_dword v0, v1, s[64:67], s62 offen offset:{4*k}")
            for k in range(18):
                a(f"v_mov_b32 v0, s{68+k}")
                a(f"buffer_store_dword v0, v1, s[64:67], s62 offen offset:{128+4*k}")
        return T

    def build(self):
        o = self.o
        pro = self.prologue()
        bodies = [self.body(u) for u in range(4)]
        tail = self.tail()
        loop = [I("L_loop:", "l")] + sum(bodies, [])
        part = bodies[0] + bodies[1] + bodies[2]
        tl = [I("L_tail:", "l")] + self.stamp(5) + tail
        trace = pro + loop + loop + part + tl
        self.resolve_waits(trace)
        lines = [it.t for it in trace if it.t and not it.skip and it.k != "l"]
        errs = hz.check(lines)
        rares = [] if o.no_sm else [self.rare(u) for u in range(4)]
        for r in rares: errs += hz.check([it.t for it in r if it.k != "l"])
        for e in sorted(set(errs))[:20]: print(e, file=sys.stderr)
        assert not errs, "hazards"
        body = pro + [I(".p2align 6" if o.align else "", "l")] + loop + tl + [I("L_end:", "l"), I("s_endpgm")] + sum(rares, [])
        return body

    def resolve_waits(self, trace):
        ds = []
        for it in trace:
            if it.k == "ds": ds.append(it.tag)
            elif it.k == "wl":
                idx = max(j for j, t in enumerate(ds) if t == it.need)
                n = len(ds) - 1 - idx
                assert n <= 15, n
                it.n = n if it.n is None else min(it.n, n)
        needed = set()
        ds = []; done = 0
        for it in trace:
            if it.k == "ds": ds.append(it.tag)
            elif it.k == "w0": done = len(ds)
            elif it.k == "wl":
                idx = max(j for j, t in enumerate(ds) if t == it.need)
                if idx >= done: needed.add(id(it))
                done = max(done, len(ds) - it.n) if id(it) in needed else done
        for it in trace:
            if it.k == "wl":
                it.skip = id(it) not in needed
                it.t = f"s_waitcnt lgkmcnt({it.n})"

    def text(self):
        body = self.build()
        hdr = open("standalone__mha_softmax__near_ridge.s.ref").read().split("\n")
        top = []
        for ln in hdr:
            if ln.startswith("; @launch"): break
            top.append(ln)
        out = top + [f"; @launch grid=(256,1,1) block=(256,1,1) lds={LDS_BYTES}",
                     "; generated by my own generator script (flash-attention forward, 4 waves x 64 q rows, 32-key tiles)",
                     '.amdgcn_target "amdgcn-amd-amdhsa--gfx950"', ".text", f".globl {KNAME}", ".p2align 8",
                     f".type {KNAME},@function", f"{KNAME}:"]
        for it in body:
            if it.skip or not it.t: continue
            out.append(("" if it.k == "l" else "    ") + it.t)
        out += ['.section .rodata,"a"', ".p2align 6", f".amdhsa_kernel {KNAME}",
                "  .amdhsa_next_free_vgpr 512", "  .amdhsa_next_free_sgpr 96", "  .amdhsa_accum_offset 256",
                "  .amdhsa_group_segment_fixed_size 0", "  .amdhsa_kernarg_size 48", "  .amdhsa_user_sgpr_count 2",
                "  .amdhsa_user_sgpr_kernarg_segment_ptr 1", "  .amdhsa_system_sgpr_workgroup_id_x 1",
                ".end_amdhsa_kernel", ""]
        return "\n".join(out)

def parse(argv):
    p = argparse.ArgumentParser()
    p.add_argument("-o", default="standalone__mha_softmax__near_ridge.s")
    for f in ("no_lds", "no_sm", "no_bar", "no_loop_dma", "stamps", "verbose", "early_kv", "dbg"):
        p.add_argument("--" + f, action="store_true")
    p.add_argument("--align", type=int, default=1)
    p.add_argument("--look", type=int, default=24)
    p.add_argument("--bar_gap", type=int, default=113)
    p.add_argument("--bar_quiet", type=int, default=1)
    p.add_argument("--kstep", type=int, default=2)
    p.add_argument("--vm_wait", type=int, default=16)
    p.add_argument("--dma0", type=int, default=2)
    p.add_argument("--dmastep", type=int, default=4)
    p.add_argument("--sdelay", type=int, default=5)
    p.add_argument("--backlog", type=int, default=5)
    p.add_argument("--thr", type=float, default=8.0)
    p.add_argument("--kvpol", default="nt")
    p.add_argument("--qpol", default="nt")
    p.add_argument("--opol", default="")
    return p.parse_args(argv)

if __name__ == "__main__":
    o = parse(sys.argv[1:])
    open(o.o, "w").write(Gen(o).text())
```

```python
import sys, struct, argparse
sys.path.insert(0, "dev")
import hz

KNAME = "standalone__mha_softmax__near_ridge_kernel"
MF = "v_mfma_f32_16x16x32_bf16"

def f32bits(x): return struct.unpack("<I", struct.pack("<f", x))[0]
def pol(x): return (" " + x.replace("+", " ")) if x else ""
def srd(s): return f"s[{s}:{s+3}]"

class I:
    __slots__ = ("t", "k", "tag", "need", "n", "skip")
    def __init__(self, t, k="o", tag=None, need=None):
        self.t = t; self.k = k; self.tag = tag; self.need = need; self.n = None; self.skip = False

def Qr(qt, d8): b = (qt * 8 + d8) * 4; return f"v[{b}:{b+3}]"
def Sb(par, qt): return 128 + par * 32 + qt * 8
def Sr(par, qt, kt): b = Sb(par, qt) + 4 * kt; return f"v[{b}:{b+3}]"
def Pr(par, qt): return Sr(par, qt, 0)
NF = 8
def Fb(f): return 192 + (f % NF) * 4
def Fr(f): b = Fb(f); return f"v[{b}:{b+3}]"
def Ob(qt, dt): return (qt * 16 + dt) * 4
def Or(qt, dt): b = Ob(qt, dt); return f"a[{b}:{b+3}]"
vK, vVe, vVo, vD, vQ = 224, 225, 226, 227, 228
vM = [229, 230, 231, 232]
vL = [233, 234, 235, 236]
vX = [237, 238]
vLane = 239
vT = 240
sQ, sK, sV, sO = 4, 8, 12, 16
sC, sKoff, sVoff, sWb, sCnt, sThr = 20, 21, 22, 23, 24, 26
sRG = [None, 88, 89, 90, 91, 92, 93, 94]
PIECE = 1088
TILE = 16 * PIECE
R = 4
VBASE = R * TILE
LDS_BYTES = (2 * R + 1) * TILE
NG = 128

class Op:
    def __init__(self, name, fn, cost=1, deps=(), t0=0):
        self.name = name; self.fn = fn; self.cost = cost; self.deps = list(deps); self.t0 = t0; self.t = None

class Gen:
    def __init__(self, o):
        self.o = o
        self.plan()

    def fread(self, u, f, part=None):
        if self.o.no_lds: return []
        if f < 16:
            d8 = f >> 1; kt = f & 1
            off = ((u + 1) % R) * TILE + kt * 8 * PIECE + 64 * d8
            return [I(f"ds_read_b128 {Fr(f)}, v{vK} offset:{off}", "ds", tag=(u, f))]
        dt = f - 16
        out = []
        for sec in range(2):
            if part is not None and part != sec: continue
            off = (u % R) * TILE + sec * 8 * PIECE + 64 * (dt >> 1)
            b = Fb(f) + 2 * sec
            out.append(I(f"ds_read_b64_tr_b16 v[{b}:{b+1}], v{vVo if dt & 1 else vVe} offset:{off}", "ds", tag=(u, f)))
        return out

    def dma_m0(self, which, slot, j):
        base = slot * TILE + (VBASE if which == "V" else 0) + (PIECE - 1024) * j
        return I(f"s_add_u32 m0, s{sWb}, {base}", "s")
    def dma_ld(self, which, j):
        s = sK if which == "K" else sV
        so = sKoff if which == "K" else sVoff
        return I(f"buffer_load_dwordx4 v{vD}, {srd(s)}, s{so} offen offset:{j*1024}{pol(self.o.kvpol)} lds", "vm")
    def dma_adv(self, which):
        so = sKoff if which == "K" else sVoff
        return I(f"s_add_u32 s{so}, s{so}, 16384", "s")
    def dma_tile(self, which, slot):
        out = []
        for j in range(4):
            out += [self.dma_m0(which, slot, j), I("s_nop 0"), self.dma_ld(which, j)]
        out.append(self.dma_adv(which))
        return out

    def qk_mfma(self, par, f, qt):
        d8 = f >> 1; kt = f & 1
        c = "0" if d8 == 0 else Sr(par, qt, kt)
        return I(f"{MF} {Sr(par,qt,kt)}, {Fr(f)}, {Qr(qt,d8)}, {c}", "m")
    def pv_mfma(self, par, dt, qt):
        return I(f"{MF} {Or(qt,dt)}, {Fr(16+dt)}, {Pr(par,qt)}, {Or(qt,dt)}", "m")
    def wait_frag(self, u, f):
        if self.o.no_lds: return []
        return [I(None, "wl", need=(u, f))]

    def plan(self):
        o = self.o
        used = [0] * NG
        self.ds_at = [[] for _ in range(NG)]
        g = o.bar_gap + 1
        for f in range(32):
            want = 4 * f - o.look
            if f < 16 and want < 0:
                pos = max(want + NG, g)
                if pos < NG - 1:
                    self.ds_at[pos].append((f, None, True)); used[pos] += 1
                    g = pos + o.kstep
                    continue
                want = 0
            parts = [None] if f < 16 else [0, 1]
            pos = want
            for p in parts:
                while used[pos] > 0: pos += 1
                assert pos < o.bar_gap - 6 or f < 16
                self.ds_at[pos].append((f, p, False)); used[pos] += 1
        self.dma_at = {}
        pos = o.dma0
        for k in range(8):
            while used[pos % NG] > 0 or (pos % NG) in (NG - 1, NG - 2, 0): pos += 1
            self.dma_at[pos % NG] = (k, pos >= NG or pos <= o.bar_gap)
            used[pos % NG] = 2
            pos += o.dmastep
        used[NG - 1] += 1
        for gq in range(o.bar_gap - o.bar_quiet + 1, o.bar_gap + 1): used[gq] = 2
        ops = []
        fm = {}
        for kt in range(2):
            for qt in range(4):
                for r in range(4):
                    k = 4 * kt + r
                    op = Op(f"fma{qt}{k}", (lambda par, qt=qt, k=k: f"v_fma_f32 v{Sb(par,qt)+k}, v{Sb(par,qt)+k}, s{sC}, v{vM[qt]}"), t0=56 + 4 * kt + qt + o.sdelay)
                    fm[(qt, k)] = op; ops.append(op)
        mx = []
        last = []
        for kt in range(2):
            vals = [(qt, 4 * kt + r) for qt in range(4) for r in range(4)]
            x = vX[kt]
            rg = lambda par, v: f"v{Sb(par, v[0]) + v[1]}"
            op = Op(f"mx{kt}0", (lambda par, x=x, a=vals[0], b=vals[1], c=vals[2]: f"v_max3_f32 v{x}, {rg(par,a)}, {rg(par,b)}, {rg(par,c)}"), deps=[fm[v] for v in vals[:3]])
            mx.append(op); prev = op
            for j in range(3, 15, 2):
                op = Op(f"mx{kt}{j}", (lambda par, x=x, a=vals[j], b=vals[j + 1]: f"v_max3_f32 v{x}, v{x}, {rg(par,a)}, {rg(par,b)}"), deps=[prev, fm[vals[j]], fm[vals[j + 1]]])
                mx.append(op); prev = op
            last.append((prev, vals[15]))
        m1 = Op("mxa", (lambda par: f"v_max3_f32 v{vX[0]}, v{vX[0]}, v{Sb(par,3)+3}, v{Sb(par,3)+7}"), deps=[last[0][0], fm[(3, 3)], fm[(3, 7)]])
        m2 = Op("mxb", (lambda par: f"v_max_f32 v{vX[0]}, v{vX[0]}, v{vX[1]}"), deps=[m1, last[1][0]])
        cmp = Op("cmp", (lambda par: f"v_cmp_lt_f32 vcc, s{sThr}, v{vX[0]}"), deps=[m2])
        Fops = ops + mx + [m1, m2, cmp]
        Fprio = mx + [m1, m2, cmp] + ops
        self.va_at = [[] for _ in range(2 * NG)]
        t = 56
        pend = list(Fprio)
        while pend:
            free = 2 - used[t % NG]
            placed = True
            while free > 0 and placed:
                placed = False
                for op in pend:
                    if op.t0 <= t and all(d.t is not None and d.t < t for d in op.deps):
                        op.t = t; self.va_at[t].append(op); pend.remove(op); used[t % NG] += 1; free -= 1; placed = True
                        break
            t += 1
        self.t_cmp = cmp.t
        self.t_br = cmp.t + 1
        while self.t_br % 4 == 3 or ((self.t_br + 1) % NG) in self.dma_at or self.t_br in (o.bar_gap, o.bar_gap - 1): self.t_br += 1
        assert self.t_br < NG - 2
        ex, ad, cv = {}, {}, {}
        Eexp, Epl = [], []
        for qt in range(4):
            for k in range(8):
                ex[(qt, k)] = Op(f"exp{qt}{k}", (lambda par, qt=qt, k=k: f"v_exp_f32 v{Sb(par,qt)+k}, v{Sb(par,qt)+k}"), cost=2, t0=self.t_br)
                Eexp.append(ex[(qt, k)])
            for k in range(8):
                deps = [ex[(qt, k)]] + ([ad[(qt, k - 1)]] if k else [])
                ad[(qt, k)] = Op(f"add{qt}{k}", (lambda par, qt=qt, k=k: f"v_add_f32 v{vL[qt]}, v{vL[qt]}, v{Sb(par,qt)+k}"), deps=deps)
            for j in range(4):
                deps = [ex[(qt, 2 * j)], ex[(qt, 2 * j + 1)], ad[(qt, j)]] + ([cv[(qt, j >> 1)]] if j else [])
                cv[(qt, j)] = Op(f"cvt{qt}{j}", (lambda par, qt=qt, j=j: f"v_cvt_pk_bf16_f32 v{Sb(par,qt)+j}, v{Sb(par,qt)+2*j}, v{Sb(par,qt)+2*j+1}"), deps=deps)
            for k in range(8):
                Epl.append(ad[(qt, k)])
                if k & 1: Epl.append(cv[(qt, k >> 1)])
        t = self.t_br
        rdy = lambda op, t: op.t0 <= t and all(d.t is not None and d.t < t for d in op.deps)
        while Eexp or Epl:
            assert t < NG + 62, "softmax does not fit"
            free = 2 - used[t % NG]
            backlog = sum(1 for op in Epl if all(d.t is not None for d in op.deps if d.cost == 2))
            if free == 2 and Eexp and backlog < o.backlog:
                op = Eexp.pop(0); op.t = t; self.va_at[t].append(op); used[t % NG] += 2
            else:
                for op in list(Epl):
                    if free == 0: break
                    if rdy(op, t):
                        op.t = t; self.va_at[t].append(op); Epl.remove(op); used[t % NG] += 1; free -= 1
                if free == 2 and Eexp:
                    op = Eexp.pop(0); op.t = t; self.va_at[t].append(op); used[t % NG] += 2
            t += 1
        self.t_end = t
        self.used = used
        if o.verbose:
            print("cmp", self.t_cmp, "br", self.t_br, "end", self.t_end - NG, "used", "".join(map(str, used)), file=sys.stderr)

    def dma_desc(self, k, u, prev):
        ub = (u - 1) % R if prev else u
        if k < 4: return ("K", (ub + 1) % R, k)
        return ("V", ub % R, k - 4)

    def gap_fill(self, u, g, valu=True, start_only=False):
        o = self.o
        cur = u & 1; nxt = cur ^ 1
        sc, ds, vm, va = [], [], [], []
        if g % 4 == 3:
            f = (g + 1) // 4
            sc += self.wait_frag(u, f) if f < 32 else self.wait_frag((u + 1) % R, 0)
        if not o.no_bar:
            if g == o.bar_gap - 1: sc.append(I(f"s_waitcnt vmcnt({o.vm_wait}) lgkmcnt(0)", "w0"))
            if g == o.bar_gap: sc.append(I("s_barrier"))
        if not o.no_loop_dma:
            g1 = (g + 1) % NG
            if g1 in self.dma_at:
                k, prev = self.dma_at[g1]
                wh, slot, j = self.dma_desc(k, u, prev)
                sc.append(self.dma_m0(wh, slot, j))
            if g in self.dma_at:
                k, prev = self.dma_at[g]
                wh, slot, j = self.dma_desc(k, u, prev)
                vm.append(self.dma_ld(wh, j))
            g2 = (g - 2) % NG
            if g2 in self.dma_at and self.dma_at[g2][0] % 4 == 3:
                sc.append(self.dma_adv("K" if self.dma_at[g2][0] < 4 else "V"))
        for (f, p, nx) in self.ds_at[g]:
            ds += self.fread((u + 1) % R if nx else u, f, p)
        if valu and not o.no_sm:
            if g == self.t_br:
                sc.append(I(f"s_cbranch_vccnz L_rare{u}", "s"))
                sc.append(I(f"L_back{u}:", "l"))
            for op in self.va_at[g + NG]: va.append(I(op.fn(cur), "v"))
            for op in self.va_at[g]: va.append(I(op.fn(nxt), "v"))
        return sc, ds, vm, va

    def body(self, u):
        cur = u & 1; nxt = cur ^ 1
        out = []
        for g in range(NG):
            f = g >> 2; qt = g & 3
            out.append(self.qk_mfma(nxt, f, qt) if f < 16 else self.pv_mfma(cur, f - 16, qt))
            sc, ds, vm, va = self.gap_fill(u, g)
            if g == NG - 2:
                assert not any(i.k == "s" for i in sc)
                if u == 2: sc.append(I(f"s_cmp_eq_u32 s{sCnt}, 7", "s"))
                if u == 3: sc.append(I(f"s_add_u32 s{sCnt}, s{sCnt}, 1", "s"))
            if g == NG - 1:
                assert not any(i.k == "s" for i in sc)
            out += sc + ds + vm + va
        if u == 2: out.append(I("s_cbranch_scc1 L_tail", "s"))
        if u == 3: out.append(I("s_branch L_loop", "s"))
        return out

    def rowmax4(self, a, b, t, t2):
        a(f"v_max3_f32 v{t}, v{b}, v{b+1}, v{b+2}")
        a(f"v_max3_f32 v{t}, v{t}, v{b+3}, v{b+4}")
        a(f"v_max3_f32 v{t}, v{t}, v{b+5}, v{b+6}")
        a(f"v_max_f32 v{t}, v{t}, v{b+7}")
        self.xl(a, t, t2, "v_max_f32")

    def xl(self, a, t, t2, op):
        for sw in ("v_permlane16_swap_b32", "v_permlane32_swap_b32"):
            a(f"v_mov_b32 v{t2}, v{t}")
            a("s_nop 1")
            a(f"{sw} v{t}, v{t2}")
            a("s_nop 1")
            a(f"{op} v{t}, v{t}, v{t2}")

    def rare(self, u):
        cur = u & 1; nxt = cur ^ 1
        out = [I(f"L_rare{u}:", "l")]
        a = lambda t: out.append(I(t))
        t, t2, f = vT, vT + 1, vT + 2
        a("s_nop 15")
        for qt in range(4):
            b = Sb(nxt, qt)
            self.rowmax4(a, b, t, t2)
            a(f"v_ceil_f32 v{t}, v{t}")
            a(f"v_max_f32 v{t}, 0, v{t}")
            a(f"v_sub_f32 v{vM[qt]}, v{vM[qt]}, v{t}")
            for k in range(8): a(f"v_sub_f32 v{b+k}, v{b+k}, v{t}")
            a(f"v_min_f32 v{t2}, 0x43480000, v{t}")
            a(f"v_cvt_i32_f32 v{t2}, v{t2}")
            a(f"v_sub_u32 v{t2}, 0, v{t2}")
            a(f"v_ldexp_f32 v{f}, 1.0, v{t2}")
            a(f"v_mul_f32 v{vL[qt]}, v{vL[qt]}, v{f}")
            pb = Sb(cur, qt)
            for j in range(4):
                a(f"v_lshlrev_b32 v{vT+4}, 16, v{pb+j}")
                a(f"v_and_b32 v{vT+5}, 0xffff0000, v{pb+j}")
                a(f"v_mul_f32 v{vT+4}, v{vT+4}, v{f}")
                a(f"v_mul_f32 v{vT+5}, v{vT+5}, v{f}")
                a(f"v_cvt_pk_bf16_f32 v{pb+j}, v{vT+4}, v{vT+5}")
            for a0 in range(qt * 64, qt * 64 + 64, 8):
                for k in range(8): a(f"v_accvgpr_read_b32 v{vT+4+k}, a{a0+k}")
                for k in range(8): a(f"v_mul_f32 v{vT+4+k}, v{vT+4+k}, v{f}")
                for k in range(8): a(f"v_accvgpr_write_b32 a{a0+k}, v{vT+4+k}")
        a("s_nop 1")
        a(f"s_branch L_back{u}")
        return out

    def stamp(self, idx):
        if not self.o.stamps: return []
        return [I(f"s_memtime s[{40+2*idx}:{41+2*idx}]", "sm"), I(f"s_memrealtime s[{68+2*idx}:{69+2*idx}]", "sm")]

    def prologue(self):
        o = self.o
        P = []
        a = lambda t, k="o", **kw: P.append(I(t, k, **kw))
        a("s_cmp_ge_u32 s2, 256")
        a("s_cbranch_scc1 L_end")
        a("s_load_dwordx8 s[28:35], s[0:1], 0", "sm")
        if o.stamps:
            a(f"s_load_dwordx2 s[36:37], s[0:1], {32 if o.dbg else 40}", "sm")
            a("s_memrealtime s[38:39]", "sm")
        P += self.stamp(0)
        lane, w, t0, t1, t2, vDQ, vQr = vT + 8, vT + 9, vT + 10, vT + 11, vT + 12, vT + 13, vT + 14
        a(f"v_and_b32 v{lane}, 63, v0")
        a(f"v_lshrrev_b32 v{w}, 6, v0")
        a("s_lshr_b32 s3, s2, 4")
        a("s_lshl_b32 s3, s3, 3")
        a("s_and_b32 s27, s2, 7")
        a("s_add_u32 s3, s3, s27")
        a("s_lshr_b32 s27, s2, 3")
        a("s_and_b32 s27, s27, 1")
        a(f"v_readfirstlane_b32 s{sWb}, v{w}")
        a(f"v_lshrrev_b32 v{t1}, 5, v{lane}")
        a(f"v_lshlrev_b32 v{t1}, 5, v{t1}")
        a(f"v_lshlrev_b32 v{t2}, 4, v{lane}")
        a(f"v_xor_b32 v{t2}, v{t2}, v{t1}")
        a(f"v_lshl_add_u32 v{vD}, v{w}, 12, v{t2}")
        a("s_lshl_b32 s27, s27, 17")
        a(f"v_lshl_add_u32 v{vDQ}, v{w}, 15, v{t2}")
        a(f"v_add_u32 v{vDQ}, s27, v{vDQ}")
        a(f"s_mul_i32 s{sWb}, s{sWb}, {4*PIECE}")
        a(f"s_mov_b32 s{sKoff}, 0")
        a(f"s_mov_b32 s{sVoff}, 0")
        for k in range(1, 8): a(f"s_mov_b32 s{sRG[k]}, {k*4096}")
        a("s_lshl_b32 s25, s3, 19")
        a("s_mul_i32 s3, s3, 253952")
        a(f"s_mov_b32 s{sK+2}, 524288")
        a(f"s_mov_b32 s{sK+3}, 0x20000")
        a(f"s_mov_b32 s{sQ+2}, 253952")
        a(f"s_mov_b32 s{sQ+3}, 0x20000")
        a("s_waitcnt lgkmcnt(0)", "w0")
        a(f"s_add_u32 s{sK}, s30, s25")
        a(f"s_addc_u32 s{sK+1}, s31, 0")
        a(f"s_add_u32 s{sQ}, s28, s3")
        a(f"s_addc_u32 s{sQ+1}, s29, 0")
        first = [1, 4, 2, 3]
        def qdma(qt):
            out = []
            for hi in range(2):
                c = 2 * qt + hi
                so = "0" if c == 0 else f"s{sRG[c]}"
                for j in range(4):
                    out.append(I(f"s_add_u32 m0, s{sWb}, {(first[qt]+4*hi)*TILE + (PIECE-1024)*j}", "s"))
                    out.append(I("s_nop 0"))
                    out.append(I(f"buffer_load_dwordx4 v{vDQ}, {srd(sQ)}, {so} offen offset:{j*1024}{pol(o.qpol)} lds", "vm"))
            return out
        if o.exp_delay:
            a(f"s_lshr_b32 s95, s2, 4")
            a(f"s_and_b32 s95, s95, {o.exp_groups-1}")
            a("L_dly:", "l")
            a("s_cmp_eq_u32 s95, 0")
            a("s_cbranch_scc1 L_dly_done")
            a(f"s_sleep {o.exp_delay}")
            a("s_sub_u32 s95, s95, 1")
            a("s_branch L_dly")
            a("L_dly_done:", "l")
        P += self.dma_tile("K", 0)
        P += qdma(0)
        a(f"s_add_u32 s{sV}, s32, s25")
        a(f"s_addc_u32 s{sV+1}, s33, 0")
        a(f"s_mov_b32 s{sV+2}, 524288")
        a(f"s_mov_b32 s{sV+3}, 0x20000")
        a(f"s_add_u32 s{sO}, s34, s3")
        a(f"s_addc_u32 s{sO+1}, s35, 0")
        a(f"s_mov_b32 s{sO+2}, 253952")
        a(f"s_mov_b32 s{sO+3}, 0x20000")
        a(f"v_lshrrev_b32 v{t0}, 3, v{lane}")
        a(f"v_lshl_add_u32 v{t0}, v{w}, 6, v{t0}")
        a(f"v_lshlrev_b32 v{t0}, 9, v{t0}")
        a(f"v_add_u32 v{t0}, s27, v{t0}")
        a(f"v_and_b32 v{t1}, 7, v{lane}")
        a(f"v_lshl_add_u32 v{vQ}, v{t1}, 4, v{t0}")
        a(f"v_and_b32 v{t2}, 1, v{lane}")
        a(f"v_lshlrev_b32 v{t0}, 9, v{t2}")
        a(f"v_lshlrev_b32 v{t2}, 5, v{t2}")
        a(f"v_lshrrev_b32 v{t1}, 4, v{lane}")
        a(f"v_lshlrev_b32 v{t1}, 4, v{t1}")
        a(f"v_xor_b32 v{t1}, v{t1}, v{t2}")
        a(f"v_add_u32 v{t0}, v{t0}, v{t1}")
        a(f"v_bfe_u32 v{t1}, v{lane}, 1, 2")
        a(f"v_mul_u32_u24 v{t1}, {PIECE}, v{t1}")
        a(f"v_add_u32 v{t0}, v{t0}, v{t1}")
        a(f"v_bfe_u32 v{t1}, v{lane}, 3, 1")
        a(f"v_mul_u32_u24 v{vK}, {4*PIECE}, v{t1}")
        a(f"v_add_u32 v{vK}, v{vK}, v{t0}")
        a(f"v_mul_u32_u24 v{vQr}, {4*TILE}, v{t1}")
        a(f"v_add_u32 v{vQr}, v{vQr}, v{t0}")
        a(f"s_add_u32 s25, s{sWb}, {TILE}")
        a(f"v_add_u32 v{vQr}, s25, v{vQr}")
        a(f"v_lshrrev_b32 v{t0}, 3, v{lane}")
        a(f"v_mul_u32_u24 v{t0}, {PIECE}, v{t0}")
        a(f"v_bfe_u32 v{t2}, v{lane}, 2, 1")
        a(f"v_lshl_add_u32 v{t0}, v{t2}, 9, v{t0}")
        a(f"v_and_b32 v{t1}, 3, v{lane}")
        a(f"v_lshl_add_u32 v{t0}, v{t1}, 3, v{t0}")
        a(f"v_add_u32 v{t0}, {VBASE}, v{t0}")
        a(f"v_lshl_add_u32 v{vVe}, v{t2}, 5, v{t0}")
        a(f"v_xor_b32 v{t2}, 1, v{t2}")
        a(f"v_lshl_add_u32 v{vVo}, v{t2}, 5, v{t0}")
        a(f"v_mov_b32 v{vLane}, v{lane}")
        a(f"s_mov_b32 s{sC}, {hex(f32bits(1.4426950408889634/16.0))}")
        a(f"s_mov_b32 s{sThr}, {hex(f32bits(o.thr))}")
        a(f"s_mov_b32 s{sCnt}, 0")
        for l in vL: a(f"v_mov_b32 v{l}, 0")
        for k in range(4): a(f"v_mov_b32 v{128+k}, 0")
        P += qdma(1)
        for i in range(16): a(f"v_mfma_f32_32x32x16_bf16 a[{16*i}:{16*i+15}], v[128:131], v[128:131], 0", "m")
        P += qdma(2)
        a("s_waitcnt vmcnt(24)")
        a("s_barrier")
        P += self.stamp(1)
        KB = 160
        for f in range(16):
            d8 = f >> 1; kt = f & 1
            a(f"ds_read_b128 v[{KB+4*f}:{KB+4*f+3}], v{vK} offset:{kt*8*PIECE + 64*d8}", "ds", tag=("k0", f))
            if f == 11: a("s_waitcnt lgkmcnt(4)")
        part1 = [[] for _ in range(4)]
        if not o.no_sm:
            for t in range(self.t_br, NG):
                for op in self.va_at[t]: part1[int(op.name[3])].append(op)
        u = R - 1
        def proc(qt, vm):
            a(f"s_waitcnt vmcnt({vm}) lgkmcnt(0)", "w0")
            if qt == 3: P.extend(self.stamp(2))
            for d8 in range(8):
                a(f"ds_read_b128 {Qr(qt,d8)}, v{vQr} offset:{(first[qt]-1)*TILE + 64*d8}", "ds", tag=("q", qt, d8))
            for d8 in range(8):
                P.append(I(None, "wl", need=("q", qt, d8)))
                for kt in range(2):
                    f = 2 * d8 + kt
                    c = "0" if d8 == 0 else Sr(0, qt, kt)
                    a(f"{MF} {Sr(0,qt,kt)}, v[{KB+4*f}:{KB+4*f+3}], {Qr(qt,d8)}, {c}", "m")
        def head(qt):
            b = Sb(0, qt); t, t2 = vT, vT + 1
            self.rowmax4(a, b, t, t2)
            a(f"v_mul_f32 v{vM[qt]}, s{sC}, v{t}")
            a(f"v_sub_f32 v{vM[qt]}, 0, v{vM[qt]}")
            for k in range(8): a(f"v_fma_f32 v{b+k}, v{b+k}, s{sC}, v{vM[qt]}")
            prev_t = False
            for op in part1[qt]:
                if prev_t and op.cost == 1: a("s_nop 0")
                a(op.fn(0), "v"); prev_t = op.cost == 2
        def post_barrier(vmw):
            lw = []
            for g in range(o.bar_gap - 1, NG):
                sc, ds, vm, va = self.gap_fill(u, g, valu=False)
                sc = [i for i in sc if not (i.k == "wl" and i.need[0] == u)]
                for i in sc:
                    if i.k == "w0": i.t = f"s_waitcnt vmcnt({vmw}) lgkmcnt(0)"
                if g == NG - 1: lw = sc; sc = []
                P.extend(sc + ds)
                if vm: P.append(I("s_nop 0"))
                P.extend(vm)
            return lw
        KV = lambda k: self.dma_tile("K", k) + self.dma_tile("V", k - 1)
        proc(0, 16)
        P += qdma(3)
        head(0)
        proc(1, 16)
        P += KV(1)
        head(1)
        proc(2, 16)
        if o.pro_order == 0:
            P += KV(2)
            head(2)
            proc(3, 16)
            P += self.stamp(3)
            P += KV(3)
            last_wait = post_barrier(16)
            head(3)
        elif o.pro_order == 1:
            a("s_nop 7")
            head(2)
            proc(3, 8)
            P += self.stamp(3)
            P += KV(2)
            head(3)
            last_wait = post_barrier(8)
            P += KV(3)
        elif o.pro_order == 2:
            a("s_nop 7")
            head(2)
            proc(3, 8)
            P += self.stamp(3)
            a("s_nop 7")
            head(3)
            last_wait = post_barrier(0)
            P += KV(2) + KV(3)
        elif o.pro_order == 3:
            P += KV(2)
            head(2)
            proc(3, 16)
            P += self.stamp(3)
            a("s_nop 7")
            head(3)
            last_wait = post_barrier(8)
            P += KV(3)
        P += last_wait
        P += self.stamp(4)
        return P

    def tail(self):
        o = self.o
        u = 3; cur = u & 1
        T = []
        a = lambda t, k="o", **kw: T.append(I(t, k, **kw))
        LA = 6
        for f in range(16, 16 + LA): T += self.fread(u, f)
        if not o.no_sm:
            prev_t = False
            for t in range(NG, 2 * NG):
                for op in self.va_at[t]:
                    if prev_t and op.cost == 1: a("s_nop 0")
                    a(op.fn(cur), "v"); prev_t = op.cost == 2
        a("s_waitcnt vmcnt(0)")
        a("s_nop 0")
        inv = [vT + 2 * qt for qt in range(4)]
        st = [[] for _ in range(4)]
        for qt in range(4):
            t, t2 = inv[qt], inv[qt] + 1
            st[qt] = [f"v_mov_b32 v{t2}, v{vL[qt]}", f"v_permlane16_swap_b32 v{vL[qt]}, v{t2}", f"v_add_f32 v{t}, v{vL[qt]}, v{t2}",
                      f"v_mov_b32 v{t2}, v{t}", f"v_permlane32_swap_b32 v{t}, v{t2}", f"v_add_f32 v{t}, v{t}, v{t2}", f"v_rcp_f32 v{t}, v{t}"]
        small = [I(st[qt][k], "v") for k in range(7) for qt in range(4)]
        vW = [vT + 8, vT + 9, vT + 10, vT + 11]; vR = vT + 12; t0, t1, t2 = vT + 13, vT + 14, vT + 15
        ad = [f"v_and_b32 v{t0}, 15, v{vLane}", f"v_lshlrev_b32 v{t0}, 7, v{t0}",
              f"v_bfe_u32 v{t1}, v{vLane}, 4, 1", f"v_lshl_add_u32 v{t0}, v{t1}, 3, v{t0}",
              f"v_add_u32 v{t0}, s{sWb}, v{t0}",
              f"v_lshrrev_b32 v{t1}, 5, v{vLane}", f"v_and_b32 v{t2}, 7, v{vLane}", f"v_xor_b32 v{t1}, v{t1}, v{t2}"]
        for k in range(4):
            ad += [f"v_xor_b32 v{vW[k]}, {2*k}, v{t1}", f"v_lshl_add_u32 v{vW[k]}, v{vW[k]}, 4, v{t0}"]
        ad += [f"v_lshrrev_b32 v{t0}, 3, v{vLane}", f"v_xor_b32 v{t1}, v{t0}, v{t2}", f"v_lshlrev_b32 v{t1}, 4, v{t1}",
               f"v_lshl_add_u32 v{vR}, v{t0}, 7, v{t1}", f"v_add_u32 v{vR}, s{sWb}, v{vR}"]
        small += [I(x, "v") for x in ad]
        def conv(cb, qt, b, pk):
            a0 = Ob(qt, 4 * cb)
            out = [I(f"v_accvgpr_read_b32 v{b+k}, a{a0+k}", "v") for k in range(16)]
            if pk: out += [I(f"v_pk_mul_f32 v[{b+k}:{b+k+1}], v[{b+k}:{b+k+1}], v[{inv[qt]}:{inv[qt]+1}] op_sel_hi:[1,0]", "v") for k in range(0, 16, 2)]
            else: out += [I(f"v_mul_f32 v{b+k}, v{b+k}, v{inv[qt]}", "v") for k in range(16)]
            out += [I(f"v_cvt_pk_bf16_f32 v{b+k}, v{b+2*k}, v{b+2*k+1}", "v") for k in range(8)]
            return out
        def wr(cb, qt, b):
            slot = 2 * (cb & 1) + (qt >> 1)
            if o.ep_nowr: return []
            return [I(f"ds_write_b64 v{vW[k]}, v[{b+2*k}:{b+2*k+1}] offset:{slot*TILE + (qt&1)*2048}", "ds", tag=("w", cb, qt, k)) for k in range(4)]
        def rd(cb, rb, b):
            slot = 2 * (cb & 1) + rb
            return [I(f"ds_read_b128 v[{b+4*i}:{b+4*i+3}], v{vR} offset:{slot*TILE + i*1024}", "ds", tag=("r", cb, rb, i)) for i in range(4)]
        def stv(cb, rb, b):
            out = [I(None, "wl", need=("r", cb, rb, 3))]
            for i in range(4):
                k = 4 * rb + i
                so = "0" if k == 0 else f"s{sRG[k]}"
                if o.ep_nostore: continue
                out.append(I(f"buffer_store_dwordx4 v[{b+4*i}:{b+4*i+3}], v{vQ}, {srd(sO)}, {so} offen offset:{128*cb}{pol(o.opol)}", "vm"))
            return out
        nhid = o.tail_hide
        batches = [(cb, qt) for cb in range(4) for qt in range(4)]
        hidden = []
        for i in range(nhid): hidden += conv(*batches[i], 16 * (i % 4), False)
        for dt in range(16):
            f = 16 + dt
            T += self.wait_frag(u, f)
            for qt in range(4):
                g = 4 * dt + qt
                T.append(self.pv_mfma(cur, dt, qt))
                free = 2
                if qt < 2 and f + LA < 32:
                    T += self.fread(u, f + LA, qt); free = 1
                while free > 0 and (small or (hidden and g >= 22)):
                    src = small if small else hidden
                    c = 2 if "rcp" in src[0].t else 1
                    if c > free: break
                    T.append(src.pop(0)); free -= c
        T += small + hidden
        T += self.stamp(6)
        pend = None
        for i, (cb, qt) in enumerate(batches):
            b = 16 * (i % 4)
            if i >= nhid:
                if i == 12 and False: a("s_nop 7")
                if not o.ep_noconv: T += conv(cb, qt, b, not o.ep_nopk)
            T += wr(cb, qt, b)
            if qt & 1:
                rb = qt >> 1; rbuf = 64 + 16 * ((i >> 1) % 4)
                T += rd(cb, rb, rbuf)
                if pend: T += stv(*pend)
                pend = (cb, rb, rbuf)
        T += stv(*pend)
        if o.stamps:
            T += self.stamp(7)
            a("s_waitcnt vmcnt(0)")
            T += self.stamp(8)
            a("s_memrealtime s[58:59]", "sm")
            a("s_getreg_b32 s60, hwreg(HW_REG_XCC_ID)")
            a("s_getreg_b32 s61, hwreg(HW_REG_HW_ID)")
            a("s_waitcnt lgkmcnt(0)")
            a(f"s_mov_b32 s64, s36"); a("s_mov_b32 s65, s37"); a(f"s_mov_b32 s66, {256 if o.dbg else 0x1000000}"); a("s_mov_b32 s67, 0x20000")
            if o.dbg:
                a("s_cmp_lg_u32 s2, 37"); a("s_cbranch_scc1 L_end")
                a(f"s_cmp_lg_u32 s{sWb}, 0"); a("s_cbranch_scc1 L_end")
                a("v_mov_b32 v1, 0")
                for k in range(8):
                    a(f"s_sub_u32 s62, s{42+2*k}, s{40+2*k}"); a("v_mov_b32 v0, s62")
                    a(f"buffer_store_dword v0, v1, s[64:67], 0 offen offset:{4*k}")
                    a(f"s_sub_u32 s62, s{70+2*k}, s{68+2*k}"); a("v_mov_b32 v0, s62")
                    a(f"buffer_store_dword v0, v1, s[64:67], 0 offen offset:{32+4*k}")
                return T
            a(f"s_lshl_b32 s62, s2, 10")
            a(f"s_mul_hi_u32 s63, s{sWb}, {(2**32)//(4*PIECE)+1}")
            a(f"s_lshl_b32 s63, s63, 8")
            a(f"s_add_u32 s62, s62, s63")
            a(f"v_mov_b32 v1, 0")
            for k in range(24):
                a(f"v_mov_b32 v0, s{38+k}")
                a(f"buffer_store_dword v0, v1, s[64:67], s62 offen offset:{4*k}")
            for k in range(18):
                a(f"v_mov_b32 v0, s{68+k}")
                a(f"buffer_store_dword v0, v1, s[64:67], s62 offen offset:{128+4*k}")
        return T

    def build(self):
        o = self.o
        pro = self.prologue()
        bodies = [self.body(u) for u in range(4)]
        tail = self.tail()
        loop = [I("L_loop:", "l")] + sum(bodies, [])
        part = bodies[0] + bodies[1] + bodies[2]
        tl = [I("L_tail:", "l")] + self.stamp(5) + tail
        trace = pro + loop + loop + part + tl
        self.resolve_waits(trace)
        lines = [it.t for it in trace if it.t and not it.skip and it.k != "l"]
        errs = hz.check(lines)
        rares = [] if o.no_sm else [self.rare(u) for u in range(4)]
        for r in rares: errs += hz.check([it.t for it in r if it.k != "l"])
        for e in sorted(set(errs))[:20]: print(e, file=sys.stderr)
        assert not errs, "hazards"
        body = pro + [I(".p2align 6" if o.align else "", "l")] + loop + tl + [I("L_end:", "l"), I("s_endpgm")] + sum(rares, [])
        return body

    def resolve_waits(self, trace):
        ds = []
        for it in trace:
            if it.k == "ds": ds.append(it.tag)
            elif it.k == "wl":
                idx = max(j for j, t in enumerate(ds) if t == it.need)
                n = len(ds) - 1 - idx
                assert n <= 15, n
                it.n = n if it.n is None else min(it.n, n)
        needed = set()
        ds = []; done = 0
        for it in trace:
            if it.k == "ds": ds.append(it.tag)
            elif it.k == "w0": done = len(ds)
            elif it.k == "wl":
                idx = max(j for j, t in enumerate(ds) if t == it.need)
                if idx >= done: needed.add(id(it))
                done = max(done, len(ds) - it.n) if id(it) in needed else done
        for it in trace:
            if it.k == "wl":
                it.skip = id(it) not in needed
                it.t = f"s_waitcnt lgkmcnt({it.n})"

    def text(self):
        body = self.build()
        hdr = open("standalone__mha_softmax__near_ridge.s.ref").read().split("\n")
        top = []
        for ln in hdr:
            if ln.startswith("; @launch"): break
            top.append(ln)
        out = top + [f"; @launch grid=(256,1,1) block=(256,1,1) lds={LDS_BYTES}",
                     "; generated by my own generator script (flash-attention forward, 4 waves x 64 q rows, 32-key tiles)",
                     '.amdgcn_target "amdgcn-amd-amdhsa--gfx950"', ".text", f".globl {KNAME}", ".p2align 8",
                     f".type {KNAME},@function", f"{KNAME}:"]
        for it in body:
            if it.skip or not it.t: continue
            out.append(("" if it.k == "l" else "    ") + it.t)
        out += ['.section .rodata,"a"', ".p2align 6", f".amdhsa_kernel {KNAME}",
                "  .amdhsa_next_free_vgpr 512", "  .amdhsa_next_free_sgpr 96", "  .amdhsa_accum_offset 256",
                "  .amdhsa_group_segment_fixed_size 0", "  .amdhsa_kernarg_size 48", "  .amdhsa_user_sgpr_count 2",
                "  .amdhsa_user_sgpr_kernarg_segment_ptr 1", "  .amdhsa_system_sgpr_workgroup_id_x 1",
                ".end_amdhsa_kernel", ""]
        return "\n".join(out)

def parse(argv):
    p = argparse.ArgumentParser()
    p.add_argument("-o", default="standalone__mha_softmax__near_ridge.s")
    for f in ("no_lds", "no_sm", "no_bar", "no_loop_dma", "stamps", "verbose", "early_kv", "dbg", "ep_nostore", "ep_nowr", "ep_noconv", "ep_nopk"):
        p.add_argument("--" + f, action="store_true")
    p.add_argument("--align", type=int, default=1)
    p.add_argument("--look", type=int, default=24)
    p.add_argument("--bar_gap", type=int, default=113)
    p.add_argument("--bar_quiet", type=int, default=1)
    p.add_argument("--kstep", type=int, default=2)
    p.add_argument("--vm_wait", type=int, default=16)
    p.add_argument("--dma0", type=int, default=2)
    p.add_argument("--dmastep", type=int, default=4)
    p.add_argument("--sdelay", type=int, default=5)
    p.add_argument("--backlog", type=int, default=5)
    p.add_argument("--thr", type=float, default=8.0)
    p.add_argument("--tail_hide", type=int, default=1)
    p.add_argument("--pro_order", type=int, default=0)
    p.add_argument("--exp_delay", type=int, default=0)
    p.add_argument("--exp_groups", type=int, default=2)
    p.add_argument("--amp", default="")
    p.add_argument("--kvpol", default="nt")
    p.add_argument("--qpol", default="nt")
    p.add_argument("--opol", default="nt")
    return p.parse_args(argv)

if __name__ == "__main__":
    o = parse(sys.argv[1:])
    open(o.o, "w").write(Gen(o).text())
```

```python
import sys, struct, argparse
sys.path.insert(0, "dev")
import hz

KNAME = "standalone__mha_softmax__near_ridge_kernel"
MF = "v_mfma_f32_16x16x32_bf16"

def f32bits(x): return struct.unpack("<I", struct.pack("<f", x))[0]
def pol(x): return (" " + x.replace("+", " ")) if x else ""
def srd(s): return f"s[{s}:{s+3}]"

class I:
    __slots__ = ("t", "k", "tag", "need", "n", "skip")
    def __init__(self, t, k="o", tag=None, need=None):
        self.t = t; self.k = k; self.tag = tag; self.need = need; self.n = None; self.skip = False

def Qr(qt, d8): b = (qt * 8 + d8) * 4; return f"v[{b}:{b+3}]"
vT = 240
def X(m, qt, k):
    if m < 2: return 128 + m * 32 + qt * 8 + k
    return vT + 4 * qt + k if k < 4 else 128 + 32 + qt * 8 + k
def Sr(m, qt, kt): b = X(m, qt, 4 * kt); return f"v[{b}:{b+3}]"
def Pr(m, qt): return Sr(m, qt, 0)
NF = 8
def Fx(f): return f if isinstance(f, tuple) else ("v", 192 + (f % NF) * 4)
def Fr(f): c, b = Fx(f); return f"{c}[{b}:{b+3}]"
def Ob(qt, dt): return (qt * 16 + dt) * 4
def Or(qt, dt): b = Ob(qt, dt); return f"a[{b}:{b+3}]"
vK, vVe, vVo, vD, vA = 224, 225, 226, 227, 228
vM = [229, 230, 231, 232]
vL = [233, 234, 235, 236]
vX = [237, 238]
vB = 239
sQ, sK, sV, sO = 4, 8, 12, 16
sC, sKoff, sVoff, sWb, sCnt, sNC, sThr, sRow = 20, 21, 22, 23, 24, 25, 26, 27
sQoff = 86
sRG = [None, 88, 89, 90, 91, 92, 93, 94]
PIECE = 1088
TILE = 16 * PIECE
R = 4
VBASE = R * TILE
LDS_BYTES = (2 * R + 1) * TILE
NG = 128

class Op:
    def __init__(self, name, fn, cost=1, deps=(), t0=0):
        self.name = name; self.fn = fn; self.cost = cost; self.deps = list(deps); self.t0 = t0; self.t = None

class Nd:
    def __init__(self, t, k, deps=(), tag=None, need=None, cap=None, soft=()):
        self.t = t if isinstance(t, list) else [t]
        self.k = k; self.deps = [d if isinstance(d, tuple) else (d, 0) for d in deps]
        self.tag = tag; self.need = need; self.idx = None; self.cap = cap; self.waited = False; self.soft = list(soft); self.low = False
        self.cost = {"t": 2, "vm": 2, "s": 0}.get(k, 1)

class Sched:
    def __init__(self):
        self.out = []; self.n = 0; self.issued = set()
    def ok(self, nd, relax=False):
        if not relax and any(d.idx is None or self.n - d.idx - 1 < dist for d, dist in nd.soft): return False
        return all(d.idx is not None and self.n - d.idx - 1 >= dist for d, dist in nd.deps)
    def wait(self, nd):
        if nd.need is not None and not nd.waited:
            self.out.append(I(None, "wl", need=nd.need)); nd.waited = True
    def emit(self, nd):
        self.wait(nd)
        for t in nd.t:
            if isinstance(t, I):
                self.out.append(t)
                if t.k != "l": self.n += 1
            else:
                self.out.append(I(t, nd.k, tag=nd.tag)); self.n += 1
        nd.idx = self.n - 1
    def raw(self, lst):
        for t in lst:
            t = t if isinstance(t, I) else I(t)
            self.out.append(t)
            if t.k not in ("l", "wl"): self.n += 1
    def pick(self, pool, free, dsmax):
        got = []; nds = 0; nsc = 0
        for nd in list(pool):
            if not self.ok(nd): continue
            if nd.k == "s":
                if nsc: continue
                nsc += 1
            else:
                if nd.cost > free: continue
                if nd.k == "ds":
                    if nds >= dsmax: continue
                    nds += 1
                free -= nd.cost
            got.append(nd); pool.remove(nd)
            if free <= 0 and nsc: break
        order = {"s": 0, "ds": 1, "vm": 2}
        got.sort(key=lambda nd: order.get(nd.k, 3))
        return got
    def drain_one(self, pool, relax=False):
        for nd in pool:
            if self.ok(nd, relax):
                pool.remove(nd); self.emit(nd); return True
        return False
    def run(self, mfs, pool, cap=2, dsmax=1, keep=()):
        for i, m in enumerate(mfs):
            guard = 0
            while not self.ok(m):
                if not self.drain_one(pool):
                    self.raw(["s_nop 0"]); guard += 1
                    assert guard < 40, ("stuck", m.t, [d.t for d, _ in m.deps if d.idx is None])
            self.emit(m)
            c = m.cap or cap
            left = c
            nx = mfs[i + 1] if i + 1 < len(mfs) else None
            if nx is not None and nx.need is not None and not nx.waited and all(d.idx is not None for d, _ in nx.deps if d.k == "ds"):
                self.wait(nx)
            def take(kinds, maxcost, low=True):
                for nd in pool:
                    if nd.k in kinds and nd.cost <= maxcost and (low or not nd.low) and self.ok(nd):
                        pool.remove(nd); self.emit(nd); return nd
                return None
            take(("s",), 0)
            nds = 0
            while nds < dsmax and left > 0 and take(("ds",), left, False): left -= 1; nds += 1
            if left >= 2 and take(("vm",), left): left -= 2
            while nds < dsmax and left > 0 and take(("ds",), left): left -= 1; nds += 1
            while left > 0:
                nd = None
                if left >= 2:
                    rdy = []
                    for x in pool:
                        if x.k in ("v", "t") and self.ok(x):
                            rdy.append(x)
                            if x.k == "t" or len(rdy) > 4: break
                    if rdy and rdy[-1].k == "t": nd = take(("t",), left)
                if not nd: nd = take(("v", "t"), left)
                if not nd: break
                left -= nd.cost
        guard = 0
        while any(nd not in keep for nd in pool):
            if not self.drain_one(pool) and not self.drain_one(pool, True):
                self.raw(["s_nop 0"]); guard += 1
                assert guard < 40, ("stuck", [nd.t for nd in pool[:3]])
            else: guard = 0

class Gen:
    def __init__(self, o):
        self.o = o
        self.rares = []
        self.plan()

    def kread_t(self, slot, f, buf):
        d8 = f >> 1; kt = f & 1
        return f"ds_read_b128 {Fr(buf)}, v{vK} offset:{slot*TILE + kt*8*PIECE + 64*d8}"
    def vread_t(self, slot, dt, sec, buf):
        c, b = Fx(buf); b += 2 * sec
        return f"ds_read_b64_tr_b16 {c}[{b}:{b+1}], v{vVo if dt & 1 else vVe} offset:{slot*TILE + sec*8*PIECE + 64*(dt>>1)}"
    def fread(self, u, f, part=None):
        if f < 16: return [I(self.kread_t((u + 1) % R, f, f), "ds", tag=(u, f))]
        return [I(self.vread_t(u % R, f - 16, sec, f), "ds", tag=(u, f)) for sec in range(2) if part is None or part == sec]

    def dma_m0(self, which, slot, j):
        base = slot * TILE + (VBASE if which == "V" else 0) + (PIECE - 1024) * j
        return I(f"s_add_u32 m0, s{sWb}, {base}", "s")
    def dma_ld(self, which, j):
        s, so, p = {"K": (sK, sKoff, self.o.kvpol), "V": (sV, sVoff, self.o.kvpol), "Q": (sQ, sQoff, self.o.qpol)}[which]
        return I(f"buffer_load_dwordx4 v{vD}, {srd(s)}, s{so} offen offset:{j*1024}{pol(p)} lds", "vm")
    def dma_adv(self, which):
        so = {"K": sKoff, "V": sVoff, "Q": sQoff}[which]
        return I(f"s_addk_i32 s{so}, {4096 if which == 'Q' else 16384}", "s")
    def dma_tile(self, which, slot):
        out = [self.dma_m0(which, slot, 0)]
        for j in range(4):
            out += [I("s_nop 0"), self.dma_ld(which, j)]
            if j < 3: out.append(I(f"s_addk_i32 m0, {PIECE-1024}", "s"))
        out.append(self.dma_adv(which))
        return out
    def dma_nodes(self, which, slot, deps, prev):
        out = []
        for j in range(4):
            m = Nd(self.dma_m0(which, slot, j).t, "s", deps=list(deps) + ([prev] if prev else []))
            l = Nd(self.dma_ld(which, j).t, "vm", deps=[(m, 1)])
            out += [m, l]; prev = l
        adv = Nd(self.dma_adv(which).t, "s", deps=[prev]); out.append(adv)
        return out, adv

    def qk_t(self, m, f, qt, buf):
        d8 = f >> 1; kt = f & 1
        return f"{MF} {Sr(m,qt,kt)}, {Fr(buf)}, {Qr(qt,d8)}, {'0' if d8 == 0 else Sr(m,qt,kt)}"
    def pv_t(self, m, dt, qt, buf, zero=False):
        return f"{MF} {Or(qt,dt)}, {Fr(buf)}, {Pr(m,qt)}, {'0' if zero else Or(qt,dt)}"

    def F_ops(self):
        o = self.o
        fm, ops, mx, last = {}, [], [], []
        for kt in range(2):
            for qt in range(4):
                for r in range(4):
                    k = 4 * kt + r
                    op = Op(f"fma{qt}{k}", (lambda m, qt=qt, k=k: f"v_fma_f32 v{X(m,qt,k)}, v{X(m,qt,k)}, s{sC}, v{vM[qt]}"), t0=56 + 4 * kt + qt + o.sdelay)
                    op.src = (qt, kt); fm[(qt, k)] = op; ops.append(op)
        for kt in range(2):
            vals = [(qt, 4 * kt + r) for qt in range(4) for r in range(4)]
            x = vX[kt]
            op = Op(f"mx{kt}0", (lambda m, x=x, a=vals[0], b=vals[1], c=vals[2]: f"v_max3_f32 v{x}, v{X(m,*a)}, v{X(m,*b)}, v{X(m,*c)}"), deps=[fm[v] for v in vals[:3]])
            mx.append(op); prev = op
            for j in range(3, 15, 2):
                op = Op(f"mx{kt}{j}", (lambda m, x=x, a=vals[j], b=vals[j + 1]: f"v_max3_f32 v{x}, v{x}, v{X(m,*a)}, v{X(m,*b)}"), deps=[prev, fm[vals[j]], fm[vals[j + 1]]])
                mx.append(op); prev = op
            last.append(prev)
        m1 = Op("mxa", (lambda m: f"v_max3_f32 v{vX[0]}, v{vX[0]}, v{X(m,3,3)}, v{X(m,3,7)}"), deps=[last[0], fm[(3, 3)], fm[(3, 7)]])
        m2 = Op("mxb", (lambda m: f"v_max_f32 v{vX[0]}, v{vX[0]}, v{vX[1]}"), deps=[m1, last[1]])
        cmp = Op("cmp", (lambda m: f"v_cmp_lt_f32 vcc, s{sThr}, v{vX[0]}"), deps=[m2])
        return mx + [m1, m2, cmp] + ops, cmp
    def E_ops(self, qts=range(4)):
        ex, ad, cv, Eexp, Epl = {}, {}, {}, [], []
        for qt in qts:
            for k in range(8):
                ex[(qt, k)] = Op(f"exp{qt}{k}", (lambda m, qt=qt, k=k: f"v_exp_f32 v{X(m,qt,k)}, v{X(m,qt,k)}"), cost=2)
                Eexp.append(ex[(qt, k)])
            for k in range(8):
                deps = [ex[(qt, k)]] + ([ad[(qt, k - 1)]] if k else [])
                ad[(qt, k)] = Op(f"add{qt}{k}", (lambda m, qt=qt, k=k: f"v_add_f32 v{vL[qt]}, v{vL[qt]}, v{X(m,qt,k)}"), deps=deps)
            for j in range(4):
                deps = [ex[(qt, 2 * j)], ex[(qt, 2 * j + 1)], ad[(qt, j)]] + ([cv[(qt, j >> 1)]] if j else [])
                cv[(qt, j)] = Op(f"cvt{qt}{j}", (lambda m, qt=qt, j=j: f"v_cvt_pk_bf16_f32 v{X(m,qt,j)}, v{X(m,qt,2*j)}, v{X(m,qt,2*j+1)}"), deps=deps)
            for k in range(8):
                Epl.append(ad[(qt, k)])
                if k & 1: Epl.append(cv[(qt, k >> 1)])
        return Eexp, Epl
    def to_nodes(self, ops, m, extra=None, only=None):
        nd = {}
        for op in ops:
            if only is not None and op.name not in only: continue
            nd[op] = Nd(op.fn(m), "t" if op.cost == 2 else "v"); nd[op].name = op.name
        for op, n in nd.items():
            for d in op.deps:
                if d in nd: n.deps.append((nd[d], 1 if d.cost == 2 else 0))
            if extra: n.deps += extra(op)
        return list(nd.values())
    @staticmethod
    def E_order(Eexp, Epl):
        return Epl + Eexp

    def plan(self):
        o = self.o
        used = [0] * NG
        self.ds_at = [[] for _ in range(NG)]
        g = o.bar_gap + 1
        self.npre = 0
        for f in range(32):
            want = 4 * f - o.look
            if f < 16 and want < 0:
                pos = max(want + NG, g)
                if pos < NG - 1:
                    self.ds_at[pos].append((f, None, True)); used[pos] += 1
                    g = pos + o.kstep; self.npre = f + 1
                    continue
                want = 0
            pos = want
            for p in ([None] if f < 16 else [0, 1]):
                while used[pos] > 0: pos += 1
                assert pos < o.bar_gap - 6 or f < 16
                self.ds_at[pos].append((f, p, False)); used[pos] += 1
        self.dma_at = {}
        pos = o.dma0
        for k in range(8):
            while used[pos] > 0 or pos % 4 == 0: pos += 1
            assert 0 < pos < o.bar_gap - 3
            self.dma_at[pos] = k
            used[pos] = 2
            pos += o.dmastep
        used[NG - 1] += 1
        for gq in range(o.bar_gap - o.bar_quiet + 1, o.bar_gap + 1): used[gq] = 2
        Fp, cmp = self.F_ops()
        self.va_at = [[] for _ in range(2 * NG)]
        rdy = lambda op, t: op.t0 <= t and all(d.t is not None and d.t < t for d in op.deps)
        t = 56
        pend = list(Fp)
        while pend:
            free = 2 - used[t % NG]
            for op in list(pend):
                if free <= 0: break
                if rdy(op, t):
                    op.t = t; self.va_at[t].append(op); pend.remove(op); used[t % NG] += 1; free -= 1
            t += 1
        self.t_br = cmp.t + 1
        busy = lambda g: g % 4 == 3 or (g + 1) in self.dma_at or ((g - 2) in self.dma_at and self.dma_at[g - 2] % 4 == 3) or g in (o.bar_gap, o.bar_gap - 1)
        while busy(self.t_br): self.t_br += 1
        assert self.t_br < NG - 2
        Eexp, Epl = self.E_ops()
        t = self.t_br
        while Eexp or Epl:
            assert t < NG + 62, "softmax does not fit"
            free = 2 - used[t % NG]
            backlog = sum(1 for op in Epl if all(d.t is not None for d in op.deps if d.cost == 2))
            if free == 2 and Eexp and backlog < o.backlog:
                op = Eexp.pop(0); op.t = t; self.va_at[t].append(op); used[t % NG] += 2
            else:
                for op in list(Epl):
                    if free == 0: break
                    if rdy(op, t):
                        op.t = t; self.va_at[t].append(op); Epl.remove(op); used[t % NG] += 1; free -= 1
                if free == 2 and Eexp:
                    op = Eexp.pop(0); op.t = t; self.va_at[t].append(op); used[t % NG] += 2
            t += 1
        self.part1 = {op.name for t in range(self.t_br, NG) for op in self.va_at[t]}
        self.part2 = {op.name for t in range(NG, 2 * NG) for op in self.va_at[t]}
        if o.verbose:
            print("cmp", cmp.t, "br", self.t_br, "end", t - NG, "npre", self.npre, "used", "".join(map(str, used)), file=sys.stderr)

    def body(self, u, lastu):
        o = self.o
        cur = u & 1; nxt = cur ^ 1
        out = []
        for g in range(NG):
            f = g >> 2; qt = g & 3
            out.append(I(self.qk_t(nxt, f, qt, f) if f < 16 else self.pv_t(cur, f - 16, qt, f), "m"))
            sc, ds, vm, va = [], [], [], []
            if g % 4 == 3:
                f1 = (g + 1) // 4
                sc.append(I(None, "wl", need=(u, f1) if f1 < 32 else ((u + 1) % R, 0)))
            if g == o.bar_gap - 1: sc.append(I(f"s_waitcnt vmcnt({o.vm_wait}) lgkmcnt(0)", "w0"))
            if g == o.bar_gap: sc.append(I("s_barrier"))
            desc = lambda k: ("K", u % R, k) if k < 4 else ("V", (u - 1) % R, k - 4)
            if g + 1 in self.dma_at: sc.append(self.dma_m0(*desc(self.dma_at[g + 1])))
            if g in self.dma_at:
                wh, _, j = desc(self.dma_at[g]); vm.append(self.dma_ld(wh, j))
            if g - 2 in self.dma_at and self.dma_at[g - 2] % 4 == 3: sc.append(self.dma_adv(desc(self.dma_at[g - 2])[0]))
            for (ff, p, nx) in self.ds_at[g]: ds += self.fread((u + 1) % R if nx else u, ff, p)
            if g == self.t_br:
                sc += [I(f"s_cbranch_vccnz L_rare{u}", "s"), I(f"L_back{u}:", "l")]
                self.rares.append(self.rare(str(u), nxt, [cur], [vT, vT + 1, vT + 2, vT + 3]))
            for op in self.va_at[g + NG]: va.append(I(op.fn(cur), "v"))
            for op in self.va_at[g]: va.append(I(op.fn(nxt), "v"))
            if u == lastu and g == NG - 3: sc.append(I(f"s_sub_u32 s{sCnt}, s{sCnt}, 1", "s"))
            if u == lastu and g == NG - 2: sc.append(I(f"s_cmp_lg_u32 s{sCnt}, 0", "s"))
            out += sc + ds + vm + va
        if u == lastu: out.append(I("s_cbranch_scc1 L_loop", "s"))
        return out

    def rare(self, name, m, pend, tmp):
        out = [I(f"L_rare{name}:", "l")]
        a = lambda t: out.append(I(t))
        t, t2, f, t3 = tmp
        a("s_nop 15")
        for qt in range(4):
            x = lambda k: X(m, qt, k)
            a(f"v_max3_f32 v{t}, v{x(0)}, v{x(1)}, v{x(2)}")
            a(f"v_max3_f32 v{t}, v{t}, v{x(3)}, v{x(4)}")
            a(f"v_max3_f32 v{t}, v{t}, v{x(5)}, v{x(6)}")
            a(f"v_max_f32 v{t}, v{t}, v{x(7)}")
            for sw in ("v_permlane16_swap_b32", "v_permlane32_swap_b32"):
                a(f"v_mov_b32 v{t2}, v{t}"); a("s_nop 1"); a(f"{sw} v{t}, v{t2}"); a("s_nop 1"); a(f"v_max_f32 v{t}, v{t}, v{t2}")
            a(f"v_ceil_f32 v{t}, v{t}")
            a(f"v_max_f32 v{t}, 0, v{t}")
            a(f"v_sub_f32 v{vM[qt]}, v{vM[qt]}, v{t}")
            for k in range(8): a(f"v_sub_f32 v{x(k)}, v{x(k)}, v{t}")
            a(f"v_min_f32 v{t2}, 0x43480000, v{t}")
            a(f"v_cvt_i32_f32 v{t2}, v{t2}")
            a(f"v_sub_u32 v{t2}, 0, v{t2}")
            a(f"v_ldexp_f32 v{f}, 1.0, v{t2}")
            a(f"v_mul_f32 v{vL[qt]}, v{vL[qt]}, v{f}")
            for pm in pend:
                for j in range(4):
                    p = X(pm, qt, j)
                    a(f"v_lshlrev_b32 v{t}, 16, v{p}")
                    a(f"v_and_b32 v{t2}, 0xffff0000, v{p}")
                    a(f"v_mul_f32 v{t}, v{t}, v{f}")
                    a(f"v_mul_f32 v{t2}, v{t2}, v{f}")
                    a(f"v_cvt_pk_bf16_f32 v{p}, v{t}, v{t2}")
            for a0 in range(qt * 64, qt * 64 + 64, 2):
                a(f"v_accvgpr_read_b32 v{t}, a{a0}"); a(f"v_accvgpr_read_b32 v{t2}, a{a0+1}")
                a(f"v_mul_f32 v{t}, v{t}, v{f}"); a(f"v_mul_f32 v{t2}, v{t2}, v{f}")
                a(f"v_accvgpr_write_b32 a{a0}, v{t}"); a(f"v_accvgpr_write_b32 a{a0+1}, v{t2}")
        a("s_nop 1")
        a(f"s_branch L_back{name}")
        return out

    def stamp(self, idx):
        if not self.o.stamps: return []
        return [I(f"s_memtime s[{40+2*idx}:{41+2*idx}]", "sm"), I(f"s_memrealtime s[{68+2*idx}:{69+2*idx}]", "sm")]

    def frag_stream(self, specs, j0, users_prev=None):
        fr = []
        for j, (kind, slot, idx, tag, deps, *bb) in enumerate(specs):
            buf = bb[0] if bb else j0 + j
            if kind == "done": nodes = []
            elif kind == "K": nodes = [Nd(self.kread_t(slot, idx, buf), "ds", deps=list(deps), tag=tag)]
            else: nodes = [Nd(self.vread_t(slot, idx, s, buf), "ds", deps=list(deps), tag=tag) for s in range(2)]
            fr.append(dict(nodes=nodes, buf=buf, tag=tag, users=[]))
        prev = None
        for f in fr:
            for n in f["nodes"]:
                if prev: n.deps.append((prev, 0))
                prev = n
        return fr
    def link_users(self, fr, depth):
        for j, f in enumerate(fr):
            if j - depth >= 0 and fr[j - depth]["users"]:
                for n in f["nodes"]: n.deps.append((fr[j - depth]["users"][-1], 0))
    def mf(self, f, text, deps=(), cap=None):
        first = not f["users"]
        m = Nd(text, "m", deps=list(deps) + [(n, 0) for n in f["nodes"]], need=f["tag"] if first else None, cap=cap)
        f["users"].append(m)
        return m

    def prologue(self):
        o = self.o
        S = Sched()
        a = lambda t, k="o", **kw: S.raw([I(t, k, **kw)])
        lane, w, t0, t1, t2, vQr = vT + 8, vT + 9, vT + 10, vT + 11, vT + 12, vT + 14
        a("s_cmpk_ge_u32 s2, 0x100")
        a("s_cbranch_scc1 L_end")
        a("s_load_dwordx8 s[28:35], s[0:1], 0", "sm")
        if o.stamps:
            a(f"s_load_dwordx2 s[36:37], s[0:1], {32 if o.dbg else 40}", "sm")
            a("s_memrealtime s[38:39]", "sm")
            S.raw(self.stamp(0))
        if o.codepf:
            a("s_getpc_b64 s[96:97]")
            a(f"v_lshlrev_b32 v{t0}, 7, v0")
            a(f"global_load_dword v{vT+15}, v{t0}, s[96:97]", "vm")
        a(f"v_lshrrev_b32 v{w}, 6, v0")
        a(f"v_and_b32 v{lane}, 63, v0")
        a(f"v_and_b32 v{t1}, 32, v0")
        a(f"v_readfirstlane_b32 s{sWb}, v{w}")
        a(f"v_lshlrev_b32 v{vD}, 4, v{lane}")
        a(f"v_xor_b32 v{vD}, v{vD}, v{t1}")
        a("s_lshr_b32 s3, s2, 4")
        a("s_and_b32 s87, s2, 7")
        a("s_lshl3_add_u32 s3, s3, s87")
        a("s_and_b32 s87, s2, 8")
        a(f"s_lshl1_add_u32 s{sRow}, s{sWb}, s87")
        a(f"s_lshl_b32 s{sQoff}, s{sRow}, 14")
        a(f"s_lshl_b32 s{sKoff}, s{sWb}, 12")
        a(f"s_mulk_i32 s{sWb}, {4*PIECE}")
        a("s_mul_i32 s87, s3, 253952")
        a(f"s_mov_b32 s{sQ+2}, 253952")
        a(f"s_mov_b32 s{sQ+3}, 0x20000")
        a(f"s_add_u32 m0, s{sWb}, {8*TILE}")
        a(f"s_movk_i32 s{sCnt}, 4")
        a("s_waitcnt lgkmcnt(0)", "w0")
        a(f"s_add_u32 s{sQ}, s28, s87")
        a(f"s_addc_u32 s{sQ+1}, s29, 0")
        a("L_q:", "l")
        for j in range(4):
            S.raw([self.dma_ld("Q", j)])
            if j < 3:
                a(f"s_addk_i32 m0, {PIECE-1024}", "s")
                a(f"s_sub_u32 s{sCnt}, s{sCnt}, 1" if j == 0 else "s_nop 0")
        a(f"s_addk_i32 m0, {-(TILE + 3*(PIECE-1024))}", "s")
        S.raw([self.dma_adv("Q")])
        a(f"s_cmp_lg_u32 s{sCnt}, 0")
        a("s_cbranch_scc1 L_q")
        a("s_lshl_b32 s3, s3, 19")
        for (s, p) in ((sK, 30), (sV, 32)):
            a(f"s_add_u32 s{s}, s{p}, s3")
            a(f"s_addc_u32 s{s+1}, s{p+1}, 0")
            a(f"s_mov_b32 s{s+2}, 524288")
            a(f"s_mov_b32 s{s+3}, 0x20000")
        a(f"s_mov_b32 s{sVoff}, s{sKoff}")
        S.raw(self.dma_tile("K", 0) + self.dma_tile("K", 1) + self.dma_tile("V", 0))
        a(f"s_add_u32 s{sO}, s34, s87")
        a(f"s_addc_u32 s{sO+1}, s35, 0")
        a(f"s_mov_b32 s{sO+2}, 253952")
        a(f"s_mov_b32 s{sO+3}, 0x20000")
        a(f"s_lshl_b32 s{sRow}, s{sRow}, 14")
        for k in range(1, 8): a(f"s_add_u32 s{sRG[k]}, s{sRow}, {k*4096}")
        a(f"v_and_b32 v{t2}, 1, v{lane}")
        a(f"v_lshlrev_b32 v{t0}, 9, v{t2}")
        a(f"v_lshlrev_b32 v{t2}, 5, v{t2}")
        a(f"v_lshrrev_b32 v{t1}, 4, v{lane}")
        a(f"v_lshlrev_b32 v{t1}, 4, v{t1}")
        a(f"v_xor_b32 v{t1}, v{t1}, v{t2}")
        a(f"v_add_u32 v{t0}, v{t0}, v{t1}")
        a(f"v_bfe_u32 v{t1}, v{lane}, 1, 2")
        a(f"v_mul_u32_u24 v{t1}, {PIECE}, v{t1}")
        a(f"v_add_u32 v{t0}, v{t0}, v{t1}")
        a(f"v_bfe_u32 v{t1}, v{lane}, 3, 1")
        a(f"v_mul_u32_u24 v{vK}, {4*PIECE}, v{t1}")
        a(f"v_add_u32 v{vK}, v{vK}, v{t0}")
        a(f"v_xor_b32 v{t1}, 1, v{t1}")
        a(f"v_mul_u32_u24 v{vQr}, {TILE}, v{t1}")
        a(f"v_add_u32 v{vQr}, v{vQr}, v{t0}")
        a(f"s_add_u32 s87, s{sWb}, {5*TILE}")
        a(f"v_add_u32 v{vQr}, s87, v{vQr}")
        a(f"v_subrev_u32 v{vQr-1}, {3*TILE}, v{vQr}")
        a(f"v_lshrrev_b32 v{t0}, 3, v{lane}")
        a(f"v_mul_u32_u24 v{t0}, {PIECE}, v{t0}")
        a(f"v_bfe_u32 v{t2}, v{lane}, 2, 1")
        a(f"v_lshl_add_u32 v{t0}, v{t2}, 9, v{t0}")
        a(f"v_and_b32 v{t1}, 3, v{lane}")
        a(f"v_lshl_add_u32 v{t0}, v{t1}, 3, v{t0}")
        a(f"v_add_u32 v{t0}, {VBASE}, v{t0}")
        a(f"v_lshl_add_u32 v{vVe}, v{t2}, 5, v{t0}")
        a(f"v_xor_b32 v{vVo}, 32, v{vVe}")
        c = 1.4426950408889634 / 16.0
        a(f"s_mov_b32 s{sC}, {hex(f32bits(c))}")
        a(f"s_mov_b32 s{sNC}, {hex(f32bits(-c))}")
        a(f"s_mov_b32 s{sThr}, {hex(f32bits(o.thr))}")
        a(f"s_movk_i32 s{sCnt}, 7")
        for l in vL: a(f"v_mov_b32 v{l}, 0")
        def qchunks(hi_slot):
            out = []
            for sl in (hi_slot, hi_slot - 1):
                out += self.dma_tile("Q", sl)
            return out
        def qread(qt):
            base, off = {0: (vQr, 2 * TILE), 1: (vQr, 0), 2: (vQr - 1, 0), 3: (vQr, 2 * TILE)}[qt]
            return [I(f"ds_read_b128 {Qr(qt,d8)}, v{base} offset:{off + 64*d8}", "ds", tag=("q", qt, d8)) for d8 in range(8)]
        S.raw(qchunks(3))
        a("s_waitcnt vmcnt(28)")
        S.raw(qread(0))
        a("s_waitcnt vmcnt(20) lgkmcnt(0)", "w0")
        S.raw(qread(1))
        a("s_waitcnt vmcnt(8) lgkmcnt(0)", "w0")
        a("s_barrier")
        if o.stamps: S.raw(self.stamp(1))
        groups = [[0, 1], [2], [3]]
        specs = [("K", 0, f, ("p", 0, 0, f), []) for f in range(16)]
        specs += [("K", 1, f, ("p", 0, 1, f), []) for f in range(16)]
        specs += [("V", 0, d, ("p", 0, 2, d), []) for d in range(16)]
        fr = self.frag_stream(specs, 0)
        bar = Nd([I("s_waitcnt vmcnt(12) lgkmcnt(0)", "w0"), I("s_barrier")], "s")
        one = lambda kind, slot, idx, tag, buf, deps=(): self.frag_stream([(kind, slot, idx, tag, list(deps), buf)], 0)[0]
        K0p = [one("K", 0, f, ("k0", f), ("a", 192 + 4 * f)) for f in range(16)]
        k1a = [("v", 128), ("v", 132), ("v", 136), ("v", 140), ("v", 246), ("v", 96), ("v", 100), ("v", 104)] + list(range(8))
        K1p = [one("K", 1, f, ("k1", f), k1a[f]) for f in range(16)]
        K1q = {5: one("K", 1, 5, ("k1b", 5), ("v", 144)), 6: one("K", 1, 6, ("k1b", 6), ("v", 148)), 7: one("K", 1, 7, ("k1b", 7), ("v", 242))}
        V2p = [one("V", 0, d, ("v2", d), ("a", 132 + 4 * d) if d < 15 else ("v", 242)) for d in range(16)]
        V3p = [one("V", 0, d, ("v3", d), ("a", 196 + 4 * d) if d < 15 else ("v", 128)) for d in range(16)]
        K2p = self.frag_stream([("K", 2, f, (1, f), [bar], f) for f in range(self.npre)], 0)
        again = lambda f: dict(nodes=f["nodes"], buf=f["buf"], tag=f["tag"], users=[])
        fr_all = fr + K0p + K1p + V2p + [again(f) for f in K0p] + [K1q.get(j) or again(f) for j, f in enumerate(K1p)] + V3p
        regions = []
        for gi, qts in enumerate(groups):
            F = fr_all[48 * gi:48 * gi + 48]
            mfs, pool = [], []
            lastm = {}
            for tl in range(2):
                for f in range(16):
                    for qt in qts:
                        m = self.mf(F[16 * tl + f], self.qk_t(tl, f, qt, F[16 * tl + f]["buf"])); mfs.append(m); lastm[(tl, qt, f & 1)] = m
            pdone = {}
            for qi, qt in enumerate(qts):
                t, t2 = vT + 2 * qi, vT + 2 * qi + 1
                vals = [(tl, k) for tl in range(2) for k in range(8)]
                src = lambda v: (lastm[(v[0], qt, v[1] >> 2)], 8)
                rg = lambda v: f"v{X(v[0], qt, v[1])}"
                ch = [Nd(f"v_max3_f32 v{t}, {rg(vals[0])}, {rg(vals[1])}, {rg(vals[2])}", "v", deps=[src(v) for v in vals[:3]])]
                for j in range(3, 15, 2):
                    ch.append(Nd(f"v_max3_f32 v{t}, v{t}, {rg(vals[j])}, {rg(vals[j+1])}", "v", deps=[ch[-1], src(vals[j]), src(vals[j + 1])]))
                ch.append(Nd(f"v_max_f32 v{t}, v{t}, {rg(vals[15])}", "v", deps=[ch[-1], src(vals[15])]))
                for sw in ("v_permlane16_swap_b32", "v_permlane32_swap_b32"):
                    ch.append(Nd(f"v_mov_b32 v{t2}, v{t}", "v", deps=[ch[-1]]))
                    ch.append(Nd(f"{sw} v{t}, v{t2}", "v", deps=[(ch[-1], 2)]))
                    ch.append(Nd(f"v_max_f32 v{t}, v{t}, v{t2}", "v", deps=[(ch[-1], 1)]))
                mm = Nd(f"v_mul_f32 v{vM[qt]}, s{sNC}, v{t}", "v", deps=[ch[-1]]); ch.append(mm)
                fma = {v: Nd(f"v_fma_f32 {rg(v)}, {rg(v)}, s{sC}, v{vM[qt]}", "v", deps=[mm]) for v in vals}
                E0 = self.to_nodes(self.E_order(*self.E_ops([qt])), 0, extra=lambda op: [(fma[(0, int(op.name[4]))], 0)] if op.name.startswith("exp") else [])
                lastadd0 = [n for n in E0 if n.name == f"add{qt}7"][0]
                E1 = self.to_nodes(self.E_order(*self.E_ops([qt])), 1, only=self.part1,
                                   extra=lambda op: [(fma[(1, int(op.name[4]))], 0)] if op.name.startswith("exp") else ([(lastadd0, 0)] if op.name.startswith("add") else []))
                pdone[qt] = [n for n in E0 if n.name.startswith("cvt")]
                crit = [n for n in E0 if not n.name.startswith("add") or int(n.name[4]) < 4]
                rest = [n for n in E0 if n not in crit]
                pool.append((ch + [fma[v] for v in vals[:8]] + crit, rest + [fma[v] for v in vals[8:]] + E1))
            for d in range(16):
                for qt in qts:
                    mfs.append(self.mf(F[32 + d], self.pv_t(0, d, qt, F[32 + d]["buf"], zero=True), deps=[(n, 2) for n in pdone[qt]]))
            hi = [n for tup in zip(*[p[0] for p in pool]) for n in tup]
            lo = sum((p[1] for p in pool), [])
            regions.append((mfs, hi + lo))
        self.link_users(fr, o.pdepth)
        dsn = lambda F: [n for f in F for n in f["nodes"]]
        def after(F, m):
            for n in dsn(F): n.deps.append((m, 0))
        m0, m1, mfs = regions[0][0], regions[1][0], regions[2][0]
        after(K1p[:4] + V2p[15:], m0[-1])
        for n in dsn(K0p + K1p + V2p): n.low = True
        for j in range(8): after([K1p[8 + j]], fr[40 + j]["users"][-1])
        after(list(K1q.values()), m1[-1])
        for d in range(16): after([V3p[d]], mfs[d + 1])
        q3a, e = self.dma_nodes("Q", 8, [], None)
        q3b, e = self.dma_nodes("Q", 7, [], e)
        v1, e = self.dma_nodes("V", 1, [], e)
        dm = q3a + q3b + v1
        k = 0
        for n in dm:
            if n.k == "vm":
                n.soft.append((m0[min(len(m0) - 1, o.g0_dma0 + o.g0_dmastep * k)], 0)); k += 1
        S.run(m0, dsn(fr) + dm + regions[0][1] + dsn(K0p + K1p[4:8] + V2p[:15] + K1p[8:] + K1p[:4] + V2p[15:]), cap=o.pro_cap, dsmax=2)
        a("s_waitcnt vmcnt(12)")
        S.raw(qread(2))
        for d8 in range(8): m1[2 * d8].need = ("q", 2, d8)
        k2, e = self.dma_nodes("K", 2, [(m1[15], 0)], None)
        S.run(m1, k2 + regions[1][1] + dsn(K1q.values()), cap=o.pro_cap)
        a("s_waitcnt vmcnt(8)")
        if o.stamps: S.raw(self.stamp(2))
        S.raw(qread(3))
        for d8 in range(8): mfs[2 * d8].need = ("q", 3, d8)
        d1, e1 = self.dma_nodes("K", 3, [(mfs[o.pro_dma], 0)], None)
        d2, e2 = self.dma_nodes("V", 2, [], e1)
        d3, e3 = self.dma_nodes("V", 3, [(mfs[15], 0)], e2)
        d4, e4 = self.dma_nodes("K", 0, [bar], e3)
        for j in range(1, 16): V3p[j]["nodes"][0].deps.append((V3p[j - 1]["nodes"][-1], 0))
        bar.deps = [(V3p[15]["nodes"][-1], o.pro_bar), (e3, 0), (mfs[o.pro_barm], 0)]
        S.run(mfs, dsn(V3p) + regions[2][1] + d1 + d2 + d3 + [bar] + dsn(K2p) + d4, cap=o.pro_cap, dsmax=1)
        S.raw([I(None, "wl", need=(1, 0))])
        if o.stamps: S.raw(self.stamp(3) + self.stamp(4))
        return S.out

    def tail(self):
        o = self.o
        S = Sched()
        a = lambda t, k="o", **kw: S.raw([I(t, k, **kw)])
        M29, M30, M31 = 1, 0, 2
        bar = Nd([I("s_waitcnt vmcnt(0)"), I("s_barrier")], "s")
        specs = [("done" if f < self.npre else "K", 2, f, (1, f), []) for f in range(16)]
        specs += [("K", 3, f, ("t", 31, f), [bar] if f == 0 else []) for f in range(16)]
        pvorder = [(tl, 4 * cb + d) for cb in range(4) for tl in range(3) for d in range(4)]
        specs += [("V", 1 + tl, dt, ("t", "v", tl, dt), []) for tl, dt in pvorder]
        fr = self.frag_stream(specs, 0)
        E29 = self.to_nodes(self.E_order(*self.E_ops()), M29, only=self.part2)
        mfs, lastm = [], {}
        for f in range(16):
            for qt in range(4):
                m = self.mf(fr[f], self.qk_t(M30, f, qt, f)); mfs.append(m); lastm[(30, qt, f & 1)] = m
        mfs[0].waited = True
        ln, t0, t1, t2 = vT, vT + 1, vT + 2, vT + 3
        vW0, vR, vQ = vD, vA, vB
        ad = [f"v_mbcnt_lo_u32_b32 v{ln}, -1, 0", f"v_mbcnt_hi_u32_b32 v{ln}, -1, v{ln}",
              f"v_and_b32 v{t0}, 15, v{ln}", f"v_lshlrev_b32 v{t0}, 7, v{t0}",
              f"v_bfe_u32 v{t1}, v{ln}, 4, 1", f"v_lshl_add_u32 v{t0}, v{t1}, 3, v{t0}", f"v_add_u32 v{t0}, s{sWb}, v{t0}",
              f"v_lshrrev_b32 v{t1}, 5, v{ln}", f"v_and_b32 v{t2}, 7, v{ln}", f"v_xor_b32 v{t1}, v{t1}, v{t2}",
              f"v_lshl_add_u32 v{vW0}, v{t1}, 4, v{t0}",
              f"v_lshrrev_b32 v{t0}, 3, v{ln}", f"v_xor_b32 v{t1}, v{t0}, v{t2}", f"v_lshlrev_b32 v{t1}, 4, v{t1}",
              f"v_lshl_add_u32 v{vR}, v{t0}, 7, v{t1}", f"v_add_u32 v{vR}, s{sWb}, v{vR}",
              f"v_lshlrev_b32 v{t2}, 4, v{t2}", f"v_lshl_add_u32 v{vQ}, v{t0}, 9, v{t2}"]
        adn = []
        for x in ad: adn.append(Nd(x, "v", deps=[adn[-1]] if adn else []))
        q31 = []
        for f in range(16):
            for qt in range(4):
                deps = []
                if f < 2: deps = [(n, 0) for n in E29] + [(adn[-1], 0)]
                m = self.mf(fr[16 + f], self.qk_t(M31, f, qt, 16 + f), deps=deps, cap=o.cap31); mfs.append(m); q31.append(m); lastm[(31, qt, f & 1)] = m
        bar.deps = [(mfs[o.tail_bar], 0)]
        def FE(tile, m, prevE, prevbr, pend, tmp, brdeps):
            Fp, cmp = self.F_ops()
            ex = lambda op: ([(lastm[(tile,) + op.src], 8)] + ([(prevbr, 0)] if prevbr else [])) if op.name.startswith("fma") else ([(n, 0) for n in prevE] if op.name == "cmp" else ([(prevbr, 0)] if prevbr else []))
            Fn = self.to_nodes(Fp, m, extra=ex)
            cn = [n for n in Fn if n.name == "cmp"][0]
            br = Nd([I(f"s_cbranch_vccnz L_rare{tile}", "s"), I(f"L_back{tile}:", "l")], "s", deps=[(cn, 1)] + brdeps)
            self.rares.append(self.rare(str(tile), m, pend, tmp))
            En = self.to_nodes(self.E_order(*self.E_ops()), m, extra=lambda op: [(br, 0)] if op.name.startswith("exp") else [])
            return Fn, br, En
        F30, br30, E30 = FE(30, M30, E29, None, [M29], [vX[0], vX[1], 0, 1], [(q31[8], 0)])
        F31, br31, E31 = FE(31, M31, E30, br30, [M29, M30], [vX[0], vX[1], 0, 1], [])
        Pd = {}
        for tl, E in enumerate((E29, E30, E31)):
            for qt in range(4): Pd[(tl, qt)] = [n for n in E if n.name.startswith(f"cvt{qt}")]
        lastpv = {}
        maps = [M29, M30, M31]
        for j, (tl, dt) in enumerate(pvorder):
            for qt in range(4):
                cap = o.cap_a if j < 8 else (o.cap_b if j < 12 else o.cap_c)
                m = self.mf(fr[32 + j], self.pv_t(maps[tl], dt, qt, 32 + j), deps=[(n, 2) for n in Pd[(tl, qt)]], cap=cap)
                mfs.append(m); lastpv[(qt, dt)] = m
        self.link_users(fr, o.pdepth)
        inv = [112 + 2 * qt for qt in range(4)]
        vW = [vW0, 120, 121, 122]
        small = []
        chains = []
        for qt in range(4):
            t, t2 = inv[qt], inv[qt] + 1
            la = [n for n in E31 if n.name == f"add{qt}7"][0]
            ch = [Nd(f"v_mov_b32 v{t2}, v{vL[qt]}", "v", deps=[la, (q31[-1], 0)])]
            ch.append(Nd(f"v_permlane16_swap_b32 v{vL[qt]}, v{t2}", "v", deps=[(ch[-1], 2)]))
            ch.append(Nd(f"v_add_f32 v{t}, v{vL[qt]}, v{t2}", "v", deps=[(ch[-1], 1)]))
            ch.append(Nd(f"v_mov_b32 v{t2}, v{t}", "v", deps=[ch[-1]]))
            ch.append(Nd(f"v_permlane32_swap_b32 v{t}, v{t2}", "v", deps=[(ch[-1], 2)]))
            ch.append(Nd(f"v_add_f32 v{t}, v{t}, v{t2}", "v", deps=[(ch[-1], 1)]))
            ch.append(Nd(f"v_rcp_f32 v{t}, v{t}", "t", deps=[ch[-1]]))
            chains.append(ch)
        small = [n for tup in zip(*chains) for n in tup]
        wn = [Nd(f"v_xor_b32 v{vW[k]}, {32*k}, v{vW0}", "v", deps=[(q31[-1], 0), adn[-1]]) for k in range(1, 4)]
        conv = []
        wr_prev = {}; st_prev = {}; rd_prev = {}
        lastds = None
        for i, (cb, qt) in enumerate([(cb, qt) for cb in range(4) for qt in range(4)]):
            b = 16 * (i % 4)
            pk = cb == 3
            a0 = Ob(qt, 4 * cb)
            war = [(wr_prev[i % 4], 1)] if i % 4 in wr_prev else [(br31, 0)]
            rdn = [Nd(f"v_accvgpr_read_b32 v{b+k}, a{a0+k}", "v", deps=[(lastpv[(qt, 4 * cb + (k >> 2))], 8)] + war) for k in range(16)]
            iv = (chains[qt][-1], 1)
            if pk: mu = [Nd(f"v_pk_mul_f32 v[{b+2*k}:{b+2*k+1}], v[{b+2*k}:{b+2*k+1}], v[{inv[qt]}:{inv[qt]+1}] op_sel_hi:[1,0]", "v", deps=[rdn[2 * k], rdn[2 * k + 1], iv]) for k in range(8)]
            else: mu = [Nd(f"v_mul_f32 v{b+k}, v{b+k}, v{inv[qt]}", "v", deps=[rdn[k], iv]) for k in range(16)]
            cv = []
            for k in range(8):
                deps = ([mu[k]] if pk else [mu[2 * k], mu[2 * k + 1]]) + ([cv[-1]] if cv else [])
                cv.append(Nd(f"v_cvt_pk_bf16_f32 v{b+k}, v{b+2*k}, v{b+2*k+1}", "v", deps=deps))
            rb = qt >> 1
            wr = []
            for k in range(4):
                deps = [cv[2 * k + 1]] + ([wn[k - 1]] if k else []) + ([rd_prev[rb]] if rb in rd_prev else [(bar, 0)]) + ([wr[-1]] if wr else [])
                wr.append(Nd(f"ds_write_b64 v{vW[k]}, v[{b+2*k}:{b+2*k+1}] offset:{rb*TILE + (qt&1)*2048}", "ds", deps=deps, tag=("w", i, k)))
            wr_prev[i % 4] = wr[-1]
            conv += wr + rdn + mu + cv
            if qt & 1:
                rbuf = 64 + 16 * ((i >> 1) % 3)
                u2 = (i >> 1) % 3
                rds = []
                for k in range(4):
                    deps = [wr[-1], prev_wr] + ([(st_prev[u2], 2)] if u2 in st_prev else []) + ([rds[-1]] if rds else [])
                    rds.append(Nd(f"ds_read_b128 v[{rbuf+4*k}:{rbuf+4*k+3}], v{vR} offset:{rb*TILE + k*1024}", "ds", deps=deps, tag=("r", i, k)))
                rd_prev[rb] = rds[-1]
                sts = []
                for k in range(4):
                    kk = 4 * rb + k
                    so = f"s{sRow}" if kk == 0 else f"s{sRG[kk]}"
                    sts.append(Nd(f"buffer_store_dwordx4 v[{rbuf+4*k}:{rbuf+4*k+3}], v{vQ}, {srd(sO)}, {so} offen offset:{128*cb}{pol(o.opol)}", "vm",
                                  deps=[rds[k]] + ([sts[-1]] if sts else []), soft=[(rds[k], o.st_dist)], need=("r", i, k)))
                st_prev[u2] = sts[-1]
                conv = self._hoist(conv, rds + sts)
            prev_wr = wr[-1]
        ds = [n for f in fr for n in f["nodes"]]
        pool = ds + [bar] + E29 + [br30] + F30 + adn + E30 + [br31] + F31 + E31 + small + wn + conv
        S.run(mfs, pool, dsmax=o.tail_dsmax)
        T = S.out
        a2 = lambda t, k="o": T.append(I(t, k))
        if o.stamps:
            T += self.stamp(6) + self.stamp(7)
            a2("s_waitcnt vmcnt(0)")
            T += self.stamp(8)
            a2("s_memrealtime s[58:59]", "sm")
            a2("s_getreg_b32 s60, hwreg(HW_REG_XCC_ID)")
            a2("s_getreg_b32 s61, hwreg(HW_REG_HW_ID)")
            a2("s_waitcnt lgkmcnt(0)")
            a2(f"s_mov_b32 s64, s36"); a2("s_mov_b32 s65, s37"); a2(f"s_mov_b32 s66, 0x1000000"); a2("s_mov_b32 s67, 0x20000")
            a2(f"s_lshl_b32 s62, s2, 10")
            a2(f"s_mul_hi_u32 s63, s{sWb}, {(2**32)//(4*PIECE)+1}")
            a2(f"s_lshl_b32 s63, s63, 8")
            a2(f"s_add_u32 s62, s62, s63")
            a2(f"v_mov_b32 v1, 0")
            for k in range(24):
                a2(f"v_mov_b32 v0, s{38+k}")
                a2(f"buffer_store_dword v0, v1, s[64:67], s62 offen offset:{4*k}")
            for k in range(18):
                a2(f"v_mov_b32 v0, s{68+k}")
                a2(f"buffer_store_dword v0, v1, s[64:67], s62 offen offset:{128+4*k}")
        return T

    @staticmethod
    def _hoist(conv, hot):
        k = 0
        while k < len(conv) and getattr(conv[k], "hot", False): k += 1
        for n in hot: n.hot = True
        return conv[:k] + hot + conv[k:]

    def build(self):
        o = self.o
        pro = self.prologue()
        order = [1, 2, 3, 0]
        loop = [I("L_loop:", "l")] + sum((self.body(u, 0) for u in order), [])
        tl = self.stamp(5) + self.tail()
        trace = pro + loop + loop + tl
        self.resolve_waits(trace)
        lines = [it.t for it in trace if it.t and not it.skip and it.k != "l"]
        errs = hz.check(lines)
        for r in self.rares: errs += hz.check([it.t for it in r if it.k != "l"])
        for e in sorted(set(errs))[:20]: print(e, file=sys.stderr)
        assert not errs, "hazards"
        if o.verbose:
            cnt = lambda l: sum(1 for it in l if it.t and not it.skip and it.k != "l")
            print("instr: prologue", cnt(pro), "loop", cnt(loop), "tail", cnt(tl), file=sys.stderr)
        return pro + [I(".p2align 6" if o.align else "", "l")] + loop + tl + [I("L_end:", "l"), I("s_endpgm")] + sum(self.rares, [])

    def resolve_waits(self, trace):
        ds = []
        for it in trace:
            if it.k == "ds": ds.append(it.tag)
            elif it.k == "wl":
                idx = max(j for j, t in enumerate(ds) if t == it.need)
                n = min(14, len(ds) - 1 - idx)
                it.n = n if it.n is None else min(it.n, n)
        needed = set()
        ds = []; done = 0
        for it in trace:
            if it.k == "ds": ds.append(it.tag)
            elif it.k == "w0": done = len(ds)
            elif it.k == "wl":
                idx = max(j for j, t in enumerate(ds) if t == it.need)
                if idx >= done: needed.add(id(it))
                done = max(done, len(ds) - it.n) if id(it) in needed else done
        for it in trace:
            if it.k == "wl":
                it.skip = id(it) not in needed
                it.t = f"s_waitcnt lgkmcnt({it.n})"

    def text(self):
        body = self.build()
        hdr = open("standalone__mha_softmax__near_ridge.s.ref").read().split("\n")
        top = []
        for ln in hdr:
            if ln.startswith("; @launch"): break
            top.append(ln)
        out = top + [f"; @launch grid=(256,1,1) block=(256,1,1) lds={LDS_BYTES}",
                     "; generated by my own generator script (flash-attention forward, 4 waves x 64 q rows, 32-key tiles)",
                     '.amdgcn_target "amdgcn-amd-amdhsa--gfx950"', ".text", f".globl {KNAME}", ".p2align 8",
                     f".type {KNAME},@function", f"{KNAME}:"]
        for it in body:
            if it.skip or not it.t: continue
            out.append(("" if it.k == "l" else "    ") + it.t)
        out += ['.section .rodata,"a"', ".p2align 6", f".amdhsa_kernel {KNAME}",
                "  .amdhsa_next_free_vgpr 512", "  .amdhsa_next_free_sgpr 100", "  .amdhsa_accum_offset 256",
                "  .amdhsa_group_segment_fixed_size 0", "  .amdhsa_kernarg_size 48", "  .amdhsa_user_sgpr_count 2",
                "  .amdhsa_user_sgpr_kernarg_segment_ptr 1", "  .amdhsa_system_sgpr_workgroup_id_x 1",
                ".end_amdhsa_kernel", ""]
        return "\n".join(out)

def parse(argv):
    p = argparse.ArgumentParser()
    p.add_argument("-o", default="standalone__mha_softmax__near_ridge.s")
    for f in ("stamps", "verbose", "dbg"):
        p.add_argument("--" + f, action="store_true")
    for name, d in dict(align=1, look=24, bar_gap=113, bar_quiet=1, kstep=2, vm_wait=16, dma0=2, dmastep=4, sdelay=5, backlog=5,
                        codepf=1, pdepth=7, g0_dma0=2, g0_dmastep=6, pro_dma=2, pro_bar=10, pro_barm=34, pro_cap=3, tail_bar=30, cap31=2, cap_a=7, cap_b=3, cap_c=5, st_dist=24, tail_dsmax=1).items():
        p.add_argument("--" + name, type=int, default=d)
    p.add_argument("--thr", type=float, default=8.0)
    p.add_argument("--kvpol", default="nt")
    p.add_argument("--qpol", default="nt")
    p.add_argument("--opol", default="nt")
    return p.parse_args(argv)

if __name__ == "__main__":
    o = parse(sys.argv[1:])
    open(o.o, "w").write(Gen(o).text())
```

```python
import sys, struct, argparse
sys.path.insert(0, "dev")
import hz

KNAME = "standalone__mha_softmax__near_ridge_kernel"
MF = "v_mfma_f32_16x16x32_bf16"

def f32bits(x): return struct.unpack("<I", struct.pack("<f", x))[0]
def pol(x): return (" " + x.replace("+", " ")) if x else ""
def srd(s): return f"s[{s}:{s+3}]"

class I:
    __slots__ = ("t", "k", "tag", "need", "n", "skip")
    def __init__(self, t, k="o", tag=None, need=None):
        self.t = t; self.k = k; self.tag = tag; self.need = need; self.n = None; self.skip = False

def Qr(qt, d8): b = (qt * 8 + d8) * 4; return f"v[{b}:{b+3}]"
vT = 240
def X(m, qt, k):
    if m < 2: return 128 + m * 32 + qt * 8 + k
    return vT + 4 * qt + k if k < 4 else 128 + 32 + qt * 8 + k
def Sr(m, qt, kt): b = X(m, qt, 4 * kt); return f"v[{b}:{b+3}]"
def Pr(m, qt): return Sr(m, qt, 0)
NF = 8
def Fx(f): return f if isinstance(f, tuple) else ("v", 192 + (f % NF) * 4)
def Fr(f): c, b = Fx(f); return f"{c}[{b}:{b+3}]"
def Ob(qt, dt): return (qt * 16 + dt) * 4
def Or(qt, dt): b = Ob(qt, dt); return f"a[{b}:{b+3}]"
vK, vVe, vVo, vD = 224, 225, 226, 227
vL = [228, 229, 230, 231]
vLt = [232, 233, 234, 235]
vC = 236
vS = [237, 238, 239]
def Mb(qt): return vT + 4 * qt
def Mr(qt): b = Mb(qt); return f"v[{b}:{b+3}]"
sQ, sK, sV, sO = 4, 8, 12, 16
sC, sKoff, sVoff, sWb, sCnt, sNC, sThr, sRow = 20, 21, 22, 23, 24, 25, 26, 27
sQoff, sMask = 86, 95
sRG = [None, 88, 89, 90, 91, 92, 93, 94]
PIECE = 1088
TILE = 16 * PIECE
R = 4
VBASE = R * TILE
LDS_BYTES = (2 * R + 1) * TILE
NG = 128

class Op:
    def __init__(self, name, fn, cost=1, deps=(), t0=0):
        self.name = name; self.fn = fn; self.cost = cost; self.deps = list(deps); self.t0 = t0; self.t = None

class Nd:
    def __init__(self, t, k, deps=(), tag=None, need=None, cap=None, soft=()):
        self.t = t if isinstance(t, list) else [t]
        self.k = k; self.deps = [d if isinstance(d, tuple) else (d, 0) for d in deps]
        self.tag = tag; self.need = need; self.idx = None; self.cap = cap; self.waited = False; self.soft = list(soft); self.low = False
        self.cost = {"t": 2, "vm": 2, "s": 0}.get(k, 1)

class Sched:
    def __init__(self):
        self.out = []; self.n = 0; self.issued = set()
    def ok(self, nd, relax=False):
        if not relax and any(d.idx is None or self.n - d.idx - 1 < dist for d, dist in nd.soft): return False
        return all(d.idx is not None and self.n - d.idx - 1 >= dist for d, dist in nd.deps)
    def wait(self, nd):
        if nd.need is not None and not nd.waited:
            self.out.append(I(None, "wl", need=nd.need)); nd.waited = True
    def emit(self, nd):
        self.wait(nd)
        for t in nd.t:
            if isinstance(t, I):
                self.out.append(t)
                if t.k != "l": self.n += 1
            else:
                self.out.append(I(t, nd.k, tag=nd.tag)); self.n += 1
        nd.idx = self.n - 1
    def raw(self, lst):
        for t in lst:
            t = t if isinstance(t, I) else I(t)
            self.out.append(t)
            if t.k not in ("l", "wl"): self.n += 1
    def pick(self, pool, free, dsmax):
        got = []; nds = 0; nsc = 0
        for nd in list(pool):
            if not self.ok(nd): continue
            if nd.k == "s":
                if nsc: continue
                nsc += 1
            else:
                if nd.cost > free: continue
                if nd.k == "ds":
                    if nds >= dsmax: continue
                    nds += 1
                free -= nd.cost
            got.append(nd); pool.remove(nd)
            if free <= 0 and nsc: break
        order = {"s": 0, "ds": 1, "vm": 2}
        got.sort(key=lambda nd: order.get(nd.k, 3))
        return got
    def drain_one(self, pool, relax=False):
        for nd in pool:
            if self.ok(nd, relax):
                pool.remove(nd); self.emit(nd); return True
        return False
    def run(self, mfs, pool, cap=2, dsmax=1, keep=()):
        for i, m in enumerate(mfs):
            guard = 0
            while not self.ok(m):
                if not self.drain_one(pool):
                    self.raw(["s_nop 0"]); guard += 1
                    assert guard < 40, ("stuck", m.t, [d.t for d, _ in m.deps if d.idx is None])
            self.emit(m)
            c = m.cap or cap
            left = c
            nx = mfs[i + 1] if i + 1 < len(mfs) else None
            if nx is not None and nx.need is not None and not nx.waited and all(d.idx is not None for d, _ in nx.deps if d.k == "ds"):
                self.wait(nx)
            def take(kinds, maxcost, low=True):
                for nd in pool:
                    if nd.k in kinds and nd.cost <= maxcost and (low or not nd.low) and self.ok(nd):
                        pool.remove(nd); self.emit(nd); return nd
                return None
            take(("s",), 0)
            nds = 0
            while nds < dsmax and left > 0 and take(("ds",), left, False): left -= 1; nds += 1
            if left >= 2 and take(("vm",), left): left -= 2
            while nds < dsmax and left > 0 and take(("ds",), left): left -= 1; nds += 1
            while left > 0:
                nd = None
                if left >= 2:
                    rdy = []
                    for x in pool:
                        if x.k in ("v", "t") and self.ok(x):
                            rdy.append(x)
                            if x.k == "t" or len(rdy) > 4: break
                    if rdy and rdy[-1].k == "t": nd = take(("t",), left)
                if not nd: nd = take(("v", "t"), left)
                if not nd: break
                left -= nd.cost
        guard = 0
        while any(nd not in keep for nd in pool):
            if not self.drain_one(pool) and not self.drain_one(pool, True):
                self.raw(["s_nop 0"]); guard += 1
                assert guard < 40, ("stuck", [nd.t for nd in pool[:3]])
            else: guard = 0

class Gen:
    def __init__(self, o):
        self.o = o
        self.rares = []
        self.plan()

    def kread_t(self, slot, f, buf):
        d8 = f >> 1; kt = f & 1
        return f"ds_read_b128 {Fr(buf)}, v{vK} offset:{slot*TILE + kt*8*PIECE + 64*d8}"
    def vread_t(self, slot, dt, sec, buf):
        c, b = Fx(buf); b += 2 * sec
        return f"ds_read_b64_tr_b16 {c}[{b}:{b+1}], v{vVo if dt & 1 else vVe} offset:{slot*TILE + sec*8*PIECE + 64*(dt>>1)}"
    def fread(self, u, f, part=None):
        if f < 16: return [I(self.kread_t((u + 1) % R, f, f), "ds", tag=(u, f))]
        return [I(self.vread_t(u % R, f - 16, sec, f), "ds", tag=(u, f)) for sec in range(2) if part is None or part == sec]

    def dma_m0(self, which, slot, j):
        base = slot * TILE + (VBASE if which == "V" else 0) + (PIECE - 1024) * j
        return I(f"s_add_u32 m0, s{sWb}, {base}", "s")
    def dma_ld(self, which, j):
        s, so, p = {"K": (sK, sKoff, self.o.kvpol), "V": (sV, sVoff, self.o.kvpol), "Q": (sQ, sQoff, self.o.qpol)}[which]
        return I(f"buffer_load_dwordx4 v{vD}, {srd(s)}, s{so} offen offset:{j*1024}{pol(p)} lds", "vm")
    def dma_adv(self, which):
        so = {"K": sKoff, "V": sVoff, "Q": sQoff}[which]
        return I(f"s_addk_i32 s{so}, {4096 if which == 'Q' else 16384}", "s")
    def dma_tile(self, which, slot):
        out = [self.dma_m0(which, slot, 0)]
        for j in range(4):
            out += [I("s_nop 0"), self.dma_ld(which, j)]
            if j < 3: out.append(I(f"s_addk_i32 m0, {PIECE-1024}", "s"))
        out.append(self.dma_adv(which))
        return out
    def dma_nodes(self, which, slot, deps, prev):
        out = []
        for j in range(4):
            m = Nd(self.dma_m0(which, slot, j).t, "s", deps=list(deps) + ([prev] if prev else []))
            l = Nd(self.dma_ld(which, j).t, "vm", deps=[(m, 1)])
            out += [m, l]; prev = l
        adv = Nd(self.dma_adv(which).t, "s", deps=[prev]); out.append(adv)
        return out, adv

    def qk_t(self, m, f, qt, buf, zero=False):
        d8 = f >> 1; kt = f & 1
        c = Sr(m, qt, kt) if d8 else ("0" if zero else Mr(qt))
        return f"{MF} {Sr(m,qt,kt)}, {Fr(buf)}, {Qr(qt,d8)}, {c}"
    def pv_t(self, m, dt, qt, buf, zero=False):
        return f"{MF} {Or(qt,dt)}, {Fr(buf)}, {Pr(m,qt)}, {'0' if zero else Or(qt,dt)}"

    def E_ops(self, qts=range(4), acc=None):
        o = self.o
        acc = acc or vLt
        ex, ad, cv, Eexp, Epl = {}, {}, {}, [], []
        for qt in qts:
            for k in range(8):
                ex[(qt, k)] = Op(f"exp{qt}{k}", (lambda m, qt=qt, k=k: f"v_exp_f32 v{X(m,qt,k)}, v{X(m,qt,k)}"), cost=2, t0=56 + 4 * (k >> 2) + qt + o.sdelay)
                ex[(qt, k)].src = (qt, k >> 2)
                Eexp.append(ex[(qt, k)])
            ad[(qt, 1)] = Op(f"add{qt}1", (lambda m, qt=qt: f"v_add_f32 v{acc[qt]}, v{X(m,qt,0)}, v{X(m,qt,1)}"), deps=[ex[(qt, 0)], ex[(qt, 1)]])
            ad[(qt, 0)] = ad[(qt, 1)]
            for k in range(2, 8):
                ad[(qt, k)] = Op(f"add{qt}{k}", (lambda m, qt=qt, k=k: f"v_add_f32 v{acc[qt]}, v{acc[qt]}, v{X(m,qt,k)}"), deps=[ex[(qt, k)], ad[(qt, k - 1)]])
            for j in range(4):
                deps = [ex[(qt, 2 * j)], ex[(qt, 2 * j + 1)], ad[(qt, j)]] + ([cv[(qt, j >> 1)]] if j else [])
                cv[(qt, j)] = Op(f"cvt{qt}{j}", (lambda m, qt=qt, j=j: f"v_cvt_pk_bf16_f32 v{X(m,qt,j)}, v{X(m,qt,2*j)}, v{X(m,qt,2*j+1)}"), deps=deps)
            for k in range(1, 8):
                Epl.append(ad[(qt, k)])
                if k & 1: Epl.append(cv[(qt, k >> 1)])
        return Eexp, Epl
    def C_ops(self, Epl):
        la = [op for op in Epl if op.name.startswith("add") and op.name.endswith("7")]
        c1 = Op("chk1", (lambda m: f"v_max3_f32 v{vC}, v{vLt[0]}, v{vLt[1]}, v{vLt[2]}"), deps=la[:3])
        c2 = Op("chk2", (lambda m: f"v_max_f32 v{vC}, v{vC}, v{vLt[3]}"), deps=[c1, la[3]])
        cmp = Op("cmp", (lambda m: f"v_cmp_lt_f32 vcc, s{sThr}, v{vC}"), deps=[c2])
        mg = [Op(f"mrg{qt}", (lambda m, qt=qt: f"v_add_f32 v{vL[qt]}, v{vL[qt]}, v{vLt[qt]}")) for qt in range(4)]
        return [c1, c2, cmp], mg
    def to_nodes(self, ops, m, extra=None, only=None):
        nd = {}
        for op in ops:
            if only is not None and op.name not in only: continue
            nd[op] = Nd(op.fn(m), "t" if op.cost == 2 else "v"); nd[op].name = op.name
        for op, n in nd.items():
            for d in op.deps:
                if d in nd: n.deps.append((nd[d], 1 if d.cost == 2 else 0))
            if extra: n.deps += extra(op)
        return list(nd.values())
    @staticmethod
    def E_order(Eexp, Epl):
        return Epl + Eexp

    def plan(self):
        o = self.o
        used = [0] * NG
        self.ds_at = [[] for _ in range(NG)]
        g = o.bar_gap + 1
        self.npre = 0
        for f in range(32):
            want = 4 * f - o.look
            if f < 16 and want < 0:
                pos = max(want + NG, g)
                if pos < NG - 1:
                    self.ds_at[pos].append((f, None, True)); used[pos] += 1
                    g = pos + o.kstep; self.npre = f + 1
                    continue
                want = 0
            pos = want
            for p in ([None] if f < 16 else [0, 1]):
                while used[pos] > 0: pos += 1
                assert pos < o.bar_gap - 6 or f < 16
                self.ds_at[pos].append((f, p, False)); used[pos] += 1
        self.dma_at = {}
        pos = o.dma0
        for k in range(8):
            while used[pos] > 0 or pos % 4 == 0: pos += 1
            assert 0 < pos < o.bar_gap - 3
            self.dma_at[pos] = k
            used[pos] = 2
            pos += o.dmastep
        used[NG - 1] += 1
        for gq in range(o.bar_gap - o.bar_quiet + 1, o.bar_gap + 1): used[gq] = 2
        self.va_at = [[] for _ in range(2 * NG)]
        rdy = lambda op, t: op.t0 <= t and all(d.t is not None and d.t < t for d in op.deps)
        Eexp, Epl = self.E_ops()
        chk, mg = self.C_ops(Epl)
        Epl = Epl + chk
        def put(op, t): op.t = t; self.va_at[t].append(op); used[t % NG] += op.cost
        t = 56
        while Eexp or Epl:
            assert t < NG + 50, "softmax does not fit"
            free = 2 - used[t % NG]
            backlog = sum(1 for op in Epl if all(d.t is not None for d in op.deps if d.cost == 2) and not op.name.startswith("c" + "hk") and op.name != "cmp")
            re = [op for op in Eexp if rdy(op, t)]
            if free == 2 and re and backlog < o.backlog:
                Eexp.remove(re[0]); put(re[0], t)
            else:
                for op in list(Epl):
                    if free == 0: break
                    if rdy(op, t): Epl.remove(op); put(op, t); free -= 1
                if free == 2 and re: Eexp.remove(re[0]); put(re[0], t)
            t += 1
        busy = lambda g: g % 4 == 3 or (g + 1) in self.dma_at or ((g - 2) in self.dma_at and self.dma_at[g - 2] % 4 == 3)
        self.t_br = max(t + o.br_delay, NG + 9) - NG
        while busy(self.t_br): self.t_br += 1
        t = self.t_br + NG
        while mg:
            if used[t % NG] < 2: put(mg.pop(0), t)
            else: t += 1
        assert t < NG + 56
        self.part1 = {op.name for t in range(0, NG) for op in self.va_at[t]}
        self.part2 = {op.name for t in range(NG, 2 * NG) for op in self.va_at[t]}
        if o.verbose:
            print("br", self.t_br, "npre", self.npre, "part2", len(self.part2), "used", "".join(map(str, used)), file=sys.stderr)

    def body(self, u, lastu):
        o = self.o
        cur = u & 1; nxt = cur ^ 1
        out = []
        for g in range(NG):
            f = g >> 2; qt = g & 3
            out.append(I(self.qk_t(nxt, f, qt, f) if f < 16 else self.pv_t(cur, f - 16, qt, f), "m"))
            sc, ds, vm, va = [], [], [], []
            if g % 4 == 3:
                f1 = (g + 1) // 4
                sc.append(I(None, "wl", need=(u, f1) if f1 < 32 else ((u + 1) % R, 0)))
            if g == o.bar_gap - 1: sc.append(I(f"s_waitcnt vmcnt({o.vm_wait}) lgkmcnt(0)", "w0"))
            if g == o.bar_gap: sc.append(I("s_barrier"))
            desc = lambda k: ("K", (u - 1) % R, k) if k < 4 else ("V", (u - 1) % R, k - 4)
            if g + 1 in self.dma_at: sc.append(self.dma_m0(*desc(self.dma_at[g + 1])))
            if g in self.dma_at:
                wh, _, j = desc(self.dma_at[g]); vm.append(self.dma_ld(wh, j))
            if g - 2 in self.dma_at and self.dma_at[g - 2] % 4 == 3: sc.append(self.dma_adv(desc(self.dma_at[g - 2])[0]))
            for (ff, p, nx) in self.ds_at[g]: ds += self.fread((u + 1) % R if nx else u, ff, p)
            if g == self.t_br:
                sc += [I(f"s_cbranch_vccnz L_rare{u}", "s"), I(f"L_back{u}:", "l")]
                self.rares.append(self.rare(str(u), cur, u % R, [], nxt))
            for op in self.va_at[g + NG]: va.append(I(op.fn(cur), "v"))
            for op in self.va_at[g]: va.append(I(op.fn(nxt), "v"))
            if u == lastu and g == NG - 3: sc.append(I(f"s_sub_u32 s{sCnt}, s{sCnt}, 1", "s"))
            if u == lastu and g == NG - 2: sc.append(I(f"s_cmp_lg_u32 s{sCnt}, 0", "s"))
            out += sc + ds + vm + va
        if u == lastu: out.append(I("s_cbranch_scc1 L_loop", "s"))
        return out

    def rare(self, name, m, kslot, pend, prog, mcopy=None):
        out = [I(f"L_rare{name}:", "l")]
        a = lambda t: out.append(I(t))
        fb = ("v", vLt[0])
        a("s_nop 7")
        for f in range(16):
            a(self.kread_t(kslot, f, fb))
            a("s_waitcnt lgkmcnt(0)")
            for qt in range(4): a(self.qk_t(m, f, qt, fb, zero=True))
            a("s_nop 7")
        a("s_nop 7")
        t, t2, f = vC, vLt[0], vLt[1]
        for qt in range(4):
            x = lambda k: X(m, qt, k)
            mreg = mcopy[qt] if mcopy else Mb(qt)
            for k in range(8): a(f"v_add_f32 v{x(k)}, v{x(k)}, v{mreg}")
            a(f"v_max3_f32 v{t}, v{x(0)}, v{x(1)}, v{x(2)}")
            a(f"v_max3_f32 v{t}, v{t}, v{x(3)}, v{x(4)}")
            a(f"v_max3_f32 v{t}, v{t}, v{x(5)}, v{x(6)}")
            a(f"v_max_f32 v{t}, v{t}, v{x(7)}")
            for sw in ("v_permlane16_swap_b32", "v_permlane32_swap_b32"):
                a(f"v_mov_b32 v{t2}, v{t}"); a("s_nop 1"); a(f"{sw} v{t}, v{t2}"); a("s_nop 1"); a(f"v_max_f32 v{t}, v{t}, v{t2}")
            a(f"v_ceil_f32 v{t}, v{t}")
            a(f"v_max_f32 v{t}, 0, v{t}")
            if mcopy: a(f"v_sub_f32 v{mreg}, v{mreg}, v{t}")
            else:
                for k in range(4): a(f"v_sub_f32 v{mreg+k}, v{mreg+k}, v{t}")
            for k in range(8): a(f"v_sub_f32 v{x(k)}, v{x(k)}, v{t}")
            if prog is not None:
                for k in range(8): a(f"v_sub_f32 v{X(prog,qt,k)}, v{X(prog,qt,k)}, v{t}")
            a(f"v_min_f32 v{t2}, 0x43480000, v{t}")
            a(f"v_cvt_i32_f32 v{t2}, v{t2}")
            a(f"v_sub_u32 v{t2}, 0, v{t2}")
            a(f"v_ldexp_f32 v{f}, 1.0, v{t2}")
            a(f"v_mul_f32 v{vL[qt]}, v{vL[qt]}, v{f}")
            for pm in pend:
                for j in range(4):
                    p = X(pm, qt, j)
                    a(f"v_lshlrev_b32 v{t}, 16, v{p}")
                    a(f"v_and_b32 v{t2}, 0xffff0000, v{p}")
                    a(f"v_mul_f32 v{t}, v{t}, v{f}")
                    a(f"v_mul_f32 v{t2}, v{t2}, v{f}")
                    a(f"v_cvt_pk_bf16_f32 v{p}, v{t}, v{t2}")
            for a0 in range(qt * 64, qt * 64 + 64, 2):
                a(f"v_accvgpr_read_b32 v{t}, a{a0}"); a(f"v_accvgpr_read_b32 v{t2}, a{a0+1}")
                a(f"v_mul_f32 v{t}, v{t}, v{f}"); a(f"v_mul_f32 v{t2}, v{t2}, v{f}")
                a(f"v_accvgpr_write_b32 a{a0}, v{t}"); a(f"v_accvgpr_write_b32 a{a0+1}, v{t2}")
        Eexp, Epl = self.E_ops()
        for op in Eexp: a(op.fn(m))
        a("s_nop 0")
        for op in Epl:
            if op.name.startswith("add"): a(op.fn(m))
        for op in Epl:
            if op.name.startswith("cvt"): a(op.fn(m))
        a("s_nop 1")
        a(f"s_branch L_back{name}")
        return out

    def stamp(self, idx):
        if not self.o.stamps: return []
        return [I(f"s_memtime s[{40+2*idx}:{41+2*idx}]", "sm"), I(f"s_memrealtime s[{68+2*idx}:{69+2*idx}]", "sm")]

    def frag_stream(self, specs, j0, users_prev=None):
        fr = []
        for j, (kind, slot, idx, tag, deps, *bb) in enumerate(specs):
            buf = bb[0] if bb else j0 + j
            if kind == "done": nodes = []
            elif kind == "K": nodes = [Nd(self.kread_t(slot, idx, buf), "ds", deps=list(deps), tag=tag)]
            else: nodes = [Nd(self.vread_t(slot, idx, s, buf), "ds", deps=list(deps), tag=tag) for s in range(2)]
            fr.append(dict(nodes=nodes, buf=buf, tag=tag, users=[]))
        prev = None
        for f in fr:
            for n in f["nodes"]:
                if prev: n.deps.append((prev, 0))
                prev = n
        return fr
    def link_users(self, fr, depth):
        for j, f in enumerate(fr):
            if j - depth >= 0 and fr[j - depth]["users"]:
                for n in f["nodes"]: n.deps.append((fr[j - depth]["users"][-1], 0))
    def mf(self, f, text, deps=(), cap=None):
        first = not f["users"]
        m = Nd(text, "m", deps=list(deps) + [(n, 0) for n in f["nodes"]], need=f["tag"] if first else None, cap=cap)
        f["users"].append(m)
        return m

    def prologue(self):
        o = self.o
        S = Sched()
        a = lambda t, k="o", **kw: S.raw([I(t, k, **kw)])
        lane, w, t0, t1, t2, vQr = vT + 8, vT + 9, vT + 10, vT + 11, vT + 12, vT + 14
        a("s_cmpk_ge_u32 s2, 0x100")
        a("s_cbranch_scc1 L_end")
        a("s_load_dwordx8 s[28:35], s[0:1], 0", "sm")
        if o.stamps:
            a(f"s_load_dwordx2 s[36:37], s[0:1], {32 if o.dbg else 40}", "sm")
            a("s_memrealtime s[38:39]", "sm")
            S.raw(self.stamp(0))
        if o.codepf:
            a("s_getpc_b64 s[96:97]")
            a(f"v_lshlrev_b32 v{t0}, 7, v0")
            a(f"global_load_dword v{vT+15}, v{t0}, s[96:97]", "vm")
        a(f"v_lshrrev_b32 v{w}, 6, v0")
        a(f"v_and_b32 v{lane}, 63, v0")
        a(f"v_and_b32 v{t1}, 32, v0")
        a(f"v_readfirstlane_b32 s{sWb}, v{w}")
        a(f"v_lshlrev_b32 v{vD}, 4, v{lane}")
        a(f"v_xor_b32 v{vD}, v{vD}, v{t1}")
        a("s_lshr_b32 s3, s2, 4")
        a("s_and_b32 s87, s2, 7")
        a("s_lshl3_add_u32 s3, s3, s87")
        a("s_and_b32 s87, s2, 8")
        a(f"s_lshl1_add_u32 s{sRow}, s{sWb}, s87")
        a(f"s_lshl_b32 s{sQoff}, s{sRow}, 14")
        a(f"s_lshl_b32 s{sKoff}, s{sWb}, 12")
        a(f"s_mulk_i32 s{sWb}, {4*PIECE}")
        a("s_mul_i32 s87, s3, 253952")
        a(f"s_mov_b32 s{sQ+2}, 253952")
        a(f"s_mov_b32 s{sQ+3}, 0x20000")
        a(f"s_add_u32 m0, s{sWb}, {8*TILE}")
        a(f"s_movk_i32 s{sCnt}, 2")
        a("s_waitcnt lgkmcnt(0)", "w0")
        a(f"s_add_u32 s{sQ}, s28, s87")
        a(f"s_addc_u32 s{sQ+1}, s29, 0")
        a("L_q:", "l")
        for j in range(4):
            S.raw([self.dma_ld("Q", j)])
            if j < 3:
                a(f"s_addk_i32 m0, {PIECE-1024}", "s")
                a(f"s_sub_u32 s{sCnt}, s{sCnt}, 1" if j == 0 else "s_nop 0")
        a(f"s_addk_i32 m0, {-(TILE + 3*(PIECE-1024))}", "s")
        S.raw([self.dma_adv("Q")])
        a(f"s_cmp_lg_u32 s{sCnt}, 0")
        a("s_cbranch_scc1 L_q")
        a("s_lshl_b32 s3, s3, 19")
        for (s, p) in ((sK, 30), (sV, 32)):
            a(f"s_add_u32 s{s}, s{p}, s3")
            a(f"s_addc_u32 s{s+1}, s{p+1}, 0")
            a(f"s_mov_b32 s{s+2}, 524288")
            a(f"s_mov_b32 s{s+3}, 0x20000")
        a(f"s_mov_b32 s{sVoff}, s{sKoff}")
        S.raw(self.dma_tile("K", 0) + self.dma_tile("K", 1) + self.dma_tile("V", 0))
        a(f"s_add_u32 s{sO}, s34, s87")
        a(f"s_addc_u32 s{sO+1}, s35, 0")
        a(f"s_mov_b32 s{sO+2}, 253952")
        a(f"s_mov_b32 s{sO+3}, 0x20000")
        a(f"s_lshl_b32 s{sRow}, s{sRow}, 14")
        for k in range(1, 8): a(f"s_add_u32 s{sRG[k]}, s{sRow}, {k*4096}")
        a(f"v_and_b32 v{t2}, 1, v{lane}")
        a(f"v_lshlrev_b32 v{t0}, 9, v{t2}")
        a(f"v_lshlrev_b32 v{t2}, 5, v{t2}")
        a(f"v_lshrrev_b32 v{t1}, 4, v{lane}")
        a(f"v_lshlrev_b32 v{t1}, 4, v{t1}")
        a(f"v_xor_b32 v{t1}, v{t1}, v{t2}")
        a(f"v_add_u32 v{t0}, v{t0}, v{t1}")
        a(f"v_bfe_u32 v{t1}, v{lane}, 1, 2")
        a(f"v_mul_u32_u24 v{t1}, {PIECE}, v{t1}")
        a(f"v_add_u32 v{t0}, v{t0}, v{t1}")
        a(f"v_bfe_u32 v{t1}, v{lane}, 3, 1")
        a(f"v_mul_u32_u24 v{vK}, {4*PIECE}, v{t1}")
        a(f"v_add_u32 v{vK}, v{vK}, v{t0}")
        a(f"v_xor_b32 v{t1}, 1, v{t1}")
        a(f"v_mul_u32_u24 v{vQr}, {TILE}, v{t1}")
        a(f"v_add_u32 v{vQr}, v{vQr}, v{t0}")
        a(f"s_add_u32 s87, s{sWb}, {5*TILE}")
        a(f"v_add_u32 v{vQr}, s87, v{vQr}")
        a(f"v_subrev_u32 v{vQr-1}, {3*TILE}, v{vQr}")
        a(f"v_lshrrev_b32 v{t0}, 3, v{lane}")
        a(f"v_mul_u32_u24 v{t0}, {PIECE}, v{t0}")
        a(f"v_bfe_u32 v{t2}, v{lane}, 2, 1")
        a(f"v_lshl_add_u32 v{t0}, v{t2}, 9, v{t0}")
        a(f"v_and_b32 v{t1}, 3, v{lane}")
        a(f"v_lshl_add_u32 v{t0}, v{t1}, 3, v{t0}")
        a(f"v_add_u32 v{t0}, {VBASE}, v{t0}")
        a(f"v_lshl_add_u32 v{vVe}, v{t2}, 5, v{t0}")
        a(f"v_xor_b32 v{vVo}, 32, v{vVe}")
        c = 1.4426950408889634 / 16.0
        a(f"s_mov_b32 s{sC}, {hex(f32bits(c))}")
        a(f"s_mov_b32 s{sNC}, {hex(f32bits(-c))}")
        a(f"s_mov_b32 s{sThr}, {hex(f32bits(o.thr))}")
        a(f"s_movk_i32 s{sCnt}, 7")
        a(f"s_mov_b32 s{sMask}, 0xffff0000")
        def qchunks(hi_slot):
            return self.dma_tile("Q", hi_slot) + self.dma_tile("Q", hi_slot - 1)
        def qread(qt):
            base, off = {0: (vQr, 2 * TILE), 1: (vQr, 0), 2: (vQr - 1, 0), 3: (vQr, 2 * TILE)}[qt]
            return [I(f"ds_read_b128 {Qr(qt,d8)}, v{base} offset:{off + 64*d8}", "ds", tag=("q", qt, d8)) for d8 in range(8)]
        def prescale(qt, tb, nt, pk, deps=()):
            out, lastcv = [], {}
            for g in range(0, 32, nt):
                rs = [(32 * qt + g + i, tb + 2 * i) for i in range(nt)]
                w = lambda t: [lastcv[t]] if t in lastcv else []
                lo = [Nd(f"v_lshlrev_b32 v{t}, 16, v{r}", "v", deps=list(deps) + w(t)) for r, t in rs]
                hi = [Nd(f"v_and_b32 v{t+1}, s{sMask}, v{r}", "v", deps=list(deps) + w(t)) for r, t in rs]
                if pk: mu = [[Nd(f"v_pk_mul_f32 v[{t}:{t+1}], v[{t}:{t+1}], s[{sC}:{sC+1}] op_sel_hi:[1,0]", "v", deps=[lo[i], hi[i]])] for i, (r, t) in enumerate(rs)]
                else: mu = [[Nd(f"v_mul_f32 v{t}, s{sC}, v{t}", "v", deps=[lo[i]]), Nd(f"v_mul_f32 v{t+1}, s{sC}, v{t+1}", "v", deps=[hi[i]])] for i, (r, t) in enumerate(rs)]
                cv = [Nd(f"v_cvt_pk_bf16_f32 v{r}, v{t}, v{t+1}", "v", deps=mu[i]) for i, (r, t) in enumerate(rs)]
                for i, (r, t) in enumerate(rs): lastcv[t] = cv[i]
                out += lo + hi + sum(mu, []) + cv
            return out
        S.raw(qchunks(6))
        a("s_waitcnt vmcnt(20)")
        S.raw(qread(0))
        a("s_waitcnt lgkmcnt(0)", "w0")
        S.run([], prescale(0, 128, 4, True))
        S.raw(self.dma_tile("Q", 3))
        a("s_waitcnt vmcnt(12)")
        a("s_barrier")
        if o.stamps: S.raw(self.stamp(1))
        groups = [[0], [1], [2], [3]]
        bar = Nd([I("s_waitcnt vmcnt(12) lgkmcnt(0)", "w0"), I("s_barrier")], "s")
        one = lambda kind, slot, idx, tag, buf, deps=(): self.frag_stream([(kind, slot, idx, tag, list(deps), buf)], 0)[0]
        K0p = [one("K", 0, f, ("k0", f), ("a", 192 + 4 * f)) for f in range(16)]
        K1p = [one("K", 1, f, ("k1", f), ("v", 96 + 4 * f) if f < 8 else f) for f in range(16)]
        assert {"cvt03", "cvt13", "add07", "add17"} <= self.part1
        K1q = [one("K", 1, f, ("k1b", f), ("v", b)) for f, b in enumerate([128, 132, 136, 140, X(1, 0, 4), X(1, 1, 4), 144, 148])]
        lastq = [("a", 64), ("a", 128), ("v", 152), ("v", 128)]
        Vp = [[one("V", 0, d, ("vp", r, d), ("a", 64 * r + 4 + 4 * d) if d < 15 else lastq[r]) for d in range(16)] for r in range(4)]
        K2p = self.frag_stream([("K", 2, f, (1, f), [bar], f) for f in range(self.npre)], 0)
        again = lambda F: [dict(nodes=f["nodes"], buf=f["buf"], tag=f["tag"], users=[]) for f in F]
        fr_all = []
        for r in range(4): fr_all += again(K0p) + (again(K1p) if r < 3 else K1q + again(K1p[8:])) + Vp[r]
        regions = []
        for gi, qts in enumerate(groups):
            F = fr_all[48 * gi:48 * gi + 48]
            mfs, pool = [], []
            lastm = {}
            neg, pos = ("-1.0", "1.0") if gi < 3 else (f"s{sNC}", f"s{sC}")
            for tl in range(2):
                for f in range(16):
                    for qt in qts:
                        m = self.mf(F[16 * tl + f], self.qk_t(tl, f, qt, F[16 * tl + f]["buf"], zero=True)); mfs.append(m); lastm[(tl, qt, f & 1)] = m
            pdone = {}
            for qi, qt in enumerate(qts):
                t, t2 = vC + 2 * qi, vC + 2 * qi + 1
                vals = [(tl, k) for tl in range(2) for k in range(8)]
                src = lambda v: (lastm[(v[0], qt, v[1] >> 2)], 8)
                rg = lambda v: f"v{X(v[0], qt, v[1])}"
                ch = [Nd(f"v_max3_f32 v{t}, {rg(vals[0])}, {rg(vals[1])}, {rg(vals[2])}", "v", deps=[src(v) for v in vals[:3]])]
                for j in range(3, 15, 2):
                    ch.append(Nd(f"v_max3_f32 v{t}, v{t}, {rg(vals[j])}, {rg(vals[j+1])}", "v", deps=[ch[-1], src(vals[j]), src(vals[j + 1])]))
                ch.append(Nd(f"v_max_f32 v{t}, v{t}, {rg(vals[15])}", "v", deps=[ch[-1], src(vals[15])]))
                for sw in ("v_permlane16_swap_b32", "v_permlane32_swap_b32"):
                    ch.append(Nd(f"v_mov_b32 v{t2}, v{t}", "v", deps=[ch[-1]]))
                    ch.append(Nd(f"{sw} v{t}, v{t2}", "v", deps=[(ch[-1], 2)]))
                    ch.append(Nd(f"v_max_f32 v{t}, v{t}, v{t2}", "v", deps=[(ch[-1], 1)]))
                mm = Nd(f"v_mul_f32 v{Mb(qt)}, {neg}, v{t}", "v", deps=[ch[-1]]); ch.append(mm)
                cp = [Nd(f"v_mov_b32 v{Mb(qt)+k}, v{Mb(qt)}", "v", deps=[mm]) for k in range(1, 4)]
                fma = {v: Nd(f"v_fma_f32 {rg(v)}, {rg(v)}, {pos}, v{Mb(qt)}", "v", deps=[mm]) for v in vals}
                E0 = self.to_nodes(self.E_order(*self.E_ops([qt], vL)), 0, extra=lambda op: [(fma[(0, int(op.name[4]))], 0)] if op.name.startswith("exp") else [])
                E1 = self.to_nodes(self.E_order(*self.E_ops([qt])), 1, only=self.part1,
                                   extra=lambda op: [(fma[(1, int(op.name[4]))], 0)] if op.name.startswith("exp") else [])
                pdone[qt] = [n for n in E0 if n.name.startswith("cvt")]
                crit = [n for n in E0 if not n.name.startswith("add") or int(n.name[4]) < 4]
                rest = [n for n in E0 if n not in crit]
                pool.append((ch + [fma[v] for v in vals[:8]] + crit, rest + cp + [fma[v] for v in vals[8:]] + E1))
            for d in range(16):
                for qt in qts:
                    mfs.append(self.mf(F[32 + d], self.pv_t(0, d, qt, F[32 + d]["buf"], zero=True), deps=[(n, 2) for n in pdone[qt]], cap=o.pro_cap3 if gi == 3 else None))
            hi = [n for tup in zip(*[p[0] for p in pool]) for n in tup]
            lo = sum((p[1] for p in pool), [])
            regions.append((mfs, hi + lo))
        assert not any(n.startswith(("chk", "cmp")) for n in self.part1)
        dsn = lambda F: [n for f in F for n in f["nodes"]]
        def after(F, m):
            for n in dsn(F): n.deps.append((m, 0))
        def spread(dm, ms, g0, step):
            k = 0
            for n in dm:
                if n.k == "vm":
                    n.soft.append((ms[min(len(ms) - 1, g0 + step * k)], 0)); k += 1
        m0, m1, m2, mfs = [r[0] for r in regions]
        V3p = Vp[3]
        for n in dsn(Vp[1] + Vp[2] + K1q): n.low = True
        for n in regions[2][1] + [m2[-1]]: after(K1q[6:], n)
        for d in range(16): after([V3p[d]], mfs[d + 1])
        qb, e = self.dma_nodes("Q", 2, [], None)
        spread(qb, m0, 4, 6)
        S.run([], dsn(K0p[:6]))
        S.run(m0, qb + dsn(K0p[6:] + K1p + Vp[0]) + regions[0][1] + dsn(Vp[1]), cap=4, dsmax=2)
        a("s_waitcnt vmcnt(8)")
        S.raw(qread(1))
        a("s_waitcnt lgkmcnt(0)", "w0")
        qa, e = self.dma_nodes("Q", 8, [], None)
        qb, e = self.dma_nodes("Q", 7, [], e)
        S.run([], qa + prescale(1, 128, 4, True))
        spread(qb, m1, 0, 8)
        a("s_nop 1")
        S.run(m1, qb + regions[1][1] + dsn(Vp[2]), cap=o.pro_cap)
        a("s_waitcnt vmcnt(8)")
        S.raw(qread(2))
        a("s_waitcnt lgkmcnt(0)", "w0")
        v1, e = self.dma_nodes("V", 1, [], None)
        k2, e = self.dma_nodes("K", 2, [], e)
        S.run([], v1 + prescale(2, 128, 4, True))
        spread(k2, m2, 0, 8)
        a("s_nop 1")
        S.run(m2, k2 + regions[2][1] + dsn(K1q), cap=o.pro_cap)
        a("s_waitcnt vmcnt(8)")
        if o.stamps: S.raw(self.stamp(2))
        S.raw(qread(3))
        for d8 in range(8): mfs[2 * d8].need = ("q", 3, d8)
        d1, e1 = self.dma_nodes("K", 3, [(mfs[o.pro_dma], 0)], None)
        d2, e2 = self.dma_nodes("V", 2, [], e1)
        d3, e3 = self.dma_nodes("V", 3, [(mfs[15], 0)], e2)
        for j in range(1, 16): V3p[j]["nodes"][0].deps.append((V3p[j - 1]["nodes"][-1], 0))
        bar.deps = [(V3p[15]["nodes"][-1], o.pro_bar), (e3, 0), (mfs[o.pro_barm], 0)]
        ps3 = prescale(3, 132, 4, False, deps=[(mfs[31], 0)])
        S.run(mfs, dsn(V3p) + regions[3][1] + d1 + d2 + d3 + [bar] + dsn(K2p) + ps3, cap=o.pro_cap, dsmax=1)
        a("s_nop 1")
        S.raw([I(None, "wl", need=(1, 0))])
        if o.stamps: S.raw(self.stamp(3) + self.stamp(4))
        return S.out

    def tail(self):
        o = self.o
        S = Sched()
        a = lambda t, k="o", **kw: S.raw([I(t, k, **kw)])
        M29, M30, M31 = 1, 0, 2
        bar = Nd([I("s_waitcnt vmcnt(0)"), I("s_barrier")], "s")
        specs = [("done" if f < self.npre else "K", 2, f, (1, f), []) for f in range(16)]
        specs += [("K", 3, f, ("t", 31, f), [bar] if f == 1 else []) for f in [1, 0] + list(range(2, 16))]
        pvorder = [(tl, 4 * cb + d) for cb in range(4) for tl in range(3) for d in range(4)]
        specs += [("V", 1 + tl, dt, ("t", "v", tl, dt), []) for tl, dt in pvorder]
        fr = self.frag_stream(specs, 0)
        mfs, lastm = [], {}
        for f in range(16):
            for qt in range(4):
                m = self.mf(fr[f], self.qk_t(M30, f, qt, f)); mfs.append(m); lastm[(30, qt, f & 1)] = m
        mfs[0].waited = True
        mcopy = vS + [vD]
        def EC(tile, m, only, prevbr, prevmg, brdeps, rare_args):
            Eexp, Epl = self.E_ops()
            chk, mg = self.C_ops(Epl)
            def ex(op):
                d = []
                if op.name.startswith("exp"):
                    if (tile,) + op.src in lastm: d.append((lastm[(tile,) + op.src], 8))
                    if prevbr: d.append((prevbr, 0))
                if op.name.startswith("add") and op.name.endswith("1") and prevmg: d.append((prevmg[int(op.name[3])], 0))
                return d
            En = self.to_nodes(Epl + chk + Eexp, m, extra=ex, only=only)
            cn = [n for n in En if n.name == "cmp"][0]
            br = Nd([I(f"s_cbranch_vccnz L_rare{tile}", "s"), I(f"L_back{tile}:", "l")], "s", deps=[(cn, 1)] + [(n, 0) for n in En] + brdeps)
            self.rares.append(self.rare(str(tile), m, tile % R, *rare_args))
            mn = self.to_nodes(mg, m, extra=lambda op: [(br, 0)])
            return En, br, mn
        E29, br29, mg29 = EC(29, M29, self.part2, None, None, [(mfs[8], 0)], ([], M30))
        cpy = [Nd(f"v_mov_b32 v{mcopy[qt]}, v{Mb(qt)}", "v", deps=[br29]) for qt in range(4)]
        q31 = []
        for f in [1, 0] + list(range(2, 16)):
            for qt in range(4):
                deps = [(br29, 0)] + [(n, 0) for n in cpy] if f < 2 else []
                j = 16 + (f ^ 1 if f < 2 else f)
                m = self.mf(fr[j], self.qk_t(M31, f, qt, j), deps=deps, cap=o.cap31); mfs.append(m); q31.append(m); lastm[(31, qt, f & 1)] = m
        bar.deps = [(mfs[o.tail_bar], 0), (br29, 0)]
        E30, br30, mg30 = EC(30, M30, None, br29, mg29, [(q31[8], 0)], ([M29], M31, mcopy))
        E31, br31, mg31 = EC(31, M31, None, br30, mg30, [], ([M29, M30], None, mcopy))
        ln, t0, t1, t2 = 108, 109, 110, 111
        vW0, vR, vQ = 123, 124, 125
        ad = [f"v_mbcnt_lo_u32_b32 v{ln}, -1, 0", f"v_mbcnt_hi_u32_b32 v{ln}, -1, v{ln}",
              f"v_and_b32 v{t0}, 15, v{ln}", f"v_lshlrev_b32 v{t0}, 7, v{t0}",
              f"v_bfe_u32 v{t1}, v{ln}, 4, 1", f"v_lshl_add_u32 v{t0}, v{t1}, 3, v{t0}", f"v_add_u32 v{t0}, s{sWb}, v{t0}",
              f"v_lshrrev_b32 v{t1}, 5, v{ln}", f"v_and_b32 v{t2}, 7, v{ln}", f"v_xor_b32 v{t1}, v{t1}, v{t2}",
              f"v_lshl_add_u32 v{vW0}, v{t1}, 4, v{t0}",
              f"v_lshrrev_b32 v{t0}, 3, v{ln}", f"v_xor_b32 v{t1}, v{t0}, v{t2}", f"v_lshlrev_b32 v{t1}, 4, v{t1}",
              f"v_lshl_add_u32 v{vR}, v{t0}, 7, v{t1}", f"v_add_u32 v{vR}, s{sWb}, v{vR}",
              f"v_lshlrev_b32 v{t2}, 4, v{t2}", f"v_lshl_add_u32 v{vQ}, v{t0}, 9, v{t2}"]
        adn = []
        for x in ad: adn.append(Nd(x, "v", deps=[adn[-1]] if adn else [br31]))
        brs = [br29, br30, br31]
        Pd = {}
        for tl, E in enumerate((E29, E30, E31)):
            for qt in range(4): Pd[(tl, qt)] = [n for n in E if n.name.startswith(f"cvt{qt}")]
        lastpv = {}
        maps = [M29, M30, M31]
        for j, (tl, dt) in enumerate(pvorder):
            for qt in range(4):
                cap = o.cap_a if j < 8 else (o.cap_b if j < 12 else o.cap_c)
                m = self.mf(fr[32 + j], self.pv_t(maps[tl], dt, qt, 32 + j), deps=[(n, 2) for n in Pd[(tl, qt)]] + [(brs[tl], 0)], cap=cap)
                mfs.append(m); lastpv[(qt, dt)] = m
        self.link_users(fr, o.pdepth)
        inv = [112 + 2 * qt for qt in range(4)]
        vW = [vW0, 120, 121, 122]
        small = []
        chains = []
        for qt in range(4):
            t, t2 = inv[qt], inv[qt] + 1
            ch = [Nd(f"v_mov_b32 v{t2}, v{vL[qt]}", "v", deps=[mg31[qt]])]
            ch.append(Nd(f"v_permlane16_swap_b32 v{vL[qt]}, v{t2}", "v", deps=[(ch[-1], 2)]))
            ch.append(Nd(f"v_add_f32 v{t}, v{vL[qt]}, v{t2}", "v", deps=[(ch[-1], 1)]))
            ch.append(Nd(f"v_mov_b32 v{t2}, v{t}", "v", deps=[ch[-1]]))
            ch.append(Nd(f"v_permlane32_swap_b32 v{t}, v{t2}", "v", deps=[(ch[-1], 2)]))
            ch.append(Nd(f"v_add_f32 v{t}, v{t}, v{t2}", "v", deps=[(ch[-1], 1)]))
            ch.append(Nd(f"v_rcp_f32 v{t}, v{t}", "t", deps=[ch[-1]]))
            chains.append(ch)
        small = [n for tup in zip(*chains) for n in tup]
        wn = [Nd(f"v_xor_b32 v{vW[k]}, {32*k}, v{vW0}", "v", deps=[adn[-1]]) for k in range(1, 4)]
        conv = []
        wr_prev = {}; st_prev = {}; rd_prev = {}
        lastds = None
        for i, (cb, qt) in enumerate([(cb, qt) for cb in range(4) for qt in range(4)]):
            b = 16 * (i % 4)
            pk = cb == 3
            a0 = Ob(qt, 4 * cb)
            war = [(wr_prev[i % 4], 1)] if i % 4 in wr_prev else [(br31, 0)]
            rdn = [Nd(f"v_accvgpr_read_b32 v{b+k}, a{a0+k}", "v", deps=[(lastpv[(qt, 4 * cb + (k >> 2))], 8)] + war) for k in range(16)]
            iv = (chains[qt][-1], 1)
            if pk: mu = [Nd(f"v_pk_mul_f32 v[{b+2*k}:{b+2*k+1}], v[{b+2*k}:{b+2*k+1}], v[{inv[qt]}:{inv[qt]+1}] op_sel_hi:[1,0]", "v", deps=[rdn[2 * k], rdn[2 * k + 1], iv]) for k in range(8)]
            else: mu = [Nd(f"v_mul_f32 v{b+k}, v{b+k}, v{inv[qt]}", "v", deps=[rdn[k], iv]) for k in range(16)]
            cv = []
            for k in range(8):
                deps = ([mu[k]] if pk else [mu[2 * k], mu[2 * k + 1]]) + ([cv[-1]] if cv else [])
                cv.append(Nd(f"v_cvt_pk_bf16_f32 v{b+k}, v{b+2*k}, v{b+2*k+1}", "v", deps=deps))
            rb = qt >> 1
            wr = []
            for k in range(4):
                deps = [cv[2 * k + 1], adn[-1]] + ([wn[k - 1]] if k else []) + ([rd_prev[rb]] if rb in rd_prev else [(bar, 0)]) + ([wr[-1]] if wr else [])
                wr.append(Nd(f"ds_write_b64 v{vW[k]}, v[{b+2*k}:{b+2*k+1}] offset:{rb*TILE + (qt&1)*2048}", "ds", deps=deps, tag=("w", i, k)))
            wr_prev[i % 4] = wr[-1]
            conv += wr + rdn + mu + cv
            if qt & 1:
                rbuf = 64 + 16 * ((i >> 1) % 3)
                u2 = (i >> 1) % 3
                rds = []
                for k in range(4):
                    deps = [wr[-1], prev_wr] + ([(st_prev[u2], 2)] if u2 in st_prev else []) + ([rds[-1]] if rds else [])
                    rds.append(Nd(f"ds_read_b128 v[{rbuf+4*k}:{rbuf+4*k+3}], v{vR} offset:{rb*TILE + k*1024}", "ds", deps=deps, tag=("r", i, k)))
                rd_prev[rb] = rds[-1]
                sts = []
                for k in range(4):
                    kk = 4 * rb + k
                    so = f"s{sRow}" if kk == 0 else f"s{sRG[kk]}"
                    sts.append(Nd(f"buffer_store_dwordx4 v[{rbuf+4*k}:{rbuf+4*k+3}], v{vQ}, {srd(sO)}, {so} offen offset:{128*cb}{pol(o.opol)}", "vm",
                                  deps=[rds[k]] + ([sts[-1]] if sts else []), soft=[(rds[k], o.st_dist)], need=("r", i, k)))
                st_prev[u2] = sts[-1]
                conv = self._hoist(conv, rds + sts)
            prev_wr = wr[-1]
        ds = [n for f in fr for n in f["nodes"]]
        pool = ds + [br29, bar] + E29 + mg29 + cpy + [br30] + E30 + mg30 + [br31] + E31 + mg31 + small + adn + wn + conv
        S.run(mfs, pool, dsmax=o.tail_dsmax)
        T = S.out
        a2 = lambda t, k="o": T.append(I(t, k))
        if o.stamps:
            T += self.stamp(6) + self.stamp(7)
            a2("s_waitcnt vmcnt(0)")
            T += self.stamp(8)
            a2("s_memrealtime s[58:59]", "sm")
            a2("s_getreg_b32 s60, hwreg(HW_REG_XCC_ID)")
            a2("s_getreg_b32 s61, hwreg(HW_REG_HW_ID)")
            a2("s_waitcnt lgkmcnt(0)")
            a2(f"s_mov_b32 s64, s36"); a2("s_mov_b32 s65, s37"); a2(f"s_mov_b32 s66, 0x1000000"); a2("s_mov_b32 s67, 0x20000")
            a2(f"s_lshl_b32 s62, s2, 10")
            a2(f"s_mul_hi_u32 s63, s{sWb}, {(2**32)//(4*PIECE)+1}")
            a2(f"s_lshl_b32 s63, s63, 8")
            a2(f"s_add_u32 s62, s62, s63")
            a2(f"v_mov_b32 v1, 0")
            for k in range(24):
                a2(f"v_mov_b32 v0, s{38+k}")
                a2(f"buffer_store_dword v0, v1, s[64:67], s62 offen offset:{4*k}")
            for k in range(18):
                a2(f"v_mov_b32 v0, s{68+k}")
                a2(f"buffer_store_dword v0, v1, s[64:67], s62 offen offset:{128+4*k}")
        return T

    @staticmethod
    def _hoist(conv, hot):
        k = 0
        while k < len(conv) and getattr(conv[k], "hot", False): k += 1
        for n in hot: n.hot = True
        return conv[:k] + hot + conv[k:]

    def build(self):
        o = self.o
        pro = self.prologue()
        order = [1, 2, 3, 0]
        loop = [I("L_loop:", "l")] + sum((self.body(u, 0) for u in order), [])
        tl = self.stamp(5) + self.tail()
        trace = pro + loop + loop + tl
        self.resolve_waits(trace)
        lines = [it.t for it in trace if it.t and not it.skip and it.k != "l"]
        errs = hz.check(lines)
        for r in self.rares: errs += hz.check([it.t for it in r if it.k != "l"])
        for e in sorted(set(errs))[:20]: print(e, file=sys.stderr)
        assert not errs, "hazards"
        if o.verbose:
            cnt = lambda l: sum(1 for it in l if it.t and not it.skip and it.k != "l")
            print("instr: prologue", cnt(pro), "loop", cnt(loop), "tail", cnt(tl), file=sys.stderr)
        return pro + [I(".p2align 6" if o.align else "", "l")] + loop + tl + [I("L_end:", "l"), I("s_endpgm")] + sum(self.rares, [])

    def resolve_waits(self, trace):
        ds = []
        for it in trace:
            if it.k == "ds": ds.append(it.tag)
            elif it.k == "wl":
                idx = max(j for j, t in enumerate(ds) if t == it.need)
                n = min(14, len(ds) - 1 - idx)
                it.n = n if it.n is None else min(it.n, n)
        needed = set()
        ds = []; done = 0
        for it in trace:
            if it.k == "ds": ds.append(it.tag)
            elif it.k == "w0": done = len(ds)
            elif it.k == "wl":
                idx = max(j for j, t in enumerate(ds) if t == it.need)
                if idx >= done: needed.add(id(it))
                done = max(done, len(ds) - it.n) if id(it) in needed else done
        for it in trace:
            if it.k == "wl":
                it.skip = id(it) not in needed
                it.t = f"s_waitcnt lgkmcnt({it.n})"

    def text(self):
        body = self.build()
        hdr = open("standalone__mha_softmax__near_ridge.s.ref").read().split("\n")
        top = []
        for ln in hdr:
            if ln.startswith("; @launch"): break
            top.append(ln)
        out = top + [f"; @launch grid=(256,1,1) block=(256,1,1) lds={LDS_BYTES}",
                     "; generated by my own generator script (flash-attention forward, 4 waves x 64 q rows, 32-key tiles)",
                     '.amdgcn_target "amdgcn-amd-amdhsa--gfx950"', ".text", f".globl {KNAME}", ".p2align 8",
                     f".type {KNAME},@function", f"{KNAME}:"]
        for it in body:
            if it.skip or not it.t: continue
            out.append(("" if it.k == "l" else "    ") + it.t)
        out += ['.section .rodata,"a"', ".p2align 6", f".amdhsa_kernel {KNAME}",
                "  .amdhsa_next_free_vgpr 512", "  .amdhsa_next_free_sgpr 100", "  .amdhsa_accum_offset 256",
                "  .amdhsa_group_segment_fixed_size 0", "  .amdhsa_kernarg_size 48", "  .amdhsa_user_sgpr_count 2",
                "  .amdhsa_user_sgpr_kernarg_segment_ptr 1", "  .amdhsa_system_sgpr_workgroup_id_x 1",
                ".end_amdhsa_kernel", ""]
        return "\n".join(out)

def parse(argv):
    p = argparse.ArgumentParser()
    p.add_argument("-o", default="standalone__mha_softmax__near_ridge.s")
    for f in ("stamps", "verbose", "dbg"):
        p.add_argument("--" + f, action="store_true")
    for name, d in dict(align=1, look=24, bar_gap=113, bar_quiet=1, kstep=2, vm_wait=12, br_delay=1, dma0=2, dmastep=4, sdelay=28, backlog=5,
                        codepf=1, pdepth=7, g0_dma0=2, g0_dmastep=6, pro_dma=2, pro_bar=10, pro_barm=43, pro_cap=3, pro_cap3=12, tail_bar=30, cap31=2, cap_a=7, cap_b=3, cap_c=5, st_dist=24, tail_dsmax=1).items():
        p.add_argument("--" + name, type=int, default=d)
    p.add_argument("--thr", type=float, default=1024.0)
    p.add_argument("--kvpol", default="nt")
    p.add_argument("--qpol", default="nt")
    p.add_argument("--opol", default="nt")
    return p.parse_args(argv)

if __name__ == "__main__":
    o = parse(sys.argv[1:])
    open(o.o, "w").write(Gen(o).text())
```

```python
import sys, struct, argparse
sys.path.insert(0, "dev")
import hz

KNAME = "standalone__mha_softmax__near_ridge_kernel"
MF = "v_mfma_f32_16x16x32_bf16"

def f32bits(x): return struct.unpack("<I", struct.pack("<f", x))[0]
def pol(x): return (" " + x.replace("+", " ")) if x else ""
def srd(s): return f"s[{s}:{s+3}]"

class I:
    __slots__ = ("t", "k", "tag", "need", "n", "skip")
    def __init__(self, t, k="o", tag=None, need=None):
        self.t = t; self.k = k; self.tag = tag; self.need = need; self.n = None; self.skip = False

def Qr(qt, d8): b = (qt * 8 + d8) * 4; return f"v[{b}:{b+3}]"
vT = 240
def X(m, qt, k):
    if m < 2: return 128 + m * 32 + qt * 8 + k
    return vT + 4 * qt + k if k < 4 else 128 + 32 + qt * 8 + k
def Sr(m, qt, kt): b = X(m, qt, 4 * kt); return f"v[{b}:{b+3}]"
def Pr(m, qt): return Sr(m, qt, 0)
NF = 8
def Fx(f): return f if isinstance(f, tuple) else ("v", 192 + (f % NF) * 4)
def Fr(f): c, b = Fx(f); return f"{c}[{b}:{b+3}]"
def Ob(qt, dt): return (qt * 16 + dt) * 4
def Or(qt, dt): b = Ob(qt, dt); return f"a[{b}:{b+3}]"
vK, vVe, vVo, vD = 224, 225, 226, 227
vL = [228, 229, 230, 231]
vLt = [232, 233, 234, 235]
vC = 236
vS = [237, 238, 239]
def Mb(qt): return vT + 4 * qt
def Mr(qt): b = Mb(qt); return f"v[{b}:{b+3}]"
sQ, sK, sV, sO = 4, 8, 12, 16
sC, sKoff, sVoff, sWb, sCnt, sNC, sThr, sRow = 20, 21, 22, 23, 24, 25, 26, 27
sQoff, sMask = 86, 95
sRG = [None, 88, 89, 90, 91, 92, 93, 94]
PIECE = 1088
TILE = 16 * PIECE
R = 4
VBASE = R * TILE
LDS_BYTES = (2 * R + 1) * TILE
NG = 128

class Op:
    def __init__(self, name, fn, cost=1, deps=(), t0=0):
        self.name = name; self.fn = fn; self.cost = cost; self.deps = list(deps); self.t0 = t0; self.t = None

class Nd:
    def __init__(self, t, k, deps=(), tag=None, need=None, cap=None, soft=()):
        self.t = t if isinstance(t, list) else [t]
        self.k = k; self.deps = [d if isinstance(d, tuple) else (d, 0) for d in deps]
        self.tag = tag; self.need = need; self.idx = None; self.cap = cap; self.waited = False; self.soft = list(soft); self.low = False
        self.cost = {"t": 2, "vm": 2, "s": 0}.get(k, 1)

class Sched:
    def __init__(self):
        self.out = []; self.n = 0; self.issued = set()
    def ok(self, nd, relax=False):
        if not relax and any(d.idx is None or self.n - d.idx - 1 < dist for d, dist in nd.soft): return False
        return all(d.idx is not None and self.n - d.idx - 1 >= dist for d, dist in nd.deps)
    def wait(self, nd):
        if nd.need is not None and not nd.waited:
            self.out.append(I(None, "wl", need=nd.need)); nd.waited = True
    def emit(self, nd):
        self.wait(nd)
        for t in nd.t:
            if isinstance(t, I):
                self.out.append(t)
                if t.k != "l": self.n += 1
            else:
                self.out.append(I(t, nd.k, tag=nd.tag)); self.n += 1
        nd.idx = self.n - 1
    def raw(self, lst):
        for t in lst:
            t = t if isinstance(t, I) else I(t)
            self.out.append(t)
            if t.k not in ("l", "wl"): self.n += 1
    def pick(self, pool, free, dsmax):
        got = []; nds = 0; nsc = 0
        for nd in list(pool):
            if not self.ok(nd): continue
            if nd.k == "s":
                if nsc: continue
                nsc += 1
            else:
                if nd.cost > free: continue
                if nd.k == "ds":
                    if nds >= dsmax: continue
                    nds += 1
                free -= nd.cost
            got.append(nd); pool.remove(nd)
            if free <= 0 and nsc: break
        order = {"s": 0, "ds": 1, "vm": 2}
        got.sort(key=lambda nd: order.get(nd.k, 3))
        return got
    def drain_one(self, pool, relax=False):
        for nd in pool:
            if self.ok(nd, relax):
                pool.remove(nd); self.emit(nd); return True
        return False
    def run(self, mfs, pool, cap=2, dsmax=1, keep=()):
        for i, m in enumerate(mfs):
            guard = 0
            while not self.ok(m):
                if not self.drain_one(pool):
                    self.raw(["s_nop 0"]); guard += 1
                    assert guard < 40, ("stuck", m.t, [d.t for d, _ in m.deps if d.idx is None])
            self.emit(m)
            c = m.cap or cap
            left = c
            nx = mfs[i + 1] if i + 1 < len(mfs) else None
            if nx is not None and nx.need is not None and not nx.waited and all(d.idx is not None for d, _ in nx.deps if d.k == "ds"):
                self.wait(nx)
            def take(kinds, maxcost, low=True):
                for nd in pool:
                    if nd.k in kinds and nd.cost <= maxcost and (low or not nd.low) and self.ok(nd):
                        pool.remove(nd); self.emit(nd); return nd
                return None
            take(("s",), 0)
            nds = 0
            while nds < dsmax and left > 0 and take(("ds",), left, False): left -= 1; nds += 1
            if left >= 2 and take(("vm",), left): left -= 2
            while nds < dsmax and left > 0 and take(("ds",), left): left -= 1; nds += 1
            while left > 0:
                nd = None
                if left >= 2:
                    rdy = []
                    for x in pool:
                        if x.k in ("v", "t") and self.ok(x):
                            rdy.append(x)
                            if x.k == "t" or len(rdy) > 4: break
                    if rdy and rdy[-1].k == "t": nd = take(("t",), left)
                if not nd: nd = take(("v", "t"), left)
                if not nd: break
                left -= nd.cost
        guard = 0
        while any(nd not in keep for nd in pool):
            if not self.drain_one(pool) and not self.drain_one(pool, True):
                self.raw(["s_nop 0"]); guard += 1
                assert guard < 40, ("stuck", [nd.t for nd in pool[:3]])
            else: guard = 0

class Gen:
    def __init__(self, o):
        self.o = o
        self.rares = []
        self.plan()

    def kread_t(self, slot, f, buf):
        d8 = f >> 1; kt = f & 1
        return f"ds_read_b128 {Fr(buf)}, v{vK} offset:{slot*TILE + kt*8*PIECE + 64*d8}"
    def vread_t(self, slot, dt, sec, buf):
        c, b = Fx(buf); b += 2 * sec
        return f"ds_read_b64_tr_b16 {c}[{b}:{b+1}], v{vVo if dt & 1 else vVe} offset:{slot*TILE + sec*8*PIECE + 64*(dt>>1)}"
    def fread(self, u, f, part=None):
        if f < 16: return [I(self.kread_t((u + 1) % R, f, f), "ds", tag=(u, f))]
        return [I(self.vread_t(u % R, f - 16, sec, f), "ds", tag=(u, f)) for sec in range(2) if part is None or part == sec]

    def dma_m0(self, which, slot, j):
        base = slot * TILE + (VBASE if which == "V" else 0) + (PIECE - 1024) * j
        return I(f"s_add_u32 m0, s{sWb}, {base}", "s")
    def dma_ld(self, which, j):
        s, so, p = {"K": (sK, sKoff, self.o.kvpol), "V": (sV, sVoff, self.o.kvpol), "Q": (sQ, sQoff, self.o.qpol)}[which]
        return I(f"buffer_load_dwordx4 v{vD}, {srd(s)}, s{so} offen offset:{j*1024}{pol(p)} lds", "vm")
    def dma_adv(self, which):
        so = {"K": sKoff, "V": sVoff, "Q": sQoff}[which]
        return I(f"s_addk_i32 s{so}, {4096 if which == 'Q' else 16384}", "s")
    def dma_tile(self, which, slot):
        out = [self.dma_m0(which, slot, 0)]
        for j in range(4):
            out += [I("s_nop 0"), self.dma_ld(which, j)]
            if j < 3: out.append(I(f"s_addk_i32 m0, {PIECE-1024}", "s"))
        out.append(self.dma_adv(which))
        return out
    def dma_nodes(self, which, slot, deps, prev):
        out = []
        for j in range(4):
            m = Nd(self.dma_m0(which, slot, j).t, "s", deps=list(deps) + ([prev] if prev else []))
            l = Nd(self.dma_ld(which, j).t, "vm", deps=[(m, 1)])
            out += [m, l]; prev = l
        adv = Nd(self.dma_adv(which).t, "s", deps=[prev]); out.append(adv)
        return out, adv

    def qk_t(self, m, f, qt, buf, zero=False):
        d8 = f >> 1; kt = f & 1
        c = Sr(m, qt, kt) if d8 else ("0" if zero else Mr(qt))
        return f"{MF} {Sr(m,qt,kt)}, {Fr(buf)}, {Qr(qt,d8)}, {c}"
    def pv_t(self, m, dt, qt, buf, zero=False):
        return f"{MF} {Or(qt,dt)}, {Fr(buf)}, {Pr(m,qt)}, {'0' if zero else Or(qt,dt)}"

    def E_ops(self, qts=range(4), acc=None):
        o = self.o
        acc = acc or vLt
        ex, ad, cv, Eexp, Epl = {}, {}, {}, [], []
        for qt in qts:
            for k in range(8):
                ex[(qt, k)] = Op(f"exp{qt}{k}", (lambda m, qt=qt, k=k: f"v_exp_f32 v{X(m,qt,k)}, v{X(m,qt,k)}"), cost=2, t0=56 + 4 * (k >> 2) + qt + o.sdelay)
                ex[(qt, k)].src = (qt, k >> 2)
                Eexp.append(ex[(qt, k)])
            ad[(qt, 1)] = Op(f"add{qt}1", (lambda m, qt=qt: f"v_add_f32 v{acc[qt]}, v{X(m,qt,0)}, v{X(m,qt,1)}"), deps=[ex[(qt, 0)], ex[(qt, 1)]])
            ad[(qt, 0)] = ad[(qt, 1)]
            for k in range(2, 8):
                ad[(qt, k)] = Op(f"add{qt}{k}", (lambda m, qt=qt, k=k: f"v_add_f32 v{acc[qt]}, v{acc[qt]}, v{X(m,qt,k)}"), deps=[ex[(qt, k)], ad[(qt, k - 1)]])
            for j in range(4):
                deps = [ex[(qt, 2 * j)], ex[(qt, 2 * j + 1)], ad[(qt, j)]] + ([cv[(qt, j >> 1)]] if j else [])
                cv[(qt, j)] = Op(f"cvt{qt}{j}", (lambda m, qt=qt, j=j: f"v_cvt_pk_bf16_f32 v{X(m,qt,j)}, v{X(m,qt,2*j)}, v{X(m,qt,2*j+1)}"), deps=deps)
            for k in range(1, 8):
                Epl.append(ad[(qt, k)])
                if k & 1: Epl.append(cv[(qt, k >> 1)])
        return Eexp, Epl
    def C_ops(self, Epl):
        la = [op for op in Epl if op.name.startswith("add") and op.name.endswith("7")]
        c1 = Op("chk1", (lambda m: f"v_max3_f32 v{vC}, v{vLt[0]}, v{vLt[1]}, v{vLt[2]}"), deps=la[:3])
        c2 = Op("chk2", (lambda m: f"v_max_f32 v{vC}, v{vC}, v{vLt[3]}"), deps=[c1, la[3]])
        cmp = Op("cmp", (lambda m: f"v_cmp_lt_f32 vcc, s{sThr}, v{vC}"), deps=[c2])
        mg = [Op(f"mrg{qt}", (lambda m, qt=qt: f"v_add_f32 v{vL[qt]}, v{vL[qt]}, v{vLt[qt]}")) for qt in range(4)]
        return [c1, c2, cmp], mg
    def to_nodes(self, ops, m, extra=None, only=None):
        nd = {}
        for op in ops:
            if only is not None and op.name not in only: continue
            nd[op] = Nd(op.fn(m), "t" if op.cost == 2 else "v"); nd[op].name = op.name
        for op, n in nd.items():
            for d in op.deps:
                if d in nd: n.deps.append((nd[d], 1 if d.cost == 2 else 0))
            if extra: n.deps += extra(op)
        return list(nd.values())
    @staticmethod
    def E_order(Eexp, Epl):
        return Epl + Eexp

    def plan(self):
        o = self.o
        used = [0] * NG
        self.ds_at = [[] for _ in range(NG)]
        g = o.bar_gap + 1
        self.npre = 0
        for f in range(32):
            want = 4 * f - o.look
            if f < 16 and want < 0:
                pos = max(want + NG, g)
                if pos < NG - 1:
                    self.ds_at[pos].append((f, None, True)); used[pos] += 1
                    g = pos + o.kstep; self.npre = f + 1
                    continue
                want = 0
            pos = want
            for p in ([None] if f < 16 else [0, 1]):
                while used[pos] > 0: pos += 1
                assert pos < o.bar_gap - 6 or f < 16
                self.ds_at[pos].append((f, p, False)); used[pos] += 1
        self.dma_at = {}
        pos = o.dma0
        for k in range(8):
            while used[pos] > 0 or pos % 4 == 0: pos += 1
            assert 0 < pos < o.bar_gap - 3
            self.dma_at[pos] = k
            used[pos] = 2
            pos += o.dmastep
        used[NG - 1] += 1
        for gq in range(o.bar_gap - o.bar_quiet + 1, o.bar_gap + 1): used[gq] = 2
        self.va_at = [[] for _ in range(2 * NG)]
        rdy = lambda op, t: op.t0 <= t and all(d.t is not None and d.t < t for d in op.deps)
        Eexp, Epl = self.E_ops()
        chk, mg = self.C_ops(Epl)
        Epl = Epl + chk
        def put(op, t): op.t = t; self.va_at[t].append(op); used[t % NG] += op.cost
        t = 56
        while Eexp or Epl:
            assert t < NG + 50, "softmax does not fit"
            free = 2 - used[t % NG]
            backlog = sum(1 for op in Epl if all(d.t is not None for d in op.deps if d.cost == 2) and not op.name.startswith("c" + "hk") and op.name != "cmp")
            re = [op for op in Eexp if rdy(op, t)]
            if free == 2 and re and backlog < o.backlog:
                Eexp.remove(re[0]); put(re[0], t)
            else:
                for op in list(Epl):
                    if free == 0: break
                    if rdy(op, t): Epl.remove(op); put(op, t); free -= 1
                if free == 2 and re: Eexp.remove(re[0]); put(re[0], t)
            t += 1
        busy = lambda g: g % 4 == 3 or (g + 1) in self.dma_at or ((g - 2) in self.dma_at and self.dma_at[g - 2] % 4 == 3)
        self.t_br = max(t + o.br_delay, NG + 9) - NG
        while busy(self.t_br): self.t_br += 1
        t = self.t_br + NG
        while mg:
            if used[t % NG] < 2: put(mg.pop(0), t)
            else: t += 1
        assert t < NG + 56
        self.part1 = {op.name for t in range(0, NG) for op in self.va_at[t]}
        self.part2 = {op.name for t in range(NG, 2 * NG) for op in self.va_at[t]}
        if o.verbose:
            print("br", self.t_br, "npre", self.npre, "part2", len(self.part2), "used", "".join(map(str, used)), file=sys.stderr)

    def body(self, u, lastu):
        o = self.o
        cur = u & 1; nxt = cur ^ 1
        out = []
        for g in range(NG):
            f = g >> 2; qt = g & 3
            out.append(I(self.qk_t(nxt, f, qt, f) if f < 16 else self.pv_t(cur, f - 16, qt, f), "m"))
            sc, ds, vm, va = [], [], [], []
            if g % 4 == 3:
                f1 = (g + 1) // 4
                sc.append(I(None, "wl", need=(u, f1) if f1 < 32 else ((u + 1) % R, 0)))
            if g == o.bar_gap - 1: sc.append(I(f"s_waitcnt vmcnt({o.vm_wait}) lgkmcnt(0)", "w0"))
            if o.late_v1 and u == 1:
                gv = 64 - o.look - 2
                assert max(self.dma_at) < gv - 1
                if g == gv - 1: sc.append(I("s_waitcnt vmcnt(20)"))
                if g == gv: sc.append(I("s_barrier"))
            if g == o.bar_gap and not o.no_bar: sc.append(I("s_barrier"))
            desc = lambda k: ("K", (u - 1) % R, k) if k < 4 else ("V", (u - 1) % R, k - 4)
            if g + 1 in self.dma_at: sc.append(self.dma_m0(*desc(self.dma_at[g + 1])))
            if g in self.dma_at:
                wh, _, j = desc(self.dma_at[g])
                if not o.no_dma: vm.append(self.dma_ld(wh, j))
            if g - 2 in self.dma_at and self.dma_at[g - 2] % 4 == 3: sc.append(self.dma_adv(desc(self.dma_at[g - 2])[0]))
            for (ff, p, nx) in self.ds_at[g]: ds += self.fread((u + 1) % R if nx else u, ff, p)
            if g == self.t_br and not o.no_br:
                sc += [I(f"s_cbranch_vccnz L_rare{u}", "s"), I(f"L_back{u}:", "l")]
                self.rares.append(self.rare(str(u), cur, u % R, [], nxt))
            for op in self.va_at[g + NG]: va.append(I(op.fn(cur), "v"))
            for op in self.va_at[g]: va.append(I(op.fn(nxt), "v"))
            if u == lastu and g == NG - 3: sc.append(I(f"s_sub_u32 s{sCnt}, s{sCnt}, 1", "s"))
            if u == lastu and g == NG - 2: sc.append(I(f"s_cmp_lg_u32 s{sCnt}, 0", "s"))
            out += sc + ds + vm + va
        if u == lastu: out.append(I("s_cbranch_scc1 L_loop", "s"))
        return out

    def rare(self, name, m, kslot, pend, prog, mcopy=None):
        out = [I(f"L_rare{name}:", "l")]
        a = lambda t: out.append(I(t))
        fb = ("v", vLt[0])
        a("s_nop 7")
        for f in range(16):
            a(self.kread_t(kslot, f, fb))
            a("s_waitcnt lgkmcnt(0)")
            for qt in range(4): a(self.qk_t(m, f, qt, fb, zero=True))
            a("s_nop 7")
        a("s_nop 7")
        t, t2, f = vC, vLt[0], vLt[1]
        for qt in range(4):
            x = lambda k: X(m, qt, k)
            mreg = mcopy[qt] if mcopy else Mb(qt)
            for k in range(8): a(f"v_add_f32 v{x(k)}, v{x(k)}, v{mreg}")
            a(f"v_max3_f32 v{t}, v{x(0)}, v{x(1)}, v{x(2)}")
            a(f"v_max3_f32 v{t}, v{t}, v{x(3)}, v{x(4)}")
            a(f"v_max3_f32 v{t}, v{t}, v{x(5)}, v{x(6)}")
            a(f"v_max_f32 v{t}, v{t}, v{x(7)}")
            for sw in ("v_permlane16_swap_b32", "v_permlane32_swap_b32"):
                a(f"v_mov_b32 v{t2}, v{t}"); a("s_nop 1"); a(f"{sw} v{t}, v{t2}"); a("s_nop 1"); a(f"v_max_f32 v{t}, v{t}, v{t2}")
            a(f"v_ceil_f32 v{t}, v{t}")
            a(f"v_max_f32 v{t}, 0, v{t}")
            if mcopy: a(f"v_sub_f32 v{mreg}, v{mreg}, v{t}")
            else:
                for k in range(4): a(f"v_sub_f32 v{mreg+k}, v{mreg+k}, v{t}")
            for k in range(8): a(f"v_sub_f32 v{x(k)}, v{x(k)}, v{t}")
            if prog is not None:
                for k in range(8): a(f"v_sub_f32 v{X(prog,qt,k)}, v{X(prog,qt,k)}, v{t}")
            a(f"v_min_f32 v{t2}, 0x43480000, v{t}")
            a(f"v_cvt_i32_f32 v{t2}, v{t2}")
            a(f"v_sub_u32 v{t2}, 0, v{t2}")
            a(f"v_ldexp_f32 v{f}, 1.0, v{t2}")
            a(f"v_mul_f32 v{vL[qt]}, v{vL[qt]}, v{f}")
            for pm in pend:
                for j in range(4):
                    p = X(pm, qt, j)
                    a(f"v_lshlrev_b32 v{t}, 16, v{p}")
                    a(f"v_and_b32 v{t2}, 0xffff0000, v{p}")
                    a(f"v_mul_f32 v{t}, v{t}, v{f}")
                    a(f"v_mul_f32 v{t2}, v{t2}, v{f}")
                    a(f"v_cvt_pk_bf16_f32 v{p}, v{t}, v{t2}")
            for a0 in range(qt * 64, qt * 64 + 64, 2):
                a(f"v_accvgpr_read_b32 v{t}, a{a0}"); a(f"v_accvgpr_read_b32 v{t2}, a{a0+1}")
                a(f"v_mul_f32 v{t}, v{t}, v{f}"); a(f"v_mul_f32 v{t2}, v{t2}, v{f}")
                a(f"v_accvgpr_write_b32 a{a0}, v{t}"); a(f"v_accvgpr_write_b32 a{a0+1}, v{t2}")
        Eexp, Epl = self.E_ops()
        for op in Eexp: a(op.fn(m))
        a("s_nop 0")
        for op in Epl:
            if op.name.startswith("add"): a(op.fn(m))
        for op in Epl:
            if op.name.startswith("cvt"): a(op.fn(m))
        a("s_nop 1")
        a(f"s_branch L_back{name}")
        return out

    def stamp(self, idx):
        if not self.o.stamps: return []
        return [I(f"s_memtime s[{40+2*idx}:{41+2*idx}]", "sm"), I(f"s_memrealtime s[{68+2*idx}:{69+2*idx}]", "sm")]

    def frag_stream(self, specs, j0, users_prev=None):
        fr = []
        for j, (kind, slot, idx, tag, deps, *bb) in enumerate(specs):
            buf = bb[0] if bb else j0 + j
            if kind == "done": nodes = []
            elif kind == "K": nodes = [Nd(self.kread_t(slot, idx, buf), "ds", deps=list(deps), tag=tag)]
            else: nodes = [Nd(self.vread_t(slot, idx, s, buf), "ds", deps=list(deps), tag=tag) for s in range(2)]
            fr.append(dict(nodes=nodes, buf=buf, tag=tag, users=[]))
        prev = None
        for f in fr:
            for n in f["nodes"]:
                if prev: n.deps.append((prev, 0))
                prev = n
        return fr
    def link_users(self, fr, depth):
        for j, f in enumerate(fr):
            if j - depth >= 0 and fr[j - depth]["users"]:
                for n in f["nodes"]: n.deps.append((fr[j - depth]["users"][-1], 0))
    def mf(self, f, text, deps=(), cap=None):
        first = not f["users"]
        m = Nd(text, "m", deps=list(deps) + [(n, 0) for n in f["nodes"]], need=f["tag"] if first else None, cap=cap)
        f["users"].append(m)
        return m

    def prologue(self):
        o = self.o
        S = Sched()
        a = lambda t, k="o", **kw: S.raw([I(t, k, **kw)])
        lane, w, t0, t1, t2, vQr = vT + 8, vT + 9, vT + 10, vT + 11, vT + 12, vT + 14
        a("s_cmpk_ge_u32 s2, 0x100")
        a("s_cbranch_scc1 L_end")
        a("s_load_dwordx8 s[28:35], s[0:1], 0", "sm")
        if o.stamps:
            a(f"s_load_dwordx2 s[36:37], s[0:1], {32 if o.dbg else 40}", "sm")
            a("s_memrealtime s[38:39]", "sm")
            S.raw(self.stamp(0))
        if o.codepf:
            a("s_getpc_b64 s[96:97]")
            a(f"v_lshlrev_b32 v{t0}, 7, v0")
            a(f"global_load_dword v{vT+15}, v{t0}, s[96:97]", "vm")
        a(f"v_lshrrev_b32 v{w}, 6, v0")
        a(f"v_and_b32 v{lane}, 63, v0")
        a(f"v_and_b32 v{t1}, 32, v0")
        a(f"v_readfirstlane_b32 s{sWb}, v{w}")
        a(f"v_lshlrev_b32 v{vD}, 4, v{lane}")
        a(f"v_xor_b32 v{vD}, v{vD}, v{t1}")
        a("s_lshr_b32 s3, s2, 4")
        a("s_and_b32 s87, s2, 7")
        a("s_lshl3_add_u32 s3, s3, s87")
        a("s_and_b32 s87, s2, 8")
        a(f"s_lshl1_add_u32 s{sRow}, s{sWb}, s87")
        a(f"s_lshl_b32 s{sQoff}, s{sRow}, 14")
        a(f"s_lshl_b32 s{sKoff}, s{sWb}, 12")
        a(f"s_mulk_i32 s{sWb}, {4*PIECE}")
        a("s_mul_i32 s87, s3, 253952")
        a(f"s_mov_b32 s{sQ+2}, 253952")
        a(f"s_mov_b32 s{sQ+3}, 0x20000")
        a(f"s_add_u32 m0, s{sWb}, {8*TILE}")
        a(f"s_movk_i32 s{sCnt}, 2")
        a("s_waitcnt lgkmcnt(0)", "w0")
        a(f"s_add_u32 s{sQ}, s28, s87")
        a(f"s_addc_u32 s{sQ+1}, s29, 0")
        a("L_q:", "l")
        for j in range(4):
            S.raw([self.dma_ld("Q", j)])
            if j < 3:
                a(f"s_addk_i32 m0, {PIECE-1024}", "s")
                a(f"s_sub_u32 s{sCnt}, s{sCnt}, 1" if j == 0 else "s_nop 0")
        a(f"s_addk_i32 m0, {-(TILE + 3*(PIECE-1024))}", "s")
        S.raw([self.dma_adv("Q")])
        a(f"s_cmp_lg_u32 s{sCnt}, 0")
        a("s_cbranch_scc1 L_q")
        a("s_lshl_b32 s3, s3, 19")
        for (s, p) in ((sK, 30), (sV, 32)):
            a(f"s_add_u32 s{s}, s{p}, s3")
            a(f"s_addc_u32 s{s+1}, s{p+1}, 0")
            a(f"s_mov_b32 s{s+2}, 524288")
            a(f"s_mov_b32 s{s+3}, 0x20000")
        a(f"s_mov_b32 s{sVoff}, s{sKoff}")
        S.raw(self.dma_tile("K", 0) + self.dma_tile("K", 1) + self.dma_tile("V", 0))
        a(f"s_add_u32 s{sO}, s34, s87")
        a(f"s_addc_u32 s{sO+1}, s35, 0")
        a(f"s_mov_b32 s{sO+2}, 253952")
        a(f"s_mov_b32 s{sO+3}, 0x20000")
        a(f"s_lshl_b32 s{sRow}, s{sRow}, 14")
        for k in range(1, 8): a(f"s_add_u32 s{sRG[k]}, s{sRow}, {k*4096}")
        a(f"v_and_b32 v{t2}, 1, v{lane}")
        a(f"v_lshlrev_b32 v{t0}, 9, v{t2}")
        a(f"v_lshlrev_b32 v{t2}, 5, v{t2}")
        a(f"v_lshrrev_b32 v{t1}, 4, v{lane}")
        a(f"v_lshlrev_b32 v{t1}, 4, v{t1}")
        a(f"v_xor_b32 v{t1}, v{t1}, v{t2}")
        a(f"v_add_u32 v{t0}, v{t0}, v{t1}")
        a(f"v_bfe_u32 v{t1}, v{lane}, 1, 2")
        a(f"v_mul_u32_u24 v{t1}, {PIECE}, v{t1}")
        a(f"v_add_u32 v{t0}, v{t0}, v{t1}")
        a(f"v_bfe_u32 v{t1}, v{lane}, 3, 1")
        a(f"v_mul_u32_u24 v{vK}, {4*PIECE}, v{t1}")
        a(f"v_add_u32 v{vK}, v{vK}, v{t0}")
        a(f"v_xor_b32 v{t1}, 1, v{t1}")
        a(f"v_mul_u32_u24 v{vQr}, {TILE}, v{t1}")
        a(f"v_add_u32 v{vQr}, v{vQr}, v{t0}")
        a(f"s_add_u32 s87, s{sWb}, {5*TILE}")
        a(f"v_add_u32 v{vQr}, s87, v{vQr}")
        a(f"v_subrev_u32 v{vQr-1}, {3*TILE}, v{vQr}")
        a(f"v_lshrrev_b32 v{t0}, 3, v{lane}")
        a(f"v_mul_u32_u24 v{t0}, {PIECE}, v{t0}")
        a(f"v_bfe_u32 v{t2}, v{lane}, 2, 1")
        a(f"v_lshl_add_u32 v{t0}, v{t2}, 9, v{t0}")
        a(f"v_and_b32 v{t1}, 3, v{lane}")
        a(f"v_lshl_add_u32 v{t0}, v{t1}, 3, v{t0}")
        a(f"v_add_u32 v{t0}, {VBASE}, v{t0}")
        a(f"v_lshl_add_u32 v{vVe}, v{t2}, 5, v{t0}")
        a(f"v_xor_b32 v{vVo}, 32, v{vVe}")
        c = 1.4426950408889634 / 16.0
        a(f"s_mov_b32 s{sC}, {hex(f32bits(c))}")
        a(f"s_mov_b32 s{sNC}, {hex(f32bits(-c))}")
        a(f"s_mov_b32 s{sThr}, {hex(f32bits(o.thr))}")
        a(f"s_movk_i32 s{sCnt}, 7")
        a(f"s_mov_b32 s{sMask}, 0xffff0000")
        def qchunks(hi_slot):
            return self.dma_tile("Q", hi_slot) + self.dma_tile("Q", hi_slot - 1)
        def qread(qt):
            base, off = {0: (vQr, 2 * TILE), 1: (vQr, 0), 2: (vQr - 1, 0), 3: (vQr, 2 * TILE)}[qt]
            return [I(f"ds_read_b128 {Qr(qt,d8)}, v{base} offset:{off + 64*d8}", "ds", tag=("q", qt, d8)) for d8 in range(8)]
        def prescale(qt, tb, nt, pk, deps=()):
            out, lastcv = [], {}
            for g in range(0, 32, nt):
                rs = [(32 * qt + g + i, tb + 2 * i) for i in range(nt)]
                w = lambda t: [lastcv[t]] if t in lastcv else []
                lo = [Nd(f"v_lshlrev_b32 v{t}, 16, v{r}", "v", deps=list(deps) + w(t)) for r, t in rs]
                hi = [Nd(f"v_and_b32 v{t+1}, s{sMask}, v{r}", "v", deps=list(deps) + w(t)) for r, t in rs]
                if pk: mu = [[Nd(f"v_pk_mul_f32 v[{t}:{t+1}], v[{t}:{t+1}], s[{sC}:{sC+1}] op_sel_hi:[1,0]", "v", deps=[lo[i], hi[i]])] for i, (r, t) in enumerate(rs)]
                else: mu = [[Nd(f"v_mul_f32 v{t}, s{sC}, v{t}", "v", deps=[lo[i]]), Nd(f"v_mul_f32 v{t+1}, s{sC}, v{t+1}", "v", deps=[hi[i]])] for i, (r, t) in enumerate(rs)]
                cv = [Nd(f"v_cvt_pk_bf16_f32 v{r}, v{t}, v{t+1}", "v", deps=mu[i]) for i, (r, t) in enumerate(rs)]
                for i, (r, t) in enumerate(rs): lastcv[t] = cv[i]
                out += lo + hi + sum(mu, []) + cv
            return out
        S.raw(qchunks(6))
        a("s_waitcnt vmcnt(20)")
        S.raw(qread(0))
        a("s_waitcnt lgkmcnt(0)", "w0")
        S.run([], prescale(0, 128, 4, True))
        S.raw(self.dma_tile("Q", 3))
        a("s_waitcnt vmcnt(12)")
        a("s_barrier")
        if o.stamps: S.raw(self.stamp(1))
        groups = [[0], [1], [2], [3]]
        bar = Nd([I(f"s_waitcnt vmcnt({16 if o.late_v1 else 12}) lgkmcnt(0)", "w0"), I("s_barrier")], "s")
        one = lambda kind, slot, idx, tag, buf, deps=(): self.frag_stream([(kind, slot, idx, tag, list(deps), buf)], 0)[0]
        K0p = [one("K", 0, f, ("k0", f), ("a", 192 + 4 * f)) for f in range(16)]
        K1p = [one("K", 1, f, ("k1", f), ("v", 96 + 4 * f) if f < 8 else f) for f in range(16)]
        assert {"cvt03", "cvt13", "add07", "add17"} <= self.part1
        K1q = [one("K", 1, f, ("k1b", f), ("v", b)) for f, b in enumerate([128, 132, 136, 140, X(1, 0, 4), X(1, 1, 4), 144, 148])]
        lastq = [("a", 64), ("a", 128), ("v", 152), ("v", 128)]
        Vp = [[one("V", 0, d, ("vp", r, d), ("a", 64 * r + 4 + 4 * d) if d < 15 else lastq[r]) for d in range(16)] for r in range(4)]
        K2p = self.frag_stream([("K", 2, f, (1, f), [bar], f) for f in range(self.npre)], 0)
        again = lambda F: [dict(nodes=f["nodes"], buf=f["buf"], tag=f["tag"], users=[]) for f in F]
        fr_all = []
        for r in range(4): fr_all += again(K0p) + (again(K1p) if r < 3 else K1q + again(K1p[8:])) + Vp[r]
        regions = []
        for gi, qts in enumerate(groups):
            F = fr_all[48 * gi:48 * gi + 48]
            mfs, pool = [], []
            lastm = {}
            neg, pos = ("-1.0", "1.0") if gi < 3 else (f"s{sNC}", f"s{sC}")
            for tl in range(2):
                for f in range(16):
                    for qt in qts:
                        m = self.mf(F[16 * tl + f], self.qk_t(tl, f, qt, F[16 * tl + f]["buf"], zero=True)); mfs.append(m); lastm[(tl, qt, f & 1)] = m
            pdone = {}
            for qi, qt in enumerate(qts):
                t, t2 = vC + 2 * qi, vC + 2 * qi + 1
                vals = [(tl, k) for tl in range(2) for k in range(8)]
                src = lambda v: (lastm[(v[0], qt, v[1] >> 2)], 8)
                rg = lambda v: f"v{X(v[0], qt, v[1])}"
                ch = [Nd(f"v_max3_f32 v{t}, {rg(vals[0])}, {rg(vals[1])}, {rg(vals[2])}", "v", deps=[src(v) for v in vals[:3]])]
                for j in range(3, 15, 2):
                    ch.append(Nd(f"v_max3_f32 v{t}, v{t}, {rg(vals[j])}, {rg(vals[j+1])}", "v", deps=[ch[-1], src(vals[j]), src(vals[j + 1])]))
                ch.append(Nd(f"v_max_f32 v{t}, v{t}, {rg(vals[15])}", "v", deps=[ch[-1], src(vals[15])]))
                for sw in ("v_permlane16_swap_b32", "v_permlane32_swap_b32"):
                    ch.append(Nd(f"v_mov_b32 v{t2}, v{t}", "v", deps=[ch[-1]]))
                    ch.append(Nd(f"{sw} v{t}, v{t2}", "v", deps=[(ch[-1], 2)]))
                    ch.append(Nd(f"v_max_f32 v{t}, v{t}, v{t2}", "v", deps=[(ch[-1], 1)]))
                mm = Nd(f"v_mul_f32 v{Mb(qt)}, {neg}, v{t}", "v", deps=[ch[-1]]); ch.append(mm)
                cp = [Nd(f"v_mov_b32 v{Mb(qt)+k}, v{Mb(qt)}", "v", deps=[mm]) for k in range(1, 4)]
                fma = {v: Nd(f"v_fma_f32 {rg(v)}, {rg(v)}, {pos}, v{Mb(qt)}", "v", deps=[mm]) for v in vals}
                E0 = self.to_nodes(self.E_order(*self.E_ops([qt], vL)), 0, extra=lambda op: [(fma[(0, int(op.name[4]))], 0)] if op.name.startswith("exp") else [])
                E1 = self.to_nodes(self.E_order(*self.E_ops([qt])), 1, only=self.part1,
                                   extra=lambda op: [(fma[(1, int(op.name[4]))], 0)] if op.name.startswith("exp") else [])
                pdone[qt] = [n for n in E0 if n.name.startswith("cvt")]
                crit = [n for n in E0 if not n.name.startswith("add") or int(n.name[4]) < 4]
                rest = [n for n in E0 if n not in crit]
                pool.append((ch + [fma[v] for v in vals[:8]] + crit, rest + cp + [fma[v] for v in vals[8:]] + E1))
            for d in range(16):
                for qt in qts:
                    mfs.append(self.mf(F[32 + d], self.pv_t(0, d, qt, F[32 + d]["buf"], zero=True), deps=[(n, 2) for n in pdone[qt]], cap=o.pro_cap3 if gi == 3 else None))
            hi = [n for tup in zip(*[p[0] for p in pool]) for n in tup]
            lo = sum((p[1] for p in pool), [])
            regions.append((mfs, hi + lo))
        assert not any(n.startswith(("chk", "cmp")) for n in self.part1)
        dsn = lambda F: [n for f in F for n in f["nodes"]]
        def after(F, m):
            for n in dsn(F): n.deps.append((m, 0))
        def spread(dm, ms, g0, step):
            k = 0
            for n in dm:
                if n.k == "vm":
                    n.soft.append((ms[min(len(ms) - 1, g0 + step * k)], 0)); k += 1
        m0, m1, m2, mfs = [r[0] for r in regions]
        V3p = Vp[3]
        for n in dsn(Vp[1] + Vp[2] + K1q): n.low = True
        for n in regions[2][1] + [m2[-1]]: after(K1q[6:], n)
        for d in range(16): after([V3p[d]], mfs[d + 1])
        qb, e = self.dma_nodes("Q", 2, [], None)
        spread(qb, m0, 4, 6)
        S.run([], dsn(K0p[:6]))
        S.run(m0, qb + dsn(K0p[6:] + K1p + Vp[0]) + regions[0][1] + dsn(Vp[1]), cap=4, dsmax=2)
        a("s_waitcnt vmcnt(8)")
        S.raw(qread(1))
        a("s_waitcnt lgkmcnt(0)", "w0")
        qa, e = self.dma_nodes("Q", 8, [], None)
        qb, e = self.dma_nodes("Q", 7, [], e)
        S.run([], qa + prescale(1, 128, 4, True))
        spread(qb, m1, 0, 8)
        a("s_nop 1")
        S.run(m1, qb + regions[1][1] + dsn(Vp[2]), cap=o.pro_cap)
        a("s_waitcnt vmcnt(8)")
        S.raw(qread(2))
        a("s_waitcnt lgkmcnt(0)", "w0")
        v1, e = self.dma_nodes("K", 2, [], None)
        k2, e = self.dma_nodes("V", 1, [], e)
        S.run([], v1 + prescale(2, 128, 4, True))
        spread(k2, m2, 0, 8)
        a("s_nop 1")
        S.run(m2, k2 + regions[2][1] + dsn(K1q), cap=o.pro_cap)
        a("s_waitcnt vmcnt(8)")
        if o.stamps: S.raw(self.stamp(2))
        S.raw(qread(3))
        for d8 in range(8): mfs[2 * d8].need = ("q", 3, d8)
        d1, e1 = self.dma_nodes("K", 3, [(mfs[o.pro_dma], 0)], None)
        d2, e2 = self.dma_nodes("V", 2, [], e1)
        d3, e3 = self.dma_nodes("V", 3, [(mfs[15], 0)], e2)
        for j in range(1, 16): V3p[j]["nodes"][0].deps.append((V3p[j - 1]["nodes"][-1], 0))
        bar.deps = [(V3p[15]["nodes"][-1], o.pro_bar), (e3, 0), (mfs[o.pro_barm], 0)]
        ps3 = prescale(3, 132, 4, False, deps=[(mfs[31], 0)])
        S.run(mfs, dsn(V3p) + regions[3][1] + d1 + d2 + d3 + [bar] + dsn(K2p) + ps3, cap=o.pro_cap, dsmax=1)
        a("s_nop 1")
        S.raw([I(None, "wl", need=(1, 0))])
        if o.stamps: S.raw(self.stamp(3) + self.stamp(4))
        return S.out

    def tail(self):
        o = self.o
        S = Sched()
        a = lambda t, k="o", **kw: S.raw([I(t, k, **kw)])
        M29, M30, M31 = 1, 0, 2
        bar = Nd([I("s_waitcnt vmcnt(0)"), I("s_barrier")], "s")
        specs = [("done" if f < self.npre else "K", 2, f, (1, f), []) for f in range(16)]
        specs += [("K", 3, f, ("t", 31, f), [bar] if f == 1 else []) for f in [1, 0] + list(range(2, 16))]
        pvorder = [(tl, 4 * cb + d) for cb in range(4) for tl in range(3) for d in range(4)]
        specs += [("V", 1 + tl, dt, ("t", "v", tl, dt), []) for tl, dt in pvorder]
        fr = self.frag_stream(specs, 0)
        mfs, lastm = [], {}
        for f in range(16):
            for qt in range(4):
                m = self.mf(fr[f], self.qk_t(M30, f, qt, f)); mfs.append(m); lastm[(30, qt, f & 1)] = m
        mfs[0].waited = True
        mcopy = vS + [vD]
        def EC(tile, m, only, prevbr, prevmg, brdeps, rare_args):
            Eexp, Epl = self.E_ops()
            chk, mg = self.C_ops(Epl)
            def ex(op):
                d = []
                if op.name.startswith("exp"):
                    if (tile,) + op.src in lastm: d.append((lastm[(tile,) + op.src], 8))
                    if prevbr: d.append((prevbr, 0))
                if op.name.startswith("add") and op.name.endswith("1") and prevmg: d.append((prevmg[int(op.name[3])], 0))
                return d
            En = self.to_nodes(Epl + chk + Eexp, m, extra=ex, only=only)
            cn = [n for n in En if n.name == "cmp"][0]
            br = Nd([I(f"s_cbranch_vccnz L_rare{tile}", "s"), I(f"L_back{tile}:", "l")], "s", deps=[(cn, 1)] + [(n, 0) for n in En] + brdeps)
            self.rares.append(self.rare(str(tile), m, tile % R, *rare_args))
            mn = self.to_nodes(mg, m, extra=lambda op: [(br, 0)])
            return En, br, mn
        E29, br29, mg29 = EC(29, M29, self.part2, None, None, [(mfs[8], 0)], ([], M30))
        cpy = [Nd(f"v_mov_b32 v{mcopy[qt]}, v{Mb(qt)}", "v", deps=[br29]) for qt in range(4)]
        q31 = []
        for f in [1, 0] + list(range(2, 16)):
            for qt in range(4):
                deps = [(br29, 0)] + [(n, 0) for n in cpy] if f < 2 else []
                j = 16 + (f ^ 1 if f < 2 else f)
                m = self.mf(fr[j], self.qk_t(M31, f, qt, j), deps=deps, cap=o.cap31); mfs.append(m); q31.append(m); lastm[(31, qt, f & 1)] = m
        bar.deps = [(mfs[o.tail_bar], 0), (br29, 0)]
        E30, br30, mg30 = EC(30, M30, None, br29, mg29, [(q31[8], 0)], ([M29], M31, mcopy))
        E31, br31, mg31 = EC(31, M31, None, br30, mg30, [], ([M29, M30], None, mcopy))
        ln, t0, t1, t2 = 108, 109, 110, 111
        vW0, vR, vQ = 123, 124, 125
        ad = [f"v_mbcnt_lo_u32_b32 v{ln}, -1, 0", f"v_mbcnt_hi_u32_b32 v{ln}, -1, v{ln}",
              f"v_and_b32 v{t0}, 15, v{ln}", f"v_lshlrev_b32 v{t0}, 7, v{t0}",
              f"v_bfe_u32 v{t1}, v{ln}, 4, 1", f"v_lshl_add_u32 v{t0}, v{t1}, 3, v{t0}", f"v_add_u32 v{t0}, s{sWb}, v{t0}",
              f"v_lshrrev_b32 v{t1}, 5, v{ln}", f"v_and_b32 v{t2}, 7, v{ln}", f"v_xor_b32 v{t1}, v{t1}, v{t2}",
              f"v_lshl_add_u32 v{vW0}, v{t1}, 4, v{t0}",
              f"v_lshrrev_b32 v{t0}, 3, v{ln}", f"v_xor_b32 v{t1}, v{t0}, v{t2}", f"v_lshlrev_b32 v{t1}, 4, v{t1}",
              f"v_lshl_add_u32 v{vR}, v{t0}, 7, v{t1}", f"v_add_u32 v{vR}, s{sWb}, v{vR}",
              f"v_lshlrev_b32 v{t2}, 4, v{t2}", f"v_lshl_add_u32 v{vQ}, v{t0}, 9, v{t2}"]
        adn = []
        for x in ad: adn.append(Nd(x, "v", deps=[adn[-1]] if adn else [br31]))
        brs = [br29, br30, br31]
        Pd = {}
        for tl, E in enumerate((E29, E30, E31)):
            for qt in range(4): Pd[(tl, qt)] = [n for n in E if n.name.startswith(f"cvt{qt}")]
        lastpv = {}
        maps = [M29, M30, M31]
        for j, (tl, dt) in enumerate(pvorder):
            for qt in range(4):
                cap = o.cap_a if j < 8 else (o.cap_b if j < 12 else o.cap_c)
                m = self.mf(fr[32 + j], self.pv_t(maps[tl], dt, qt, 32 + j), deps=[(n, 2) for n in Pd[(tl, qt)]] + [(brs[tl], 0)], cap=cap)
                mfs.append(m); lastpv[(qt, dt)] = m
        self.link_users(fr, o.pdepth)
        inv = [112 + 2 * qt for qt in range(4)]
        vW = [vW0, 120, 121, 122]
        small = []
        chains = []
        for qt in range(4):
            t, t2 = inv[qt], inv[qt] + 1
            ch = [Nd(f"v_mov_b32 v{t2}, v{vL[qt]}", "v", deps=[mg31[qt]])]
            ch.append(Nd(f"v_permlane16_swap_b32 v{vL[qt]}, v{t2}", "v", deps=[(ch[-1], 2)]))
            ch.append(Nd(f"v_add_f32 v{t}, v{vL[qt]}, v{t2}", "v", deps=[(ch[-1], 1)]))
            ch.append(Nd(f"v_mov_b32 v{t2}, v{t}", "v", deps=[ch[-1]]))
            ch.append(Nd(f"v_permlane32_swap_b32 v{t}, v{t2}", "v", deps=[(ch[-1], 2)]))
            ch.append(Nd(f"v_add_f32 v{t}, v{t}, v{t2}", "v", deps=[(ch[-1], 1)]))
            ch.append(Nd(f"v_rcp_f32 v{t}, v{t}", "t", deps=[ch[-1]]))
            chains.append(ch)
        small = [n for tup in zip(*chains) for n in tup]
        wn = [Nd(f"v_xor_b32 v{vW[k]}, {32*k}, v{vW0}", "v", deps=[adn[-1]]) for k in range(1, 4)]
        conv = []
        opol = [pol(x) for x in (o.opol.split(",") * 4)[:4]]
        wr_prev = {}; st_prev = {}; rd_prev = {}
        lastds = None
        for i, (cb, qt) in enumerate([(cb, qt) for cb in range(4) for qt in range(4)]):
            b = 16 * (i % 4)
            pk = cb == 3
            a0 = Ob(qt, 4 * cb)
            war = [(wr_prev[i % 4], 1)] if i % 4 in wr_prev else [(br31, 0)]
            rdn = [Nd(f"v_accvgpr_read_b32 v{b+k}, a{a0+k}", "v", deps=[(lastpv[(qt, 4 * cb + (k >> 2))], 8)] + war) for k in range(16)]
            iv = (chains[qt][-1], 1)
            if pk: mu = [Nd(f"v_pk_mul_f32 v[{b+2*k}:{b+2*k+1}], v[{b+2*k}:{b+2*k+1}], v[{inv[qt]}:{inv[qt]+1}] op_sel_hi:[1,0]", "v", deps=[rdn[2 * k], rdn[2 * k + 1], iv]) for k in range(8)]
            else: mu = [Nd(f"v_mul_f32 v{b+k}, v{b+k}, v{inv[qt]}", "v", deps=[rdn[k], iv]) for k in range(16)]
            cv = []
            for k in range(8):
                deps = ([mu[k]] if pk else [mu[2 * k], mu[2 * k + 1]]) + ([cv[-1]] if cv else [])
                cv.append(Nd(f"v_cvt_pk_bf16_f32 v{b+k}, v{b+2*k}, v{b+2*k+1}", "v", deps=deps))
            rb = qt >> 1
            wr = []
            for k in range(4):
                deps = [cv[2 * k + 1], adn[-1]] + ([wn[k - 1]] if k else []) + ([rd_prev[rb]] if rb in rd_prev else [(bar, 0)]) + ([wr[-1]] if wr else [])
                wr.append(Nd(f"ds_write_b64 v{vW[k]}, v[{b+2*k}:{b+2*k+1}] offset:{rb*TILE + (qt&1)*2048}", "ds", deps=deps, tag=("w", i, k)))
            wr_prev[i % 4] = wr[-1]
            conv += wr + rdn + mu + cv
            if qt & 1:
                rbuf = 64 + 16 * ((i >> 1) % 3)
                u2 = (i >> 1) % 3
                rds = []
                for k in range(4):
                    deps = [wr[-1], prev_wr] + ([(st_prev[u2], 2)] if u2 in st_prev else []) + ([rds[-1]] if rds else [])
                    rds.append(Nd(f"ds_read_b128 v[{rbuf+4*k}:{rbuf+4*k+3}], v{vR} offset:{rb*TILE + k*1024}", "ds", deps=deps, tag=("r", i, k)))
                rd_prev[rb] = rds[-1]
                sts = []
                for k in range(4):
                    kk = 4 * rb + k
                    so = f"s{sRow}" if kk == 0 else f"s{sRG[kk]}"
                    sts.append(Nd(f"buffer_store_dwordx4 v[{rbuf+4*k}:{rbuf+4*k+3}], v{vQ}, {srd(sO)}, {so} offen offset:{128*cb}{opol[cb]}", "vm",
                                  deps=[rds[k]] + ([sts[-1]] if sts else []), soft=[(rds[k], o.st_dist)], need=("r", i, k)))
                st_prev[u2] = sts[-1]
                conv = self._hoist(conv, rds + sts)
            prev_wr = wr[-1]
        ds = [n for f in fr for n in f["nodes"]]
        pool = ds + [br29, bar] + E29 + mg29 + cpy + [br30] + E30 + mg30 + [br31] + E31 + mg31 + small + adn + wn + conv
        S.run(mfs, pool, dsmax=o.tail_dsmax)
        T = S.out
        if o.ab_drop:
            dr = tuple(o.ab_drop.split(","))
            for it in T:
                if it.t and it.t.startswith(dr): it.t = "s_nop 0" if o.ab_nop else None; it.k = "ds" if it.k == "ds" else "o"
        a2 = lambda t, k="o": T.append(I(t, k))
        if o.stamps:
            T += self.stamp(6) + self.stamp(7)
            a2("s_waitcnt vmcnt(0)")
            T += self.stamp(8)
            a2("s_memrealtime s[58:59]", "sm")
            a2("s_getreg_b32 s60, hwreg(HW_REG_XCC_ID)")
            a2("s_getreg_b32 s61, hwreg(HW_REG_HW_ID)")
            a2("s_waitcnt lgkmcnt(0)")
            a2(f"s_mov_b32 s64, s36"); a2("s_mov_b32 s65, s37"); a2(f"s_mov_b32 s66, 0x1000000"); a2("s_mov_b32 s67, 0x20000")
            a2(f"s_lshl_b32 s62, s2, 10")
            a2(f"s_mul_hi_u32 s63, s{sWb}, {(2**32)//(4*PIECE)+1}")
            a2(f"s_lshl_b32 s63, s63, 8")
            a2(f"s_add_u32 s62, s62, s63")
            a2(f"v_mov_b32 v1, 0")
            for k in range(24):
                a2(f"v_mov_b32 v0, s{38+k}")
                a2(f"buffer_store_dword v0, v1, s[64:67], s62 offen offset:{4*k}")
            for k in range(18):
                a2(f"v_mov_b32 v0, s{68+k}")
                a2(f"buffer_store_dword v0, v1, s[64:67], s62 offen offset:{128+4*k}")
        return T

    @staticmethod
    def _hoist(conv, hot):
        k = 0
        while k < len(conv) and getattr(conv[k], "hot", False): k += 1
        for n in hot: n.hot = True
        return conv[:k] + hot + conv[k:]

    def build(self):
        o = self.o
        pro = self.prologue()
        order = [1, 2, 3, 0]
        loop = [I("L_loop:", "l")] + sum((self.body(u, 0) for u in order), [])
        tl = self.stamp(5) + self.tail()
        trace = pro + loop + loop + tl
        self.resolve_waits(trace)
        lines = [it.t for it in trace if it.t and not it.skip and it.k != "l"]
        errs = hz.check(lines)
        for r in self.rares: errs += hz.check([it.t for it in r if it.k != "l"])
        for e in sorted(set(errs))[:20]: print(e, file=sys.stderr)
        assert not errs or o.ab_drop, "hazards"
        if o.verbose:
            cnt = lambda l: sum(1 for it in l if it.t and not it.skip and it.k != "l")
            print("instr: prologue", cnt(pro), "loop", cnt(loop), "tail", cnt(tl), file=sys.stderr)
        return pro + [I(".p2align 6" if o.align else "", "l")] + loop + tl + [I("L_end:", "l"), I("s_endpgm")] + sum(self.rares, [])

    def resolve_waits(self, trace):
        ds = []
        for it in trace:
            if it.k == "ds": ds.append(it.tag)
            elif it.k == "wl":
                idx = max(j for j, t in enumerate(ds) if t == it.need)
                n = min(14, len(ds) - 1 - idx)
                it.n = n if it.n is None else min(it.n, n)
        needed = set()
        ds = []; done = 0
        for it in trace:
            if it.k == "ds": ds.append(it.tag)
            elif it.k == "w0": done = len(ds)
            elif it.k == "wl":
                idx = max(j for j, t in enumerate(ds) if t == it.need)
                if idx >= done: needed.add(id(it))
                done = max(done, len(ds) - it.n) if id(it) in needed else done
        for it in trace:
            if it.k == "wl":
                it.skip = id(it) not in needed
                it.t = f"s_waitcnt lgkmcnt({it.n})"

    def text(self):
        body = self.build()
        hdr = open("standalone__mha_softmax__near_ridge.s.ref").read().split("\n")
        top = []
        for ln in hdr:
            if ln.startswith("; @launch"): break
            top.append(ln)
        out = top + [f"; @launch grid=(256,1,1) block=(256,1,1) lds={LDS_BYTES}",
                     "; generated by my own generator script (flash-attention forward, 4 waves x 64 q rows, 32-key tiles)",
                     '.amdgcn_target "amdgcn-amd-amdhsa--gfx950"', ".text", f".globl {KNAME}", ".p2align 8",
                     f".type {KNAME},@function", f"{KNAME}:"]
        for it in body:
            if it.skip or not it.t: continue
            out.append(("" if it.k == "l" else "    ") + it.t)
        out += ['.section .rodata,"a"', ".p2align 6", f".amdhsa_kernel {KNAME}",
                "  .amdhsa_next_free_vgpr 512", "  .amdhsa_next_free_sgpr 100", "  .amdhsa_accum_offset 256",
                "  .amdhsa_group_segment_fixed_size 0", "  .amdhsa_kernarg_size 48", "  .amdhsa_user_sgpr_count 2",
                "  .amdhsa_user_sgpr_kernarg_segment_ptr 1", "  .amdhsa_system_sgpr_workgroup_id_x 1",
                ".end_amdhsa_kernel", ""]
        return "\n".join(out)

def parse(argv):
    p = argparse.ArgumentParser()
    p.add_argument("-o", default="standalone__mha_softmax__near_ridge.s")
    for f in ("stamps", "verbose", "dbg", "no_bar", "no_dma", "no_br"):
        p.add_argument("--" + f, action="store_true")
    for name, d in dict(align=1, look=24, bar_gap=113, bar_quiet=1, kstep=2, vm_wait=12, late_v1=1, br_delay=1, dma0=2, dmastep=4, sdelay=28, backlog=5,
                        codepf=1, pdepth=7, g0_dma0=2, g0_dmastep=6, pro_dma=2, pro_bar=10, pro_barm=43, pro_cap=3, pro_cap3=12, tail_bar=30, cap31=2, cap_a=7, cap_b=3, cap_c=5, st_dist=24, tail_dsmax=1).items():
        p.add_argument("--" + name, type=int, default=d)
    p.add_argument("--thr", type=float, default=1024.0)
    p.add_argument("--ab_drop", default="")
    p.add_argument("--ab_nop", type=int, default=0)
    p.add_argument("--kvpol", default="nt")
    p.add_argument("--qpol", default="nt")
    p.add_argument("--opol", default="sc1")
    return p.parse_args(argv)

if __name__ == "__main__":
    o = parse(sys.argv[1:])
    open(o.o, "w").write(Gen(o).text())
```

```python
import sys, struct, argparse
sys.path.insert(0, "dev")
import hz

KNAME = "standalone__mha_softmax__near_ridge_kernel"
MF = "v_mfma_f32_16x16x32_bf16"

def f32bits(x): return struct.unpack("<I", struct.pack("<f", x))[0]
def pol(x): return (" " + x.replace("+", " ")) if x else ""
def srd(s): return f"s[{s}:{s+3}]"

class I:
    __slots__ = ("t", "k", "tag", "need", "n", "skip")
    def __init__(self, t, k="o", tag=None, need=None):
        self.t = t; self.k = k; self.tag = tag; self.need = need; self.n = None; self.skip = False

def Qr(qt, d8): b = (qt * 8 + d8) * 4; return f"v[{b}:{b+3}]"
vT = 240
def X(m, qt, k):
    if m < 2: return 128 + m * 32 + qt * 8 + k
    if m == 3: return 208 + 4 * qt + k if k < 4 else 128 + qt * 8 + k
    return vT + 4 * qt + k if k < 4 else 128 + 32 + qt * 8 + k
def Sr(m, qt, kt): b = X(m, qt, 4 * kt); return f"v[{b}:{b+3}]"
def Pr(m, qt): return Sr(m, qt, 0)
NF = 8
def Fx(f): return f if isinstance(f, tuple) else ("v", 192 + (f % NF) * 4)
def Fr(f): c, b = Fx(f); return f"{c}[{b}:{b+3}]"
def Ob(qt, dt): return (qt * 16 + dt) * 4
def Or(qt, dt): b = Ob(qt, dt); return f"a[{b}:{b+3}]"
vK, vVe, vVo, vD = 224, 225, 226, 227
vL = [228, 229, 230, 231]
vLt = [232, 233, 234, 235]
vC = 236
vS = [237, 238, 239]
def Mb(qt): return vT + 4 * qt
def Mr(qt): b = Mb(qt); return f"v[{b}:{b+3}]"
sQ, sK, sV, sO = 4, 8, 12, 16
sC, sKoff, sVoff, sWb, sCnt, sNC, sThr, sRow = 20, 21, 22, 23, 24, 25, 26, 27
sQoff, sMask = 86, 95
sRG = [None, 88, 89, 90, 91, 92, 93, 94]
PIECE = 1088
TILE = 16 * PIECE
R = 4
VBASE = R * TILE
LDS_BYTES = (2 * R + 1) * TILE
NG = 128

class Op:
    def __init__(self, name, fn, cost=1, deps=(), t0=0):
        self.name = name; self.fn = fn; self.cost = cost; self.deps = list(deps); self.t0 = t0; self.t = None

class Nd:
    def __init__(self, t, k, deps=(), tag=None, need=None, cap=None, soft=()):
        self.t = t if isinstance(t, list) else [t]
        self.k = k; self.deps = [d if isinstance(d, tuple) else (d, 0) for d in deps]
        self.tag = tag; self.need = need; self.idx = None; self.cap = cap; self.waited = False; self.soft = list(soft); self.low = False
        self.cost = {"t": 2, "vm": 2, "s": 0}.get(k, 1)

class Sched:
    def __init__(self):
        self.out = []; self.n = 0; self.issued = set()
    def ok(self, nd, relax=False):
        if not relax and any(d.idx is None or self.n - d.idx - 1 < dist for d, dist in nd.soft): return False
        return all(d.idx is not None and self.n - d.idx - 1 >= dist for d, dist in nd.deps)
    def wait(self, nd):
        if nd.need is not None and not nd.waited:
            self.out.append(I(None, "wl", need=nd.need)); nd.waited = True
    def emit(self, nd):
        self.wait(nd)
        for t in nd.t:
            if isinstance(t, I):
                self.out.append(t)
                if t.k != "l": self.n += 1
            else:
                self.out.append(I(t, nd.k, tag=nd.tag)); self.n += 1
        nd.idx = self.n - 1
    def raw(self, lst):
        for t in lst:
            t = t if isinstance(t, I) else I(t)
            self.out.append(t)
            if t.k not in ("l", "wl"): self.n += 1
    def pick(self, pool, free, dsmax):
        got = []; nds = 0; nsc = 0
        for nd in list(pool):
            if not self.ok(nd): continue
            if nd.k == "s":
                if nsc: continue
                nsc += 1
            else:
                if nd.cost > free: continue
                if nd.k == "ds":
                    if nds >= dsmax: continue
                    nds += 1
                free -= nd.cost
            got.append(nd); pool.remove(nd)
            if free <= 0 and nsc: break
        order = {"s": 0, "ds": 1, "vm": 2}
        got.sort(key=lambda nd: order.get(nd.k, 3))
        return got
    def drain_one(self, pool, relax=False):
        for nd in pool:
            if self.ok(nd, relax):
                pool.remove(nd); self.emit(nd); return True
        return False
    def run(self, mfs, pool, cap=2, dsmax=1, keep=()):
        for i, m in enumerate(mfs):
            guard = 0
            while not self.ok(m):
                if not self.drain_one(pool):
                    self.raw(["s_nop 0"]); guard += 1
                    assert guard < 40, ("stuck", m.t, [d.t for d, _ in m.deps if d.idx is None])
            self.emit(m)
            c = m.cap or cap
            left = c
            nx = mfs[i + 1] if i + 1 < len(mfs) else None
            if nx is not None and nx.need is not None and not nx.waited and all(d.idx is not None for d, _ in nx.deps if d.k == "ds"):
                self.wait(nx)
            def take(kinds, maxcost, low=True):
                for nd in pool:
                    if nd.k in kinds and nd.cost <= maxcost and (low or not nd.low) and self.ok(nd):
                        pool.remove(nd); self.emit(nd); return nd
                return None
            take(("s",), 0)
            nds = 0
            while nds < dsmax and left > 0 and take(("ds",), left, False): left -= 1; nds += 1
            if left >= 2 and take(("vm",), left): left -= 2
            while nds < dsmax and left > 0 and take(("ds",), left): left -= 1; nds += 1
            while left > 0:
                nd = None
                if left >= 2:
                    rdy = []
                    for x in pool:
                        if x.k in ("v", "t") and self.ok(x):
                            rdy.append(x)
                            if x.k == "t" or len(rdy) > 4: break
                    if rdy and rdy[-1].k == "t": nd = take(("t",), left)
                if not nd: nd = take(("v", "t"), left)
                if not nd: break
                left -= nd.cost
        guard = 0
        while any(nd not in keep for nd in pool):
            if not self.drain_one(pool) and not self.drain_one(pool, True):
                self.raw(["s_nop 0"]); guard += 1
                assert guard < 40, ("stuck", [nd.t for nd in pool[:3]])
            else: guard = 0

class Gen:
    def __init__(self, o):
        self.o = o
        self.rares = []
        self.plan()

    def kread_t(self, slot, f, buf):
        d8 = f >> 1; kt = f & 1
        return f"ds_read_b128 {Fr(buf)}, v{vK} offset:{slot*TILE + kt*8*PIECE + 64*d8}"
    def vread_t(self, slot, dt, sec, buf):
        c, b = Fx(buf); b += 2 * sec
        return f"ds_read_b64_tr_b16 {c}[{b}:{b+1}], v{vVo if dt & 1 else vVe} offset:{slot*TILE + sec*8*PIECE + 64*(dt>>1)}"
    def fread(self, u, f, part=None):
        if f < 16: return [I(self.kread_t((u + 1) % R, f, f), "ds", tag=(u, f))]
        return [I(self.vread_t(u % R, f - 16, sec, f), "ds", tag=(u, f)) for sec in range(2) if part is None or part == sec]

    def dma_m0(self, which, slot, j):
        base = slot * TILE + (VBASE if which == "V" else 0) + (PIECE - 1024) * j
        return I(f"s_add_u32 m0, s{sWb}, {base}", "s")
    def dma_ld(self, which, j):
        s, so, p = {"K": (sK, sKoff, self.o.kvpol), "V": (sV, sVoff, self.o.kvpol), "Q": (sQ, sQoff, self.o.qpol)}[which]
        return I(f"buffer_load_dwordx4 v{vD}, {srd(s)}, s{so} offen offset:{j*1024}{pol(p)} lds", "vm")
    def dma_adv(self, which):
        so = {"K": sKoff, "V": sVoff, "Q": sQoff}[which]
        return I(f"s_addk_i32 s{so}, {4096 if which == 'Q' else 16384}", "s")
    def dma_tile(self, which, slot):
        out = [self.dma_m0(which, slot, 0)]
        for j in range(4):
            out += [I("s_nop 0"), self.dma_ld(which, j)]
            if j < 3: out.append(I(f"s_addk_i32 m0, {PIECE-1024}", "s"))
        out.append(self.dma_adv(which))
        return out
    def dma_nodes(self, which, slot, deps, prev):
        out = []
        for j in range(4):
            m = Nd(self.dma_m0(which, slot, j).t, "s", deps=list(deps) + ([prev] if prev else []))
            l = Nd(self.dma_ld(which, j).t, "vm", deps=[(m, 1)])
            out += [m, l]; prev = l
        adv = Nd(self.dma_adv(which).t, "s", deps=[prev]); out.append(adv)
        return out, adv

    def qk_t(self, m, f, qt, buf, zero=False):
        d8 = f >> 1; kt = f & 1
        c = Sr(m, qt, kt) if d8 else ("0" if zero else Mr(qt))
        return f"{MF} {Sr(m,qt,kt)}, {Fr(buf)}, {Qr(qt,d8)}, {c}"
    def pv_t(self, m, dt, qt, buf, zero=False):
        return f"{MF} {Or(qt,dt)}, {Fr(buf)}, {Pr(m,qt)}, {'0' if zero else Or(qt,dt)}"

    def E_ops(self, qts=range(4), acc=None):
        o = self.o
        acc = acc or vLt
        ex, ad, cv, Eexp, Epl = {}, {}, {}, [], []
        for qt in qts:
            for k in range(8):
                ex[(qt, k)] = Op(f"exp{qt}{k}", (lambda m, qt=qt, k=k: f"v_exp_f32 v{X(m,qt,k)}, v{X(m,qt,k)}"), cost=2, t0=56 + 4 * (k >> 2) + qt + o.sdelay)
                ex[(qt, k)].src = (qt, k >> 2)
                Eexp.append(ex[(qt, k)])
            ad[(qt, 1)] = Op(f"add{qt}1", (lambda m, qt=qt: f"v_add_f32 v{acc[qt]}, v{X(m,qt,0)}, v{X(m,qt,1)}"), deps=[ex[(qt, 0)], ex[(qt, 1)]])
            ad[(qt, 0)] = ad[(qt, 1)]
            for k in range(2, 8):
                ad[(qt, k)] = Op(f"add{qt}{k}", (lambda m, qt=qt, k=k: f"v_add_f32 v{acc[qt]}, v{acc[qt]}, v{X(m,qt,k)}"), deps=[ex[(qt, k)], ad[(qt, k - 1)]])
            for j in range(4):
                deps = [ex[(qt, 2 * j)], ex[(qt, 2 * j + 1)], ad[(qt, j)]] + ([cv[(qt, j >> 1)]] if j else [])
                cv[(qt, j)] = Op(f"cvt{qt}{j}", (lambda m, qt=qt, j=j: f"v_cvt_pk_bf16_f32 v{X(m,qt,j)}, v{X(m,qt,2*j)}, v{X(m,qt,2*j+1)}"), deps=deps)
            for k in range(1, 8):
                Epl.append(ad[(qt, k)])
                if k & 1: Epl.append(cv[(qt, k >> 1)])
        return Eexp, Epl
    def C_ops(self, Epl):
        la = [op for op in Epl if op.name.startswith("add") and op.name.endswith("7")]
        c1 = Op("chk1", (lambda m: f"v_max3_f32 v{vC}, v{vLt[0]}, v{vLt[1]}, v{vLt[2]}"), deps=la[:3])
        c2 = Op("chk2", (lambda m: f"v_max_f32 v{vC}, v{vC}, v{vLt[3]}"), deps=[c1, la[3]])
        cmp = Op("cmp", (lambda m: f"v_cmp_lt_f32 vcc, s{sThr}, v{vC}"), deps=[c2])
        mg = [Op(f"mrg{qt}", (lambda m, qt=qt: f"v_add_f32 v{vL[qt]}, v{vL[qt]}, v{vLt[qt]}")) for qt in range(4)]
        return [c1, c2, cmp], mg
    def to_nodes(self, ops, m, extra=None, only=None):
        nd = {}
        for op in ops:
            if only is not None and op.name not in only: continue
            nd[op] = Nd(op.fn(m), "t" if op.cost == 2 else "v"); nd[op].name = op.name
        for op, n in nd.items():
            for d in op.deps:
                if d in nd: n.deps.append((nd[d], 1 if d.cost == 2 else 0))
            if extra: n.deps += extra(op)
        return list(nd.values())
    @staticmethod
    def E_order(Eexp, Epl):
        return Epl + Eexp

    def plan(self):
        o = self.o
        used = [0] * NG
        self.ds_at = [[] for _ in range(NG)]
        g = o.bar_gap + 1
        self.npre = 0
        for f in range(32):
            want = 4 * f - o.look
            if f < 16 and want < 0:
                pos = max(want + NG, g)
                if pos < NG - 1:
                    self.ds_at[pos].append((f, None, True)); used[pos] += 1
                    g = pos + o.kstep; self.npre = f + 1
                    continue
                want = 0
            pos = want
            for p in ([None] if f < 16 else [0, 1]):
                while used[pos] > 0: pos += 1
                assert pos < o.bar_gap - 6 or f < 16
                self.ds_at[pos].append((f, p, False)); used[pos] += 1
        self.dma_at = {}
        pos = o.dma0
        for k in range(8):
            while used[pos] > 0 or pos % 4 == 0: pos += 1
            assert 0 < pos < o.bar_gap - 3
            self.dma_at[pos] = k
            used[pos] = 2
            pos += o.dmastep
        used[NG - 1] += 1
        for gq in range(o.bar_gap - o.bar_quiet + 1, o.bar_gap + 1): used[gq] = 2
        self.va_at = [[] for _ in range(2 * NG)]
        rdy = lambda op, t: op.t0 <= t and all(d.t is not None and d.t < t for d in op.deps)
        Eexp, Epl = self.E_ops()
        chk, mg = self.C_ops(Epl)
        Epl = Epl + chk
        def put(op, t): op.t = t; self.va_at[t].append(op); used[t % NG] += op.cost
        t = 56
        while Eexp or Epl:
            assert t < NG + 50, "softmax does not fit"
            free = 2 - used[t % NG]
            backlog = sum(1 for op in Epl if all(d.t is not None for d in op.deps if d.cost == 2) and not op.name.startswith("c" + "hk") and op.name != "cmp")
            re = [op for op in Eexp if rdy(op, t)]
            if free == 2 and re and backlog < o.backlog:
                Eexp.remove(re[0]); put(re[0], t)
            else:
                for op in list(Epl):
                    if free == 0: break
                    if rdy(op, t): Epl.remove(op); put(op, t); free -= 1
                if free == 2 and re: Eexp.remove(re[0]); put(re[0], t)
            t += 1
        busy = lambda g: g % 4 == 3 or (g + 1) in self.dma_at or ((g - 2) in self.dma_at and self.dma_at[g - 2] % 4 == 3)
        self.t_br = max(t + o.br_delay, NG + 9) - NG
        while busy(self.t_br): self.t_br += 1
        t = self.t_br + NG
        while mg:
            if used[t % NG] < 2: put(mg.pop(0), t)
            else: t += 1
        assert t < NG + 56
        self.part1 = {op.name for t in range(0, NG) for op in self.va_at[t]}
        self.part2 = {op.name for t in range(NG, 2 * NG) for op in self.va_at[t]}
        if o.verbose:
            print("br", self.t_br, "npre", self.npre, "part2", len(self.part2), "used", "".join(map(str, used)), file=sys.stderr)

    def body(self, u, lastu):
        o = self.o
        cur = u & 1; nxt = cur ^ 1
        out = []
        for g in range(NG):
            f = g >> 2; qt = g & 3
            out.append(I(self.qk_t(nxt, f, qt, f) if f < 16 else self.pv_t(cur, f - 16, qt, f), "m"))
            sc, ds, vm, va = [], [], [], []
            if g % 4 == 3:
                f1 = (g + 1) // 4
                sc.append(I(None, "wl", need=(u, f1) if f1 < 32 else ((u + 1) % R, 0)))
            if g == o.bar_gap - 1: sc.append(I(f"s_waitcnt vmcnt({o.vm_wait}) lgkmcnt(0)", "w0"))
            if o.late_v1 and u == 1:
                gv = 64 - o.look - 2
                assert max(self.dma_at) < gv - 1
                if g == gv - 1: sc.append(I("s_waitcnt vmcnt(20)"))
                if g == gv: sc.append(I("s_barrier"))
            if g == o.bar_gap and not o.no_bar: sc.append(I("s_barrier"))
            desc = lambda k: ("K", (u - 1) % R, k) if k < 4 else ("V", (u - 1) % R, k - 4)
            if g + 1 in self.dma_at: sc.append(self.dma_m0(*desc(self.dma_at[g + 1])))
            if g in self.dma_at:
                wh, _, j = desc(self.dma_at[g])
                if not o.no_dma: vm.append(self.dma_ld(wh, j))
            if g - 2 in self.dma_at and self.dma_at[g - 2] % 4 == 3: sc.append(self.dma_adv(desc(self.dma_at[g - 2])[0]))
            for (ff, p, nx) in self.ds_at[g]: ds += self.fread((u + 1) % R if nx else u, ff, p)
            if g == self.t_br and not o.no_br:
                sc += [I(f"s_cbranch_vccnz L_rare{u}", "s"), I(f"L_back{u}:", "l")]
                self.rares.append(self.rare(str(u), cur, u % R, [], nxt))
            for op in self.va_at[g + NG]: va.append(I(op.fn(cur), "v"))
            for op in self.va_at[g]: va.append(I(op.fn(nxt), "v"))
            if u == lastu and g == NG - 3: sc.append(I(f"s_sub_u32 s{sCnt}, s{sCnt}, 1", "s"))
            if u == lastu and g == NG - 2: sc.append(I(f"s_cmp_lg_u32 s{sCnt}, 0", "s"))
            out += sc + ds + vm + va
        if u == lastu: out.append(I("s_cbranch_scc1 L_loop", "s"))
        return out

    def rare(self, name, m, kslot, pend, prog, mcopy=None):
        out = [I(f"L_rare{name}:", "l")]
        a = lambda t: out.append(I(t))
        fb = ("v", vLt[0])
        a("s_nop 7")
        for f in range(16):
            a(self.kread_t(kslot, f, fb))
            a("s_waitcnt lgkmcnt(0)")
            for qt in range(4): a(self.qk_t(m, f, qt, fb, zero=True))
            a("s_nop 7")
        a("s_nop 7")
        t, t2, f = vC, vLt[0], vLt[1]
        for qt in range(4):
            x = lambda k: X(m, qt, k)
            mreg = mcopy[qt] if mcopy else Mb(qt)
            for k in range(8): a(f"v_add_f32 v{x(k)}, v{x(k)}, v{mreg}")
            a(f"v_max3_f32 v{t}, v{x(0)}, v{x(1)}, v{x(2)}")
            a(f"v_max3_f32 v{t}, v{t}, v{x(3)}, v{x(4)}")
            a(f"v_max3_f32 v{t}, v{t}, v{x(5)}, v{x(6)}")
            a(f"v_max_f32 v{t}, v{t}, v{x(7)}")
            for sw in ("v_permlane16_swap_b32", "v_permlane32_swap_b32"):
                a(f"v_mov_b32 v{t2}, v{t}"); a("s_nop 1"); a(f"{sw} v{t}, v{t2}"); a("s_nop 1"); a(f"v_max_f32 v{t}, v{t}, v{t2}")
            a(f"v_ceil_f32 v{t}, v{t}")
            a(f"v_max_f32 v{t}, 0, v{t}")
            if mcopy: a(f"v_sub_f32 v{mreg}, v{mreg}, v{t}")
            else:
                for k in range(4): a(f"v_sub_f32 v{mreg+k}, v{mreg+k}, v{t}")
            for k in range(8): a(f"v_sub_f32 v{x(k)}, v{x(k)}, v{t}")
            if prog is not None:
                for k in range(8): a(f"v_sub_f32 v{X(prog,qt,k)}, v{X(prog,qt,k)}, v{t}")
            a(f"v_min_f32 v{t2}, 0x43480000, v{t}")
            a(f"v_cvt_i32_f32 v{t2}, v{t2}")
            a(f"v_sub_u32 v{t2}, 0, v{t2}")
            a(f"v_ldexp_f32 v{f}, 1.0, v{t2}")
            a(f"v_mul_f32 v{vL[qt]}, v{vL[qt]}, v{f}")
            for pm in pend:
                for j in range(4):
                    p = X(pm, qt, j)
                    a(f"v_lshlrev_b32 v{t}, 16, v{p}")
                    a(f"v_and_b32 v{t2}, 0xffff0000, v{p}")
                    a(f"v_mul_f32 v{t}, v{t}, v{f}")
                    a(f"v_mul_f32 v{t2}, v{t2}, v{f}")
                    a(f"v_cvt_pk_bf16_f32 v{p}, v{t}, v{t2}")
            for a0 in range(qt * 64, qt * 64 + 64, 2):
                a(f"v_accvgpr_read_b32 v{t}, a{a0}"); a(f"v_accvgpr_read_b32 v{t2}, a{a0+1}")
                a(f"v_mul_f32 v{t}, v{t}, v{f}"); a(f"v_mul_f32 v{t2}, v{t2}, v{f}")
                a(f"v_accvgpr_write_b32 a{a0}, v{t}"); a(f"v_accvgpr_write_b32 a{a0+1}, v{t2}")
        Eexp, Epl = self.E_ops()
        for op in Eexp: a(op.fn(m))
        a("s_nop 0")
        for op in Epl:
            if op.name.startswith("add"): a(op.fn(m))
        for op in Epl:
            if op.name.startswith("cvt"): a(op.fn(m))
        a("s_nop 1")
        a(f"s_branch L_back{name}")
        return out

    def stamp(self, idx):
        if not self.o.stamps: return []
        return [I(f"s_memtime s[{40+2*idx}:{41+2*idx}]", "sm"), I(f"s_memrealtime s[{68+2*idx}:{69+2*idx}]", "sm")]

    def frag_stream(self, specs, j0, users_prev=None):
        fr = []
        for j, (kind, slot, idx, tag, deps, *bb) in enumerate(specs):
            buf = bb[0] if bb else j0 + j
            if kind == "done": nodes = []
            elif kind == "K": nodes = [Nd(self.kread_t(slot, idx, buf), "ds", deps=list(deps), tag=tag)]
            else: nodes = [Nd(self.vread_t(slot, idx, s, buf), "ds", deps=list(deps), tag=tag) for s in range(2)]
            fr.append(dict(nodes=nodes, buf=buf, tag=tag, users=[]))
        prev = None
        for f in fr:
            for n in f["nodes"]:
                if prev: n.deps.append((prev, 0))
                prev = n
        return fr
    def link_users(self, fr, depth):
        for j, f in enumerate(fr):
            if j - depth >= 0 and fr[j - depth]["users"]:
                for n in f["nodes"]: n.deps.append((fr[j - depth]["users"][-1], 0))
    def mf(self, f, text, deps=(), cap=None):
        first = not f["users"]
        m = Nd(text, "m", deps=list(deps) + [(n, 0) for n in f["nodes"]], need=f["tag"] if first else None, cap=cap)
        f["users"].append(m)
        return m

    def prologue(self):
        o = self.o
        S = Sched()
        a = lambda t, k="o", **kw: S.raw([I(t, k, **kw)])
        lane, w, t0, t1, t2, vQr = vT + 8, vT + 9, vT + 10, vT + 11, vT + 12, vT + 14
        a("s_cmpk_ge_u32 s2, 0x100")
        a("s_cbranch_scc1 L_end")
        a("s_load_dwordx8 s[28:35], s[0:1], 0", "sm")
        if o.stamps:
            a(f"s_load_dwordx2 s[36:37], s[0:1], {32 if o.dbg else 40}", "sm")
            a("s_memrealtime s[38:39]", "sm")
            S.raw(self.stamp(0))
        if o.codepf:
            a("s_getpc_b64 s[96:97]")
            a(f"v_lshlrev_b32 v{t0}, 7, v0")
            a(f"global_load_dword v{vT+15}, v{t0}, s[96:97]", "vm")
        a(f"v_lshrrev_b32 v{w}, 6, v0")
        a(f"v_and_b32 v{lane}, 63, v0")
        a(f"v_and_b32 v{t1}, 32, v0")
        a(f"v_readfirstlane_b32 s{sWb}, v{w}")
        a(f"v_lshlrev_b32 v{vD}, 4, v{lane}")
        a(f"v_xor_b32 v{vD}, v{vD}, v{t1}")
        a("s_lshr_b32 s3, s2, 4")
        a("s_and_b32 s87, s2, 7")
        a("s_lshl3_add_u32 s3, s3, s87")
        a("s_and_b32 s87, s2, 8")
        a(f"s_lshl1_add_u32 s{sRow}, s{sWb}, s87")
        a(f"s_lshl_b32 s{sQoff}, s{sRow}, 14")
        a(f"s_lshl_b32 s{sKoff}, s{sWb}, 12")
        a(f"s_mulk_i32 s{sWb}, {4*PIECE}")
        a("s_mul_i32 s87, s3, 253952")
        a(f"s_mov_b32 s{sQ+2}, 253952")
        a(f"s_mov_b32 s{sQ+3}, 0x20000")
        a(f"s_add_u32 m0, s{sWb}, {8*TILE}")
        a(f"s_movk_i32 s{sCnt}, 2")
        a("s_waitcnt lgkmcnt(0)", "w0")
        a(f"s_add_u32 s{sQ}, s28, s87")
        a(f"s_addc_u32 s{sQ+1}, s29, 0")
        a("L_q:", "l")
        for j in range(4):
            S.raw([self.dma_ld("Q", j)])
            if j < 3:
                a(f"s_addk_i32 m0, {PIECE-1024}", "s")
                a(f"s_sub_u32 s{sCnt}, s{sCnt}, 1" if j == 0 else "s_nop 0")
        a(f"s_addk_i32 m0, {-(TILE + 3*(PIECE-1024))}", "s")
        S.raw([self.dma_adv("Q")])
        a(f"s_cmp_lg_u32 s{sCnt}, 0")
        a("s_cbranch_scc1 L_q")
        a("s_lshl_b32 s3, s3, 19")
        for (s, p) in ((sK, 30), (sV, 32)):
            a(f"s_add_u32 s{s}, s{p}, s3")
            a(f"s_addc_u32 s{s+1}, s{p+1}, 0")
            a(f"s_mov_b32 s{s+2}, 524288")
            a(f"s_mov_b32 s{s+3}, 0x20000")
        a(f"s_mov_b32 s{sVoff}, s{sKoff}")
        S.raw(self.dma_tile("K", 0) + self.dma_tile("K", 1) + self.dma_tile("V", 0))
        a(f"s_add_u32 s{sO}, s34, s87")
        a(f"s_addc_u32 s{sO+1}, s35, 0")
        a(f"s_mov_b32 s{sO+2}, 253952")
        a(f"s_mov_b32 s{sO+3}, 0x20000")
        a(f"s_lshl_b32 s{sRow}, s{sRow}, 14")
        for k in range(1, 8): a(f"s_add_u32 s{sRG[k]}, s{sRow}, {k*4096}")
        a(f"v_and_b32 v{t2}, 1, v{lane}")
        a(f"v_lshlrev_b32 v{t0}, 9, v{t2}")
        a(f"v_lshlrev_b32 v{t2}, 5, v{t2}")
        a(f"v_lshrrev_b32 v{t1}, 4, v{lane}")
        a(f"v_lshlrev_b32 v{t1}, 4, v{t1}")
        a(f"v_xor_b32 v{t1}, v{t1}, v{t2}")
        a(f"v_add_u32 v{t0}, v{t0}, v{t1}")
        a(f"v_bfe_u32 v{t1}, v{lane}, 1, 2")
        a(f"v_mul_u32_u24 v{t1}, {PIECE}, v{t1}")
        a(f"v_add_u32 v{t0}, v{t0}, v{t1}")
        a(f"v_bfe_u32 v{t1}, v{lane}, 3, 1")
        a(f"v_mul_u32_u24 v{vK}, {4*PIECE}, v{t1}")
        a(f"v_add_u32 v{vK}, v{vK}, v{t0}")
        a(f"v_xor_b32 v{t1}, 1, v{t1}")
        a(f"v_mul_u32_u24 v{vQr}, {TILE}, v{t1}")
        a(f"v_add_u32 v{vQr}, v{vQr}, v{t0}")
        a(f"s_add_u32 s87, s{sWb}, {5*TILE}")
        a(f"v_add_u32 v{vQr}, s87, v{vQr}")
        a(f"v_subrev_u32 v{vQr-1}, {3*TILE}, v{vQr}")
        a(f"v_lshrrev_b32 v{t0}, 3, v{lane}")
        a(f"v_mul_u32_u24 v{t0}, {PIECE}, v{t0}")
        a(f"v_bfe_u32 v{t2}, v{lane}, 2, 1")
        a(f"v_lshl_add_u32 v{t0}, v{t2}, 9, v{t0}")
        a(f"v_and_b32 v{t1}, 3, v{lane}")
        a(f"v_lshl_add_u32 v{t0}, v{t1}, 3, v{t0}")
        a(f"v_add_u32 v{t0}, {VBASE}, v{t0}")
        a(f"v_lshl_add_u32 v{vVe}, v{t2}, 5, v{t0}")
        a(f"v_xor_b32 v{vVo}, 32, v{vVe}")
        c = 1.4426950408889634 / 16.0
        a(f"s_mov_b32 s{sC}, {hex(f32bits(c))}")
        a(f"s_mov_b32 s{sNC}, {hex(f32bits(-c))}")
        a(f"s_mov_b32 s{sThr}, {hex(f32bits(o.thr))}")
        a(f"s_movk_i32 s{sCnt}, 7")
        a(f"s_mov_b32 s{sMask}, 0xffff0000")
        def qchunks(hi_slot):
            return self.dma_tile("Q", hi_slot) + self.dma_tile("Q", hi_slot - 1)
        def qread(qt):
            base, off = {0: (vQr, 2 * TILE), 1: (vQr, 0), 2: (vQr - 1, 0), 3: (vQr, 2 * TILE)}[qt]
            return [I(f"ds_read_b128 {Qr(qt,d8)}, v{base} offset:{off + 64*d8}", "ds", tag=("q", qt, d8)) for d8 in range(8)]
        def prescale(qt, tb, nt, pk, deps=()):
            out, lastcv = [], {}
            for g in range(0, 32, nt):
                rs = [(32 * qt + g + i, tb + 2 * i) for i in range(nt)]
                w = lambda t: [lastcv[t]] if t in lastcv else []
                lo = [Nd(f"v_lshlrev_b32 v{t}, 16, v{r}", "v", deps=list(deps) + w(t)) for r, t in rs]
                hi = [Nd(f"v_and_b32 v{t+1}, s{sMask}, v{r}", "v", deps=list(deps) + w(t)) for r, t in rs]
                if pk: mu = [[Nd(f"v_pk_mul_f32 v[{t}:{t+1}], v[{t}:{t+1}], s[{sC}:{sC+1}] op_sel_hi:[1,0]", "v", deps=[lo[i], hi[i]])] for i, (r, t) in enumerate(rs)]
                else: mu = [[Nd(f"v_mul_f32 v{t}, s{sC}, v{t}", "v", deps=[lo[i]]), Nd(f"v_mul_f32 v{t+1}, s{sC}, v{t+1}", "v", deps=[hi[i]])] for i, (r, t) in enumerate(rs)]
                cv = [Nd(f"v_cvt_pk_bf16_f32 v{r}, v{t}, v{t+1}", "v", deps=mu[i]) for i, (r, t) in enumerate(rs)]
                for i, (r, t) in enumerate(rs): lastcv[t] = cv[i]
                out += lo + hi + sum(mu, []) + cv
            return out
        S.raw(qchunks(6))
        a("s_waitcnt vmcnt(20)")
        S.raw(qread(0))
        a("s_waitcnt lgkmcnt(0)", "w0")
        S.run([], prescale(0, 128, 4, True))
        S.raw(self.dma_tile("Q", 3))
        a("s_waitcnt vmcnt(12)")
        a("s_barrier")
        if o.stamps: S.raw(self.stamp(1))
        groups = [[0], [1], [2], [3]]
        bar = Nd([I(f"s_waitcnt vmcnt({16 if o.late_v1 else 12}) lgkmcnt(0)", "w0"), I("s_barrier")], "s")
        one = lambda kind, slot, idx, tag, buf, deps=(): self.frag_stream([(kind, slot, idx, tag, list(deps), buf)], 0)[0]
        K0p = [one("K", 0, f, ("k0", f), ("a", 192 + 4 * f)) for f in range(16)]
        K1p = [one("K", 1, f, ("k1", f), ("v", 96 + 4 * f) if f < 8 else f) for f in range(16)]
        assert {"cvt03", "cvt13", "add07", "add17"} <= self.part1
        K1q = [one("K", 1, f, ("k1b", f), ("v", b)) for f, b in enumerate([128, 132, 136, 140, X(1, 0, 4), X(1, 1, 4), 144, 148])]
        lastq = [("a", 64), ("a", 128), ("v", 152), ("v", 128)]
        Vp = [[one("V", 0, d, ("vp", r, d), ("a", 64 * r + 4 + 4 * d) if d < 15 else lastq[r]) for d in range(16)] for r in range(4)]
        K2p = self.frag_stream([("K", 2, f, (1, f), [bar], f) for f in range(self.npre)], 0)
        again = lambda F: [dict(nodes=f["nodes"], buf=f["buf"], tag=f["tag"], users=[]) for f in F]
        fr_all = []
        for r in range(4): fr_all += again(K0p) + (again(K1p) if r < 3 else K1q + again(K1p[8:])) + Vp[r]
        regions = []
        for gi, qts in enumerate(groups):
            F = fr_all[48 * gi:48 * gi + 48]
            mfs, pool = [], []
            lastm = {}
            neg, pos = ("-1.0", "1.0") if gi < 3 else (f"s{sNC}", f"s{sC}")
            for tl in range(2):
                for f in range(16):
                    for qt in qts:
                        m = self.mf(F[16 * tl + f], self.qk_t(tl, f, qt, F[16 * tl + f]["buf"], zero=True)); mfs.append(m); lastm[(tl, qt, f & 1)] = m
            pdone = {}
            for qi, qt in enumerate(qts):
                t, t2 = vC + 2 * qi, vC + 2 * qi + 1
                vals = [(tl, k) for tl in range(2) for k in range(8)]
                src = lambda v: (lastm[(v[0], qt, v[1] >> 2)], 8)
                rg = lambda v: f"v{X(v[0], qt, v[1])}"
                ch = [Nd(f"v_max3_f32 v{t}, {rg(vals[0])}, {rg(vals[1])}, {rg(vals[2])}", "v", deps=[src(v) for v in vals[:3]])]
                for j in range(3, 15, 2):
                    ch.append(Nd(f"v_max3_f32 v{t}, v{t}, {rg(vals[j])}, {rg(vals[j+1])}", "v", deps=[ch[-1], src(vals[j]), src(vals[j + 1])]))
                ch.append(Nd(f"v_max_f32 v{t}, v{t}, {rg(vals[15])}", "v", deps=[ch[-1], src(vals[15])]))
                for sw in ("v_permlane16_swap_b32", "v_permlane32_swap_b32"):
                    ch.append(Nd(f"v_mov_b32 v{t2}, v{t}", "v", deps=[ch[-1]]))
                    ch.append(Nd(f"{sw} v{t}, v{t2}", "v", deps=[(ch[-1], 2)]))
                    ch.append(Nd(f"v_max_f32 v{t}, v{t}, v{t2}", "v", deps=[(ch[-1], 1)]))
                mm = Nd(f"v_mul_f32 v{Mb(qt)}, {neg}, v{t}", "v", deps=[ch[-1]]); ch.append(mm)
                cp = [Nd(f"v_mov_b32 v{Mb(qt)+k}, v{Mb(qt)}", "v", deps=[mm]) for k in range(1, 4)]
                fma = {v: Nd(f"v_fma_f32 {rg(v)}, {rg(v)}, {pos}, v{Mb(qt)}", "v", deps=[mm]) for v in vals}
                E0 = self.to_nodes(self.E_order(*self.E_ops([qt], vL)), 0, extra=lambda op: [(fma[(0, int(op.name[4]))], 0)] if op.name.startswith("exp") else [])
                E1 = self.to_nodes(self.E_order(*self.E_ops([qt])), 1, only=self.part1,
                                   extra=lambda op: [(fma[(1, int(op.name[4]))], 0)] if op.name.startswith("exp") else [])
                pdone[qt] = [n for n in E0 if n.name.startswith("cvt")]
                crit = [n for n in E0 if not n.name.startswith("add") or int(n.name[4]) < 4]
                rest = [n for n in E0 if n not in crit]
                pool.append((ch + [fma[v] for v in vals[:8]] + crit, rest + cp + [fma[v] for v in vals[8:]] + E1))
            for d in range(16):
                for qt in qts:
                    mfs.append(self.mf(F[32 + d], self.pv_t(0, d, qt, F[32 + d]["buf"], zero=True), deps=[(n, 2) for n in pdone[qt]], cap=o.pro_cap3 if gi == 3 else None))
            hi = [n for tup in zip(*[p[0] for p in pool]) for n in tup]
            lo = sum((p[1] for p in pool), [])
            regions.append((mfs, hi + lo))
        assert not any(n.startswith(("chk", "cmp")) for n in self.part1)
        dsn = lambda F: [n for f in F for n in f["nodes"]]
        def after(F, m):
            for n in dsn(F): n.deps.append((m, 0))
        def spread(dm, ms, g0, step):
            k = 0
            for n in dm:
                if n.k == "vm":
                    n.soft.append((ms[min(len(ms) - 1, g0 + step * k)], 0)); k += 1
        m0, m1, m2, mfs = [r[0] for r in regions]
        V3p = Vp[3]
        for n in dsn(Vp[1] + Vp[2] + K1q): n.low = True
        for n in regions[2][1] + [m2[-1]]: after(K1q[6:], n)
        for d in range(16): after([V3p[d]], mfs[d + 1])
        qb, e = self.dma_nodes("Q", 2, [], None)
        spread(qb, m0, 4, 6)
        S.run([], dsn(K0p[:6]))
        S.run(m0, qb + dsn(K0p[6:] + K1p + Vp[0]) + regions[0][1] + dsn(Vp[1]), cap=4, dsmax=2)
        a("s_waitcnt vmcnt(8)")
        S.raw(qread(1))
        a("s_waitcnt lgkmcnt(0)", "w0")
        qa, e = self.dma_nodes("Q", 8, [], None)
        qb, e = self.dma_nodes("Q", 7, [], e)
        S.run([], qa + prescale(1, 128, 4, True))
        spread(qb, m1, 0, 8)
        a("s_nop 1")
        S.run(m1, qb + regions[1][1] + dsn(Vp[2]), cap=o.pro_cap)
        a("s_waitcnt vmcnt(8)")
        S.raw(qread(2))
        a("s_waitcnt lgkmcnt(0)", "w0")
        v1, e = self.dma_nodes("K", 2, [], None)
        k2, e = self.dma_nodes("V", 1, [], e)
        S.run([], v1 + prescale(2, 128, 4, True))
        spread(k2, m2, 0, 8)
        a("s_nop 1")
        S.run(m2, k2 + regions[2][1] + dsn(K1q), cap=o.pro_cap)
        a("s_waitcnt vmcnt(8)")
        if o.stamps: S.raw(self.stamp(2))
        S.raw(qread(3))
        for d8 in range(8): mfs[2 * d8].need = ("q", 3, d8)
        d1, e1 = self.dma_nodes("K", 3, [(mfs[o.pro_dma], 0)], None)
        d2, e2 = self.dma_nodes("V", 2, [], e1)
        d3, e3 = self.dma_nodes("V", 3, [(mfs[15], 0)], e2)
        for j in range(1, 16): V3p[j]["nodes"][0].deps.append((V3p[j - 1]["nodes"][-1], 0))
        bar.deps = [(V3p[15]["nodes"][-1], o.pro_bar), (e3, 0), (mfs[o.pro_barm], 0)]
        ps3 = prescale(3, 132, 4, False, deps=[(mfs[31], 0)])
        S.run(mfs, dsn(V3p) + regions[3][1] + d1 + d2 + d3 + [bar] + dsn(K2p) + ps3, cap=o.pro_cap, dsmax=1)
        a("s_nop 1")
        S.raw([I(None, "wl", need=(1, 0))])
        if o.stamps: S.raw(self.stamp(3) + self.stamp(4))
        return S.out

    def tail(self):
        o = self.o
        S = Sched()
        a = lambda t, k="o", **kw: S.raw([I(t, k, **kw)])
        tiles = [28, 29, 30, 31]
        MP = {28: 0, 29: 1, 30: 3, 31: 2}
        barA = Nd([I("s_waitcnt vmcnt(12)"), I("s_barrier")], "s")
        barB = Nd([I("s_waitcnt vmcnt(0)"), I("s_barrier")], "s")
        bar = Nd([I("s_barrier")], "s")
        o31 = [1, 0] + list(range(2, 16))
        specs = [("done" if f < self.npre else "K", 1, f, (0, f), [], f) for f in range(16)]
        specs += [("K", 2, f, ("t", 30, f), [barA] if f == 0 else [], f % 4) for f in range(16)]
        specs += [("K", 3, f, ("t", 31, f), [barB] if j == 0 else [], j % 4) for j, f in enumerate(o31)]
        pvorder = [(tl, 4 * cb + d) for cb in range(4) for tl in tiles for d in range(4)]
        wide = [0, 1, 2, 3] + [("v", X(m, qt, 4)) for m in (0, 1) for qt in range(4)]
        specs += [("V", tl % R, dt, ("t", "v", tl, dt), [], j % 4 if j < 16 else wide[(j - 16 + 4) % 12]) for j, (tl, dt) in enumerate(pvorder)]
        fr = self.frag_stream(specs, 0)
        mfs, lastm, qk = [], {}, {}
        mcopy = vS + [vD]
        def QK(tile, base, order, deps, cap):
            qk[tile] = []
            for j, f in enumerate(order):
                for qt in range(4):
                    m = self.mf(fr[base + j], self.qk_t(MP[tile], f, qt, fr[base + j]["buf"]), deps=deps if f < 2 else [], cap=cap)
                    mfs.append(m); qk[tile].append(m); lastm[(tile, qt, f & 1)] = m
        def EC(tile, only, prevbr, prevmg, rare_args):
            m = MP[tile]
            Eexp, Epl = self.E_ops()
            chk, mg = self.C_ops(Epl)
            def ex(op):
                d = []
                if op.name.startswith("exp"):
                    if (tile,) + op.src in lastm: d.append((lastm[(tile,) + op.src], 8))
                    if prevbr: d.append((prevbr, 0))
                if op.name.startswith("add") and op.name.endswith("1") and prevmg: d.append((prevmg[int(op.name[3])], 0))
                return d
            En = self.to_nodes(Epl + chk + Eexp, m, extra=ex, only=only)
            cn = [n for n in En if n.name == "cmp"][0]
            br = Nd([I(f"s_cbranch_vccnz L_rare{tile}", "s"), I(f"L_back{tile}:", "l")], "s", deps=[(cn, 1)] + [(n, 0) for n in En])
            self.rares.append(self.rare(str(tile), m, tile % R, *rare_args))
            mn = self.to_nodes(mg, m, extra=lambda op: [(br, 0)])
            return En, br, mn
        QK(29, 0, range(16), [], None)
        mfs[0].waited = True
        dk, e = self.dma_nodes("K", 3, [], None)
        dv, e = self.dma_nodes("V", 3, [], e)
        E28, br28, mg28 = EC(28, self.part2, None, None, ([], MP[29]))
        br28.deps.append((qk[29][8], 0))
        QK(30, 16, range(16), [(br28, 0)], o.cap31)
        E29, br29, mg29 = EC(29, None, br28, mg28, ([MP[28]], MP[30]))
        br29.deps.append((qk[30][8], 0))
        cpy = [Nd(f"v_mov_b32 v{mcopy[qt]}, v{Mb(qt)}", "v", deps=[br29, e]) for qt in range(4)]
        QK(31, 32, o31, [(br29, 0)] + [(n, 0) for n in cpy], o.cap31)
        E30, br30, mg30 = EC(30, None, br29, mg29, ([MP[28], MP[29]], MP[31], mcopy))
        br30.deps.append((qk[31][8], 0))
        E31, br31, mg31 = EC(31, None, br30, mg30, ([MP[28], MP[29], MP[30]], None, mcopy))
        barA.deps = [(qk[29][o.tail_bar], 0), (e, 0)]
        barB.deps = [(qk[30][o.tail_bar + 14], 0)]
        bar.deps = [(br30, 0)]
        ln, t0, t1, t2 = 108, 109, 110, 111
        vW0, vR, vQ = 123, 124, 125
        ad = [f"v_mbcnt_lo_u32_b32 v{ln}, -1, 0", f"v_mbcnt_hi_u32_b32 v{ln}, -1, v{ln}",
              f"v_and_b32 v{t0}, 15, v{ln}", f"v_lshlrev_b32 v{t0}, 7, v{t0}",
              f"v_bfe_u32 v{t1}, v{ln}, 4, 1", f"v_lshl_add_u32 v{t0}, v{t1}, 3, v{t0}", f"v_add_u32 v{t0}, s{sWb}, v{t0}",
              f"v_lshrrev_b32 v{t1}, 5, v{ln}", f"v_and_b32 v{t2}, 7, v{ln}", f"v_xor_b32 v{t1}, v{t1}, v{t2}",
              f"v_lshl_add_u32 v{vW0}, v{t1}, 4, v{t0}",
              f"v_lshrrev_b32 v{t0}, 3, v{ln}", f"v_xor_b32 v{t1}, v{t0}, v{t2}", f"v_lshlrev_b32 v{t1}, 4, v{t1}",
              f"v_lshl_add_u32 v{vR}, v{t0}, 7, v{t1}", f"v_add_u32 v{vR}, s{sWb}, v{vR}",
              f"v_lshlrev_b32 v{t2}, 4, v{t2}", f"v_lshl_add_u32 v{vQ}, v{t0}, 9, v{t2}"]
        adn = []
        for x in ad: adn.append(Nd(x, "v", deps=[adn[-1]] if adn else [br31]))
        brs = {28: br28, 29: br29, 30: br30, 31: br31}
        Pd = {}
        for tl, E in ((28, E28), (29, E29), (30, E30), (31, E31)):
            for qt in range(4): Pd[(tl, qt)] = [n for n in E if n.name.startswith(f"cvt{qt}")]
        lastpv = {}
        for j, (tl, dt) in enumerate(pvorder):
            for qt in range(4):
                cap = o.cap_a if j < 12 else (o.cap_b if j < 16 else o.cap_c)
                m = self.mf(fr[48 + j], self.pv_t(MP[tl], dt, qt, fr[48 + j]["buf"]), deps=[(n, 2) for n in Pd[(tl, qt)]] + [(brs[tl], 0)], cap=cap)
                mfs.append(m); lastpv[(qt, dt)] = m
        self.link_users(fr, o.pdepth)
        occ = {}
        for f in fr:
            b = Fx(f["buf"])
            for n in f["nodes"]:
                if b in occ: n.deps.append((occ[b]["users"][-1], 0))
                elif isinstance(f["buf"], tuple): n.deps.append((br31, 0))
            occ[b] = f
        inv = [112 + 2 * qt for qt in range(4)]
        vW = [vW0, 120, 121, 122]
        small = []
        chains = []
        for qt in range(4):
            t, t2 = inv[qt], inv[qt] + 1
            ch = [Nd(f"v_mov_b32 v{t2}, v{vL[qt]}", "v", deps=[mg31[qt]])]
            ch.append(Nd(f"v_permlane16_swap_b32 v{vL[qt]}, v{t2}", "v", deps=[(ch[-1], 2)]))
            ch.append(Nd(f"v_add_f32 v{t}, v{vL[qt]}, v{t2}", "v", deps=[(ch[-1], 1)]))
            ch.append(Nd(f"v_mov_b32 v{t2}, v{t}", "v", deps=[ch[-1]]))
            ch.append(Nd(f"v_permlane32_swap_b32 v{t}, v{t2}", "v", deps=[(ch[-1], 2)]))
            ch.append(Nd(f"v_add_f32 v{t}, v{t}, v{t2}", "v", deps=[(ch[-1], 1)]))
            ch.append(Nd(f"v_rcp_f32 v{t}, v{t}", "t", deps=[ch[-1]]))
            chains.append(ch)
        small = [n for tup in zip(*chains) for n in tup]
        wn = [Nd(f"v_xor_b32 v{vW[k]}, {32*k}, v{vW0}", "v", deps=[adn[-1]]) for k in range(1, 4)]
        conv = []
        opol = [pol(x) for x in (o.opol.split(",") * 4)[:4]]
        wr_prev = {}; st_prev = {}; rd_prev = {}
        lastds = None
        for i, (cb, qt) in enumerate([(cb, qt) for cb in range(4) for qt in range(4)]):
            b = 16 * (i % 4)
            pk = cb == 3
            a0 = Ob(qt, 4 * cb)
            war = [(wr_prev[i % 4], 1)] if i % 4 in wr_prev else [(br31, 0)]
            rdn = [Nd(f"v_accvgpr_read_b32 v{b+k}, a{a0+k}", "v", deps=[(lastpv[(qt, 4 * cb + (k >> 2))], 8)] + war) for k in range(16)]
            iv = (chains[qt][-1], 1)
            if pk: mu = [Nd(f"v_pk_mul_f32 v[{b+2*k}:{b+2*k+1}], v[{b+2*k}:{b+2*k+1}], v[{inv[qt]}:{inv[qt]+1}] op_sel_hi:[1,0]", "v", deps=[rdn[2 * k], rdn[2 * k + 1], iv]) for k in range(8)]
            else: mu = [Nd(f"v_mul_f32 v{b+k}, v{b+k}, v{inv[qt]}", "v", deps=[rdn[k], iv]) for k in range(16)]
            cv = []
            for k in range(8):
                deps = ([mu[k]] if pk else [mu[2 * k], mu[2 * k + 1]]) + ([cv[-1]] if cv else [])
                cv.append(Nd(f"v_cvt_pk_bf16_f32 v{b+k}, v{b+2*k}, v{b+2*k+1}", "v", deps=deps))
            rb = qt >> 1
            wr = []
            for k in range(4):
                deps = [cv[2 * k + 1], adn[-1]] + ([wn[k - 1]] if k else []) + ([rd_prev[rb]] if rb in rd_prev else [(bar, 0)]) + ([wr[-1]] if wr else [])
                wr.append(Nd(f"ds_write_b64 v{vW[k]}, v[{b+2*k}:{b+2*k+1}] offset:{rb*TILE + (qt&1)*2048}", "ds", deps=deps, tag=("w", i, k)))
            wr_prev[i % 4] = wr[-1]
            conv += wr + rdn + mu + cv
            if qt & 1:
                rbuf = 64 + 16 * ((i >> 1) % 3)
                u2 = (i >> 1) % 3
                rds = []
                for k in range(4):
                    deps = [wr[-1], prev_wr] + ([(st_prev[u2], 2)] if u2 in st_prev else []) + ([rds[-1]] if rds else [])
                    rds.append(Nd(f"ds_read_b128 v[{rbuf+4*k}:{rbuf+4*k+3}], v{vR} offset:{rb*TILE + k*1024}", "ds", deps=deps, tag=("r", i, k)))
                rd_prev[rb] = rds[-1]
                sts = []
                for k in range(4):
                    kk = 4 * rb + k
                    so = f"s{sRow}" if kk == 0 else f"s{sRG[kk]}"
                    sts.append(Nd(f"buffer_store_dwordx4 v[{rbuf+4*k}:{rbuf+4*k+3}], v{vQ}, {srd(sO)}, {so} offen offset:{128*cb}{opol[cb]}", "vm",
                                  deps=[rds[k]] + ([sts[-1]] if sts else []), soft=[(rds[k], o.st_dist)], need=("r", i, k)))
                st_prev[u2] = sts[-1]
                conv = self._hoist(conv, rds + sts)
            prev_wr = wr[-1]
        ds = [n for f in fr for n in f["nodes"]]
        pool = ds + dk + dv + [br28, barA, barB, bar] + E28 + mg28 + [br29] + E29 + mg29 + cpy + [br30] + E30 + mg30 + [br31] + E31 + mg31 + small + adn + wn + conv
        S.run(mfs, pool, dsmax=o.tail_dsmax)
        T = S.out
        if o.ab_drop:
            dr = tuple(o.ab_drop.split(","))
            for it in T:
                if it.t and it.t.startswith(dr): it.t = "s_nop 0" if o.ab_nop else None; it.k = "ds" if it.k == "ds" else "o"
        a2 = lambda t, k="o": T.append(I(t, k))
        if o.stamps:
            T += self.stamp(6) + self.stamp(7)
            a2("s_waitcnt vmcnt(0)")
            T += self.stamp(8)
            a2("s_memrealtime s[58:59]", "sm")
            a2("s_getreg_b32 s60, hwreg(HW_REG_XCC_ID)")
            a2("s_getreg_b32 s61, hwreg(HW_REG_HW_ID)")
            a2("s_waitcnt lgkmcnt(0)")
            a2(f"s_mov_b32 s64, s36"); a2("s_mov_b32 s65, s37"); a2(f"s_mov_b32 s66, 0x1000000"); a2("s_mov_b32 s67, 0x20000")
            a2(f"s_lshl_b32 s62, s2, 10")
            a2(f"s_mul_hi_u32 s63, s{sWb}, {(2**32)//(4*PIECE)+1}")
            a2(f"s_lshl_b32 s63, s63, 8")
            a2(f"s_add_u32 s62, s62, s63")
            a2(f"v_mov_b32 v1, 0")
            for k in range(24):
                a2(f"v_mov_b32 v0, s{38+k}")
                a2(f"buffer_store_dword v0, v1, s[64:67], s62 offen offset:{4*k}")
            for k in range(18):
                a2(f"v_mov_b32 v0, s{68+k}")
                a2(f"buffer_store_dword v0, v1, s[64:67], s62 offen offset:{128+4*k}")
        return T

    @staticmethod
    def _hoist(conv, hot):
        k = 0
        while k < len(conv) and getattr(conv[k], "hot", False): k += 1
        for n in hot: n.hot = True
        return conv[:k] + hot + conv[k:]

    def build(self):
        o = self.o
        pro = self.prologue()
        bodies = [self.body(u, 3) for u in range(4)]
        pro.append(I("s_branch L_entry", "s"))
        loop = [I("L_loop:", "l")] + bodies[0] + [I("L_entry:", "l")] + bodies[1] + bodies[2] + bodies[3]
        tl = self.stamp(5) + self.tail()
        trace = pro + bodies[1] + bodies[2] + bodies[3] + loop + tl
        self.resolve_waits(trace)
        lines = [it.t for it in trace if it.t and not it.skip and it.k != "l"]
        errs = hz.check(lines)
        for r in self.rares: errs += hz.check([it.t for it in r if it.k != "l"])
        for e in sorted(set(errs))[:20]: print(e, file=sys.stderr)
        assert not errs or o.ab_drop, "hazards"
        if o.verbose:
            cnt = lambda l: sum(1 for it in l if it.t and not it.skip and it.k != "l")
            print("instr: prologue", cnt(pro), "loop", cnt(loop), "tail", cnt(tl), file=sys.stderr)
        return pro + [I(".p2align 6" if o.align else "", "l")] + loop + tl + [I("L_end:", "l"), I("s_endpgm")] + sum(self.rares, [])

    def resolve_waits(self, trace):
        ds = []
        for it in trace:
            if it.k == "ds": ds.append(it.tag)
            elif it.k == "wl":
                idx = max(j for j, t in enumerate(ds) if t == it.need)
                n = min(14, len(ds) - 1 - idx)
                it.n = n if it.n is None else min(it.n, n)
        needed = set()
        ds = []; done = 0
        for it in trace:
            if it.k == "ds": ds.append(it.tag)
            elif it.k == "w0": done = len(ds)
            elif it.k == "wl":
                idx = max(j for j, t in enumerate(ds) if t == it.need)
                if idx >= done: needed.add(id(it))
                done = max(done, len(ds) - it.n) if id(it) in needed else done
        for it in trace:
            if it.k == "wl":
                it.skip = id(it) not in needed
                it.t = f"s_waitcnt lgkmcnt({it.n})"

    def text(self):
        body = self.build()
        hdr = open("standalone__mha_softmax__near_ridge.s.ref").read().split("\n")
        top = []
        for ln in hdr:
            if ln.startswith("; @launch"): break
            top.append(ln)
        out = top + [f"; @launch grid=(256,1,1) block=(256,1,1) lds={LDS_BYTES}",
                     "; generated by my own generator script (flash-attention forward, 4 waves x 64 q rows, 32-key tiles)",
                     '.amdgcn_target "amdgcn-amd-amdhsa--gfx950"', ".text", f".globl {KNAME}", ".p2align 8",
                     f".type {KNAME},@function", f"{KNAME}:"]
        for it in body:
            if it.skip or not it.t: continue
            out.append(("" if it.k == "l" else "    ") + it.t)
        out += ['.section .rodata,"a"', ".p2align 6", f".amdhsa_kernel {KNAME}",
                "  .amdhsa_next_free_vgpr 512", "  .amdhsa_next_free_sgpr 100", "  .amdhsa_accum_offset 256",
                "  .amdhsa_group_segment_fixed_size 0", "  .amdhsa_kernarg_size 48", "  .amdhsa_user_sgpr_count 2",
                "  .amdhsa_user_sgpr_kernarg_segment_ptr 1", "  .amdhsa_system_sgpr_workgroup_id_x 1",
                ".end_amdhsa_kernel", ""]
        return "\n".join(out)

def parse(argv):
    p = argparse.ArgumentParser()
    p.add_argument("-o", default="standalone__mha_softmax__near_ridge.s")
    for f in ("stamps", "verbose", "dbg", "no_bar", "no_dma", "no_br"):
        p.add_argument("--" + f, action="store_true")
    for name, d in dict(align=1, look=24, bar_gap=113, bar_quiet=1, kstep=2, vm_wait=12, late_v1=0, br_delay=1, dma0=2, dmastep=4, sdelay=28, backlog=5,
                        codepf=1, pdepth=7, g0_dma0=2, g0_dmastep=6, pro_dma=2, pro_bar=10, pro_barm=43, pro_cap=3, pro_cap3=12, tail_bar=30, cap31=2, cap_a=4, cap_b=3, cap_c=4, st_dist=24, tail_dsmax=1).items():
        p.add_argument("--" + name, type=int, default=d)
    p.add_argument("--thr", type=float, default=1024.0)
    p.add_argument("--ab_drop", default="")
    p.add_argument("--ab_nop", type=int, default=0)
    p.add_argument("--kvpol", default="nt")
    p.add_argument("--qpol", default="nt")
    p.add_argument("--opol", default="sc1")
    return p.parse_args(argv)

if __name__ == "__main__":
    o = parse(sys.argv[1:])
    open(o.o, "w").write(Gen(o).text())
```

```python
import sys, struct, argparse
sys.path.insert(0, "dev")
import hz

KNAME = "standalone__mha_softmax__near_ridge_kernel"
MF = "v_mfma_f32_16x16x32_bf16"

def f32bits(x): return struct.unpack("<I", struct.pack("<f", x))[0]
def pol(x): return (" " + x.replace("+", " ")) if x else ""
def srd(s): return f"s[{s}:{s+3}]"

class I:
    __slots__ = ("t", "k", "tag", "need", "n", "skip")
    def __init__(self, t, k="o", tag=None, need=None):
        self.t = t; self.k = k; self.tag = tag; self.need = need; self.n = None; self.skip = False

def Qr(qt, d8): b = (qt * 8 + d8) * 4; return f"v[{b}:{b+3}]"
vT = 240
def X(m, qt, k):
    if m < 2: return 128 + m * 32 + qt * 8 + k
    return vT + 4 * qt + k if k < 4 else 128 + 32 + qt * 8 + k
def Sr(m, qt, kt): b = X(m, qt, 4 * kt); return f"v[{b}:{b+3}]"
def Pr(m, qt): return Sr(m, qt, 0)
NF = 8
def Fx(f): return f if isinstance(f, tuple) else ("v", 192 + (f % NF) * 4)
def Fr(f): c, b = Fx(f); return f"{c}[{b}:{b+3}]"
def Ob(qt, dt): return (qt * 16 + dt) * 4
def Or(qt, dt): b = Ob(qt, dt); return f"a[{b}:{b+3}]"
vK, vVe, vVo, vD = 224, 225, 226, 227
vL = [228, 229, 230, 231]
vLt = [232, 233, 234, 235]
vC = 236
vS = [237, 238, 239]
def Mb(qt): return vT + 4 * qt
def Mr(qt): b = Mb(qt); return f"v[{b}:{b+3}]"
sQ, sK, sV, sO = 4, 8, 12, 16
sC, sKoff, sVoff, sWb, sCnt, sNC, sThr, sRow = 20, 21, 22, 23, 24, 25, 26, 27
sQoff, sMask = 86, 95
sRG = [None, 88, 89, 90, 91, 92, 93, 94]
PIECE = 1088
TILE = 16 * PIECE
R = 4
VBASE = R * TILE
LDS_BYTES = (2 * R + 1) * TILE
NG = 128
def dk(f): return (2 * (f >> 2) + (f & 1), (f >> 1) & 1)

class Op:
    def __init__(self, name, fn, cost=1, deps=(), t0=0):
        self.name = name; self.fn = fn; self.cost = cost; self.deps = list(deps); self.t0 = t0; self.t = None

class Nd:
    def __init__(self, t, k, deps=(), tag=None, need=None, cap=None, soft=()):
        self.t = t if isinstance(t, list) else [t]
        self.k = k; self.deps = [d if isinstance(d, tuple) else (d, 0) for d in deps]
        self.tag = tag; self.need = need; self.idx = None; self.cap = cap; self.waited = False; self.soft = list(soft); self.low = False
        self.cost = {"t": 2, "vm": 2, "s": 0}.get(k, 1)

class Sched:
    def __init__(self):
        self.out = []; self.n = 0; self.issued = set()
    def ok(self, nd, relax=False):
        if not relax and any(d.idx is None or self.n - d.idx - 1 < dist for d, dist in nd.soft): return False
        return all(d.idx is not None and self.n - d.idx - 1 >= dist for d, dist in nd.deps)
    def wait(self, nd):
        if nd.need is not None and not nd.waited:
            self.out.append(I(None, "wl", need=nd.need)); nd.waited = True
    def emit(self, nd):
        self.wait(nd)
        for t in nd.t:
            if isinstance(t, I):
                self.out.append(t)
                if t.k != "l": self.n += 1
            else:
                self.out.append(I(t, nd.k, tag=nd.tag)); self.n += 1
        nd.idx = self.n - 1
    def raw(self, lst):
        for t in lst:
            t = t if isinstance(t, I) else I(t)
            self.out.append(t)
            if t.k not in ("l", "wl"): self.n += 1
    def pick(self, pool, free, dsmax):
        got = []; nds = 0; nsc = 0
        for nd in list(pool):
            if not self.ok(nd): continue
            if nd.k == "s":
                if nsc: continue
                nsc += 1
            else:
                if nd.cost > free: continue
                if nd.k == "ds":
                    if nds >= dsmax: continue
                    nds += 1
                free -= nd.cost
            got.append(nd); pool.remove(nd)
            if free <= 0 and nsc: break
        order = {"s": 0, "ds": 1, "vm": 2}
        got.sort(key=lambda nd: order.get(nd.k, 3))
        return got
    def drain_one(self, pool, relax=False):
        for nd in pool:
            if self.ok(nd, relax):
                pool.remove(nd); self.emit(nd); return True
        return False
    def run(self, mfs, pool, cap=2, dsmax=1, keep=()):
        for i, m in enumerate(mfs):
            guard = 0
            while not self.ok(m):
                if not self.drain_one(pool):
                    self.raw(["s_nop 0"]); guard += 1
                    assert guard < 40, ("stuck", m.t, [d.t for d, _ in m.deps if d.idx is None])
            self.emit(m)
            c = m.cap or cap
            left = c
            nx = mfs[i + 1] if i + 1 < len(mfs) else None
            if nx is not None and nx.need is not None and not nx.waited and all(d.idx is not None for d, _ in nx.deps if d.k == "ds"):
                self.wait(nx)
            def take(kinds, maxcost, low=True):
                for nd in pool:
                    if nd.k in kinds and nd.cost <= maxcost and (low or not nd.low) and self.ok(nd):
                        pool.remove(nd); self.emit(nd); return nd
                return None
            take(("s",), 0)
            nds = 0
            while nds < dsmax and left > 0 and take(("ds",), left, False): left -= 1; nds += 1
            if left >= 2 and take(("vm",), left): left -= 2
            while nds < dsmax and left > 0 and take(("ds",), left): left -= 1; nds += 1
            while left > 0:
                nd = None
                if left >= 2:
                    rdy = []
                    for x in pool:
                        if x.k in ("v", "t") and self.ok(x):
                            rdy.append(x)
                            if x.k == "t" or len(rdy) > 4: break
                    if rdy and rdy[-1].k == "t": nd = take(("t",), left)
                if not nd: nd = take(("v", "t"), left)
                if not nd: break
                left -= nd.cost
        guard = 0
        while any(nd not in keep for nd in pool):
            if not self.drain_one(pool) and not self.drain_one(pool, True):
                self.raw(["s_nop 0"]); guard += 1
                assert guard < 40, ("stuck", [nd.t for nd in pool[:3]])
            else: guard = 0

class Gen:
    def __init__(self, o):
        self.o = o
        self.rares = []
        self.plan()

    def kread_t(self, slot, f, buf):
        d8, kt = dk(f)
        return f"ds_read_b128 {Fr(buf)}, v{vK} offset:{slot*TILE + kt*8*PIECE + 64*d8}"
    def vread_t(self, slot, dt, sec, buf):
        c, b = Fx(buf); b += 2 * sec
        return f"ds_read_b64_tr_b16 {c}[{b}:{b+1}], v{vVo if dt & 1 else vVe} offset:{slot*TILE + sec*8*PIECE + 64*(dt>>1)}"
    def fread(self, u, f, part=None):
        if f < 16: return [I(self.kread_t((u + 1) % R, f, f), "ds", tag=(u, f))]
        return [I(self.vread_t(u % R, f - 16, sec, f), "ds", tag=(u, f)) for sec in range(2) if part is None or part == sec]

    def dma_m0(self, which, slot, j):
        base = slot * TILE + (VBASE if which == "V" else 0) + (PIECE - 1024) * j
        return I(f"s_add_u32 m0, s{sWb}, {base}", "s")
    def dma_ld(self, which, j):
        s, so, p = {"K": (sK, sKoff, self.o.kvpol), "V": (sV, sVoff, self.o.kvpol), "Q": (sQ, sQoff, self.o.qpol)}[which]
        return I(f"buffer_load_dwordx4 v{vD}, {srd(s)}, s{so} offen offset:{j*1024}{pol(p)} lds", "vm")
    def dma_adv(self, which):
        so = {"K": sKoff, "V": sVoff, "Q": sQoff}[which]
        return I(f"s_addk_i32 s{so}, {4096 if which == 'Q' else 16384}", "s")
    def dma_tile(self, which, slot):
        out = [self.dma_m0(which, slot, 0)]
        for j in range(4):
            out += [I("s_nop 0"), self.dma_ld(which, j)]
            if j < 3: out.append(I(f"s_addk_i32 m0, {PIECE-1024}", "s"))
        out.append(self.dma_adv(which))
        return out
    def dma_nodes(self, which, slot, deps, prev):
        out = []
        for j in range(4):
            m = Nd(self.dma_m0(which, slot, j).t, "s", deps=list(deps) + ([prev] if prev else []))
            l = Nd(self.dma_ld(which, j).t, "vm", deps=[(m, 1)])
            out += [m, l]; prev = l
        adv = Nd(self.dma_adv(which).t, "s", deps=[prev]); out.append(adv)
        return out, adv

    def qk_t(self, m, f, qt, buf, zero=False):
        d8, kt = dk(f)
        c = Sr(m, qt, kt) if d8 else ("0" if zero else Mr(qt))
        return f"{MF} {Sr(m,qt,kt)}, {Fr(buf)}, {Qr(qt,d8)}, {c}"
    def pv_t(self, m, dt, qt, buf, zero=False):
        return f"{MF} {Or(qt,dt)}, {Fr(buf)}, {Pr(m,qt)}, {'0' if zero else Or(qt,dt)}"

    def E_ops(self, qts=range(4), acc=None):
        o = self.o
        acc = acc or vLt
        ex, ad, cv, Eexp, Epl = {}, {}, {}, [], []
        for qt in qts:
            for k in range(8):
                ex[(qt, k)] = Op(f"exp{qt}{k}", (lambda m, qt=qt, k=k: f"v_exp_f32 v{X(m,qt,k)}, v{X(m,qt,k)}"), cost=2, t0=49 + 8 * (k >> 2) + 2 * qt + max(6, o.sdelay))
                ex[(qt, k)].src = (qt, k >> 2)
                Eexp.append(ex[(qt, k)])
            ad[(qt, 1)] = Op(f"add{qt}1", (lambda m, qt=qt: f"v_add_f32 v{acc[qt]}, v{X(m,qt,0)}, v{X(m,qt,1)}"), deps=[ex[(qt, 0)], ex[(qt, 1)]])
            ad[(qt, 0)] = ad[(qt, 1)]
            for k in range(2, 8):
                ad[(qt, k)] = Op(f"add{qt}{k}", (lambda m, qt=qt, k=k: f"v_add_f32 v{acc[qt]}, v{acc[qt]}, v{X(m,qt,k)}"), deps=[ex[(qt, k)], ad[(qt, k - 1)]])
            for j in range(4):
                deps = [ex[(qt, 2 * j)], ex[(qt, 2 * j + 1)], ad[(qt, j)]] + ([cv[(qt, j >> 1)]] if j else [])
                cv[(qt, j)] = Op(f"cvt{qt}{j}", (lambda m, qt=qt, j=j: f"v_cvt_pk_bf16_f32 v{X(m,qt,j)}, v{X(m,qt,2*j)}, v{X(m,qt,2*j+1)}"), deps=deps)
            for k in range(1, 8):
                Epl.append(ad[(qt, k)])
                if k & 1: Epl.append(cv[(qt, k >> 1)])
        return Eexp, Epl
    def C_ops(self, Epl):
        la = [op for op in Epl if op.name.startswith("add") and op.name.endswith("7")]
        c1 = Op("chk1", (lambda m: f"v_max3_f32 v{vC}, v{vLt[0]}, v{vLt[1]}, v{vLt[2]}"), deps=la[:3])
        c2 = Op("chk2", (lambda m: f"v_max_f32 v{vC}, v{vC}, v{vLt[3]}"), deps=[c1, la[3]])
        cmp = Op("cmp", (lambda m: f"v_cmp_lt_f32 vcc, s{sThr}, v{vC}"), deps=[c2])
        mg = [Op(f"mrg{qt}", (lambda m, qt=qt: f"v_add_f32 v{vL[qt]}, v{vL[qt]}, v{vLt[qt]}")) for qt in range(4)]
        return [c1, c2, cmp], mg
    def to_nodes(self, ops, m, extra=None, only=None):
        nd = {}
        for op in ops:
            if only is not None and op.name not in only: continue
            nd[op] = Nd(op.fn(m), "t" if op.cost == 2 else "v"); nd[op].name = op.name
        for op, n in nd.items():
            for d in op.deps:
                if d in nd: n.deps.append((nd[d], 1 if d.cost == 2 else 0))
            if extra: n.deps += extra(op)
        return list(nd.values())
    @staticmethod
    def E_order(Eexp, Epl):
        return Epl + Eexp

    def plan(self):
        o = self.o
        used = [0] * NG
        self.ds_at = [[] for _ in range(NG)]
        g = o.bar_gap + 1
        self.npre = 0
        for f in range(32):
            want = 4 * f - o.look
            if f < 16 and want < 0:
                pos = max(want + NG, g)
                if pos < NG - 1:
                    self.ds_at[pos].append((f, None, True)); used[pos] += 1
                    g = pos + o.kstep; self.npre = f + 1
                    continue
                want = 0
            pos = want
            for p in ([None] if f < 16 else [0, 1]):
                while used[pos] > 0: pos += 1
                assert pos < o.bar_gap - 6 or f < 16
                self.ds_at[pos].append((f, p, False)); used[pos] += 1
        self.dma_at = {}
        pos = o.dma0
        for k in range(8):
            while used[pos] > 0 or pos % 4 == 0: pos += 1
            assert 0 < pos < o.bar_gap - 3
            self.dma_at[pos] = k
            used[pos] = 2
            pos += o.dmastep
        used[NG - 1] += 1
        for gq in range(o.bar_gap - o.bar_quiet + 1, o.bar_gap + 1): used[gq] = 2
        self.va_at = [[] for _ in range(2 * NG)]
        rdy = lambda op, t: op.t0 <= t and all(d.t is not None and d.t < t for d in op.deps)
        Eexp, Epl = self.E_ops()
        chk, mg = self.C_ops(Epl)
        Epl = Epl + chk
        for k, op in enumerate(Eexp): op.t0 = max(op.t0, 56 + o.sdelay + k * o.pace // 10)
        def put(op, t): op.t = t; self.va_at[t].append(op); used[t % NG] += op.cost
        t = 56
        while Eexp or Epl:
            assert t < NG + 56, "softmax does not fit"
            free = 2 - used[t % NG]
            backlog = sum(1 for op in Epl if all(d.t is not None for d in op.deps if d.cost == 2) and not op.name.startswith("c" + "hk") and op.name != "cmp")
            re = [op for op in Eexp if rdy(op, t)]
            if free == 2 and re and backlog < o.backlog:
                Eexp.remove(re[0]); put(re[0], t)
            else:
                for op in list(Epl):
                    if free == 0: break
                    if rdy(op, t): Epl.remove(op); put(op, t); free -= 1
                if free == 2 and re: Eexp.remove(re[0]); put(re[0], t)
            t += 1
        busy = lambda g: g % 4 == 3 or (g + 1) in self.dma_at or ((g - 2) in self.dma_at and self.dma_at[g - 2] % 4 == 3)
        self.t_br = max(t + o.br_delay, NG + 17) - NG
        while busy(self.t_br): self.t_br += 1
        t = self.t_br + NG
        while mg:
            if used[t % NG] < 2: put(mg.pop(0), t)
            else: t += 1
        assert t < NG + 61
        self.part1 = {op.name for t in range(0, NG) for op in self.va_at[t]}
        self.part2 = {op.name for t in range(NG, 2 * NG) for op in self.va_at[t]}
        if o.verbose:
            print("br", self.t_br, "npre", self.npre, "part2", len(self.part2), "used", "".join(map(str, used)), file=sys.stderr)

    def body(self, u, lastu):
        o = self.o
        cur = u & 1; nxt = cur ^ 1
        out = []
        for g in range(NG):
            f = g >> 2; qt = g & 3
            if g < 64: f = 2 * (g >> 3) + (g & 1); qt = (g >> 1) & 3
            elif o.snake and f & 1: qt = 3 - qt
            out.append(I(self.qk_t(nxt, f, qt, f) if f < 16 else self.pv_t(cur, f - 16, qt, f), "m"))
            sc, ds, vm, va = [], [], [], []
            if g % 4 == 3:
                f1 = (g + 1) // 4
                if f1 >= 32: sc.append(I(None, "wl", need=((u + 1) % R, 1)))
                elif f1 >= 16: sc.append(I(None, "wl", need=(u, f1)))
                elif f1 % 2 == 0: sc.append(I(None, "wl", need=(u, f1 + 1)))
            if g == o.bar_gap - 1: sc.append(I(f"s_waitcnt vmcnt({o.vm_wait}) lgkmcnt(0)", "w0"))
            if o.late_v1 and u == 1:
                gv = 64 - o.look - 2
                assert max(self.dma_at) < gv - 1
                if g == gv - 1: sc.append(I("s_waitcnt vmcnt(20)"))
                if g == gv: sc.append(I("s_barrier"))
            if g == o.bar_gap and not o.no_bar: sc.append(I("s_barrier"))
            desc = lambda k: ("K", (u - 1) % R, k) if k < 4 else ("V", (u - 1) % R, k - 4)
            if g + 1 in self.dma_at: sc.append(self.dma_m0(*desc(self.dma_at[g + 1])))
            if g in self.dma_at:
                wh, _, j = desc(self.dma_at[g])
                if not o.no_dma: vm.append(self.dma_ld(wh, j))
            if g - 2 in self.dma_at and self.dma_at[g - 2] % 4 == 3: sc.append(self.dma_adv(desc(self.dma_at[g - 2])[0]))
            for (ff, p, nx) in self.ds_at[g]: ds += self.fread((u + 1) % R if nx else u, ff, p)
            if g == self.t_br and not o.no_br:
                sc += [I(f"s_cbranch_vccnz L_rare{u}", "s"), I(f"L_back{u}:", "l")]
                self.rares.append(self.rare(str(u), cur, u % R, [], nxt))
            for op in self.va_at[g + NG]: va.append(I(op.fn(cur), "v"))
            for op in self.va_at[g]: va.append(I(op.fn(nxt), "v"))
            if u == lastu and g == NG - 3: sc.append(I(f"s_sub_u32 s{sCnt}, s{sCnt}, 1", "s"))
            if u == lastu and g == NG - 2: sc.append(I(f"s_cmp_lg_u32 s{sCnt}, 0", "s"))
            out += sc + ds + vm + va
        if u == lastu: out.append(I("s_cbranch_scc1 L_loop", "s"))
        return out

    def rare(self, name, m, kslot, pend, prog, mcopy=None):
        out = [I(f"L_rare{name}:", "l")]
        a = lambda t: out.append(I(t))
        fb = ("v", vLt[0])
        a("s_nop 7")
        for f in range(16):
            a(self.kread_t(kslot, f, fb))
            a("s_waitcnt lgkmcnt(0)")
            for qt in range(4): a(self.qk_t(m, f, qt, fb, zero=True))
            a("s_nop 7")
        a("s_nop 7")
        t, t2, f = vC, vLt[0], vLt[1]
        for qt in range(4):
            x = lambda k: X(m, qt, k)
            mreg = mcopy[qt] if mcopy else Mb(qt)
            for k in range(8): a(f"v_add_f32 v{x(k)}, v{x(k)}, v{mreg}")
            a(f"v_max3_f32 v{t}, v{x(0)}, v{x(1)}, v{x(2)}")
            a(f"v_max3_f32 v{t}, v{t}, v{x(3)}, v{x(4)}")
            a(f"v_max3_f32 v{t}, v{t}, v{x(5)}, v{x(6)}")
            a(f"v_max_f32 v{t}, v{t}, v{x(7)}")
            for sw in ("v_permlane16_swap_b32", "v_permlane32_swap_b32"):
                a(f"v_mov_b32 v{t2}, v{t}"); a("s_nop 1"); a(f"{sw} v{t}, v{t2}"); a("s_nop 1"); a(f"v_max_f32 v{t}, v{t}, v{t2}")
            a(f"v_ceil_f32 v{t}, v{t}")
            a(f"v_max_f32 v{t}, 0, v{t}")
            if mcopy: a(f"v_sub_f32 v{mreg}, v{mreg}, v{t}")
            else:
                for k in range(4): a(f"v_sub_f32 v{mreg+k}, v{mreg+k}, v{t}")
            for k in range(8): a(f"v_sub_f32 v{x(k)}, v{x(k)}, v{t}")
            if prog is not None:
                for k in range(8): a(f"v_sub_f32 v{X(prog,qt,k)}, v{X(prog,qt,k)}, v{t}")
            a(f"v_min_f32 v{t2}, 0x43480000, v{t}")
            a(f"v_cvt_i32_f32 v{t2}, v{t2}")
            a(f"v_sub_u32 v{t2}, 0, v{t2}")
            a(f"v_ldexp_f32 v{f}, 1.0, v{t2}")
            a(f"v_mul_f32 v{vL[qt]}, v{vL[qt]}, v{f}")
            for pm in pend:
                for j in range(4):
                    p = X(pm, qt, j)
                    a(f"v_lshlrev_b32 v{t}, 16, v{p}")
                    a(f"v_and_b32 v{t2}, 0xffff0000, v{p}")
                    a(f"v_mul_f32 v{t}, v{t}, v{f}")
                    a(f"v_mul_f32 v{t2}, v{t2}, v{f}")
                    a(f"v_cvt_pk_bf16_f32 v{p}, v{t}, v{t2}")
            for a0 in range(qt * 64, qt * 64 + 64, 2):
                a(f"v_accvgpr_read_b32 v{t}, a{a0}"); a(f"v_accvgpr_read_b32 v{t2}, a{a0+1}")
                a(f"v_mul_f32 v{t}, v{t}, v{f}"); a(f"v_mul_f32 v{t2}, v{t2}, v{f}")
                a(f"v_accvgpr_write_b32 a{a0}, v{t}"); a(f"v_accvgpr_write_b32 a{a0+1}, v{t2}")
        Eexp, Epl = self.E_ops()
        for op in Eexp: a(op.fn(m))
        a("s_nop 0")
        for op in Epl:
            if op.name.startswith("add"): a(op.fn(m))
        for op in Epl:
            if op.name.startswith("cvt"): a(op.fn(m))
        a("s_nop 1")
        a(f"s_branch L_back{name}")
        return out

    def stamp(self, idx):
        if not self.o.stamps: return []
        return [I(f"s_memtime s[{40+2*idx}:{41+2*idx}]", "sm"), I(f"s_memrealtime s[{68+2*idx}:{69+2*idx}]", "sm")]

    def frag_stream(self, specs, j0, users_prev=None):
        fr = []
        for j, (kind, slot, idx, tag, deps, *bb) in enumerate(specs):
            buf = bb[0] if bb else j0 + j
            if kind == "done": nodes = []
            elif kind == "K": nodes = [Nd(self.kread_t(slot, idx, buf), "ds", deps=list(deps), tag=tag)]
            else: nodes = [Nd(self.vread_t(slot, idx, s, buf), "ds", deps=list(deps), tag=tag) for s in range(2)]
            fr.append(dict(nodes=nodes, buf=buf, tag=tag, users=[]))
        prev = None
        for f in fr:
            for n in f["nodes"]:
                if prev: n.deps.append((prev, 0))
                prev = n
        return fr
    def link_users(self, fr, depth):
        for j, f in enumerate(fr):
            if j - depth >= 0 and fr[j - depth]["users"]:
                for n in f["nodes"]: n.deps.append((fr[j - depth]["users"][-1], 0))
    def mf(self, f, text, deps=(), cap=None):
        first = not f["users"]
        m = Nd(text, "m", deps=list(deps) + [(n, 0) for n in f["nodes"]], need=f["tag"] if first else None, cap=cap)
        f["users"].append(m)
        return m

    def prologue(self):
        o = self.o
        S = Sched()
        a = lambda t, k="o", **kw: S.raw([I(t, k, **kw)])
        lane, w, t0, t1, t2, vQr = vT + 8, vT + 9, vT + 10, vT + 11, vT + 12, vT + 14
        a("s_cmpk_ge_u32 s2, 0x100")
        a("s_cbranch_scc1 L_end")
        a("s_load_dwordx8 s[28:35], s[0:1], 0", "sm")
        if o.stamps:
            a(f"s_load_dwordx2 s[36:37], s[0:1], {32 if o.dbg else 40}", "sm")
            a("s_memrealtime s[38:39]", "sm")
            S.raw(self.stamp(0))
        if o.codepf:
            a("s_getpc_b64 s[96:97]")
            a(f"v_lshlrev_b32 v{t0}, 7, v0")
            a(f"global_load_dword v{vT+15}, v{t0}, s[96:97]", "vm")
        a(f"v_lshrrev_b32 v{w}, 6, v0")
        a(f"v_and_b32 v{lane}, 63, v0")
        a(f"v_and_b32 v{t1}, 32, v0")
        a(f"v_readfirstlane_b32 s{sWb}, v{w}")
        a(f"v_lshlrev_b32 v{vD}, 4, v{lane}")
        a(f"v_xor_b32 v{vD}, v{vD}, v{t1}")
        a("s_lshr_b32 s3, s2, 4")
        a("s_and_b32 s87, s2, 7")
        a("s_lshl3_add_u32 s3, s3, s87")
        a("s_and_b32 s87, s2, 8")
        a(f"s_lshl1_add_u32 s{sRow}, s{sWb}, s87")
        a(f"s_lshl_b32 s{sQoff}, s{sRow}, 14")
        a(f"s_lshl_b32 s{sKoff}, s{sWb}, 12")
        a(f"s_mulk_i32 s{sWb}, {4*PIECE}")
        a("s_mul_i32 s87, s3, 253952")
        a(f"s_mov_b32 s{sQ+2}, 253952")
        a(f"s_mov_b32 s{sQ+3}, 0x20000")
        a(f"s_add_u32 m0, s{sWb}, {8*TILE}")
        a(f"s_movk_i32 s{sCnt}, 2")
        a("s_waitcnt lgkmcnt(0)", "w0")
        a(f"s_add_u32 s{sQ}, s28, s87")
        a(f"s_addc_u32 s{sQ+1}, s29, 0")
        a("L_q:", "l")
        for j in range(4):
            S.raw([self.dma_ld("Q", j)])
            if j < 3:
                a(f"s_addk_i32 m0, {PIECE-1024}", "s")
                a(f"s_sub_u32 s{sCnt}, s{sCnt}, 1" if j == 0 else "s_nop 0")
        a(f"s_addk_i32 m0, {-(TILE + 3*(PIECE-1024))}", "s")
        S.raw([self.dma_adv("Q")])
        a(f"s_cmp_lg_u32 s{sCnt}, 0")
        a("s_cbranch_scc1 L_q")
        a("s_lshl_b32 s3, s3, 19")
        for (s, p) in ((sK, 30), (sV, 32)):
            a(f"s_add_u32 s{s}, s{p}, s3")
            a(f"s_addc_u32 s{s+1}, s{p+1}, 0")
            a(f"s_mov_b32 s{s+2}, 524288")
            a(f"s_mov_b32 s{s+3}, 0x20000")
        a(f"s_mov_b32 s{sVoff}, s{sKoff}")
        S.raw(self.dma_tile("K", 0) + self.dma_tile("K", 1) + self.dma_tile("V", 0))
        a(f"s_add_u32 s{sO}, s34, s87")
        a(f"s_addc_u32 s{sO+1}, s35, 0")
        a(f"s_mov_b32 s{sO+2}, 253952")
        a(f"s_mov_b32 s{sO+3}, 0x20000")
        a(f"s_lshl_b32 s{sRow}, s{sRow}, 14")
        for k in range(1, 8): a(f"s_add_u32 s{sRG[k]}, s{sRow}, {k*4096}")
        a(f"v_and_b32 v{t2}, 1, v{lane}")
        a(f"v_lshlrev_b32 v{t0}, 9, v{t2}")
        a(f"v_lshlrev_b32 v{t2}, 5, v{t2}")
        a(f"v_lshrrev_b32 v{t1}, 4, v{lane}")
        a(f"v_lshlrev_b32 v{t1}, 4, v{t1}")
        a(f"v_xor_b32 v{t1}, v{t1}, v{t2}")
        a(f"v_add_u32 v{t0}, v{t0}, v{t1}")
        a(f"v_bfe_u32 v{t1}, v{lane}, 1, 2")
        a(f"v_mul_u32_u24 v{t1}, {PIECE}, v{t1}")
        a(f"v_add_u32 v{t0}, v{t0}, v{t1}")
        a(f"v_bfe_u32 v{t1}, v{lane}, 3, 1")
        a(f"v_mul_u32_u24 v{vK}, {4*PIECE}, v{t1}")
        a(f"v_add_u32 v{vK}, v{vK}, v{t0}")
        a(f"v_xor_b32 v{t1}, 1, v{t1}")
        a(f"v_mul_u32_u24 v{vQr}, {TILE}, v{t1}")
        a(f"v_add_u32 v{vQr}, v{vQr}, v{t0}")
        a(f"s_add_u32 s87, s{sWb}, {5*TILE}")
        a(f"v_add_u32 v{vQr}, s87, v{vQr}")
        a(f"v_subrev_u32 v{vQr-1}, {3*TILE}, v{vQr}")
        a(f"v_lshrrev_b32 v{t0}, 3, v{lane}")
        a(f"v_mul_u32_u24 v{t0}, {PIECE}, v{t0}")
        a(f"v_bfe_u32 v{t2}, v{lane}, 2, 1")
        a(f"v_lshl_add_u32 v{t0}, v{t2}, 9, v{t0}")
        a(f"v_and_b32 v{t1}, 3, v{lane}")
        a(f"v_lshl_add_u32 v{t0}, v{t1}, 3, v{t0}")
        a(f"v_add_u32 v{t0}, {VBASE}, v{t0}")
        a(f"v_lshl_add_u32 v{vVe}, v{t2}, 5, v{t0}")
        a(f"v_xor_b32 v{vVo}, 32, v{vVe}")
        c = 1.4426950408889634 / 16.0
        a(f"s_mov_b32 s{sC}, {hex(f32bits(c))}")
        a(f"s_mov_b32 s{sNC}, {hex(f32bits(-c))}")
        a(f"s_mov_b32 s{sThr}, {hex(f32bits(o.thr))}")
        a(f"s_movk_i32 s{sCnt}, 7")
        a(f"s_mov_b32 s{sMask}, 0xffff0000")
        def qchunks(hi_slot):
            return self.dma_tile("Q", hi_slot) + self.dma_tile("Q", hi_slot - 1)
        def qread(qt):
            base, off = {0: (vQr, 2 * TILE), 1: (vQr, 0), 2: (vQr - 1, 0), 3: (vQr, 2 * TILE)}[qt]
            return [I(f"ds_read_b128 {Qr(qt,d8)}, v{base} offset:{off + 64*d8}", "ds", tag=("q", qt, d8)) for d8 in range(8)]
        def prescale(qt, tb, nt, pk, deps=()):
            out, lastcv = [], {}
            for g in range(0, 32, nt):
                rs = [(32 * qt + g + i, tb + 2 * i) for i in range(nt)]
                w = lambda t: [lastcv[t]] if t in lastcv else []
                lo = [Nd(f"v_lshlrev_b32 v{t}, 16, v{r}", "v", deps=list(deps) + w(t)) for r, t in rs]
                hi = [Nd(f"v_and_b32 v{t+1}, s{sMask}, v{r}", "v", deps=list(deps) + w(t)) for r, t in rs]
                if pk: mu = [[Nd(f"v_pk_mul_f32 v[{t}:{t+1}], v[{t}:{t+1}], s[{sC}:{sC+1}] op_sel_hi:[1,0]", "v", deps=[lo[i], hi[i]])] for i, (r, t) in enumerate(rs)]
                else: mu = [[Nd(f"v_mul_f32 v{t}, s{sC}, v{t}", "v", deps=[lo[i]]), Nd(f"v_mul_f32 v{t+1}, s{sC}, v{t+1}", "v", deps=[hi[i]])] for i, (r, t) in enumerate(rs)]
                cv = [Nd(f"v_cvt_pk_bf16_f32 v{r}, v{t}, v{t+1}", "v", deps=mu[i]) for i, (r, t) in enumerate(rs)]
                for i, (r, t) in enumerate(rs): lastcv[t] = cv[i]
                out += lo + hi + sum(mu, []) + cv
            return out
        S.raw(qchunks(6))
        a("s_waitcnt vmcnt(20)")
        S.raw(qread(0))
        a("s_waitcnt lgkmcnt(0)", "w0")
        S.run([], prescale(0, 128, 4, True))
        S.raw(self.dma_tile("Q", 3))
        a("s_waitcnt vmcnt(12)")
        a("s_barrier")
        if o.stamps: S.raw(self.stamp(1))
        groups = [[0], [1], [2], [3]]
        bar = Nd([I(f"s_waitcnt vmcnt({16 if o.late_v1 else 12}) lgkmcnt(0)", "w0"), I("s_barrier")], "s")
        one = lambda kind, slot, idx, tag, buf, deps=(): self.frag_stream([(kind, slot, idx, tag, list(deps), buf)], 0)[0]
        K0p = [one("K", 0, f, ("k0", f), ("a", 192 + 4 * f)) for f in range(16)]
        K1p = [one("K", 1, f, ("k1", f), ("v", 96 + 4 * f) if f < 8 else f) for f in range(16)]
        assert {"cvt03", "cvt13", "add07", "add17"} <= self.part1
        K1q = [one("K", 1, f, ("k1b", f), ("v", b)) for f, b in enumerate([128, 132, 136, 140, X(1, 0, 4), X(1, 1, 4), 144, 148])]
        lastq = [("a", 64), ("a", 128), ("v", 152), ("v", 128)]
        Vp = [[one("V", 0, d, ("vp", r, d), ("a", 64 * r + 4 + 4 * d) if d < 15 else lastq[r]) for d in range(16)] for r in range(4)]
        K2p = self.frag_stream([("K", 2, f, (1, f), [bar], f) for f in range(self.npre)], 0)
        again = lambda F: [dict(nodes=f["nodes"], buf=f["buf"], tag=f["tag"], users=[]) for f in F]
        fr_all = []
        for r in range(4): fr_all += again(K0p) + (again(K1p) if r < 3 else K1q + again(K1p[8:])) + Vp[r]
        regions = []
        for gi, qts in enumerate(groups):
            F = fr_all[48 * gi:48 * gi + 48]
            mfs, pool = [], []
            lastm = {}
            neg, pos = ("-1.0", "1.0") if gi < 3 else (f"s{sNC}", f"s{sC}")
            for tl in range(2):
                for f in range(16):
                    for qt in qts:
                        m = self.mf(F[16 * tl + f], self.qk_t(tl, f, qt, F[16 * tl + f]["buf"], zero=True)); mfs.append(m); lastm[(tl, qt, dk(f)[1])] = m
            pdone = {}
            for qi, qt in enumerate(qts):
                t, t2 = vC + 2 * qi, vC + 2 * qi + 1
                vals = [(tl, k) for tl in range(2) for k in range(8)]
                src = lambda v: (lastm[(v[0], qt, v[1] >> 2)], 8)
                rg = lambda v: f"v{X(v[0], qt, v[1])}"
                ch = [Nd(f"v_max3_f32 v{t}, {rg(vals[0])}, {rg(vals[1])}, {rg(vals[2])}", "v", deps=[src(v) for v in vals[:3]])]
                for j in range(3, 15, 2):
                    ch.append(Nd(f"v_max3_f32 v{t}, v{t}, {rg(vals[j])}, {rg(vals[j+1])}", "v", deps=[ch[-1], src(vals[j]), src(vals[j + 1])]))
                ch.append(Nd(f"v_max_f32 v{t}, v{t}, {rg(vals[15])}", "v", deps=[ch[-1], src(vals[15])]))
                for sw in ("v_permlane16_swap_b32", "v_permlane32_swap_b32"):
                    ch.append(Nd(f"v_mov_b32 v{t2}, v{t}", "v", deps=[ch[-1]]))
                    ch.append(Nd(f"{sw} v{t}, v{t2}", "v", deps=[(ch[-1], 2)]))
                    ch.append(Nd(f"v_max_f32 v{t}, v{t}, v{t2}", "v", deps=[(ch[-1], 1)]))
                mm = Nd(f"v_mul_f32 v{Mb(qt)}, {neg}, v{t}", "v", deps=[ch[-1]]); ch.append(mm)
                cp = [Nd(f"v_mov_b32 v{Mb(qt)+k}, v{Mb(qt)}", "v", deps=[mm]) for k in range(1, 4)]
                fma = {v: Nd(f"v_fma_f32 {rg(v)}, {rg(v)}, {pos}, v{Mb(qt)}", "v", deps=[mm]) for v in vals}
                E0 = self.to_nodes(self.E_order(*self.E_ops([qt], vL)), 0, extra=lambda op: [(fma[(0, int(op.name[4]))], 0)] if op.name.startswith("exp") else [])
                E1 = self.to_nodes(self.E_order(*self.E_ops([qt])), 1, only=self.part1,
                                   extra=lambda op: [(fma[(1, int(op.name[4]))], 0)] if op.name.startswith("exp") else [])
                pdone[qt] = [n for n in E0 if n.name.startswith("cvt")]
                crit = [n for n in E0 if not n.name.startswith("add") or int(n.name[4]) < 4]
                rest = [n for n in E0 if n not in crit]
                pool.append((ch + [fma[v] for v in vals[:8]] + crit, rest + cp + [fma[v] for v in vals[8:]] + E1))
            for d in range(16):
                for qt in qts:
                    mfs.append(self.mf(F[32 + d], self.pv_t(0, d, qt, F[32 + d]["buf"], zero=True), deps=[(n, 2) for n in pdone[qt]], cap=o.pro_cap3 if gi == 3 else None))
            hi = [n for tup in zip(*[p[0] for p in pool]) for n in tup]
            lo = sum((p[1] for p in pool), [])
            regions.append((mfs, hi + lo))
        assert not any(n.startswith(("chk", "cmp")) for n in self.part1)
        dsn = lambda F: [n for f in F for n in f["nodes"]]
        def after(F, m):
            for n in dsn(F): n.deps.append((m, 0))
        def spread(dm, ms, g0, step):
            k = 0
            for n in dm:
                if n.k == "vm":
                    n.soft.append((ms[min(len(ms) - 1, g0 + step * k)], 0)); k += 1
        m0, m1, m2, mfs = [r[0] for r in regions]
        V3p = Vp[3]
        for n in dsn(Vp[1] + Vp[2] + K1q): n.low = True
        for n in regions[2][1] + [m2[-1]]: after(K1q[6:], n)
        for d in range(16): after([V3p[d]], mfs[d + 1])
        qb, e = self.dma_nodes("Q", 2, [], None)
        spread(qb, m0, 4, 6)
        S.run([], dsn(K0p[:6]))
        S.run(m0, qb + dsn(K0p[6:] + K1p + Vp[0]) + regions[0][1] + dsn(Vp[1]), cap=4, dsmax=2)
        a("s_waitcnt vmcnt(8)")
        S.raw(qread(1))
        a("s_waitcnt lgkmcnt(0)", "w0")
        qa, e = self.dma_nodes("Q", 8, [], None)
        qb, e = self.dma_nodes("Q", 7, [], e)
        S.run([], qa + prescale(1, 128, 4, True))
        spread(qb, m1, 0, 8)
        a("s_nop 1")
        S.run(m1, qb + regions[1][1] + dsn(Vp[2]), cap=o.pro_cap)
        a("s_waitcnt vmcnt(8)")
        S.raw(qread(2))
        a("s_waitcnt lgkmcnt(0)", "w0")
        v1, e = self.dma_nodes("K", 2, [], None)
        k2, e = self.dma_nodes("V", 1, [], e)
        S.run([], v1 + prescale(2, 128, 4, True))
        spread(k2, m2, 0, 8)
        a("s_nop 1")
        S.run(m2, k2 + regions[2][1] + dsn(K1q), cap=o.pro_cap)
        a("s_waitcnt vmcnt(8)")
        if o.stamps: S.raw(self.stamp(2))
        S.raw(qread(3))
        for f in range(16):
            if dk(f)[1] == 0: mfs[f].need = ("q", 3, dk(f)[0])
        d1, e1 = self.dma_nodes("K", 3, [(mfs[o.pro_dma], 0)], None)
        d2, e2 = self.dma_nodes("V", 2, [], e1)
        d3, e3 = self.dma_nodes("V", 3, [(mfs[15], 0)], e2)
        for j in range(1, 16): V3p[j]["nodes"][0].deps.append((V3p[j - 1]["nodes"][-1], 0))
        bar.deps = [(V3p[15]["nodes"][-1], o.pro_bar), (e3, 0), (mfs[o.pro_barm], 0)]
        ps3 = prescale(3, 132, 4, False, deps=[(mfs[31], 0)])
        S.run(mfs, dsn(V3p) + regions[3][1] + d1 + d2 + d3 + [bar] + dsn(K2p) + ps3, cap=o.pro_cap, dsmax=1)
        a("s_nop 1")
        S.raw([I(None, "wl", need=(1, 1))])
        if o.stamps: S.raw(self.stamp(3) + self.stamp(4))
        return S.out

    def tail(self):
        o = self.o
        S = Sched()
        a = lambda t, k="o", **kw: S.raw([I(t, k, **kw)])
        M29, M30, M31 = 1, 0, 2
        bar = Nd([I("s_waitcnt vmcnt(0)"), I("s_barrier")], "s")
        specs = [("done" if f < self.npre else "K", 2, f, (1, f), []) for f in range(16)]
        o31 = [2, 3, 0, 1] + list(range(4, 16))
        specs += [("K", 3, f, ("t", 31, f), [bar] if f == 2 else []) for f in o31]
        pvgroups = [[(0, d), (1, d)] for d in range(4)] + [[(2, d)] for d in range(4)]
        pvgroups += [[(tl, dt) for tl in range(3)] if o.pvchain else None for dt in range(4, 16)]
        if not o.pvchain: pvgroups = [[(tl, 4 * cb + d)] for cb in range(4) for tl in range(3) for d in range(4)]
        pvorder = sum(pvgroups, [])
        specs += [("V", 1 + tl, dt, ("t", "v", tl, dt), []) for tl, dt in pvorder]
        fr = self.frag_stream(specs, 0)
        mfs, lastm = [], {}
        for p in range(8):
            for qt in range(4):
                for f in (2 * p, 2 * p + 1):
                    m = self.mf(fr[f], self.qk_t(M30, f, qt, f)); mfs.append(m); lastm[(30, qt, dk(f)[1])] = m
        mfs[0].waited = True; mfs[1].waited = True
        mcopy = vS + [vD]
        def EC(tile, m, only, prevbr, prevmg, brdeps, rare_args):
            Eexp, Epl = self.E_ops()
            chk, mg = self.C_ops(Epl)
            def ex(op):
                d = []
                if op.name.startswith("exp"):
                    if (tile,) + op.src in lastm: d.append((lastm[(tile,) + op.src], 8))
                    if prevbr: d.append((prevbr, 0))
                if op.name.startswith("add") and op.name.endswith("1") and prevmg: d.append((prevmg[int(op.name[3])], 0))
                return d
            En = self.to_nodes(Epl + chk + Eexp, m, extra=ex, only=only)
            cn = [n for n in En if n.name == "cmp"][0]
            br = Nd([I(f"s_cbranch_vccnz L_rare{tile}", "s"), I(f"L_back{tile}:", "l")], "s", deps=[(cn, 1)] + [(n, 0) for n in En] + brdeps)
            self.rares.append(self.rare(str(tile), m, tile % R, *rare_args))
            mn = self.to_nodes(mg, m, extra=lambda op: [(br, 0)])
            return En, br, mn
        E29, br29, mg29 = EC(29, M29, self.part2, None, None, [(mfs[16], 0)], ([], M30))
        cpy = [Nd(f"v_mov_b32 v{mcopy[qt]}, v{Mb(qt)}", "v", deps=[br29]) for qt in range(4)]
        q31 = []
        for p in range(8):
            for qt in range(4):
                for j in (2 * p, 2 * p + 1):
                    f = o31[j]
                    deps = [(br29, 0)] + [(n, 0) for n in cpy] if p < 2 else []
                    m = self.mf(fr[16 + j], self.qk_t(M31, f, qt, 16 + j), deps=deps, cap=o.cap31); mfs.append(m); q31.append(m); lastm[(31, qt, dk(f)[1])] = m
        bar.deps = [(mfs[o.tail_bar], 0), (br29, 0)]
        E30, br30, mg30 = EC(30, M30, None, br29, mg29, [(q31[16], 0)], ([M29], M31, mcopy))
        E31, br31, mg31 = EC(31, M31, None, br30, mg30, [], ([M29, M30], None, mcopy))
        ln, t0, t1, t2 = 108, 109, 110, 111
        vW0, vR, vQ = 123, 124, 125
        ad = [f"v_mbcnt_lo_u32_b32 v{ln}, -1, 0", f"v_mbcnt_hi_u32_b32 v{ln}, -1, v{ln}",
              f"v_and_b32 v{t0}, 15, v{ln}", f"v_lshlrev_b32 v{t0}, 7, v{t0}",
              f"v_bfe_u32 v{t1}, v{ln}, 4, 1", f"v_lshl_add_u32 v{t0}, v{t1}, 3, v{t0}", f"v_add_u32 v{t0}, s{sWb}, v{t0}",
              f"v_lshrrev_b32 v{t1}, 5, v{ln}", f"v_and_b32 v{t2}, 7, v{ln}", f"v_xor_b32 v{t1}, v{t1}, v{t2}",
              f"v_lshl_add_u32 v{vW0}, v{t1}, 4, v{t0}",
              f"v_lshrrev_b32 v{t0}, 3, v{ln}", f"v_xor_b32 v{t1}, v{t0}, v{t2}", f"v_lshlrev_b32 v{t1}, 4, v{t1}",
              f"v_lshl_add_u32 v{vR}, v{t0}, 7, v{t1}", f"v_add_u32 v{vR}, s{sWb}, v{vR}",
              f"v_lshlrev_b32 v{t2}, 4, v{t2}", f"v_lshl_add_u32 v{vQ}, v{t0}, 9, v{t2}"]
        adn = []
        for x in ad: adn.append(Nd(x, "v", deps=[adn[-1]] if adn else [br31]))
        brs = [br29, br30, br31]
        Pd = {}
        for tl, E in enumerate((E29, E30, E31)):
            for qt in range(4): Pd[(tl, qt)] = [n for n in E if n.name.startswith(f"cvt{qt}")]
        lastpv = {}
        maps = [M29, M30, M31]
        j0 = 0
        for grp in pvgroups:
            for qt in range(4):
                for jj, (tl, dt) in enumerate(grp):
                    j = j0 + jj
                    cap = o.cap_a if j < 8 else (o.cap_b if j < 12 else o.cap_c)
                    m = self.mf(fr[32 + j], self.pv_t(maps[tl], dt, qt, 32 + j), deps=[(n, 2) for n in Pd[(tl, qt)]] + [(brs[tl], 0)], cap=cap)
                    mfs.append(m); lastpv[(qt, dt)] = m
            j0 += len(grp)
        self.link_users(fr, 8)
        inv = [112 + 2 * qt for qt in range(4)]
        vW = [vW0, 120, 121, 122]
        small = []
        chains = []
        for qt in range(4):
            t, t2 = inv[qt], inv[qt] + 1
            ch = [Nd(f"v_mov_b32 v{t2}, v{vL[qt]}", "v", deps=[mg31[qt]])]
            ch.append(Nd(f"v_permlane16_swap_b32 v{vL[qt]}, v{t2}", "v", deps=[(ch[-1], 2)]))
            ch.append(Nd(f"v_add_f32 v{t}, v{vL[qt]}, v{t2}", "v", deps=[(ch[-1], 1)]))
            ch.append(Nd(f"v_mov_b32 v{t2}, v{t}", "v", deps=[ch[-1]]))
            ch.append(Nd(f"v_permlane32_swap_b32 v{t}, v{t2}", "v", deps=[(ch[-1], 2)]))
            ch.append(Nd(f"v_add_f32 v{t}, v{t}, v{t2}", "v", deps=[(ch[-1], 1)]))
            ch.append(Nd(f"v_rcp_f32 v{t}, v{t}", "t", deps=[ch[-1]]))
            chains.append(ch)
        small = [n for tup in zip(*chains) for n in tup]
        wn = [Nd(f"v_xor_b32 v{vW[k]}, {32*k}, v{vW0}", "v", deps=[adn[-1]]) for k in range(1, 4)]
        conv = []
        opol = [pol(x) for x in (o.opol.split(",") * 4)[:4]]
        wr_prev = {}; st_prev = {}; rd_prev = {}
        lastds = None
        for i, (cb, qt) in enumerate([(cb, qt) for cb in range(4) for qt in range(4)]):
            b = 16 * (i % 4)
            pk = cb == 3
            a0 = Ob(qt, 4 * cb)
            war = [(wr_prev[i % 4], 1)] if i % 4 in wr_prev else [(br31, 0)]
            rdn = [Nd(f"v_accvgpr_read_b32 v{b+k}, a{a0+k}", "v", deps=[(lastpv[(qt, 4 * cb + (k >> 2))], 8)] + war) for k in range(16)]
            iv = (chains[qt][-1], 1)
            if pk: mu = [Nd(f"v_pk_mul_f32 v[{b+2*k}:{b+2*k+1}], v[{b+2*k}:{b+2*k+1}], v[{inv[qt]}:{inv[qt]+1}] op_sel_hi:[1,0]", "v", deps=[rdn[2 * k], rdn[2 * k + 1], iv]) for k in range(8)]
            else: mu = [Nd(f"v_mul_f32 v{b+k}, v{b+k}, v{inv[qt]}", "v", deps=[rdn[k], iv]) for k in range(16)]
            cv = []
            for k in range(8):
                deps = ([mu[k]] if pk else [mu[2 * k], mu[2 * k + 1]]) + ([cv[-1]] if cv else [])
                cv.append(Nd(f"v_cvt_pk_bf16_f32 v{b+k}, v{b+2*k}, v{b+2*k+1}", "v", deps=deps))
            rb = qt >> 1
            wr = []
            for k in range(4):
                deps = [cv[2 * k + 1], adn[-1]] + ([wn[k - 1]] if k else []) + ([rd_prev[rb]] if rb in rd_prev else [(bar, 0)]) + ([wr[-1]] if wr else [])
                wr.append(Nd(f"ds_write_b64 v{vW[k]}, v[{b+2*k}:{b+2*k+1}] offset:{rb*TILE + (qt&1)*2048}", "ds", deps=deps, tag=("w", i, k)))
            wr_prev[i % 4] = wr[-1]
            conv += wr + rdn + mu + cv
            if qt & 1:
                rbuf = 64 + 16 * ((i >> 1) % 3)
                u2 = (i >> 1) % 3
                rds = []
                for k in range(4):
                    deps = [wr[-1], prev_wr] + ([(st_prev[u2], 2)] if u2 in st_prev else []) + ([rds[-1]] if rds else [])
                    rds.append(Nd(f"ds_read_b128 v[{rbuf+4*k}:{rbuf+4*k+3}], v{vR} offset:{rb*TILE + k*1024}", "ds", deps=deps, tag=("r", i, k)))
                rd_prev[rb] = rds[-1]
                sts = []
                for k in range(4):
                    kk = 4 * rb + k
                    so = f"s{sRow}" if kk == 0 else f"s{sRG[kk]}"
                    sts.append(Nd(f"buffer_store_dwordx4 v[{rbuf+4*k}:{rbuf+4*k+3}], v{vQ}, {srd(sO)}, {so} offen offset:{128*cb}{opol[cb]}", "vm",
                                  deps=[rds[k]] + ([sts[-1]] if sts else []), soft=[(rds[k], o.st_dist)], need=("r", i, k)))
                st_prev[u2] = sts[-1]
                conv = self._hoist(conv, rds + sts)
            prev_wr = wr[-1]
        ds = [n for f in fr for n in f["nodes"]]
        pool = ds + [br29, bar] + E29 + mg29 + cpy + [br30] + E30 + mg30 + [br31] + E31 + mg31 + small + adn + wn + conv
        S.run(mfs, pool, dsmax=o.tail_dsmax)
        T = S.out
        if o.ab_drop:
            dr = tuple(o.ab_drop.split(","))
            for it in T:
                if it.t and it.t.startswith(dr): it.t = "s_nop 0" if o.ab_nop else None; it.k = "ds" if it.k == "ds" else "o"
        a2 = lambda t, k="o": T.append(I(t, k))
        if o.stamps:
            T += self.stamp(6) + self.stamp(7)
            a2("s_waitcnt vmcnt(0)")
            T += self.stamp(8)
            a2("s_memrealtime s[58:59]", "sm")
            a2("s_getreg_b32 s60, hwreg(HW_REG_XCC_ID)")
            a2("s_getreg_b32 s61, hwreg(HW_REG_HW_ID)")
            a2("s_waitcnt lgkmcnt(0)")
            a2(f"s_mov_b32 s64, s36"); a2("s_mov_b32 s65, s37"); a2(f"s_mov_b32 s66, 0x1000000"); a2("s_mov_b32 s67, 0x20000")
            a2(f"s_lshl_b32 s62, s2, 10")
            a2(f"s_mul_hi_u32 s63, s{sWb}, {(2**32)//(4*PIECE)+1}")
            a2(f"s_lshl_b32 s63, s63, 8")
            a2(f"s_add_u32 s62, s62, s63")
            a2(f"v_mov_b32 v1, 0")
            for k in range(24):
                a2(f"v_mov_b32 v0, s{38+k}")
                a2(f"buffer_store_dword v0, v1, s[64:67], s62 offen offset:{4*k}")
            for k in range(18):
                a2(f"v_mov_b32 v0, s{68+k}")
                a2(f"buffer_store_dword v0, v1, s[64:67], s62 offen offset:{128+4*k}")
        return T

    @staticmethod
    def _hoist(conv, hot):
        k = 0
        while k < len(conv) and getattr(conv[k], "hot", False): k += 1
        for n in hot: n.hot = True
        return conv[:k] + hot + conv[k:]

    def build(self):
        o = self.o
        pro = self.prologue()
        order = [1, 2, 3, 0]
        loop = [I("L_loop:", "l")] + sum((self.body(u, 0) for u in order), [])
        tl = self.stamp(5) + self.tail()
        trace = pro + loop + loop + tl
        self.resolve_waits(trace)
        lines = [it.t for it in trace if it.t and not it.skip and it.k != "l"]
        errs = hz.check(lines)
        for r in self.rares: errs += hz.check([it.t for it in r if it.k != "l"])
        for e in sorted(set(errs))[:20]: print(e, file=sys.stderr)
        assert not errs or o.ab_drop, "hazards"
        if o.verbose:
            cnt = lambda l: sum(1 for it in l if it.t and not it.skip and it.k != "l")
            print("instr: prologue", cnt(pro), "loop", cnt(loop), "tail", cnt(tl), file=sys.stderr)
        return pro + [I(".p2align 6" if o.align else "", "l")] + loop + tl + [I("L_end:", "l"), I("s_endpgm")] + sum(self.rares, [])

    def resolve_waits(self, trace):
        ds = []
        for it in trace:
            if it.k == "ds": ds.append(it.tag)
            elif it.k == "wl":
                idx = max(j for j, t in enumerate(ds) if t == it.need)
                n = min(14, len(ds) - 1 - idx)
                it.n = n if it.n is None else min(it.n, n)
        needed = set()
        ds = []; done = 0
        for it in trace:
            if it.k == "ds": ds.append(it.tag)
            elif it.k == "w0": done = len(ds)
            elif it.k == "wl":
                idx = max(j for j, t in enumerate(ds) if t == it.need)
                if idx >= done: needed.add(id(it))
                done = max(done, len(ds) - it.n) if id(it) in needed else done
        for it in trace:
            if it.k == "wl":
                it.skip = id(it) not in needed
                it.t = f"s_waitcnt lgkmcnt({it.n})"

    def text(self):
        body = self.build()
        hdr = open("standalone__mha_softmax__near_ridge.s.ref").read().split("\n")
        top = []
        for ln in hdr:
            if ln.startswith("; @launch"): break
            top.append(ln)
        out = top + [f"; @launch grid=(256,1,1) block=(256,1,1) lds={LDS_BYTES}",
                     "; generated by my own generator script (flash-attention forward, 4 waves x 64 q rows, 32-key tiles)",
                     '.amdgcn_target "amdgcn-amd-amdhsa--gfx950"', ".text", f".globl {KNAME}"] + ([".p2align 12"] if self.o.al12 else []) + [".p2align 8",
                     f".type {KNAME},@function", f"{KNAME}:"]
        for it in body:
            if it.skip or not it.t: continue
            out.append(("" if it.k == "l" else "    ") + it.t)
        out += ['.section .rodata,"a"', ".p2align 6", f".amdhsa_kernel {KNAME}",
                "  .amdhsa_next_free_vgpr 512", "  .amdhsa_next_free_sgpr 100", "  .amdhsa_accum_offset 256",
                "  .amdhsa_group_segment_fixed_size 0", "  .amdhsa_kernarg_size 48", "  .amdhsa_user_sgpr_count 2",
                "  .amdhsa_user_sgpr_kernarg_segment_ptr 1", "  .amdhsa_system_sgpr_workgroup_id_x 1",
                ".end_amdhsa_kernel", ""]
        return "\n".join(out)

def parse(argv):
    p = argparse.ArgumentParser()
    p.add_argument("-o", default="standalone__mha_softmax__near_ridge.s")
    for f in ("stamps", "verbose", "dbg", "no_bar", "no_dma", "no_br"):
        p.add_argument("--" + f, action="store_true")
    for name, d in dict(align=1, look=24, bar_gap=113, bar_quiet=1, kstep=2, vm_wait=12, snake=1, pvchain=1, pace=0, al12=0, late_v1=0, br_delay=1, dma0=2, dmastep=4, sdelay=28, backlog=5,
                        codepf=1, pdepth=7, g0_dma0=2, g0_dmastep=6, pro_dma=2, pro_bar=10, pro_barm=43, pro_cap=3, pro_cap3=12, tail_bar=30, cap31=2, cap_a=7, cap_b=3, cap_c=5, st_dist=24, tail_dsmax=1).items():
        p.add_argument("--" + name, type=int, default=d)
    p.add_argument("--thr", type=float, default=1024.0)
    p.add_argument("--ab_drop", default="")
    p.add_argument("--ab_nop", type=int, default=0)
    p.add_argument("--kvpol", default="nt")
    p.add_argument("--qpol", default="nt")
    p.add_argument("--opol", default="nt")
    return p.parse_args(argv)

if __name__ == "__main__":
    o = parse(sys.argv[1:])
    open(o.o, "w").write(Gen(o).text())
```

```python
import sys, struct, argparse
sys.path.insert(0, "dev")
import hz

KNAME = "standalone__mha_softmax__near_ridge_kernel"
MF = "v_mfma_f32_16x16x32_bf16"

def f32bits(x): return struct.unpack("<I", struct.pack("<f", x))[0]
def pol(x): return (" " + x.replace("+", " ")) if x else ""
def srd(s): return f"s[{s}:{s+3}]"

class I:
    __slots__ = ("t", "k", "tag", "need", "n", "skip")
    def __init__(self, t, k="o", tag=None, need=None):
        self.t = t; self.k = k; self.tag = tag; self.need = need; self.n = None; self.skip = False

def Qr(qt, d8): b = (qt * 8 + d8) * 4; return f"v[{b}:{b+3}]"
vT = 240
def X(m, qt, k):
    if m < 2: return 128 + m * 32 + qt * 8 + k
    return vT + 4 * qt + k if k < 4 else 128 + 32 + qt * 8 + k
def Sr(m, qt, kt): b = X(m, qt, 4 * kt); return f"v[{b}:{b+3}]"
def Pr(m, qt): return Sr(m, qt, 0)
NF = 8
def Fx(f): return f if isinstance(f, tuple) else ("v", 192 + (f % NF) * 4)
def Fr(f): c, b = Fx(f); return f"{c}[{b}:{b+3}]"
def Ob(qt, dt): return (qt * 16 + dt) * 4
def Or(qt, dt): b = Ob(qt, dt); return f"a[{b}:{b+3}]"
vK, vVe, vVo, vD = 224, 225, 226, 227
vL = [228, 229, 230, 231]
vLt = [232, 233, 234, 235]
vC = 236
vS = [237, 238, 239]
def Mb(qt): return vT + 4 * qt
def Mr(qt): b = Mb(qt); return f"v[{b}:{b+3}]"
sQ, sK, sV, sO = 4, 8, 12, 16
sC, sKoff, sVoff, sWb, sCnt, sNC, sThr, sRow = 20, 21, 22, 23, 24, 25, 26, 27
sQoff, sMask = 86, 95
sRG = [None, 88, 89, 90, 91, 92, 93, 94]
PIECE = 1088
TILE = 16 * PIECE
R = 4
VBASE = R * TILE
LDS_BYTES = (2 * R + 1) * TILE
NG = 128
def dk(f): return (f & 7, f >> 3)
def walk(n, par):
    for qi in range(4):
        for e in range(n):
            yield (e if qi % 2 == 0 else n - 1 - e, qi if par % 2 == 0 else 3 - qi, e)

class Op:
    def __init__(self, name, fn, cost=1, deps=(), t0=0):
        self.name = name; self.fn = fn; self.cost = cost; self.deps = list(deps); self.t0 = t0; self.t = None

class Nd:
    def __init__(self, t, k, deps=(), tag=None, need=None, cap=None, soft=()):
        self.t = t if isinstance(t, list) else [t]
        self.k = k; self.deps = [d if isinstance(d, tuple) else (d, 0) for d in deps]
        self.tag = tag; self.need = need; self.idx = None; self.cap = cap; self.waited = False; self.soft = list(soft); self.low = False
        self.cost = {"t": 2, "vm": 2, "s": 0}.get(k, 1)

class Sched:
    def __init__(self):
        self.out = []; self.n = 0; self.issued = set()
    def ok(self, nd, relax=False):
        if not relax and any(d.idx is None or self.n - d.idx - 1 < dist for d, dist in nd.soft): return False
        return all(d.idx is not None and self.n - d.idx - 1 >= dist for d, dist in nd.deps)
    def wait(self, nd):
        if nd.need is not None and not nd.waited:
            self.out.append(I(None, "wl", need=nd.need)); nd.waited = True
    def emit(self, nd):
        self.wait(nd)
        for t in nd.t:
            if isinstance(t, I):
                self.out.append(t)
                if t.k != "l": self.n += 1
            else:
                self.out.append(I(t, nd.k, tag=nd.tag)); self.n += 1
        nd.idx = self.n - 1
    def raw(self, lst):
        for t in lst:
            t = t if isinstance(t, I) else I(t)
            self.out.append(t)
            if t.k not in ("l", "wl"): self.n += 1
    def pick(self, pool, free, dsmax):
        got = []; nds = 0; nsc = 0
        for nd in list(pool):
            if not self.ok(nd): continue
            if nd.k == "s":
                if nsc: continue
                nsc += 1
            else:
                if nd.cost > free: continue
                if nd.k == "ds":
                    if nds >= dsmax: continue
                    nds += 1
                free -= nd.cost
            got.append(nd); pool.remove(nd)
            if free <= 0 and nsc: break
        order = {"s": 0, "ds": 1, "vm": 2}
        got.sort(key=lambda nd: order.get(nd.k, 3))
        return got
    def drain_one(self, pool, relax=False):
        for nd in pool:
            if self.ok(nd, relax):
                pool.remove(nd); self.emit(nd); return True
        return False
    def run(self, mfs, pool, cap=2, dsmax=1, keep=()):
        for i, m in enumerate(mfs):
            guard = 0
            while not self.ok(m):
                if not self.drain_one(pool):
                    self.raw(["s_nop 0"]); guard += 1
                    assert guard < 40, ("stuck", m.t, [d.t for d, _ in m.deps if d.idx is None])
            self.emit(m)
            c = m.cap or cap
            left = c
            nx = mfs[i + 1] if i + 1 < len(mfs) else None
            if nx is not None and nx.need is not None and not nx.waited and all(d.idx is not None for d, _ in nx.deps if d.k == "ds"):
                self.wait(nx)
            def take(kinds, maxcost, low=True):
                for nd in pool:
                    if nd.k in kinds and nd.cost <= maxcost and (low or not nd.low) and self.ok(nd):
                        pool.remove(nd); self.emit(nd); return nd
                return None
            take(("s",), 0)
            nds = 0
            while nds < dsmax and left > 0 and take(("ds",), left, False): left -= 1; nds += 1
            if left >= 2 and take(("vm",), left): left -= 2
            while nds < dsmax and left > 0 and take(("ds",), left): left -= 1; nds += 1
            while left > 0:
                nd = None
                if left >= 2:
                    rdy = []
                    for x in pool:
                        if x.k in ("v", "t") and self.ok(x):
                            rdy.append(x)
                            if x.k == "t" or len(rdy) > 4: break
                    if rdy and rdy[-1].k == "t": nd = take(("t",), left)
                if not nd: nd = take(("v", "t"), left)
                if not nd: break
                left -= nd.cost
        guard = 0
        while any(nd not in keep for nd in pool):
            if not self.drain_one(pool) and not self.drain_one(pool, True):
                self.raw(["s_nop 0"]); guard += 1
                assert guard < 40, ("stuck", [nd.t for nd in pool[:3]])
            else: guard = 0

class Gen:
    def __init__(self, o):
        self.o = o
        self.rares = []
        self.plan()

    def kread_t(self, slot, f, buf):
        d8, kt = dk(f)
        return f"ds_read_b128 {Fr(buf)}, v{vK} offset:{slot*TILE + kt*8*PIECE + 64*d8}"
    def vread_t(self, slot, dt, sec, buf):
        c, b = Fx(buf); b += 2 * sec
        return f"ds_read_b64_tr_b16 {c}[{b}:{b+1}], v{vVo if dt & 1 else vVe} offset:{slot*TILE + sec*8*PIECE + 64*(dt>>1)}"
    def fread(self, u, f, part=None):
        if f < 16: return [I(self.kread_t((u + 1) % R, f, f), "ds", tag=(u, f))]
        return [I(self.vread_t(u % R, f - 16, sec, f), "ds", tag=(u, f)) for sec in range(2) if part is None or part == sec]

    def dma_m0(self, which, slot, j):
        base = slot * TILE + (VBASE if which == "V" else 0) + (PIECE - 1024) * j
        return I(f"s_add_u32 m0, s{sWb}, {base}", "s")
    def dma_ld(self, which, j):
        s, so, p = {"K": (sK, sKoff, self.o.kvpol), "V": (sV, sVoff, self.o.kvpol), "Q": (sQ, sQoff, self.o.qpol)}[which]
        return I(f"buffer_load_dwordx4 v{vD}, {srd(s)}, s{so} offen offset:{j*1024}{pol(p)} lds", "vm")
    def dma_adv(self, which):
        so = {"K": sKoff, "V": sVoff, "Q": sQoff}[which]
        return I(f"s_addk_i32 s{so}, {4096 if which == 'Q' else 16384}", "s")
    def dma_tile(self, which, slot):
        out = [self.dma_m0(which, slot, 0)]
        for j in range(4):
            out += [I("s_nop 0"), self.dma_ld(which, j)]
            if j < 3: out.append(I(f"s_addk_i32 m0, {PIECE-1024}", "s"))
        out.append(self.dma_adv(which))
        return out
    def dma_nodes(self, which, slot, deps, prev):
        out = []
        for j in range(4):
            m = Nd(self.dma_m0(which, slot, j).t, "s", deps=list(deps) + ([prev] if prev else []))
            l = Nd(self.dma_ld(which, j).t, "vm", deps=[(m, 1)])
            out += [m, l]; prev = l
        adv = Nd(self.dma_adv(which).t, "s", deps=[prev]); out.append(adv)
        return out, adv

    def qk_t(self, m, f, qt, buf, zero=False, first=None):
        d8, kt = dk(f)
        if first is None: first = d8 == 0
        c = ("0" if zero else Mr(qt)) if first else Sr(m, qt, kt)
        return f"{MF} {Sr(m,qt,kt)}, {Fr(buf)}, {Qr(qt,d8)}, {c}"
    def pv_t(self, m, dt, qt, buf, zero=False):
        return f"{MF} {Or(qt,dt)}, {Fr(buf)}, {Pr(m,qt)}, {'0' if zero else Or(qt,dt)}"

    def E_ops(self, qts=range(4), acc=None):
        o = self.o
        acc = acc or vLt
        ex, ad, cv, Eexp, Epl = {}, {}, {}, [], []
        for qt in qts:
            for k in range(8):
                ex[(qt, k)] = Op(f"exp{qt}{k}", (lambda m, qt=qt, k=k: f"v_exp_f32 v{X(m,qt,k)}, v{X(m,qt,k)}"), cost=2, t0=(25 if k < 4 else 57) + 2 * (3 - qt) + 6)
                ex[(qt, k)].src = (qt, k >> 2)
                Eexp.append(ex[(qt, k)])
            ad[(qt, 1)] = Op(f"add{qt}1", (lambda m, qt=qt: f"v_add_f32 v{acc[qt]}, v{X(m,qt,0)}, v{X(m,qt,1)}"), deps=[ex[(qt, 0)], ex[(qt, 1)]])
            ad[(qt, 0)] = ad[(qt, 1)]
            for k in range(2, 8):
                ad[(qt, k)] = Op(f"add{qt}{k}", (lambda m, qt=qt, k=k: f"v_add_f32 v{acc[qt]}, v{acc[qt]}, v{X(m,qt,k)}"), deps=[ex[(qt, k)], ad[(qt, k - 1)]])
            for j in range(4):
                deps = [ex[(qt, 2 * j)], ex[(qt, 2 * j + 1)], ad[(qt, j)]] + ([cv[(qt, j >> 1)]] if j else [])
                cv[(qt, j)] = Op(f"cvt{qt}{j}", (lambda m, qt=qt, j=j: f"v_cvt_pk_bf16_f32 v{X(m,qt,j)}, v{X(m,qt,2*j)}, v{X(m,qt,2*j+1)}"), deps=deps)
            for k in range(1, 8):
                Epl.append(ad[(qt, k)])
                if k & 1: Epl.append(cv[(qt, k >> 1)])
        return Eexp, Epl
    def C_ops(self, Epl):
        la = [op for op in Epl if op.name.startswith("add") and op.name.endswith("7")]
        c1 = Op("chk1", (lambda m: f"v_max3_f32 v{vC}, v{vLt[0]}, v{vLt[1]}, v{vLt[2]}"), deps=la[:3])
        c2 = Op("chk2", (lambda m: f"v_max_f32 v{vC}, v{vC}, v{vLt[3]}"), deps=[c1, la[3]])
        cmp = Op("cmp", (lambda m: f"v_cmp_lt_f32 vcc, s{sThr}, v{vC}"), deps=[c2])
        mg = [Op(f"mrg{qt}", (lambda m, qt=qt: f"v_add_f32 v{vL[qt]}, v{vL[qt]}, v{vLt[qt]}")) for qt in range(4)]
        return [c1, c2, cmp], mg
    def to_nodes(self, ops, m, extra=None, only=None):
        nd = {}
        for op in ops:
            if only is not None and op.name not in only: continue
            nd[op] = Nd(op.fn(m), "t" if op.cost == 2 else "v"); nd[op].name = op.name
        for op, n in nd.items():
            for d in op.deps:
                if d in nd: n.deps.append((nd[d], 1 if d.cost == 2 else 0))
            if extra: n.deps += extra(op)
        return list(nd.values())
    @staticmethod
    def E_order(Eexp, Epl):
        return Epl + Eexp

    def plan(self):
        o = self.o
        used = [0] * NG
        self.ds_at = [[] for _ in range(NG)]
        g = o.bar_gap + 1
        self.npre = 0
        for f in range(32):
            want = 4 * f - o.look
            if f < 16 and want < 0:
                pos = max(want + NG, g)
                if pos < NG - 1:
                    self.ds_at[pos].append((f, None, True)); used[pos] += 1
                    g = pos + o.kstep; self.npre = f + 1
                    continue
                want = 0
            pos = want
            for p in ([None] if f < 16 else [0, 1]):
                while used[pos] > 0: pos += 1
                assert pos < o.bar_gap - 6 or f < 16
                self.ds_at[pos].append((f, p, False)); used[pos] += 1
        self.dma_at = {}
        pos = o.dma0
        for k in range(8):
            while used[pos] > 0 or pos % 4 == 0: pos += 1
            assert 0 < pos < o.bar_gap - 3
            self.dma_at[pos] = k
            used[pos] = 2
            pos += o.dmastep
        used[NG - 1] += 1
        for gq in range(o.bar_gap - o.bar_quiet + 1, o.bar_gap + 1): used[gq] = 2
        self.va_at = [[] for _ in range(2 * NG)]
        rdy = lambda op, t: op.t0 <= t and all(d.t is not None and d.t < t for d in op.deps)
        Eexp, Epl = self.E_ops()
        chk, mg = self.C_ops(Epl)
        Epl = Epl + chk
        for k, op in enumerate(Eexp): op.t0 = max(op.t0, 56 + o.sdelay + k * o.pace // 10)
        def put(op, t): op.t = t; self.va_at[t].append(op); used[t % NG] += op.cost
        t = 56
        while Eexp or Epl:
            assert t < NG + 56, "softmax does not fit"
            free = 2 - used[t % NG]
            backlog = sum(1 for op in Epl if all(d.t is not None for d in op.deps if d.cost == 2) and not op.name.startswith("c" + "hk") and op.name != "cmp")
            re = [op for op in Eexp if rdy(op, t)]
            if free == 2 and re and backlog < o.backlog:
                Eexp.remove(re[0]); put(re[0], t)
            else:
                for op in list(Epl):
                    if free == 0: break
                    if rdy(op, t): Epl.remove(op); put(op, t); free -= 1
                if free == 2 and re: Eexp.remove(re[0]); put(re[0], t)
            t += 1
        busy = lambda g: g % 4 == 3 or (g + 1) in self.dma_at or ((g - 2) in self.dma_at and self.dma_at[g - 2] % 4 == 3)
        self.t_br = max(t + o.br_delay, NG + 1) - NG
        while busy(self.t_br): self.t_br += 1
        t = self.t_br + NG
        while mg:
            if used[t % NG] < 2: put(mg.pop(0), t)
            else: t += 1
        assert t < NG + 61
        self.part1 = {op.name for t in range(0, NG) for op in self.va_at[t]}
        self.part2 = {op.name for t in range(NG, 2 * NG) for op in self.va_at[t]}
        if o.verbose:
            print("br", self.t_br, "npre", self.npre, "part2", len(self.part2), "used", "".join(map(str, used)), file=sys.stderr)

    def body(self, u, lastu):
        o = self.o
        cur = u & 1; nxt = cur ^ 1
        out = []
        for g in range(NG):
            p = g >> 3
            j, qt, e = list(walk(2, p))[g & 7]
            f = 2 * p + j
            out.append(I(self.qk_t(nxt, f, qt, f, first=(p & 3) == 0 and e == 0) if f < 16 else self.pv_t(cur, f - 16, qt, f), "m"))
            sc, ds, vm, va = [], [], [], []
            if g % 4 == 3:
                f1 = (g + 1) // 4
                if f1 >= 32: sc.append(I(None, "wl", need=((u + 1) % R, 1)))
                elif f1 % 2 == 0: sc.append(I(None, "wl", need=(u, f1 + 1)))
            if g == o.bar_gap - 1: sc.append(I(f"s_waitcnt vmcnt({o.vm_wait}) lgkmcnt(0)", "w0"))
            if o.late_v1 and u == 1:
                gv = 64 - o.look - 2
                assert max(self.dma_at) < gv - 1
                if g == gv - 1: sc.append(I("s_waitcnt vmcnt(20)"))
                if g == gv: sc.append(I("s_barrier"))
            if g == o.bar_gap and not o.no_bar: sc.append(I("s_barrier"))
            desc = lambda k: ("K", (u - 1) % R, k) if k < 4 else ("V", (u - 1) % R, k - 4)
            if g + 1 in self.dma_at: sc.append(self.dma_m0(*desc(self.dma_at[g + 1])))
            if g in self.dma_at:
                wh, _, j = desc(self.dma_at[g])
                if not o.no_dma: vm.append(self.dma_ld(wh, j))
            if g - 2 in self.dma_at and self.dma_at[g - 2] % 4 == 3: sc.append(self.dma_adv(desc(self.dma_at[g - 2])[0]))
            for (ff, p, nx) in self.ds_at[g]: ds += self.fread((u + 1) % R if nx else u, ff, p)
            if g == self.t_br and not o.no_br:
                sc += [I(f"s_cbranch_vccnz L_rare{u}", "s"), I(f"L_back{u}:", "l")]
                self.rares.append(self.rare(str(u), cur, u % R, [], nxt))
            for op in self.va_at[g + NG]: va.append(I(op.fn(cur), "v"))
            for op in self.va_at[g]: va.append(I(op.fn(nxt), "v"))
            if u == lastu and g == NG - 3: sc.append(I(f"s_sub_u32 s{sCnt}, s{sCnt}, 1", "s"))
            if u == lastu and g == NG - 2: sc.append(I(f"s_cmp_lg_u32 s{sCnt}, 0", "s"))
            out += sc + ds + vm + va
        if u == lastu: out.append(I("s_cbranch_scc1 L_loop", "s"))
        return out

    def rare(self, name, m, kslot, pend, prog, mcopy=None):
        out = [I(f"L_rare{name}:", "l")]
        a = lambda t: out.append(I(t))
        fb = ("v", vLt[0])
        a("s_nop 7")
        for f in range(16):
            a(self.kread_t(kslot, f, fb))
            a("s_waitcnt lgkmcnt(0)")
            for qt in range(4): a(self.qk_t(m, f, qt, fb, zero=True))
            a("s_nop 7")
        a("s_nop 7")
        t, t2, f = vC, vLt[0], vLt[1]
        for qt in range(4):
            x = lambda k: X(m, qt, k)
            mreg = mcopy[qt] if mcopy else Mb(qt)
            for k in range(8): a(f"v_add_f32 v{x(k)}, v{x(k)}, v{mreg}")
            a(f"v_max3_f32 v{t}, v{x(0)}, v{x(1)}, v{x(2)}")
            a(f"v_max3_f32 v{t}, v{t}, v{x(3)}, v{x(4)}")
            a(f"v_max3_f32 v{t}, v{t}, v{x(5)}, v{x(6)}")
            a(f"v_max_f32 v{t}, v{t}, v{x(7)}")
            for sw in ("v_permlane16_swap_b32", "v_permlane32_swap_b32"):
                a(f"v_mov_b32 v{t2}, v{t}"); a("s_nop 1"); a(f"{sw} v{t}, v{t2}"); a("s_nop 1"); a(f"v_max_f32 v{t}, v{t}, v{t2}")
            a(f"v_ceil_f32 v{t}, v{t}")
            a(f"v_max_f32 v{t}, 0, v{t}")
            if mcopy: a(f"v_sub_f32 v{mreg}, v{mreg}, v{t}")
            else:
                for k in range(4): a(f"v_sub_f32 v{mreg+k}, v{mreg+k}, v{t}")
            for k in range(8): a(f"v_sub_f32 v{x(k)}, v{x(k)}, v{t}")
            if prog is not None:
                for k in range(8): a(f"v_sub_f32 v{X(prog,qt,k)}, v{X(prog,qt,k)}, v{t}")
            a(f"v_min_f32 v{t2}, 0x43480000, v{t}")
            a(f"v_cvt_i32_f32 v{t2}, v{t2}")
            a(f"v_sub_u32 v{t2}, 0, v{t2}")
            a(f"v_ldexp_f32 v{f}, 1.0, v{t2}")
            a(f"v_mul_f32 v{vL[qt]}, v{vL[qt]}, v{f}")
            for pm in pend:
                for j in range(4):
                    p = X(pm, qt, j)
                    a(f"v_lshlrev_b32 v{t}, 16, v{p}")
                    a(f"v_and_b32 v{t2}, 0xffff0000, v{p}")
                    a(f"v_mul_f32 v{t}, v{t}, v{f}")
                    a(f"v_mul_f32 v{t2}, v{t2}, v{f}")
                    a(f"v_cvt_pk_bf16_f32 v{p}, v{t}, v{t2}")
            for a0 in range(qt * 64, qt * 64 + 64, 2):
                a(f"v_accvgpr_read_b32 v{t}, a{a0}"); a(f"v_accvgpr_read_b32 v{t2}, a{a0+1}")
                a(f"v_mul_f32 v{t}, v{t}, v{f}"); a(f"v_mul_f32 v{t2}, v{t2}, v{f}")
                a(f"v_accvgpr_write_b32 a{a0}, v{t}"); a(f"v_accvgpr_write_b32 a{a0+1}, v{t2}")
        Eexp, Epl = self.E_ops()
        for op in Eexp: a(op.fn(m))
        a("s_nop 0")
        for op in Epl:
            if op.name.startswith("add"): a(op.fn(m))
        for op in Epl:
            if op.name.startswith("cvt"): a(op.fn(m))
        a("s_nop 1")
        a(f"s_branch L_back{name}")
        return out

    def stamp(self, idx):
        if not self.o.stamps: return []
        return [I(f"s_memtime s[{40+2*idx}:{41+2*idx}]", "sm"), I(f"s_memrealtime s[{68+2*idx}:{69+2*idx}]", "sm")]

    def frag_stream(self, specs, j0, users_prev=None):
        fr = []
        for j, (kind, slot, idx, tag, deps, *bb) in enumerate(specs):
            buf = bb[0] if bb else j0 + j
            if kind == "done": nodes = []
            elif kind == "K": nodes = [Nd(self.kread_t(slot, idx, buf), "ds", deps=list(deps), tag=tag)]
            else: nodes = [Nd(self.vread_t(slot, idx, s, buf), "ds", deps=list(deps), tag=tag) for s in range(2)]
            fr.append(dict(nodes=nodes, buf=buf, tag=tag, users=[]))
        prev = None
        for f in fr:
            for n in f["nodes"]:
                if prev: n.deps.append((prev, 0))
                prev = n
        return fr
    def link_users(self, fr, depth):
        for j, f in enumerate(fr):
            if j - depth >= 0 and fr[j - depth]["users"]:
                for n in f["nodes"]: n.deps.append((fr[j - depth]["users"][-1], 0))
    def mf(self, f, text, deps=(), cap=None):
        first = not f["users"]
        m = Nd(text, "m", deps=list(deps) + [(n, 0) for n in f["nodes"]], need=f["tag"] if first else None, cap=cap)
        f["users"].append(m)
        return m

    def prologue(self):
        o = self.o
        S = Sched()
        a = lambda t, k="o", **kw: S.raw([I(t, k, **kw)])
        lane, w, t0, t1, t2, vQr = vT + 8, vT + 9, vT + 10, vT + 11, vT + 12, vT + 14
        a("s_cmpk_ge_u32 s2, 0x100")
        a("s_cbranch_scc1 L_end")
        a("s_load_dwordx8 s[28:35], s[0:1], 0", "sm")
        if o.stamps:
            a(f"s_load_dwordx2 s[36:37], s[0:1], {32 if o.dbg else 40}", "sm")
            a("s_memrealtime s[38:39]", "sm")
            S.raw(self.stamp(0))
        if o.codepf:
            a("s_getpc_b64 s[96:97]")
            a(f"v_lshlrev_b32 v{t0}, 7, v0")
            a(f"global_load_dword v{vT+15}, v{t0}, s[96:97]", "vm")
        a(f"v_lshrrev_b32 v{w}, 6, v0")
        a(f"v_and_b32 v{lane}, 63, v0")
        a(f"v_and_b32 v{t1}, 32, v0")
        a(f"v_readfirstlane_b32 s{sWb}, v{w}")
        a(f"v_lshlrev_b32 v{vD}, 4, v{lane}")
        a(f"v_xor_b32 v{vD}, v{vD}, v{t1}")
        a("s_lshr_b32 s3, s2, 4")
        a("s_and_b32 s87, s2, 7")
        a("s_lshl3_add_u32 s3, s3, s87")
        a("s_and_b32 s87, s2, 8")
        a(f"s_lshl1_add_u32 s{sRow}, s{sWb}, s87")
        a(f"s_lshl_b32 s{sQoff}, s{sRow}, 14")
        a(f"s_lshl_b32 s{sKoff}, s{sWb}, 12")
        a(f"s_mulk_i32 s{sWb}, {4*PIECE}")
        a("s_mul_i32 s87, s3, 253952")
        a(f"s_mov_b32 s{sQ+2}, 253952")
        a(f"s_mov_b32 s{sQ+3}, 0x20000")
        a(f"s_add_u32 m0, s{sWb}, {8*TILE}")
        a(f"s_movk_i32 s{sCnt}, 2")
        a("s_waitcnt lgkmcnt(0)", "w0")
        a(f"s_add_u32 s{sQ}, s28, s87")
        a(f"s_addc_u32 s{sQ+1}, s29, 0")
        a("L_q:", "l")
        for j in range(4):
            S.raw([self.dma_ld("Q", j)])
            if j < 3:
                a(f"s_addk_i32 m0, {PIECE-1024}", "s")
                a(f"s_sub_u32 s{sCnt}, s{sCnt}, 1" if j == 0 else "s_nop 0")
        a(f"s_addk_i32 m0, {-(TILE + 3*(PIECE-1024))}", "s")
        S.raw([self.dma_adv("Q")])
        a(f"s_cmp_lg_u32 s{sCnt}, 0")
        a("s_cbranch_scc1 L_q")
        a("s_lshl_b32 s3, s3, 19")
        for (s, p) in ((sK, 30), (sV, 32)):
            a(f"s_add_u32 s{s}, s{p}, s3")
            a(f"s_addc_u32 s{s+1}, s{p+1}, 0")
            a(f"s_mov_b32 s{s+2}, 524288")
            a(f"s_mov_b32 s{s+3}, 0x20000")
        a(f"s_mov_b32 s{sVoff}, s{sKoff}")
        S.raw(self.dma_tile("K", 0) + self.dma_tile("K", 1) + self.dma_tile("V", 0))
        a(f"s_add_u32 s{sO}, s34, s87")
        a(f"s_addc_u32 s{sO+1}, s35, 0")
        a(f"s_mov_b32 s{sO+2}, 253952")
        a(f"s_mov_b32 s{sO+3}, 0x20000")
        a(f"s_lshl_b32 s{sRow}, s{sRow}, 14")
        for k in range(1, 8): a(f"s_add_u32 s{sRG[k]}, s{sRow}, {k*4096}")
        a(f"v_and_b32 v{t2}, 1, v{lane}")
        a(f"v_lshlrev_b32 v{t0}, 9, v{t2}")
        a(f"v_lshlrev_b32 v{t2}, 5, v{t2}")
        a(f"v_lshrrev_b32 v{t1}, 4, v{lane}")
        a(f"v_lshlrev_b32 v{t1}, 4, v{t1}")
        a(f"v_xor_b32 v{t1}, v{t1}, v{t2}")
        a(f"v_add_u32 v{t0}, v{t0}, v{t1}")
        a(f"v_bfe_u32 v{t1}, v{lane}, 1, 2")
        a(f"v_mul_u32_u24 v{t1}, {PIECE}, v{t1}")
        a(f"v_add_u32 v{t0}, v{t0}, v{t1}")
        a(f"v_bfe_u32 v{t1}, v{lane}, 3, 1")
        a(f"v_mul_u32_u24 v{vK}, {4*PIECE}, v{t1}")
        a(f"v_add_u32 v{vK}, v{vK}, v{t0}")
        a(f"v_xor_b32 v{t1}, 1, v{t1}")
        a(f"v_mul_u32_u24 v{vQr}, {TILE}, v{t1}")
        a(f"v_add_u32 v{vQr}, v{vQr}, v{t0}")
        a(f"s_add_u32 s87, s{sWb}, {5*TILE}")
        a(f"v_add_u32 v{vQr}, s87, v{vQr}")
        a(f"v_subrev_u32 v{vQr-1}, {3*TILE}, v{vQr}")
        a(f"v_lshrrev_b32 v{t0}, 3, v{lane}")
        a(f"v_mul_u32_u24 v{t0}, {PIECE}, v{t0}")
        a(f"v_bfe_u32 v{t2}, v{lane}, 2, 1")
        a(f"v_lshl_add_u32 v{t0}, v{t2}, 9, v{t0}")
        a(f"v_and_b32 v{t1}, 3, v{lane}")
        a(f"v_lshl_add_u32 v{t0}, v{t1}, 3, v{t0}")
        a(f"v_add_u32 v{t0}, {VBASE}, v{t0}")
        a(f"v_lshl_add_u32 v{vVe}, v{t2}, 5, v{t0}")
        a(f"v_xor_b32 v{vVo}, 32, v{vVe}")
        c = 1.4426950408889634 / 16.0
        a(f"s_mov_b32 s{sC}, {hex(f32bits(c))}")
        a(f"s_mov_b32 s{sNC}, {hex(f32bits(-c))}")
        a(f"s_mov_b32 s{sThr}, {hex(f32bits(o.thr))}")
        a(f"s_movk_i32 s{sCnt}, 7")
        a(f"s_mov_b32 s{sMask}, 0xffff0000")
        def qchunks(hi_slot):
            return self.dma_tile("Q", hi_slot) + self.dma_tile("Q", hi_slot - 1)
        def qread(qt):
            base, off = {0: (vQr, 2 * TILE), 1: (vQr, 0), 2: (vQr - 1, 0), 3: (vQr, 2 * TILE)}[qt]
            return [I(f"ds_read_b128 {Qr(qt,d8)}, v{base} offset:{off + 64*d8}", "ds", tag=("q", qt, d8)) for d8 in range(8)]
        def prescale(qt, tb, nt, pk, deps=()):
            out, lastcv = [], {}
            for g in range(0, 32, nt):
                rs = [(32 * qt + g + i, tb + 2 * i) for i in range(nt)]
                w = lambda t: [lastcv[t]] if t in lastcv else []
                lo = [Nd(f"v_lshlrev_b32 v{t}, 16, v{r}", "v", deps=list(deps) + w(t)) for r, t in rs]
                hi = [Nd(f"v_and_b32 v{t+1}, s{sMask}, v{r}", "v", deps=list(deps) + w(t)) for r, t in rs]
                if pk: mu = [[Nd(f"v_pk_mul_f32 v[{t}:{t+1}], v[{t}:{t+1}], s[{sC}:{sC+1}] op_sel_hi:[1,0]", "v", deps=[lo[i], hi[i]])] for i, (r, t) in enumerate(rs)]
                else: mu = [[Nd(f"v_mul_f32 v{t}, s{sC}, v{t}", "v", deps=[lo[i]]), Nd(f"v_mul_f32 v{t+1}, s{sC}, v{t+1}", "v", deps=[hi[i]])] for i, (r, t) in enumerate(rs)]
                cv = [Nd(f"v_cvt_pk_bf16_f32 v{r}, v{t}, v{t+1}", "v", deps=mu[i]) for i, (r, t) in enumerate(rs)]
                for i, (r, t) in enumerate(rs): lastcv[t] = cv[i]
                out += lo + hi + sum(mu, []) + cv
            return out
        S.raw(qchunks(6))
        a("s_waitcnt vmcnt(20)")
        S.raw(qread(0))
        a("s_waitcnt lgkmcnt(0)", "w0")
        S.run([], prescale(0, 128, 4, True))
        S.raw(self.dma_tile("Q", 3))
        a("s_waitcnt vmcnt(12)")
        a("s_barrier")
        if o.stamps: S.raw(self.stamp(1))
        groups = [[0], [1], [2], [3]]
        bar = Nd([I(f"s_waitcnt vmcnt({16 if o.late_v1 else 12}) lgkmcnt(0)", "w0"), I("s_barrier")], "s")
        one = lambda kind, slot, idx, tag, buf, deps=(): self.frag_stream([(kind, slot, idx, tag, list(deps), buf)], 0)[0]
        K0p = [one("K", 0, f, ("k0", f), ("a", 192 + 4 * f)) for f in range(16)]
        K1p = [one("K", 1, f, ("k1", f), ("v", 96 + 4 * f) if f < 8 else f) for f in range(16)]
        assert {"cvt03", "cvt13", "add07", "add17"} <= self.part1
        K1q = [one("K", 1, f, ("k1b", f), ("v", b)) for f, b in enumerate([128, 132, 136, 140, X(1, 0, 4), X(1, 1, 4), 144, 148])]
        lastq = [("a", 64), ("a", 128), ("v", 152), ("v", 128)]
        Vp = [[one("V", 0, d, ("vp", r, d), ("a", 64 * r + 4 + 4 * d) if d < 15 else lastq[r]) for d in range(16)] for r in range(4)]
        K2p = self.frag_stream([("K", 2, f, (1, f), [bar], f) for f in range(self.npre)], 0)
        again = lambda F: [dict(nodes=f["nodes"], buf=f["buf"], tag=f["tag"], users=[]) for f in F]
        fr_all = []
        for r in range(4): fr_all += again(K0p) + (again(K1p) if r < 3 else K1q + again(K1p[8:])) + Vp[r]
        regions = []
        for gi, qts in enumerate(groups):
            F = fr_all[48 * gi:48 * gi + 48]
            mfs, pool = [], []
            lastm = {}
            neg, pos = ("-1.0", "1.0") if gi < 3 else (f"s{sNC}", f"s{sC}")
            for tl in range(2):
                for f in range(16):
                    for qt in qts:
                        m = self.mf(F[16 * tl + f], self.qk_t(tl, f, qt, F[16 * tl + f]["buf"], zero=True)); mfs.append(m); lastm[(tl, qt, dk(f)[1])] = m
            pdone = {}
            for qi, qt in enumerate(qts):
                t, t2 = vC + 2 * qi, vC + 2 * qi + 1
                vals = [(tl, k) for tl in range(2) for k in range(8)]
                src = lambda v: (lastm[(v[0], qt, v[1] >> 2)], 8)
                rg = lambda v: f"v{X(v[0], qt, v[1])}"
                ch = [Nd(f"v_max3_f32 v{t}, {rg(vals[0])}, {rg(vals[1])}, {rg(vals[2])}", "v", deps=[src(v) for v in vals[:3]])]
                for j in range(3, 15, 2):
                    ch.append(Nd(f"v_max3_f32 v{t}, v{t}, {rg(vals[j])}, {rg(vals[j+1])}", "v", deps=[ch[-1], src(vals[j]), src(vals[j + 1])]))
                ch.append(Nd(f"v_max_f32 v{t}, v{t}, {rg(vals[15])}", "v", deps=[ch[-1], src(vals[15])]))
                for sw in ("v_permlane16_swap_b32", "v_permlane32_swap_b32"):
                    ch.append(Nd(f"v_mov_b32 v{t2}, v{t}", "v", deps=[ch[-1]]))
                    ch.append(Nd(f"{sw} v{t}, v{t2}", "v", deps=[(ch[-1], 2)]))
                    ch.append(Nd(f"v_max_f32 v{t}, v{t}, v{t2}", "v", deps=[(ch[-1], 1)]))
                mm = Nd(f"v_mul_f32 v{Mb(qt)}, {neg}, v{t}", "v", deps=[ch[-1]]); ch.append(mm)
                cp = [Nd(f"v_mov_b32 v{Mb(qt)+k}, v{Mb(qt)}", "v", deps=[mm]) for k in range(1, 4)]
                fma = {v: Nd(f"v_fma_f32 {rg(v)}, {rg(v)}, {pos}, v{Mb(qt)}", "v", deps=[mm]) for v in vals}
                E0 = self.to_nodes(self.E_order(*self.E_ops([qt], vL)), 0, extra=lambda op: [(fma[(0, int(op.name[4]))], 0)] if op.name.startswith("exp") else [])
                E1 = self.to_nodes(self.E_order(*self.E_ops([qt])), 1, only=self.part1,
                                   extra=lambda op: [(fma[(1, int(op.name[4]))], 0)] if op.name.startswith("exp") else [])
                pdone[qt] = [n for n in E0 if n.name.startswith("cvt")]
                crit = [n for n in E0 if not n.name.startswith("add") or int(n.name[4]) < 4]
                rest = [n for n in E0 if n not in crit]
                pool.append((ch + [fma[v] for v in vals[:8]] + crit, rest + cp + [fma[v] for v in vals[8:]] + E1))
            for d in range(16):
                for qt in qts:
                    mfs.append(self.mf(F[32 + d], self.pv_t(0, d, qt, F[32 + d]["buf"], zero=True), deps=[(n, 2) for n in pdone[qt]], cap=o.pro_cap3 if gi == 3 else None))
            hi = [n for tup in zip(*[p[0] for p in pool]) for n in tup]
            lo = sum((p[1] for p in pool), [])
            regions.append((mfs, hi + lo))
        assert not any(n.startswith(("chk", "cmp")) for n in self.part1)
        dsn = lambda F: [n for f in F for n in f["nodes"]]
        def after(F, m):
            for n in dsn(F): n.deps.append((m, 0))
        def spread(dm, ms, g0, step):
            k = 0
            for n in dm:
                if n.k == "vm":
                    n.soft.append((ms[min(len(ms) - 1, g0 + step * k)], 0)); k += 1
        m0, m1, m2, mfs = [r[0] for r in regions]
        V3p = Vp[3]
        for n in dsn(Vp[1] + Vp[2] + K1q): n.low = True
        for n in regions[2][1] + [m2[-1]]: after(K1q[6:], n)
        for d in range(16): after([V3p[d]], mfs[d + 1])
        qb, e = self.dma_nodes("Q", 2, [], None)
        spread(qb, m0, 4, 6)
        S.run([], dsn(K0p[:6]))
        S.run(m0, qb + dsn(K0p[6:] + K1p + Vp[0]) + regions[0][1] + dsn(Vp[1]), cap=4, dsmax=2)
        a("s_waitcnt vmcnt(8)")
        S.raw(qread(1))
        a("s_waitcnt lgkmcnt(0)", "w0")
        qa, e = self.dma_nodes("Q", 8, [], None)
        qb, e = self.dma_nodes("Q", 7, [], e)
        S.run([], qa + prescale(1, 128, 4, True))
        spread(qb, m1, 0, 8)
        a("s_nop 1")
        S.run(m1, qb + regions[1][1] + dsn(Vp[2]), cap=o.pro_cap)
        a("s_waitcnt vmcnt(8)")
        S.raw(qread(2))
        a("s_waitcnt lgkmcnt(0)", "w0")
        v1, e = self.dma_nodes("K", 2, [], None)
        k2, e = self.dma_nodes("V", 1, [], e)
        S.run([], v1 + prescale(2, 128, 4, True))
        spread(k2, m2, 0, 8)
        a("s_nop 1")
        S.run(m2, k2 + regions[2][1] + dsn(K1q), cap=o.pro_cap)
        a("s_waitcnt vmcnt(8)")
        if o.stamps: S.raw(self.stamp(2))
        S.raw(qread(3))
        for f in range(16):
            if dk(f)[1] == 0: mfs[f].need = ("q", 3, dk(f)[0])
        d1, e1 = self.dma_nodes("K", 3, [(mfs[o.pro_dma], 0)], None)
        d2, e2 = self.dma_nodes("V", 2, [], e1)
        d3, e3 = self.dma_nodes("V", 3, [(mfs[15], 0)], e2)
        for j in range(1, 16): V3p[j]["nodes"][0].deps.append((V3p[j - 1]["nodes"][-1], 0))
        bar.deps = [(V3p[15]["nodes"][-1], o.pro_bar), (e3, 0), (mfs[o.pro_barm], 0)]
        ps3 = prescale(3, 132, 4, False, deps=[(mfs[31], 0)])
        S.run(mfs, dsn(V3p) + regions[3][1] + d1 + d2 + d3 + [bar] + dsn(K2p) + ps3, cap=o.pro_cap, dsmax=1)
        a("s_nop 1")
        S.raw([I(None, "wl", need=(1, 1))])
        if o.stamps: S.raw(self.stamp(3) + self.stamp(4))
        return S.out

    def tail(self):
        o = self.o
        S = Sched()
        a = lambda t, k="o", **kw: S.raw([I(t, k, **kw)])
        M29, M30, M31 = 1, 0, 2
        bar = Nd([I("s_waitcnt vmcnt(0)"), I("s_barrier")], "s")
        specs = [("done" if f < self.npre else "K", 2, f, (1, f), []) for f in range(16)]
        o31 = list(range(8, 16)) + list(range(8))
        specs += [("K", 3, f, ("t", 31, f), [bar] if f == 8 else []) for f in o31]
        pvgroups = [[(0, d), (1, d)] for d in range(4)] + [[(2, 0), (2, 1)], [(2, 2), (2, 3)]]
        pvgroups += [[(tl, dt) for tl in range(3)] for dt in range(4, 16)]
        pvorder = sum(pvgroups, [])
        specs += [("V", 1 + tl, dt, ("t", "v", tl, dt), []) for tl, dt in pvorder]
        fr = self.frag_stream(specs, 0)
        mfs, lastm = [], {}
        for p in range(8):
            for j, qt, e in walk(2, p):
                f = 2 * p + j
                m = self.mf(fr[f], self.qk_t(M30, f, qt, f, first=(p & 3) == 0 and e == 0)); mfs.append(m); lastm[(30, qt, dk(f)[1])] = m
        mfs[0].waited = True; mfs[1].waited = True
        mcopy = vS + [vD]
        def EC(tile, m, only, prevbr, prevmg, brdeps, rare_args):
            Eexp, Epl = self.E_ops()
            chk, mg = self.C_ops(Epl)
            def ex(op):
                d = []
                if op.name.startswith("exp"):
                    if (tile,) + op.src in lastm: d.append((lastm[(tile,) + op.src], 8))
                    if prevbr: d.append((prevbr, 0))
                if op.name.startswith("add") and op.name.endswith("1") and prevmg: d.append((prevmg[int(op.name[3])], 0))
                return d
            En = self.to_nodes(Epl + chk + Eexp, m, extra=ex, only=only)
            cn = [n for n in En if n.name == "cmp"][0]
            br = Nd([I(f"s_cbranch_vccnz L_rare{tile}", "s"), I(f"L_back{tile}:", "l")], "s", deps=[(cn, 1)] + [(n, 0) for n in En] + brdeps)
            self.rares.append(self.rare(str(tile), m, tile % R, *rare_args))
            mn = self.to_nodes(mg, m, extra=lambda op: [(br, 0)])
            return En, br, mn
        E29, br29, mg29 = EC(29, M29, self.part2, None, None, [], ([], M30))
        cpy = [Nd(f"v_mov_b32 v{mcopy[qt]}, v{Mb(qt)}", "v", deps=[br29]) for qt in range(4)]
        q31 = []
        for p in range(8):
            for jj, qt, e in walk(2, p):
                j = 2 * p + jj; f = o31[j]
                deps = [(br29, 0)] + [(n, 0) for n in cpy] if p == 0 else []
                m = self.mf(fr[16 + j], self.qk_t(M31, f, qt, 16 + j, first=(p & 3) == 0 and e == 0), deps=deps, cap=o.cap31)
                mfs.append(m); q31.append(m); lastm[(31, qt, dk(f)[1])] = m
        bar.deps = [(mfs[o.tail_bar], 0), (br29, 0)]
        E30, br30, mg30 = EC(30, M30, None, br29, mg29, [(n, 0) for n in cpy], ([M29], M31, mcopy))
        E31, br31, mg31 = EC(31, M31, None, br30, mg30, [], ([M29, M30], None, mcopy))
        ln, t0, t1, t2 = 108, 109, 110, 111
        vW0, vR, vQ = 123, 124, 125
        ad = [f"v_mbcnt_lo_u32_b32 v{ln}, -1, 0", f"v_mbcnt_hi_u32_b32 v{ln}, -1, v{ln}",
              f"v_and_b32 v{t0}, 15, v{ln}", f"v_lshlrev_b32 v{t0}, 7, v{t0}",
              f"v_bfe_u32 v{t1}, v{ln}, 4, 1", f"v_lshl_add_u32 v{t0}, v{t1}, 3, v{t0}", f"v_add_u32 v{t0}, s{sWb}, v{t0}",
              f"v_lshrrev_b32 v{t1}, 5, v{ln}", f"v_and_b32 v{t2}, 7, v{ln}", f"v_xor_b32 v{t1}, v{t1}, v{t2}",
              f"v_lshl_add_u32 v{vW0}, v{t1}, 4, v{t0}",
              f"v_lshrrev_b32 v{t0}, 3, v{ln}", f"v_xor_b32 v{t1}, v{t0}, v{t2}", f"v_lshlrev_b32 v{t1}, 4, v{t1}",
              f"v_lshl_add_u32 v{vR}, v{t0}, 7, v{t1}", f"v_add_u32 v{vR}, s{sWb}, v{vR}",
              f"v_lshlrev_b32 v{t2}, 4, v{t2}", f"v_lshl_add_u32 v{vQ}, v{t0}, 9, v{t2}"]
        adn = []
        for x in ad: adn.append(Nd(x, "v", deps=[adn[-1]] if adn else [br31]))
        brs = [br29, br30, br31]
        Pd = {}
        for tl, E in enumerate((E29, E30, E31)):
            for qt in range(4): Pd[(tl, qt)] = [n for n in E if n.name.startswith(f"cvt{qt}")]
        lastpv = {}
        maps = [M29, M30, M31]
        j0 = 0
        for gi, grp in enumerate(pvgroups):
            for jj, qt, e in walk(len(grp), gi):
                if True:
                    tl, dt = grp[jj]
                    j = j0 + jj
                    cap = o.cap_a if j < 8 else (o.cap_b if j < 12 else o.cap_c)
                    m = self.mf(fr[32 + j], self.pv_t(maps[tl], dt, qt, 32 + j), deps=[(n, 2) for n in Pd[(tl, qt)]] + [(brs[tl], 0)], cap=cap)
                    mfs.append(m); lastpv[(qt, dt)] = m
            j0 += len(grp)
        self.link_users(fr, 8)
        inv = [112 + 2 * qt for qt in range(4)]
        vW = [vW0, 120, 121, 122]
        small = []
        chains = []
        for qt in range(4):
            t, t2 = inv[qt], inv[qt] + 1
            ch = [Nd(f"v_mov_b32 v{t2}, v{vL[qt]}", "v", deps=[mg31[qt]])]
            ch.append(Nd(f"v_permlane16_swap_b32 v{vL[qt]}, v{t2}", "v", deps=[(ch[-1], 2)]))
            ch.append(Nd(f"v_add_f32 v{t}, v{vL[qt]}, v{t2}", "v", deps=[(ch[-1], 1)]))
            ch.append(Nd(f"v_mov_b32 v{t2}, v{t}", "v", deps=[ch[-1]]))
            ch.append(Nd(f"v_permlane32_swap_b32 v{t}, v{t2}", "v", deps=[(ch[-1], 2)]))
            ch.append(Nd(f"v_add_f32 v{t}, v{t}, v{t2}", "v", deps=[(ch[-1], 1)]))
            ch.append(Nd(f"v_rcp_f32 v{t}, v{t}", "t", deps=[ch[-1]]))
            chains.append(ch)
        small = [n for tup in zip(*chains) for n in tup]
        wn = [Nd(f"v_xor_b32 v{vW[k]}, {32*k}, v{vW0}", "v", deps=[adn[-1]]) for k in range(1, 4)]
        conv = []
        opol = [pol(x) for x in (o.opol.split(",") * 4)[:4]]
        wr_prev = {}; st_prev = {}; rd_prev = {}
        lastds = None
        for i, (cb, qt) in enumerate([(cb, qt) for cb in range(4) for qt in range(4)]):
            b = 16 * (i % 4)
            pk = cb == 3
            a0 = Ob(qt, 4 * cb)
            war = [(wr_prev[i % 4], 1)] if i % 4 in wr_prev else [(br31, 0)]
            rdn = [Nd(f"v_accvgpr_read_b32 v{b+k}, a{a0+k}", "v", deps=[(lastpv[(qt, 4 * cb + (k >> 2))], 8)] + war) for k in range(16)]
            iv = (chains[qt][-1], 1)
            if pk: mu = [Nd(f"v_pk_mul_f32 v[{b+2*k}:{b+2*k+1}], v[{b+2*k}:{b+2*k+1}], v[{inv[qt]}:{inv[qt]+1}] op_sel_hi:[1,0]", "v", deps=[rdn[2 * k], rdn[2 * k + 1], iv]) for k in range(8)]
            else: mu = [Nd(f"v_mul_f32 v{b+k}, v{b+k}, v{inv[qt]}", "v", deps=[rdn[k], iv]) for k in range(16)]
            cv = []
            for k in range(8):
                deps = ([mu[k]] if pk else [mu[2 * k], mu[2 * k + 1]]) + ([cv[-1]] if cv else [])
                cv.append(Nd(f"v_cvt_pk_bf16_f32 v{b+k}, v{b+2*k}, v{b+2*k+1}", "v", deps=deps))
            rb = qt >> 1
            wr = []
            for k in range(4):
                deps = [cv[2 * k + 1], adn[-1]] + ([wn[k - 1]] if k else []) + ([rd_prev[rb]] if rb in rd_prev else [(bar, 0)]) + ([wr[-1]] if wr else [])
                wr.append(Nd(f"ds_write_b64 v{vW[k]}, v[{b+2*k}:{b+2*k+1}] offset:{rb*TILE + (qt&1)*2048}", "ds", deps=deps, tag=("w", i, k)))
            wr_prev[i % 4] = wr[-1]
            conv += wr + rdn + mu + cv
            if qt & 1:
                rbuf = 64 + 16 * ((i >> 1) % 3)
                u2 = (i >> 1) % 3
                rds = []
                for k in range(4):
                    deps = [wr[-1], prev_wr] + ([(st_prev[u2], 2)] if u2 in st_prev else []) + ([rds[-1]] if rds else [])
                    rds.append(Nd(f"ds_read_b128 v[{rbuf+4*k}:{rbuf+4*k+3}], v{vR} offset:{rb*TILE + k*1024}", "ds", deps=deps, tag=("r", i, k)))
                rd_prev[rb] = rds[-1]
                sts = []
                for k in range(4):
                    kk = 4 * rb + k
                    so = f"s{sRow}" if kk == 0 else f"s{sRG[kk]}"
                    sts.append(Nd(f"buffer_store_dwordx4 v[{rbuf+4*k}:{rbuf+4*k+3}], v{vQ}, {srd(sO)}, {so} offen offset:{128*cb}{opol[cb]}", "vm",
                                  deps=[rds[k]] + ([sts[-1]] if sts else []), soft=[(rds[k], o.st_dist)], need=("r", i, k)))
                st_prev[u2] = sts[-1]
                conv = self._hoist(conv, rds + sts)
            prev_wr = wr[-1]
        ds = [n for f in fr for n in f["nodes"]]
        pool = ds + [br29, bar] + E29 + mg29 + cpy + [br30] + E30 + mg30 + [br31] + E31 + mg31 + small + adn + wn + conv
        S.run(mfs, pool, dsmax=o.tail_dsmax)
        T = S.out
        if o.ab_drop:
            dr = tuple(o.ab_drop.split(","))
            for it in T:
                if it.t and it.t.startswith(dr): it.t = "s_nop 0" if o.ab_nop else None; it.k = "ds" if it.k == "ds" else "o"
        a2 = lambda t, k="o": T.append(I(t, k))
        if o.stamps:
            T += self.stamp(6) + self.stamp(7)
            a2("s_waitcnt vmcnt(0)")
            T += self.stamp(8)
            a2("s_memrealtime s[58:59]", "sm")
            a2("s_getreg_b32 s60, hwreg(HW_REG_XCC_ID)")
            a2("s_getreg_b32 s61, hwreg(HW_REG_HW_ID)")
            a2("s_waitcnt lgkmcnt(0)")
            a2(f"s_mov_b32 s64, s36"); a2("s_mov_b32 s65, s37"); a2(f"s_mov_b32 s66, 0x1000000"); a2("s_mov_b32 s67, 0x20000")
            a2(f"s_lshl_b32 s62, s2, 10")
            a2(f"s_mul_hi_u32 s63, s{sWb}, {(2**32)//(4*PIECE)+1}")
            a2(f"s_lshl_b32 s63, s63, 8")
            a2(f"s_add_u32 s62, s62, s63")
            a2(f"v_mov_b32 v1, 0")
            for k in range(24):
                a2(f"v_mov_b32 v0, s{38+k}")
                a2(f"buffer_store_dword v0, v1, s[64:67], s62 offen offset:{4*k}")
            for k in range(18):
                a2(f"v_mov_b32 v0, s{68+k}")
                a2(f"buffer_store_dword v0, v1, s[64:67], s62 offen offset:{128+4*k}")
        return T

    @staticmethod
    def _hoist(conv, hot):
        k = 0
        while k < len(conv) and getattr(conv[k], "hot", False): k += 1
        for n in hot: n.hot = True
        return conv[:k] + hot + conv[k:]

    def build(self):
        o = self.o
        pro = self.prologue()
        order = [1, 2, 3, 0]
        loop = [I("L_loop:", "l")] + sum((self.body(u, 0) for u in order), [])
        tl = self.stamp(5) + self.tail()
        trace = pro + loop + loop + tl
        self.resolve_waits(trace)
        lines = [it.t for it in trace if it.t and not it.skip and it.k != "l"]
        errs = hz.check(lines)
        for r in self.rares: errs += hz.check([it.t for it in r if it.k != "l"])
        for e in sorted(set(errs))[:20]: print(e, file=sys.stderr)
        assert not errs or o.ab_drop, "hazards"
        if o.verbose:
            cnt = lambda l: sum(1 for it in l if it.t and not it.skip and it.k != "l")
            print("instr: prologue", cnt(pro), "loop", cnt(loop), "tail", cnt(tl), file=sys.stderr)
        return pro + [I(".p2align 6" if o.align else "", "l")] + loop + tl + [I("L_end:", "l"), I("s_endpgm")] + sum(self.rares, [])

    def resolve_waits(self, trace):
        ds = []
        for it in trace:
            if it.k == "ds": ds.append(it.tag)
            elif it.k == "wl":
                idx = max(j for j, t in enumerate(ds) if t == it.need)
                n = min(14, len(ds) - 1 - idx)
                it.n = n if it.n is None else min(it.n, n)
        needed = set()
        ds = []; done = 0
        for it in trace:
            if it.k == "ds": ds.append(it.tag)
            elif it.k == "w0": done = len(ds)
            elif it.k == "wl":
                idx = max(j for j, t in enumerate(ds) if t == it.need)
                if idx >= done: needed.add(id(it))
                done = max(done, len(ds) - it.n) if id(it) in needed else done
        for it in trace:
            if it.k == "wl":
                it.skip = id(it) not in needed
                it.t = f"s_waitcnt lgkmcnt({it.n})"

    def text(self):
        body = self.build()
        hdr = open("standalone__mha_softmax__near_ridge.s.ref").read().split("\n")
        top = []
        for ln in hdr:
            if ln.startswith("; @launch"): break
            top.append(ln)
        out = top + [f"; @launch grid=(256,1,1) block=(256,1,1) lds={LDS_BYTES}",
                     "; generated by my own generator script (flash-attention forward, 4 waves x 64 q rows, 32-key tiles)",
                     '.amdgcn_target "amdgcn-amd-amdhsa--gfx950"', ".text", f".globl {KNAME}"] + ([".p2align 12"] if self.o.al12 else []) + [".p2align 8",
                     f".type {KNAME},@function", f"{KNAME}:"]
        for it in body:
            if it.skip or not it.t: continue
            out.append(("" if it.k == "l" else "    ") + it.t)
        out += ['.section .rodata,"a"', ".p2align 6", f".amdhsa_kernel {KNAME}",
                "  .amdhsa_next_free_vgpr 512", "  .amdhsa_next_free_sgpr 100", "  .amdhsa_accum_offset 256",
                "  .amdhsa_group_segment_fixed_size 0", "  .amdhsa_kernarg_size 48", "  .amdhsa_user_sgpr_count 2",
                "  .amdhsa_user_sgpr_kernarg_segment_ptr 1", "  .amdhsa_system_sgpr_workgroup_id_x 1",
                ".end_amdhsa_kernel", ""]
        return "\n".join(out)

def parse(argv):
    p = argparse.ArgumentParser()
    p.add_argument("-o", default="standalone__mha_softmax__near_ridge.s")
    for f in ("stamps", "verbose", "dbg", "no_bar", "no_dma", "no_br"):
        p.add_argument("--" + f, action="store_true")
    for name, d in dict(align=1, look=24, bar_gap=113, bar_quiet=1, kstep=2, vm_wait=12, snake=1, pvchain=1, pace=0, al12=0, late_v1=0, br_delay=1, dma0=2, dmastep=4, sdelay=28, backlog=5,
                        codepf=1, pdepth=7, g0_dma0=2, g0_dmastep=6, pro_dma=2, pro_bar=10, pro_barm=43, pro_cap=3, pro_cap3=12, tail_bar=30, cap31=2, cap_a=7, cap_b=3, cap_c=5, st_dist=24, tail_dsmax=1).items():
        p.add_argument("--" + name, type=int, default=d)
    p.add_argument("--thr", type=float, default=1024.0)
    p.add_argument("--ab_drop", default="")
    p.add_argument("--ab_nop", type=int, default=0)
    p.add_argument("--kvpol", default="nt")
    p.add_argument("--qpol", default="nt")
    p.add_argument("--opol", default="nt")
    return p.parse_args(argv)

if __name__ == "__main__":
    o = parse(sys.argv[1:])
    open(o.o, "w").write(Gen(o).text())
```

```python
import sys, struct, argparse
sys.path.insert(0, "dev")
import hz

KNAME = "standalone__mha_softmax__near_ridge_kernel"
MF = "v_mfma_f32_16x16x32_bf16"

def f32bits(x): return struct.unpack("<I", struct.pack("<f", x))[0]
def pol(x): return (" " + x.replace("+", " ")) if x else ""
def srd(s): return f"s[{s}:{s+3}]"

class I:
    __slots__ = ("t", "k", "tag", "need", "n", "skip")
    def __init__(self, t, k="o", tag=None, need=None):
        self.t = t; self.k = k; self.tag = tag; self.need = need; self.n = None; self.skip = False

def Qr(qt, d8): b = (qt * 8 + d8) * 4; return f"v[{b}:{b+3}]"
vT = 240
def X(m, qt, k):
    if m < 2: return 128 + m * 32 + qt * 8 + k
    return 128 + 32 + qt * 8 + 4 + k if k < 4 else vT + 4 * qt + k - 4
def Sr(m, qt, kt): b = X(m, qt, 4 * kt); return f"v[{b}:{b+3}]"
def Pr(m, qt): return Sr(m, qt, 0)
NF = 8
def Fx(f): return f if isinstance(f, tuple) else ("v", 192 + (f % NF) * 4)
def Fr(f): c, b = Fx(f); return f"{c}[{b}:{b+3}]"
def Ob(qt, dt): return (qt * 16 + dt) * 4
def Or(qt, dt): b = Ob(qt, dt); return f"a[{b}:{b+3}]"
vK, vVe, vVo, vD = 224, 225, 226, 227
vL = [228, 229, 230, 231]
vLt = [232, 233, 234, 235]
vC = 236
vS = [237, 238, 239]
def Mb(qt): return vT + 4 * qt
def Mr(qt): b = Mb(qt); return f"v[{b}:{b+3}]"
sQ, sK, sV, sO = 4, 8, 12, 16
sC, sKoff, sVoff, sWb, sCnt, sNC, sThr, sRow = 20, 21, 22, 23, 24, 25, 26, 27
sQoff, sMask = 86, 95
sRG = [None, 88, 89, 90, 91, 92, 93, 94]
PIECE = 1088
TILE = 16 * PIECE
R = 4
VBASE = R * TILE
LDS_BYTES = (2 * R + 1) * TILE
NG = 128
def dk(f): return (f & 7, f >> 3)
def walk(n, par):
    for qi in range(4):
        for e in range(n):
            yield (e if qi % 2 == 0 else n - 1 - e, qi if par % 2 == 0 else 3 - qi, e)

class Op:
    def __init__(self, name, fn, cost=1, deps=(), t0=0):
        self.name = name; self.fn = fn; self.cost = cost; self.deps = list(deps); self.t0 = t0; self.t = None

class Nd:
    def __init__(self, t, k, deps=(), tag=None, need=None, cap=None, soft=()):
        self.t = t if isinstance(t, list) else [t]
        self.k = k; self.deps = [d if isinstance(d, tuple) else (d, 0) for d in deps]
        self.tag = tag; self.need = need; self.idx = None; self.cap = cap; self.waited = False; self.soft = list(soft); self.low = False; self.pk = False
        self.cost = {"t": 2, "vm": 2, "s": 0}.get(k, 1)

class Sched:
    def __init__(self):
        self.out = []; self.n = 0; self.issued = set()
    def ok(self, nd, relax=False):
        if not relax and any(d.idx is None or self.n - d.idx - 1 < dist for d, dist in nd.soft): return False
        return all(d.idx is not None and self.n - d.idx - 1 >= dist for d, dist in nd.deps)
    def wait(self, nd):
        if nd.need is not None and not nd.waited:
            self.out.append(I(None, "wl", need=nd.need)); nd.waited = True
    def emit(self, nd):
        self.wait(nd)
        for t in nd.t:
            if isinstance(t, I):
                self.out.append(t)
                if t.k != "l": self.n += 1
            else:
                self.out.append(I(t, nd.k, tag=nd.tag)); self.n += 1
        nd.idx = self.n - 1
    def raw(self, lst):
        for t in lst:
            t = t if isinstance(t, I) else I(t)
            self.out.append(t)
            if t.k not in ("l", "wl"): self.n += 1
    def pick(self, pool, free, dsmax):
        got = []; nds = 0; nsc = 0
        for nd in list(pool):
            if not self.ok(nd): continue
            if nd.k == "s":
                if nsc: continue
                nsc += 1
            else:
                if nd.cost > free: continue
                if nd.k == "ds":
                    if nds >= dsmax: continue
                    nds += 1
                free -= nd.cost
            got.append(nd); pool.remove(nd)
            if free <= 0 and nsc: break
        order = {"s": 0, "ds": 1, "vm": 2}
        got.sort(key=lambda nd: order.get(nd.k, 3))
        return got
    def drain_one(self, pool, relax=False):
        for nd in pool:
            if self.ok(nd, relax):
                pool.remove(nd); self.emit(nd); return True
        return False
    def run(self, mfs, pool, cap=2, dsmax=1, keep=()):
        for i, m in enumerate(mfs):
            guard = 0
            while not self.ok(m):
                if not self.drain_one(pool):
                    self.raw(["s_nop 0"]); guard += 1
                    assert guard < 40, ("stuck", m.t, [d.t for d, _ in m.deps if d.idx is None])
            self.emit(m)
            c = m.cap or cap
            left = c
            pkok = lambda: c - left >= 5
            nx = mfs[i + 1] if i + 1 < len(mfs) else None
            if nx is not None and nx.need is not None and not nx.waited and all(d.idx is not None for d, _ in nx.deps if d.k == "ds"):
                self.wait(nx)
            def take(kinds, maxcost, low=True):
                for nd in pool:
                    if nd.k in kinds and nd.cost <= maxcost and (low or not nd.low) and self.ok(nd) and (not nd.pk or pkok()):
                        pool.remove(nd); self.emit(nd); return nd
                return None
            take(("s",), 0)
            nds = 0
            for lowok in (False, True):
                while nds < dsmax and left > 0:
                    nd = take(("ds",), left, lowok)
                    if not nd: break
                    left -= nd.cost; nds += 1
                if not lowok and left >= 2 and take(("vm",), left): left -= 2
            while left > 0:
                nd = None
                if pkok():
                    for x in pool:
                        if x.pk and self.ok(x):
                            pool.remove(x); self.emit(x); nd = x; break
                if not nd and left >= 2:
                    rdy = []
                    for x in pool:
                        if x.k in ("v", "t") and self.ok(x):
                            rdy.append(x)
                            if x.k == "t" or len(rdy) > 4: break
                    if rdy and rdy[-1].k == "t": nd = take(("t",), left)
                if not nd: nd = take(("v", "t"), left)
                if not nd: break
                left -= nd.cost
        guard = 0
        while any(nd not in keep for nd in pool):
            if not self.drain_one(pool) and not self.drain_one(pool, True):
                self.raw(["s_nop 0"]); guard += 1
                assert guard < 40, ("stuck", [nd.t for nd in pool[:3]])
            else: guard = 0

class Gen:
    def __init__(self, o):
        self.o = o
        self.rares = []
        self.plan()

    def kread_t(self, slot, f, buf):
        d8, kt = dk(f)
        return f"ds_read_b128 {Fr(buf)}, v{vK} offset:{slot*TILE + kt*8*PIECE + 64*d8}"
    def vread_t(self, slot, dt, sec, buf):
        c, b = Fx(buf); b += 2 * sec
        return f"ds_read_b64_tr_b16 {c}[{b}:{b+1}], v{vVo if dt & 1 else vVe} offset:{slot*TILE + sec*8*PIECE + 64*(dt>>1)}"
    def fread(self, u, f, part=None):
        if f < 16: return [I(self.kread_t((u + 1) % R, f, f), "ds", tag=(u, f))]
        return [I(self.vread_t(u % R, f - 16, sec, f), "ds", tag=(u, f)) for sec in range(2) if part is None or part == sec]

    def dma_m0(self, which, slot, j):
        base = slot * TILE + (VBASE if which == "V" else 0) + (PIECE - 1024) * j
        return I(f"s_add_u32 m0, s{sWb}, {base}", "s")
    def dma_ld(self, which, j):
        s, so, p = {"K": (sK, sKoff, self.o.kvpol), "V": (sV, sVoff, self.o.kvpol), "Q": (sQ, sQoff, self.o.qpol)}[which]
        return I(f"buffer_load_dwordx4 v{vD}, {srd(s)}, s{so} offen offset:{j*1024}{pol(p)} lds", "vm")
    def dma_adv(self, which):
        so = {"K": sKoff, "V": sVoff, "Q": sQoff}[which]
        return I(f"s_addk_i32 s{so}, {4096 if which == 'Q' else 16384}", "s")
    def dma_tile(self, which, slot):
        out = [self.dma_m0(which, slot, 0)]
        for j in range(4):
            out += [I("s_nop 0"), self.dma_ld(which, j)]
            if j < 3: out.append(I(f"s_addk_i32 m0, {PIECE-1024}", "s"))
        out.append(self.dma_adv(which))
        return out
    def dma_nodes(self, which, slot, deps, prev):
        out = []
        for j in range(4):
            m = Nd(self.dma_m0(which, slot, j).t, "s", deps=list(deps) + ([prev] if prev else []))
            l = Nd(self.dma_ld(which, j).t, "vm", deps=[(m, 1)])
            out += [m, l]; prev = l
        adv = Nd(self.dma_adv(which).t, "s", deps=[prev]); out.append(adv)
        return out, adv

    def qk_t(self, m, f, qt, buf, zero=False, first=None):
        d8, kt = dk(f)
        if first is None: first = d8 == 0
        c = ("0" if zero else Mr(qt)) if first else Sr(m, qt, kt)
        return f"{MF} {Sr(m,qt,kt)}, {Fr(buf)}, {Qr(qt,d8)}, {c}"
    def pv_t(self, m, dt, qt, buf, zero=False):
        return f"{MF} {Or(qt,dt)}, {Fr(buf)}, {Pr(m,qt)}, {'0' if zero else Or(qt,dt)}"

    def E_ops(self, qts=range(4), acc=None):
        o = self.o
        acc = acc or vLt
        ex, ad, cv, Eexp, Epl = {}, {}, {}, [], []
        for qt in qts:
            for k in range(8):
                ex[(qt, k)] = Op(f"exp{qt}{k}", (lambda m, qt=qt, k=k: f"v_exp_f32 v{X(m,qt,k)}, v{X(m,qt,k)}"), cost=2, t0=(25 if k < 4 else 57) + 2 * (3 - qt) + 6)
                ex[(qt, k)].src = (qt, k >> 2)
                Eexp.append(ex[(qt, k)])
            ad[(qt, 1)] = Op(f"add{qt}1", (lambda m, qt=qt: f"v_add_f32 v{acc[qt]}, v{X(m,qt,0)}, v{X(m,qt,1)}"), deps=[ex[(qt, 0)], ex[(qt, 1)]])
            ad[(qt, 0)] = ad[(qt, 1)]
            for k in range(2, 8):
                ad[(qt, k)] = Op(f"add{qt}{k}", (lambda m, qt=qt, k=k: f"v_add_f32 v{acc[qt]}, v{acc[qt]}, v{X(m,qt,k)}"), deps=[ex[(qt, k)], ad[(qt, k - 1)]])
            for j in range(4):
                deps = [ex[(qt, 2 * j)], ex[(qt, 2 * j + 1)], ad[(qt, j)]] + ([cv[(qt, j >> 1)]] if j else [])
                cv[(qt, j)] = Op(f"cvt{qt}{j}", (lambda m, qt=qt, j=j: f"v_cvt_pk_bf16_f32 v{X(m,qt,j)}, v{X(m,qt,2*j)}, v{X(m,qt,2*j+1)}"), deps=deps)
            for k in range(1, 8):
                Epl.append(ad[(qt, k)])
                if k & 1: Epl.append(cv[(qt, k >> 1)])
        return Eexp, Epl
    def C_ops(self, Epl):
        la = [op for op in Epl if op.name.startswith("add") and op.name.endswith("7")]
        c1 = Op("chk1", (lambda m: f"v_max3_f32 v{vC}, v{vLt[0]}, v{vLt[1]}, v{vLt[2]}"), deps=la[:3])
        c2 = Op("chk2", (lambda m: f"v_max_f32 v{vC}, v{vC}, v{vLt[3]}"), deps=[c1, la[3]])
        cmp = Op("cmp", (lambda m: f"v_cmp_lt_f32 vcc, s{sThr}, v{vC}"), deps=[c2])
        mg = [Op(f"mrg{qt}", (lambda m, qt=qt: f"v_add_f32 v{vL[qt]}, v{vL[qt]}, v{vLt[qt]}")) for qt in range(4)]
        return [c1, c2, cmp], mg
    def to_nodes(self, ops, m, extra=None, only=None):
        nd = {}
        for op in ops:
            if only is not None and op.name not in only: continue
            nd[op] = Nd(op.fn(m), "t" if op.cost == 2 else "v"); nd[op].name = op.name
        for op, n in nd.items():
            for d in op.deps:
                if d in nd: n.deps.append((nd[d], 1 if d.cost == 2 else 0))
            if extra: n.deps += extra(op)
        return list(nd.values())
    @staticmethod
    def E_order(Eexp, Epl):
        return Epl + Eexp

    def plan(self):
        o = self.o
        used = [0] * NG
        self.ds_at = [[] for _ in range(NG)]
        g = o.bar_gap + 1
        self.npre = 0
        for f in range(32):
            want = 4 * f - o.look
            if f < 16 and want < 0:
                pos = max(want + NG, g)
                if pos < NG - 1:
                    self.ds_at[pos].append((f, None, True)); used[pos] += 1
                    g = pos + o.kstep; self.npre = f + 1
                    continue
                want = 0
            pos = want
            for p in ([None] if f < 16 else [0, 1]):
                while used[pos] > 0: pos += 1
                assert pos < o.bar_gap - 6 or f < 16
                self.ds_at[pos].append((f, p, False)); used[pos] += 1
        self.dma_at = {}
        pos = o.dma0
        for k in range(8):
            while used[pos] > 0 or pos % 4 == 0: pos += 1
            assert 0 < pos < o.bar_gap - 3
            self.dma_at[pos] = k
            used[pos] = 2
            pos += o.dmastep
        used[NG - 1] += 1
        for gq in range(o.bar_gap - o.bar_quiet + 1, o.bar_gap + 1): used[gq] = 2
        self.va_at = [[] for _ in range(2 * NG)]
        rdy = lambda op, t: op.t0 <= t and all(d.t is not None and d.t < t for d in op.deps)
        Eexp, Epl = self.E_ops()
        chk, mg = self.C_ops(Epl)
        Epl = Epl + chk
        for k, op in enumerate(Eexp): op.t0 = max(op.t0, 56 + o.sdelay + k * o.pace // 10)
        def put(op, t): op.t = t; self.va_at[t].append(op); used[t % NG] += op.cost
        t = 56
        while Eexp or Epl:
            assert t < NG + 56, "softmax does not fit"
            free = 2 - used[t % NG]
            backlog = sum(1 for op in Epl if all(d.t is not None for d in op.deps if d.cost == 2) and not op.name.startswith("c" + "hk") and op.name != "cmp")
            re = [op for op in Eexp if rdy(op, t)]
            if free == 2 and re and backlog < o.backlog:
                Eexp.remove(re[0]); put(re[0], t)
            else:
                for op in list(Epl):
                    if free == 0: break
                    if rdy(op, t): Epl.remove(op); put(op, t); free -= 1
                if free == 2 and re: Eexp.remove(re[0]); put(re[0], t)
            t += 1
        busy = lambda g: g % 4 == 3 or (g + 1) in self.dma_at or ((g - 2) in self.dma_at and self.dma_at[g - 2] % 4 == 3)
        self.t_br = max(t + o.br_delay, NG + 1) - NG
        while busy(self.t_br): self.t_br += 1
        t = self.t_br + NG
        while mg:
            if used[t % NG] < 2: put(mg.pop(0), t)
            else: t += 1
        assert t < NG + 61
        self.part1 = {op.name for t in range(0, NG) for op in self.va_at[t]}
        self.part2 = {op.name for t in range(NG, 2 * NG) for op in self.va_at[t]}
        if o.verbose:
            print("br", self.t_br, "npre", self.npre, "part2", len(self.part2), "used", "".join(map(str, used)), file=sys.stderr)

    def body(self, u, lastu):
        o = self.o
        cur = u & 1; nxt = cur ^ 1
        out = []
        for g in range(NG):
            p = g >> 3
            j, qt, e = list(walk(2, p))[g & 7]
            f = 2 * p + j
            out.append(I(self.qk_t(nxt, f, qt, f, first=(p & 3) == 0 and e == 0) if f < 16 else self.pv_t(cur, f - 16, qt, f), "m"))
            sc, ds, vm, va = [], [], [], []
            if g % 4 == 3:
                f1 = (g + 1) // 4
                if f1 >= 32: sc.append(I(None, "wl", need=((u + 1) % R, 1)))
                elif f1 % 2 == 0: sc.append(I(None, "wl", need=(u, f1 + 1)))
            if g == o.bar_gap - 1: sc.append(I(f"s_waitcnt vmcnt({o.vm_wait}) lgkmcnt(0)", "w0"))
            if o.late_v1 and u == 1:
                gv = 64 - o.look - 2
                assert max(self.dma_at) < gv - 1
                if g == gv - 1: sc.append(I("s_waitcnt vmcnt(20)"))
                if g == gv: sc.append(I("s_barrier"))
            if g == o.bar_gap and not o.no_bar: sc.append(I("s_barrier"))
            desc = lambda k: ("K", (u - 1) % R, k) if k < 4 else ("V", (u - 1) % R, k - 4)
            if g + 1 in self.dma_at: sc.append(self.dma_m0(*desc(self.dma_at[g + 1])))
            if g in self.dma_at:
                wh, _, j = desc(self.dma_at[g])
                if not o.no_dma: vm.append(self.dma_ld(wh, j))
            if g - 2 in self.dma_at and self.dma_at[g - 2] % 4 == 3: sc.append(self.dma_adv(desc(self.dma_at[g - 2])[0]))
            for (ff, p, nx) in self.ds_at[g]: ds += self.fread((u + 1) % R if nx else u, ff, p)
            if g == self.t_br and not o.no_br:
                sc += [I(f"s_cbranch_vccnz L_rare{u}", "s"), I(f"L_back{u}:", "l")]
                self.rares.append(self.rare(str(u), cur, u % R, [], nxt))
            for op in self.va_at[g + NG]: va.append(I(op.fn(cur), "v"))
            for op in self.va_at[g]: va.append(I(op.fn(nxt), "v"))
            if u == lastu and g == NG - 3: sc.append(I(f"s_sub_u32 s{sCnt}, s{sCnt}, 1", "s"))
            if u == lastu and g == NG - 2: sc.append(I(f"s_cmp_lg_u32 s{sCnt}, 0", "s"))
            out += sc + ds + vm + va
        if u == lastu: out.append(I("s_cbranch_scc1 L_loop", "s"))
        return out

    def rare(self, name, m, kslot, pend, prog, mcopy=None):
        out = [I(f"L_rare{name}:", "l")]
        a = lambda t: out.append(I(t))
        fb = ("v", vLt[0])
        a("s_nop 7")
        for f in range(16):
            a(self.kread_t(kslot, f, fb))
            a("s_waitcnt lgkmcnt(0)")
            for qt in range(4): a(self.qk_t(m, f, qt, fb, zero=True))
            a("s_nop 7")
        a("s_nop 7")
        t, t2, f = vC, vLt[0], vLt[1]
        for qt in range(4):
            x = lambda k: X(m, qt, k)
            mreg = mcopy[qt] if mcopy else Mb(qt)
            for k in range(8): a(f"v_add_f32 v{x(k)}, v{x(k)}, v{mreg}")
            a(f"v_max3_f32 v{t}, v{x(0)}, v{x(1)}, v{x(2)}")
            a(f"v_max3_f32 v{t}, v{t}, v{x(3)}, v{x(4)}")
            a(f"v_max3_f32 v{t}, v{t}, v{x(5)}, v{x(6)}")
            a(f"v_max_f32 v{t}, v{t}, v{x(7)}")
            for sw in ("v_permlane16_swap_b32", "v_permlane32_swap_b32"):
                a(f"v_mov_b32 v{t2}, v{t}"); a("s_nop 1"); a(f"{sw} v{t}, v{t2}"); a("s_nop 1"); a(f"v_max_f32 v{t}, v{t}, v{t2}")
            a(f"v_ceil_f32 v{t}, v{t}")
            a(f"v_max_f32 v{t}, 0, v{t}")
            if mcopy: a(f"v_sub_f32 v{mreg}, v{mreg}, v{t}")
            else:
                for k in range(4): a(f"v_sub_f32 v{mreg+k}, v{mreg+k}, v{t}")
            for k in range(8): a(f"v_sub_f32 v{x(k)}, v{x(k)}, v{t}")
            if prog is not None:
                for k in range(8): a(f"v_sub_f32 v{X(prog,qt,k)}, v{X(prog,qt,k)}, v{t}")
            a(f"v_min_f32 v{t2}, 0x43480000, v{t}")
            a(f"v_cvt_i32_f32 v{t2}, v{t2}")
            a(f"v_sub_u32 v{t2}, 0, v{t2}")
            a(f"v_ldexp_f32 v{f}, 1.0, v{t2}")
            a(f"v_mul_f32 v{vL[qt]}, v{vL[qt]}, v{f}")
            for pm in pend:
                for j in range(4):
                    p = X(pm, qt, j)
                    a(f"v_lshlrev_b32 v{t}, 16, v{p}")
                    a(f"v_and_b32 v{t2}, 0xffff0000, v{p}")
                    a(f"v_mul_f32 v{t}, v{t}, v{f}")
                    a(f"v_mul_f32 v{t2}, v{t2}, v{f}")
                    a(f"v_cvt_pk_bf16_f32 v{p}, v{t}, v{t2}")
            for a0 in range(qt * 64, qt * 64 + 64, 2):
                a(f"v_accvgpr_read_b32 v{t}, a{a0}"); a(f"v_accvgpr_read_b32 v{t2}, a{a0+1}")
                a(f"v_mul_f32 v{t}, v{t}, v{f}"); a(f"v_mul_f32 v{t2}, v{t2}, v{f}")
                a(f"v_accvgpr_write_b32 a{a0}, v{t}"); a(f"v_accvgpr_write_b32 a{a0+1}, v{t2}")
        Eexp, Epl = self.E_ops()
        for op in Eexp: a(op.fn(m))
        a("s_nop 0")
        for op in Epl:
            if op.name.startswith("add"): a(op.fn(m))
        for op in Epl:
            if op.name.startswith("cvt"): a(op.fn(m))
        a("s_nop 1")
        a(f"s_branch L_back{name}")
        return out

    def stamp(self, idx):
        if not self.o.stamps: return []
        return [I(f"s_memtime s[{40+2*idx}:{41+2*idx}]", "sm"), I(f"s_memrealtime s[{68+2*idx}:{69+2*idx}]", "sm")]

    def frag_stream(self, specs, j0, users_prev=None):
        fr = []
        for j, (kind, slot, idx, tag, deps, *bb) in enumerate(specs):
            buf = bb[0] if bb else j0 + j
            if kind == "done": nodes = []
            elif kind == "K": nodes = [Nd(self.kread_t(slot, idx, buf), "ds", deps=list(deps), tag=tag)]
            else: nodes = [Nd(self.vread_t(slot, idx, s, buf), "ds", deps=list(deps), tag=tag) for s in range(2)]
            fr.append(dict(nodes=nodes, buf=buf, tag=tag, users=[]))
        prev = None
        for f in fr:
            for n in f["nodes"]:
                if prev: n.deps.append((prev, 0))
                prev = n
        return fr
    def link_users(self, fr, depth):
        for j, f in enumerate(fr):
            if j - depth >= 0 and fr[j - depth]["users"]:
                for n in f["nodes"]: n.deps.append((fr[j - depth]["users"][-1], 0))
    def mf(self, f, text, deps=(), cap=None):
        first = not f["users"]
        m = Nd(text, "m", deps=list(deps) + [(n, 0) for n in f["nodes"]], need=f["tag"] if first else None, cap=cap)
        f["users"].append(m)
        return m

    def prologue(self):
        o = self.o
        S = Sched()
        a = lambda t, k="o", **kw: S.raw([I(t, k, **kw)])
        lane, w, t0, t1, t2, vQr = vT + 8, vT + 9, vT + 10, vT + 11, vT + 12, vT + 14
        a("s_cmpk_ge_u32 s2, 0x100")
        a("s_cbranch_scc1 L_end")
        a("s_load_dwordx8 s[28:35], s[0:1], 0", "sm")
        if o.stamps:
            a(f"s_load_dwordx2 s[36:37], s[0:1], {32 if o.dbg else 40}", "sm")
            a("s_memrealtime s[38:39]", "sm")
            S.raw(self.stamp(0))
        if o.codepf:
            a("s_getpc_b64 s[96:97]")
            a(f"v_lshlrev_b32 v{t0}, 7, v0")
            a(f"global_load_dword v{vT+15}, v{t0}, s[96:97]", "vm")
        a(f"v_lshrrev_b32 v{w}, 6, v0")
        a(f"v_and_b32 v{lane}, 63, v0")
        a(f"v_and_b32 v{t1}, 32, v0")
        a(f"v_readfirstlane_b32 s{sWb}, v{w}")
        a(f"v_lshlrev_b32 v{vD}, 4, v{lane}")
        a(f"v_xor_b32 v{vD}, v{vD}, v{t1}")
        a("s_lshr_b32 s3, s2, 4")
        a("s_and_b32 s87, s2, 7")
        a("s_lshl3_add_u32 s3, s3, s87")
        a("s_and_b32 s87, s2, 8")
        a(f"s_lshl1_add_u32 s{sRow}, s{sWb}, s87")
        a(f"s_lshl_b32 s{sQoff}, s{sRow}, 14")
        a(f"s_lshl_b32 s{sKoff}, s{sWb}, 12")
        a(f"s_mulk_i32 s{sWb}, {4*PIECE}")
        a("s_mul_i32 s87, s3, 253952")
        a(f"s_mov_b32 s{sQ+2}, 253952")
        a(f"s_mov_b32 s{sQ+3}, 0x20000")
        a(f"s_add_u32 m0, s{sWb}, {8*TILE}")
        a(f"s_movk_i32 s{sCnt}, 2")
        a("s_waitcnt lgkmcnt(0)", "w0")
        a(f"s_add_u32 s{sQ}, s28, s87")
        a(f"s_addc_u32 s{sQ+1}, s29, 0")
        if o.exp_delay:
            a(f"s_bitcmp1_b32 s2, {o.exp_bit}")
            a("s_cbranch_scc0 L_q")
            a(f"s_sleep {o.exp_delay}")
        a("L_q:", "l")
        for j in range(4):
            S.raw([self.dma_ld("Q", j)])
            if j < 3:
                a(f"s_addk_i32 m0, {PIECE-1024}", "s")
                a(f"s_sub_u32 s{sCnt}, s{sCnt}, 1" if j == 0 else "s_nop 0")
        a(f"s_addk_i32 m0, {-(TILE + 3*(PIECE-1024))}", "s")
        S.raw([self.dma_adv("Q")])
        a(f"s_cmp_lg_u32 s{sCnt}, 0")
        a("s_cbranch_scc1 L_q")
        a("s_lshl_b32 s3, s3, 19")
        for (s, p) in ((sK, 30), (sV, 32)):
            a(f"s_add_u32 s{s}, s{p}, s3")
            a(f"s_addc_u32 s{s+1}, s{p+1}, 0")
            a(f"s_mov_b32 s{s+2}, 524288")
            a(f"s_mov_b32 s{s+3}, 0x20000")
        a(f"s_mov_b32 s{sVoff}, s{sKoff}")
        S.raw(self.dma_tile("K", 0) + self.dma_tile("K", 1) + self.dma_tile("V", 0))
        a(f"s_add_u32 s{sO}, s34, s87")
        a(f"s_addc_u32 s{sO+1}, s35, 0")
        a(f"s_mov_b32 s{sO+2}, 253952")
        a(f"s_mov_b32 s{sO+3}, 0x20000")
        a(f"s_lshl_b32 s{sRow}, s{sRow}, 14")
        for k in range(1, 8): a(f"s_add_u32 s{sRG[k]}, s{sRow}, {k*4096}")
        a(f"v_and_b32 v{t2}, 1, v{lane}")
        a(f"v_lshlrev_b32 v{t0}, 9, v{t2}")
        a(f"v_lshlrev_b32 v{t2}, 5, v{t2}")
        a(f"v_lshrrev_b32 v{t1}, 4, v{lane}")
        a(f"v_lshlrev_b32 v{t1}, 4, v{t1}")
        a(f"v_xor_b32 v{t1}, v{t1}, v{t2}")
        a(f"v_add_u32 v{t0}, v{t0}, v{t1}")
        a(f"v_bfe_u32 v{t1}, v{lane}, 1, 2")
        a(f"v_mul_u32_u24 v{t1}, {PIECE}, v{t1}")
        a(f"v_add_u32 v{t0}, v{t0}, v{t1}")
        a(f"v_bfe_u32 v{t1}, v{lane}, 3, 1")
        a(f"v_mul_u32_u24 v{vK}, {4*PIECE}, v{t1}")
        a(f"v_add_u32 v{vK}, v{vK}, v{t0}")
        a(f"v_xor_b32 v{t1}, 1, v{t1}")
        a(f"v_mul_u32_u24 v{vQr}, {TILE}, v{t1}")
        a(f"v_add_u32 v{vQr}, v{vQr}, v{t0}")
        a(f"s_add_u32 s87, s{sWb}, {5*TILE}")
        a(f"v_add_u32 v{vQr}, s87, v{vQr}")
        a(f"v_subrev_u32 v{vQr-1}, {3*TILE}, v{vQr}")
        a(f"v_lshrrev_b32 v{t0}, 3, v{lane}")
        a(f"v_mul_u32_u24 v{t0}, {PIECE}, v{t0}")
        a(f"v_bfe_u32 v{t2}, v{lane}, 2, 1")
        a(f"v_lshl_add_u32 v{t0}, v{t2}, 9, v{t0}")
        a(f"v_and_b32 v{t1}, 3, v{lane}")
        a(f"v_lshl_add_u32 v{t0}, v{t1}, 3, v{t0}")
        a(f"v_add_u32 v{t0}, {VBASE}, v{t0}")
        a(f"v_lshl_add_u32 v{vVe}, v{t2}, 5, v{t0}")
        a(f"v_xor_b32 v{vVo}, 32, v{vVe}")
        c = 1.4426950408889634 / 16.0
        a(f"s_mov_b32 s{sC}, {hex(f32bits(c))}")
        a(f"s_mov_b32 s{sNC}, {hex(f32bits(-c))}")
        a(f"s_mov_b32 s{sThr}, {hex(f32bits(o.thr))}")
        a(f"s_movk_i32 s{sCnt}, 7")
        a(f"s_mov_b32 s{sMask}, 0xffff0000")
        def qchunks(hi_slot):
            return self.dma_tile("Q", hi_slot) + self.dma_tile("Q", hi_slot - 1)
        def qread(qt):
            base, off = {0: (vQr, 2 * TILE), 1: (vQr, 0), 2: (vQr - 1, 0), 3: (vQr, 2 * TILE)}[(3 - qt) if (o.deep and qt in (1, 2)) else qt]
            return [I(f"ds_read_b128 {Qr(qt,d8)}, v{base} offset:{off + 64*d8}", "ds", tag=("q", qt, d8)) for d8 in range(8)]
        def prescale(qt, tb, nt, pk, deps=()):
            out, lastcv = [], {}
            for g in range(0, 32, nt):
                rs = [(32 * qt + g + i, tb + 2 * i) for i in range(nt)]
                w = lambda t: [lastcv[t]] if t in lastcv else []
                lo = [Nd(f"v_lshlrev_b32 v{t}, 16, v{r}", "v", deps=list(deps) + w(t)) for r, t in rs]
                hi = [Nd(f"v_and_b32 v{t+1}, s{sMask}, v{r}", "v", deps=list(deps) + w(t)) for r, t in rs]
                if pk: mu = [[Nd(f"v_pk_mul_f32 v[{t}:{t+1}], v[{t}:{t+1}], s[{sC}:{sC+1}] op_sel_hi:[1,0]", "v", deps=[lo[i], hi[i]])] for i, (r, t) in enumerate(rs)]
                else: mu = [[Nd(f"v_mul_f32 v{t}, s{sC}, v{t}", "v", deps=[lo[i]]), Nd(f"v_mul_f32 v{t+1}, s{sC}, v{t+1}", "v", deps=[hi[i]])] for i, (r, t) in enumerate(rs)]
                cv = [Nd(f"v_cvt_pk_bf16_f32 v{r}, v{t}, v{t+1}", "v", deps=mu[i]) for i, (r, t) in enumerate(rs)]
                for i, (r, t) in enumerate(rs): lastcv[t] = cv[i]
                out += lo + hi + sum(mu, []) + cv
            return out
        S.raw(qchunks(3 if o.deep else 6))
        a("s_waitcnt vmcnt(20)")
        S.raw(qread(0))
        a("s_waitcnt lgkmcnt(0)", "w0")
        S.run([], prescale(0, 128, 4, True))
        if o.deep:
            S.raw(qchunks(6))
            a("s_waitcnt vmcnt(16)")
        else:
            S.raw(self.dma_tile("Q", 3))
            a("s_waitcnt vmcnt(12)")
        a("s_barrier")
        if o.stamps: S.raw(self.stamp(1))
        groups = [[0], [1], [2], [3]]
        bar = Nd([I(f"s_waitcnt vmcnt({16 if o.late_v1 else 12}) lgkmcnt(0)", "w0"), I("s_barrier")], "s")
        one = lambda kind, slot, idx, tag, buf, deps=(): self.frag_stream([(kind, slot, idx, tag, list(deps), buf)], 0)[0]
        K0p = [one("K", 0, f, ("k0", f), ("a", 192 + 4 * f)) for f in range(16)]
        K1p = [one("K", 1, f, ("k1", f), ("v", 96 + 4 * f) if f < 8 else f) for f in range(16)]
        assert {"cvt03", "cvt13", "add07", "add17"} <= self.part1
        K1q = [one("K", 1, f, ("k1b", f), ("v", b)) for f, b in enumerate([128, 132, 136, 140, X(1, 0, 4), X(1, 1, 4), 144, 148])]
        lastq = [("a", 64), ("a", 128), ("v", 152), ("v", 128)]
        Vp = [[one("V", 0, d, ("vp", r, d), ("a", 64 * r + 4 + 4 * d) if d < 15 else lastq[r]) for d in range(16)] for r in range(4)]
        K2p = self.frag_stream([("K", 2, f, (1, f), [bar], f) for f in range(self.npre)], 0)
        again = lambda F: [dict(nodes=f["nodes"], buf=f["buf"], tag=f["tag"], users=[]) for f in F]
        fr_all = []
        for r in range(4): fr_all += again(K0p) + (again(K1p) if r < 3 else K1q + again(K1p[8:])) + Vp[r]
        regions = []
        for gi, qts in enumerate(groups):
            F = fr_all[48 * gi:48 * gi + 48]
            mfs, pool = [], []
            lastm = {}
            neg, pos = ("-1.0", "1.0") if gi < 3 else (f"s{sNC}", f"s{sC}")
            for tl in range(2):
                for f in range(16):
                    for qt in qts:
                        m = self.mf(F[16 * tl + f], self.qk_t(tl, f, qt, F[16 * tl + f]["buf"], zero=True)); mfs.append(m); lastm[(tl, qt, dk(f)[1])] = m
            pdone = {}
            for qi, qt in enumerate(qts):
                t, t2 = vC + 2 * qi, vC + 2 * qi + 1
                vals = [(tl, k) for tl in range(2) for k in range(8)]
                src = lambda v: (lastm[(v[0], qt, v[1] >> 2)], 8)
                rg = lambda v: f"v{X(v[0], qt, v[1])}"
                ch = [Nd(f"v_max3_f32 v{t}, {rg(vals[0])}, {rg(vals[1])}, {rg(vals[2])}", "v", deps=[src(v) for v in vals[:3]])]
                for j in range(3, 15, 2):
                    ch.append(Nd(f"v_max3_f32 v{t}, v{t}, {rg(vals[j])}, {rg(vals[j+1])}", "v", deps=[ch[-1], src(vals[j]), src(vals[j + 1])]))
                ch.append(Nd(f"v_max_f32 v{t}, v{t}, {rg(vals[15])}", "v", deps=[ch[-1], src(vals[15])]))
                for sw in ("v_permlane16_swap_b32", "v_permlane32_swap_b32"):
                    ch.append(Nd(f"v_mov_b32 v{t2}, v{t}", "v", deps=[ch[-1]]))
                    ch.append(Nd(f"{sw} v{t}, v{t2}", "v", deps=[(ch[-1], 2)]))
                    ch.append(Nd(f"v_max_f32 v{t}, v{t}, v{t2}", "v", deps=[(ch[-1], 1)]))
                mm = Nd(f"v_mul_f32 v{Mb(qt)}, {neg}, v{t}", "v", deps=[ch[-1]]); ch.append(mm)
                cp = [Nd(f"v_mov_b32 v{Mb(qt)+k}, v{Mb(qt)}", "v", deps=[mm]) for k in range(1, 4)]
                fma = {v: Nd(f"v_fma_f32 {rg(v)}, {rg(v)}, {pos}, v{Mb(qt)}", "v", deps=[mm]) for v in vals}
                E0 = self.to_nodes(self.E_order(*self.E_ops([qt], vL)), 0, extra=lambda op: [(fma[(0, int(op.name[4]))], 0)] if op.name.startswith("exp") else [])
                E1 = self.to_nodes(self.E_order(*self.E_ops([qt])), 1, only=self.part1,
                                   extra=lambda op: [(fma[(1, int(op.name[4]))], 0)] if op.name.startswith("exp") else [])
                pdone[qt] = [n for n in E0 if n.name.startswith("cvt")]
                crit = [n for n in E0 if not n.name.startswith("add") or int(n.name[4]) < 4]
                rest = [n for n in E0 if n not in crit]
                pool.append((ch + [fma[v] for v in vals[:8]] + crit, rest + cp + [fma[v] for v in vals[8:]] + E1))
            for d in range(16):
                for qt in qts:
                    mfs.append(self.mf(F[32 + d], self.pv_t(0, d, qt, F[32 + d]["buf"], zero=True), deps=[(n, 2) for n in pdone[qt]], cap=o.pro_cap3 if gi == 3 else None))
            hi = [n for tup in zip(*[p[0] for p in pool]) for n in tup]
            lo = sum((p[1] for p in pool), [])
            regions.append((mfs, hi + lo))
        assert not any(n.startswith(("chk", "cmp")) for n in self.part1)
        dsn = lambda F: [n for f in F for n in f["nodes"]]
        def after(F, m):
            for n in dsn(F): n.deps.append((m, 0))
        def spread(dm, ms, g0, step):
            k = 0
            for n in dm:
                if n.k == "vm":
                    n.soft.append((ms[min(len(ms) - 1, g0 + step * k)], 0)); k += 1
        m0, m1, m2, mfs = [r[0] for r in regions]
        V3p = Vp[3]
        for n in dsn(Vp[1] + Vp[2] + K1q): n.low = True
        for n in regions[2][1] + [m2[-1]]: after(K1q[6:], n)
        for d in range(16): after([V3p[d]], mfs[d + 1])
        plan = [("Q", 8), ("Q", 7), ("K", 2), ("V", 1), ("K", 3)] if o.deep else [("Q", 2), ("Q", 8), ("Q", 7), ("K", 2), ("V", 1)]
        vw = 12 if o.deep else 8
        qb, e = self.dma_nodes(*plan[0], [], None)
        spread(qb, m0, 4, 6)
        S.run([], dsn(K0p[:6]))
        S.run(m0, qb + dsn(K0p[6:] + K1p + Vp[0]) + regions[0][1] + dsn(Vp[1]), cap=4, dsmax=2)
        a(f"s_waitcnt vmcnt({vw})")
        S.raw(qread(1))
        a("s_waitcnt lgkmcnt(0)", "w0")
        qa, e = self.dma_nodes(*plan[1], [], None)
        qb, e = self.dma_nodes(*plan[2], [], e)
        S.run([], qa + prescale(1, 128, 4, True))
        spread(qb, m1, 0, 8)
        a("s_nop 1")
        S.run(m1, qb + regions[1][1] + dsn(Vp[2]), cap=o.pro_cap)
        a(f"s_waitcnt vmcnt({vw})")
        S.raw(qread(2))
        a("s_waitcnt lgkmcnt(0)", "w0")
        v1, e = self.dma_nodes(*plan[3], [], None)
        k2, e = self.dma_nodes(*plan[4], [], e)
        S.run([], v1 + prescale(2, 128, 4, True))
        spread(k2, m2, 0, 8)
        a("s_nop 1")
        S.run(m2, k2 + regions[2][1] + dsn(K1q), cap=o.pro_cap)
        a(f"s_waitcnt vmcnt({vw})")
        if o.stamps: S.raw(self.stamp(2))
        S.raw(qread(3))
        for f in range(16):
            if dk(f)[1] == 0: mfs[f].need = ("q", 3, dk(f)[0])
        d1, e1 = ([], None) if o.deep else self.dma_nodes("K", 3, [(mfs[o.pro_dma], 0)], None)
        d2, e2 = self.dma_nodes("V", 2, [(mfs[o.pro_dma], 0)], e1)
        d3, e3 = self.dma_nodes("V", 3, [(mfs[15], 0)], e2)
        for j in range(1, 16): V3p[j]["nodes"][0].deps.append((V3p[j - 1]["nodes"][-1], 0))
        bar.deps = [(V3p[15]["nodes"][-1], o.pro_bar), (e3, 0), (mfs[o.pro_barm], 0)]
        ps3 = prescale(3, 132, 4, False, deps=[(mfs[31], 0)])
        S.run(mfs, dsn(V3p) + regions[3][1] + d1 + d2 + d3 + [bar] + dsn(K2p) + ps3, cap=o.pro_cap, dsmax=1)
        a("s_nop 1")
        S.raw([I(None, "wl", need=(1, 1))])
        if o.stamps: S.raw(self.stamp(3) + self.stamp(4))
        return S.out

    def tail(self):
        o = self.o
        S = Sched()
        a = lambda t, k="o", **kw: S.raw([I(t, k, **kw)])
        M29, M30, M31 = 1, 0, 2
        bar = Nd([I("s_waitcnt vmcnt(0)"), I("s_barrier")], "s")
        touch = []
        if o.otouch:
            tm = Nd(f"s_add_u32 m0, s{sWb}, {8*TILE}", "s", deps=[bar])
            touch = [tm, Nd(f"buffer_load_dword off, {srd(sO)}, s{sRow} lds", "vm", deps=[(tm, 1)])]
        specs = [("done" if f < self.npre else "K", 2, f, (1, f), []) for f in range(16)]
        o31 = list(range(16))
        specs += [("K", 3, f, ("t", 31, f), [bar] if f == 0 else []) for f in o31]
        pvgroups = [[(0, d), (1, d)] for d in range(4)] + ([[(2, d) for d in range(4)]] if o.cb0quad else [[(2, 0), (2, 1)], [(2, 2), (2, 3)]])
        pvgroups += [[(tl, dt) for tl in range(3)] for dt in range(4, 16)]
        pvorder = sum(pvgroups, [])
        specs += [("V", 1 + tl, dt, ("t", "v", tl, dt), []) for tl, dt in pvorder]
        fr = self.frag_stream(specs, 0)
        mfs, lastm = [], {}
        for p in range(8):
            for j, qt, e in walk(2, p):
                f = 2 * p + j
                m = self.mf(fr[f], self.qk_t(M30, f, qt, f, first=(p & 3) == 0 and e == 0)); mfs.append(m); lastm[(30, qt, dk(f)[1])] = m
        mfs[0].waited = True; mfs[1].waited = True
        mcopy = vS + [vD]
        def EC(tile, m, only, prevbr, prevmg, brdeps, rare_args):
            Eexp, Epl = self.E_ops()
            chk, mg = self.C_ops(Epl)
            def ex(op):
                d = []
                if op.name.startswith("exp"):
                    if (tile,) + op.src in lastm: d.append((lastm[(tile,) + op.src], 8))
                    if prevbr: d.append((prevbr, 0))
                if op.name.startswith("add") and op.name.endswith("1") and prevmg: d.append((prevmg[int(op.name[3])], 0))
                return d
            En = self.to_nodes(Epl + chk + Eexp, m, extra=ex, only=only)
            cn = [n for n in En if n.name == "cmp"][0]
            br = Nd([I(f"s_cbranch_vccnz L_rare{tile}", "s"), I(f"L_back{tile}:", "l")], "s", deps=[(cn, 1)] + [(n, 0) for n in En] + brdeps)
            self.rares.append(self.rare(str(tile), m, tile % R, *rare_args))
            mn = self.to_nodes(mg, m, extra=lambda op: [(br, 0)])
            return En, br, mn
        E29, br29, mg29 = EC(29, M29, self.part2, None, None, [], ([], M30))
        cpy = [Nd(f"v_mov_b32 v{mcopy[qt]}, v{Mb(qt)}", "v", deps=[br29]) for qt in range(4)]
        q31 = []
        for p in range(8):
            for jj, qt, e in walk(2, p):
                j = 2 * p + jj; f = o31[j]
                deps = [(br29, 0)] if p == 0 else ([(n, 0) for n in cpy] if p == 4 else [])
                m = self.mf(fr[16 + j], self.qk_t(M31, f, qt, 16 + j, first=(p & 3) == 0 and e == 0), deps=deps, cap=o.cap31)
                mfs.append(m); q31.append(m); lastm[(31, qt, dk(f)[1])] = m
        bar.deps = [(mfs[o.tail_bar], 0), (br29, 0)]
        E30, br30, mg30 = EC(30, M30, None, br29, mg29, [(n, 0) for n in cpy], ([M29], M31, mcopy))
        E31, br31, mg31 = EC(31, M31, None, br30, mg30, [], ([M29, M30], None, mcopy))
        ln, t0, t1, t2 = 108, 109, 110, 111
        vW0, vR, vQ = 123, 124, 125
        ad = [f"v_mbcnt_lo_u32_b32 v{ln}, -1, 0", f"v_mbcnt_hi_u32_b32 v{ln}, -1, v{ln}",
              f"v_and_b32 v{t0}, 15, v{ln}", f"v_lshlrev_b32 v{t0}, 7, v{t0}",
              f"v_bfe_u32 v{t1}, v{ln}, 4, 1", f"v_lshl_add_u32 v{t0}, v{t1}, 3, v{t0}", f"v_add_u32 v{t0}, s{sWb}, v{t0}",
              f"v_lshrrev_b32 v{t1}, 5, v{ln}", f"v_and_b32 v{t2}, 7, v{ln}", f"v_xor_b32 v{t1}, v{t1}, v{t2}",
              f"v_lshl_add_u32 v{vW0}, v{t1}, 4, v{t0}",
              f"v_lshrrev_b32 v{t0}, 3, v{ln}", f"v_xor_b32 v{t1}, v{t0}, v{t2}", f"v_lshlrev_b32 v{t1}, 4, v{t1}",
              f"v_lshl_add_u32 v{vR}, v{t0}, 7, v{t1}", f"v_add_u32 v{vR}, s{sWb}, v{vR}",
              f"v_lshlrev_b32 v{t2}, 4, v{t2}", f"v_lshl_add_u32 v{vQ}, v{t0}, 9, v{t2}"]
        adn = []
        for x in ad: adn.append(Nd(x, "v", deps=[adn[-1]] if adn else [br31]))
        brs = [br29, br30, br31]
        Pd = {}
        for tl, E in enumerate((E29, E30, E31)):
            for qt in range(4): Pd[(tl, qt)] = [n for n in E if n.name.startswith(f"cvt{qt}")]
        lastpv = {}
        maps = [M29, M30, M31]
        j0 = 0
        for gi, grp in enumerate(pvgroups):
            for jj, qt, e in walk(len(grp), gi):
                if True:
                    tl, dt = grp[jj]
                    j = j0 + jj
                    cap = o.cap_a if j < 8 else (o.cap_b if j < 12 else (o.cap_d if j < 15 else o.cap_c))
                    if o.pkall and j >= 8: cap = o.cap_hi if len(mfs) % o.clus == o.clus - 1 else 2
                    m = self.mf(fr[32 + j], self.pv_t(maps[tl], dt, qt, 32 + j), deps=[(n, 2) for n in Pd[(tl, qt)]] + [(brs[tl], 0)], cap=cap)
                    mfs.append(m); lastpv[(qt, dt)] = m
            j0 += len(grp)
        self.link_users(fr, 8)
        inv = [112 + 2 * qt for qt in range(4)]
        vW = [vW0, 120, 121, 122]
        small = []
        chains = []
        for qt in range(4):
            t, t2 = inv[qt], inv[qt] + 1
            ch = [Nd(f"v_mov_b32 v{t2}, v{vL[qt]}", "v", deps=[mg31[qt]])]
            ch.append(Nd(f"v_permlane16_swap_b32 v{vL[qt]}, v{t2}", "v", deps=[(ch[-1], 2)]))
            ch.append(Nd(f"v_add_f32 v{t}, v{vL[qt]}, v{t2}", "v", deps=[(ch[-1], 1)]))
            ch.append(Nd(f"v_mov_b32 v{t2}, v{t}", "v", deps=[ch[-1]]))
            ch.append(Nd(f"v_permlane32_swap_b32 v{t}, v{t2}", "v", deps=[(ch[-1], 2)]))
            ch.append(Nd(f"v_add_f32 v{t}, v{t}, v{t2}", "v", deps=[(ch[-1], 1)]))
            ch.append(Nd(f"v_rcp_f32 v{t}, v{t}", "t", deps=[ch[-1]]))
            chains.append(ch)
        small = [n for tup in zip(*chains) for n in tup]
        wn = [Nd(f"v_xor_b32 v{vW[k]}, {32*k}, v{vW0}", "v", deps=[adn[-1]]) for k in range(1, 4)]
        conv = []
        opol = [pol(x) for x in (o.opol.split(",") * 4)[:4]]
        wr_prev = {}; st_prev = {}; rd_prev = {}
        lastds = None
        for i, (cb, qt) in enumerate([(cb, qt) for cb in range(4) for qt in range(4)]):
            b = 16 * (i % 4)
            pk = cb == 3 or o.pkall
            a0 = Ob(qt, 4 * cb)
            war = [(wr_prev[i % 4], 1)] if i % 4 in wr_prev else [(br31, 0)]
            rdn = [Nd(f"v_accvgpr_read_b32 v{b+k}, a{a0+k}", "v", deps=[(lastpv[(qt, 4 * cb + (k >> 2))], 8)] + war) for k in range(16)]
            iv = (chains[qt][-1], 1)
            if pk: mu = [Nd(f"v_pk_mul_f32 v[{b+2*k}:{b+2*k+1}], v[{b+2*k}:{b+2*k+1}], v[{inv[qt]}:{inv[qt]+1}] op_sel_hi:[1,0]", "v", deps=[rdn[2 * k], rdn[2 * k + 1], iv]) for k in range(8)]
            else: mu = [Nd(f"v_mul_f32 v{b+k}, v{b+k}, v{inv[qt]}", "v", deps=[rdn[k], iv]) for k in range(16)]
            if pk:
                for n in mu: n.pk = True
            cv = []
            for k in range(8):
                deps = ([mu[k]] if pk else [mu[2 * k], mu[2 * k + 1]]) + ([cv[-1]] if cv else [])
                cv.append(Nd(f"v_cvt_pk_bf16_f32 v{b+k}, v{b+2*k}, v{b+2*k+1}", "v", deps=deps))
            rb = qt >> 1
            wr = []
            for k in range(4):
                deps = [cv[2 * k + 1], adn[-1]] + ([wn[k - 1]] if k else []) + ([rd_prev[rb]] if rb in rd_prev else [(bar, 0)]) + ([wr[-1]] if wr else [])
                wr.append(Nd(f"ds_write_b64 v{vW[k]}, v[{b+2*k}:{b+2*k+1}] offset:{rb*TILE + (qt&1)*2048}", "ds", deps=deps, tag=("w", i, k)))
            for n in wr: n.cost = o.wcost
            wr_prev[i % 4] = wr[-1]
            conv += wr + rdn + mu + cv
            if qt & 1:
                rbuf = 64 + 16 * ((i >> 1) % 3)
                u2 = (i >> 1) % 3
                rds = []
                for k in range(4):
                    deps = [wr[-1], prev_wr] + ([(st_prev[u2], 2)] if u2 in st_prev else []) + ([rds[-1]] if rds else [])
                    rds.append(Nd(f"ds_read_b128 v[{rbuf+4*k}:{rbuf+4*k+3}], v{vR} offset:{rb*TILE + k*1024}", "ds", deps=deps, tag=("r", i, k)))
                rd_prev[rb] = rds[-1]
                sts = []
                for k in range(4):
                    kk = 4 * rb + k
                    so = f"s{sRow}" if kk == 0 else f"s{sRG[kk]}"
                    sts.append(Nd(f"buffer_store_dwordx4 v[{rbuf+4*k}:{rbuf+4*k+3}], v{vQ}, {srd(sO)}, {so} offen offset:{128*cb}{opol[cb]}", "vm",
                                  deps=[rds[k]] + ([sts[-1]] if sts else []), soft=[(rds[k], o.st_dist)], need=("r", i, k)))
                st_prev[u2] = sts[-1]
                conv = self._hoist(conv, rds + sts)
            prev_wr = wr[-1]
        ds = [n for f in fr for n in f["nodes"]]
        pool = ds + [br29, bar] + touch + E29 + mg29 + cpy + [br30] + E30 + mg30 + [br31] + E31 + mg31 + small + adn + wn + conv
        S.run(mfs, pool, dsmax=o.tail_dsmax)
        T = S.out
        if o.ab_drop:
            dr = tuple(o.ab_drop.split(","))
            for it in T:
                if it.t and it.t.startswith(dr): it.t = "s_nop 0" if o.ab_nop else None; it.k = "ds" if it.k == "ds" else "o"
        a2 = lambda t, k="o": T.append(I(t, k))
        if o.stamps:
            i1 = max(i for i, it in enumerate(T) if it.k == "m")
            T[i1 + 1:i1 + 1] = self.stamp(7)
            i0 = min(i for i, it in enumerate(T) if it.t and it.t.startswith("buffer_store"))
            T[i0:i0] = self.stamp(6)
            a2("s_waitcnt vmcnt(0)")
            T += self.stamp(8)
            a2("s_memrealtime s[58:59]", "sm")
            a2("s_getreg_b32 s60, hwreg(HW_REG_XCC_ID)")
            a2("s_getreg_b32 s61, hwreg(HW_REG_HW_ID)")
            a2("s_waitcnt lgkmcnt(0)")
            a2(f"s_mov_b32 s64, s36"); a2("s_mov_b32 s65, s37"); a2(f"s_mov_b32 s66, 0x1000000"); a2("s_mov_b32 s67, 0x20000")
            a2(f"s_lshl_b32 s62, s2, 10")
            a2(f"s_mul_hi_u32 s63, s{sWb}, {(2**32)//(4*PIECE)+1}")
            a2(f"s_lshl_b32 s63, s63, 8")
            a2(f"s_add_u32 s62, s62, s63")
            a2(f"v_mov_b32 v1, 0")
            for k in range(24):
                a2(f"v_mov_b32 v0, s{38+k}")
                a2(f"buffer_store_dword v0, v1, s[64:67], s62 offen offset:{4*k}")
            for k in range(18):
                a2(f"v_mov_b32 v0, s{68+k}")
                a2(f"buffer_store_dword v0, v1, s[64:67], s62 offen offset:{128+4*k}")
        return T

    @staticmethod
    def _hoist(conv, hot):
        k = 0
        while k < len(conv) and getattr(conv[k], "hot", False): k += 1
        for n in hot: n.hot = True
        return conv[:k] + hot + conv[k:]

    def build(self):
        o = self.o
        pro = self.prologue()
        order = [1, 2, 3, 0]
        loop = [I("L_loop:", "l")] + sum((self.body(u, 0) for u in order), [])
        tl = self.stamp(5) + self.tail()
        trace = pro + loop + loop + tl
        self.resolve_waits(trace)
        lines = [it.t for it in trace if it.t and not it.skip and it.k != "l"]
        errs = hz.check(lines)
        for r in self.rares: errs += hz.check([it.t for it in r if it.k != "l"])
        for e in sorted(set(errs))[:20]: print(e, file=sys.stderr)
        assert not errs or o.ab_drop, "hazards"
        if o.verbose:
            cnt = lambda l: sum(1 for it in l if it.t and not it.skip and it.k != "l")
            print("instr: prologue", cnt(pro), "loop", cnt(loop), "tail", cnt(tl), file=sys.stderr)
        return pro + [I(".p2align 6" if o.align else "", "l")] + loop + tl + [I("L_end:", "l"), I("s_endpgm")] + sum(self.rares, [])

    def resolve_waits(self, trace):
        ds = []
        for it in trace:
            if it.k == "ds": ds.append(it.tag)
            elif it.k == "wl":
                idx = max(j for j, t in enumerate(ds) if t == it.need)
                n = min(14, len(ds) - 1 - idx)
                it.n = n if it.n is None else min(it.n, n)
        needed = set()
        ds = []; done = 0
        for it in trace:
            if it.k == "ds": ds.append(it.tag)
            elif it.k == "w0": done = len(ds)
            elif it.k == "wl":
                idx = max(j for j, t in enumerate(ds) if t == it.need)
                if idx >= done: needed.add(id(it))
                done = max(done, len(ds) - it.n) if id(it) in needed else done
        for it in trace:
            if it.k == "wl":
                it.skip = id(it) not in needed
                it.t = f"s_waitcnt lgkmcnt({it.n})"

    def text(self):
        body = self.build()
        hdr = open("standalone__mha_softmax__near_ridge.s.ref").read().split("\n")
        top = []
        for ln in hdr:
            if ln.startswith("; @launch"): break
            top.append(ln)
        out = top + [f"; @launch grid=(256,1,1) block=(256,1,1) lds={LDS_BYTES}",
                     "; generated by my own generator script (flash-attention forward, 4 waves x 64 q rows, 32-key tiles)",
                     '.amdgcn_target "amdgcn-amd-amdhsa--gfx950"', ".text", f".globl {KNAME}"] + ([".p2align 12"] if self.o.al12 else []) + [".p2align 8",
                     f".type {KNAME},@function", f"{KNAME}:"]
        for it in body:
            if it.skip or not it.t: continue
            out.append(("" if it.k == "l" else "    ") + it.t)
        out += ['.section .rodata,"a"', ".p2align 6", f".amdhsa_kernel {KNAME}",
                "  .amdhsa_next_free_vgpr 512", "  .amdhsa_next_free_sgpr 100", "  .amdhsa_accum_offset 256",
                "  .amdhsa_group_segment_fixed_size 0", "  .amdhsa_kernarg_size 48", "  .amdhsa_user_sgpr_count 2",
                "  .amdhsa_user_sgpr_kernarg_segment_ptr 1", "  .amdhsa_system_sgpr_workgroup_id_x 1",
                ".end_amdhsa_kernel", ""]
        return "\n".join(out)

def parse(argv):
    p = argparse.ArgumentParser()
    p.add_argument("-o", default="standalone__mha_softmax__near_ridge.s")
    for f in ("stamps", "verbose", "dbg", "no_bar", "no_dma", "no_br"):
        p.add_argument("--" + f, action="store_true")
    for name, d in dict(align=1, look=24, bar_gap=113, bar_quiet=1, kstep=2, vm_wait=12, exp_delay=0, exp_bit=3, pkall=0, wcost=1, cap_hi=10, clus=2, deep=0, cb0quad=1, cap_d=5, otouch=0, snake=1, pvchain=1, pace=0, al12=0, late_v1=0, br_delay=1, dma0=2, dmastep=4, sdelay=28, backlog=5,
                        codepf=1, pdepth=7, g0_dma0=2, g0_dmastep=6, pro_dma=2, pro_bar=10, pro_barm=43, pro_cap=3, pro_cap3=12, tail_bar=30, cap31=2, cap_a=7, cap_b=3, cap_c=5, st_dist=24, tail_dsmax=1).items():
        p.add_argument("--" + name, type=int, default=d)
    p.add_argument("--thr", type=float, default=1024.0)
    p.add_argument("--ab_drop", default="")
    p.add_argument("--ab_nop", type=int, default=0)
    p.add_argument("--kvpol", default="nt")
    p.add_argument("--qpol", default="nt")
    p.add_argument("--opol", default="nt")
    return p.parse_args(argv)

if __name__ == "__main__":
    o = parse(sys.argv[1:])
    open(o.o, "w").write(Gen(o).text())
```

```python
import sys, struct, argparse
sys.path.insert(0, "dev")
import hz

KNAME = "standalone__mha_softmax__near_ridge_kernel"
MF = "v_mfma_f32_16x16x32_bf16"

def f32bits(x): return struct.unpack("<I", struct.pack("<f", x))[0]
def pol(x): return (" " + x.replace("+", " ")) if x else ""
def srd(s): return f"s[{s}:{s+3}]"

class I:
    __slots__ = ("t", "k", "tag", "need", "n", "skip")
    def __init__(self, t, k="o", tag=None, need=None):
        self.t = t; self.k = k; self.tag = tag; self.need = need; self.n = None; self.skip = False

def Qr(qt, d8): b = (qt * 8 + d8) * 4; return f"v[{b}:{b+3}]"
vT = 240
def X(m, qt, k):
    if m < 2: return 128 + m * 32 + qt * 8 + k
    if m == 4: return 128 + qt * 8 + k if k < 4 else 160 + qt * 8 + k
    if m == 5: return 128 + qt * 8 + 4 + k if k < 4 else 160 + qt * 8 + k
    if m >= 10: return X(m - 10, qt, k) if k < 4 else vC + k - 4
    return 128 + 32 + qt * 8 + 4 + k if k < 4 else vT + 4 * qt + k - 4
def Sr(m, qt, kt): b = X(m, qt, 4 * kt); return f"v[{b}:{b+3}]"
def Pr(m, qt): return Sr(m, qt, 0)
NF = 8
def Fx(f): return f if isinstance(f, tuple) else ("v", 192 + (f % NF) * 4)
def Fr(f): c, b = Fx(f); return f"{c}[{b}:{b+3}]"
def Ob(qt, dt): return (qt * 16 + dt) * 4
def Or(qt, dt): b = Ob(qt, dt); return f"a[{b}:{b+3}]"
vK, vVe, vVo, vD = 224, 225, 226, 227
vL = [228, 229, 230, 231]
vLt = [232, 233, 234, 235]
vC = 236
vS = [237, 238, 239]
def Mb(qt): return vT + 4 * qt
def Mr(qt): b = Mb(qt); return f"v[{b}:{b+3}]"
sQ, sK, sV, sO = 4, 8, 12, 16
sC, sKoff, sVoff, sWb, sCnt, sNC, sThr, sRow = 20, 21, 22, 23, 24, 25, 26, 27
sQoff, sMask = 86, 95
sRG = [None, 88, 89, 90, 91, 92, 93, 94]
PIECE = 1088
TILE = 16 * PIECE
R = 4
VBASE = R * TILE
LDS_BYTES = (2 * R + 1) * TILE
NG = 256
def dk(f): return (f & 7, f >> 3)
def walk(n, par):
    for qi in range(4):
        for e in range(n):
            yield (e if qi % 2 == 0 else n - 1 - e, qi if par % 2 == 0 else 3 - qi, e)

class Op:
    def __init__(self, name, fn, cost=1, deps=(), t0=0):
        self.name = name; self.fn = fn; self.cost = cost; self.deps = list(deps); self.t0 = t0; self.t = None

class Nd:
    def __init__(self, t, k, deps=(), tag=None, need=None, cap=None, soft=()):
        self.t = t if isinstance(t, list) else [t]
        self.k = k; self.deps = [d if isinstance(d, tuple) else (d, 0) for d in deps]
        self.tag = tag; self.need = need; self.idx = None; self.cap = cap; self.waited = False; self.soft = list(soft); self.low = False; self.pk = False
        self.cost = {"t": 2, "vm": 2, "s": 0}.get(k, 1)

class Sched:
    def __init__(self):
        self.out = []; self.n = 0; self.issued = set()
    def ok(self, nd, relax=False):
        if not relax and any(d.idx is None or self.n - d.idx - 1 < dist for d, dist in nd.soft): return False
        return all(d.idx is not None and self.n - d.idx - 1 >= dist for d, dist in nd.deps)
    def wait(self, nd):
        if nd.need is not None and not nd.waited:
            self.out.append(I(None, "wl", need=nd.need)); nd.waited = True
    def emit(self, nd):
        self.wait(nd)
        for t in nd.t:
            if isinstance(t, I):
                self.out.append(t)
                if t.k != "l": self.n += 1
            else:
                self.out.append(I(t, nd.k, tag=nd.tag)); self.n += 1
        nd.idx = self.n - 1
    def raw(self, lst):
        for t in lst:
            t = t if isinstance(t, I) else I(t)
            self.out.append(t)
            if t.k not in ("l", "wl"): self.n += 1
    def pick(self, pool, free, dsmax):
        got = []; nds = 0; nsc = 0
        for nd in list(pool):
            if not self.ok(nd): continue
            if nd.k == "s":
                if nsc: continue
                nsc += 1
            else:
                if nd.cost > free: continue
                if nd.k == "ds":
                    if nds >= dsmax: continue
                    nds += 1
                free -= nd.cost
            got.append(nd); pool.remove(nd)
            if free <= 0 and nsc: break
        order = {"s": 0, "ds": 1, "vm": 2}
        got.sort(key=lambda nd: order.get(nd.k, 3))
        return got
    def drain_one(self, pool, relax=False):
        for nd in pool:
            if self.ok(nd, relax):
                pool.remove(nd); self.emit(nd); return True
        return False
    def run(self, mfs, pool, cap=2, dsmax=1, keep=()):
        for i, m in enumerate(mfs):
            guard = 0
            while not self.ok(m):
                if not self.drain_one(pool):
                    self.raw(["s_nop 0"]); guard += 1
                    assert guard < 40, ("stuck", m.t, [d.t for d, _ in m.deps if d.idx is None])
            self.emit(m)
            c = m.cap or cap
            left = c
            pkok = lambda: c - left >= 5
            nx = mfs[i + 1] if i + 1 < len(mfs) else None
            if nx is not None and nx.need is not None and not nx.waited and all(d.idx is not None for d, _ in nx.deps if d.k == "ds"):
                self.wait(nx)
            def take(kinds, maxcost, low=True):
                for nd in pool:
                    if nd.k in kinds and nd.cost <= maxcost and (low or not nd.low) and self.ok(nd) and (not nd.pk or pkok()):
                        pool.remove(nd); self.emit(nd); return nd
                return None
            take(("s",), 0)
            nds = 0
            for lowok in (False, True):
                while nds < dsmax and left > 0:
                    nd = take(("ds",), left, lowok)
                    if not nd: break
                    left -= nd.cost; nds += 1
                if not lowok and left >= 2 and take(("vm",), left): left -= 2
            while left > 0:
                nd = None
                if pkok():
                    for x in pool:
                        if x.pk and self.ok(x):
                            pool.remove(x); self.emit(x); nd = x; break
                if not nd and left >= 2:
                    rdy = []
                    for x in pool:
                        if x.k in ("v", "t") and self.ok(x):
                            rdy.append(x)
                            if x.k == "t" or len(rdy) > 4: break
                    if rdy and rdy[-1].k == "t": nd = take(("t",), left)
                if not nd: nd = take(("v", "t"), left)
                if not nd: break
                left -= nd.cost
        guard = 0
        while any(nd not in keep for nd in pool):
            if not self.drain_one(pool) and not self.drain_one(pool, True):
                self.raw(["s_nop 0"]); guard += 1
                assert guard < 40, ("stuck", [nd.t for nd in pool[:3]])
            else: guard = 0

class Gen:
    def __init__(self, o):
        self.o = o
        self.rares = []
        self.plan()

    def kread_t(self, slot, f, buf):
        d8, kt = dk(f)
        return f"ds_read_b128 {Fr(buf)}, v{vK} offset:{slot*TILE + kt*8*PIECE + 64*d8}"
    def vread_t(self, slot, dt, sec, buf):
        c, b = Fx(buf); b += 2 * sec
        return f"ds_read_b64_tr_b16 {c}[{b}:{b+1}], v{vVo if dt & 1 else vVe} offset:{slot*TILE + sec*8*PIECE + 64*(dt>>1)}"
    def fread(self, u, f, part=None):
        if f < 16: return [I(self.kread_t((u + 1) % R, f, f), "ds", tag=(u, f))]
        return [I(self.vread_t(u % R, f - 16, sec, f), "ds", tag=(u, f)) for sec in range(2) if part is None or part == sec]

    def dma_m0(self, which, slot, j):
        base = slot * TILE + (VBASE if which == "V" else 0) + (PIECE - 1024) * j
        return I(f"s_add_u32 m0, s{sWb}, {base}", "s")
    def dma_ld(self, which, j):
        s, so, p = {"K": (sK, sKoff, self.o.kvpol), "V": (sV, sVoff, self.o.kvpol), "Q": (sQ, sQoff, self.o.qpol)}[which]
        return I(f"buffer_load_dwordx4 v{vD}, {srd(s)}, s{so} offen offset:{j*1024}{pol(p)} lds", "vm")
    def dma_adv(self, which):
        so = {"K": sKoff, "V": sVoff, "Q": sQoff}[which]
        return I(f"s_addk_i32 s{so}, {4096 if which == 'Q' else 16384}", "s")
    def dma_tile(self, which, slot):
        out = [self.dma_m0(which, slot, 0)]
        for j in range(4):
            out += [I("s_nop 0"), self.dma_ld(which, j)]
            if j < 3: out.append(I(f"s_addk_i32 m0, {PIECE-1024}", "s"))
        out.append(self.dma_adv(which))
        return out
    def dma_nodes(self, which, slot, deps, prev):
        out = []
        for j in range(4):
            m = Nd(self.dma_m0(which, slot, j).t, "s", deps=list(deps) + ([prev] if prev else []))
            l = Nd(self.dma_ld(which, j).t, "vm", deps=[(m, 1)])
            out += [m, l]; prev = l
        adv = Nd(self.dma_adv(which).t, "s", deps=[prev]); out.append(adv)
        return out, adv

    def qk_t(self, m, f, qt, buf, zero=False, first=None):
        d8, kt = dk(f)
        if first is None: first = d8 == 0
        c = ("0" if zero else Mr(qt)) if first else Sr(m, qt, kt)
        return f"{MF} {Sr(m,qt,kt)}, {Fr(buf)}, {Qr(qt,d8)}, {c}"
    def pv_t(self, m, dt, qt, buf, zero=False):
        return f"{MF} {Or(qt,dt)}, {Fr(buf)}, {Pr(m,qt)}, {'0' if zero else Or(qt,dt)}"

    def E_ops(self, qts=range(4), acc=None):
        o = self.o
        acc = acc or vLt
        ex, ad, cv, Eexp, Epl = {}, {}, {}, [], []
        for qt in qts:
            for k in range(8):
                ex[(qt, k)] = Op(f"exp{qt}{k}", (lambda m, qt=qt, k=k: f"v_exp_f32 v{X(m,qt,k)}, v{X(m,qt,k)}"), cost=2, t0=(25 if k < 4 else 57) + 2 * (3 - qt) + 6)
                ex[(qt, k)].src = (qt, k >> 2)
                Eexp.append(ex[(qt, k)])
            ad[(qt, 1)] = Op(f"add{qt}1", (lambda m, qt=qt: f"v_add_f32 v{acc[qt]}, v{X(m,qt,0)}, v{X(m,qt,1)}"), deps=[ex[(qt, 0)], ex[(qt, 1)]])
            ad[(qt, 0)] = ad[(qt, 1)]
            for k in range(2, 8):
                ad[(qt, k)] = Op(f"add{qt}{k}", (lambda m, qt=qt, k=k: f"v_add_f32 v{acc[qt]}, v{acc[qt]}, v{X(m,qt,k)}"), deps=[ex[(qt, k)], ad[(qt, k - 1)]])
            for j in range(4):
                deps = [ex[(qt, 2 * j)], ex[(qt, 2 * j + 1)], ad[(qt, j)]] + ([cv[(qt, j >> 1)]] if j else [])
                cv[(qt, j)] = Op(f"cvt{qt}{j}", (lambda m, qt=qt, j=j: f"v_cvt_pk_bf16_f32 v{X(m,qt,j)}, v{X(m,qt,2*j)}, v{X(m,qt,2*j+1)}"), deps=deps)
            for k in range(1, 8):
                Epl.append(ad[(qt, k)])
                if k & 1: Epl.append(cv[(qt, k >> 1)])
        return Eexp, Epl
    def C_ops(self, Epl):
        la = [op for op in Epl if op.name.startswith("add") and op.name.endswith("7")]
        c1 = Op("chk1", (lambda m: f"v_max3_f32 v{vC}, v{vLt[0]}, v{vLt[1]}, v{vLt[2]}"), deps=la[:3])
        c2 = Op("chk2", (lambda m: f"v_max_f32 v{vC}, v{vC}, v{vLt[3]}"), deps=[c1, la[3]])
        cmp = Op("cmp", (lambda m: f"v_cmp_lt_f32 vcc, s{sThr}, v{vC}"), deps=[c2])
        mg = [Op(f"mrg{qt}", (lambda m, qt=qt: f"v_add_f32 v{vL[qt]}, v{vL[qt]}, v{vLt[qt]}")) for qt in range(4)]
        return [c1, c2, cmp], mg
    def to_nodes(self, ops, m, extra=None, only=None):
        nd = {}
        for op in ops:
            if only is not None and op.name not in only: continue
            nd[op] = Nd(op.fn(m), "t" if op.cost == 2 else "v"); nd[op].name = op.name
        for op, n in nd.items():
            for d in op.deps:
                if d in nd: n.deps.append((nd[d], 1 if d.cost == 2 else 0))
            if extra: n.deps += extra(op)
        return list(nd.values())
    @staticmethod
    def E_order(Eexp, Epl):
        return Epl + Eexp

    def mf_at(self, g):
        p = g >> 3
        j, qt, e = list(walk(2, p + (1 if 8 <= p < 16 else 0)))[g & 7]
        return 2 * p + j, qt, e

    def plan(self):
        o = self.o
        used = [0] * NG
        self.ds_at = [[] for _ in range(NG)]
        self.barE, self.barM, self.barV = o.bar_gap + 128, 64 - o.look - 2, 128 - o.look - 2
        g = self.barE + 1
        self.npre = 0
        for f in range(64):
            want = 4 * f - o.look
            if want < 0:
                pos = max(want + NG, g)
                assert pos < NG - 1
                self.ds_at[pos].append((f, None, True)); used[pos] += 1
                g = pos + o.kstep; self.npre = f + 1
                continue
            pos = want
            for p in ([None] if f < 32 else [0, 1]):
                while used[pos] > 0: pos += 1
                assert pos < self.barE - 6
                self.ds_at[pos].append((f, p, False)); used[pos] += 1
        self.dma_at = {}
        pos = o.dma0
        for k in range(16):
            if k == 4: pos = o.dma1
            while used[pos] > 0 or pos % 8 == 0: pos += 1
            assert (0 < pos < self.barM - 3) if k < 4 else (self.barV + 1 < pos < self.barE - 3)
            self.dma_at[pos] = k
            used[pos] = 2
            pos += o.dmastep if k < 4 else o.dmastep1
        used[NG - 1] += 1
        used[self.barE] = 2
        done, start = {}, {}
        for g in range(128):
            f, qt, e = self.mf_at(g)
            done[(f >> 4, qt, dk(f & 15)[1])] = g
            start.setdefault((f >> 4, qt, dk(f & 15)[1]), g)
        scal = set()
        for g, k in self.dma_at.items():
            scal.add(g - 1)
            if k % 4 == 3: scal.add(g + 2)
        for b in (self.barE, self.barM, self.barV): scal |= {b, b - 1}
        busy = lambda g: g % 8 == 7 or (g % NG) in scal
        self.va_at = [[[] for _ in range(2 * NG)] for _ in range(2)]
        self.t_br = [None, None]
        rdy = lambda op, t: op.t0 <= t and all(d.t is not None and d.t < t for d in op.deps)
        tnext = 0
        for w in range(2):
            Eexp, Epl = self.E_ops()
            chk, mg = self.C_ops(Epl)
            for op in Eexp: op.t0 = max(done[(w,) + op.src] + o.sgap, tnext, o.e2start if w else 0)
            if w == 0:
                Eexp.sort(key=lambda op: op.t0)
                hi = lambda op: int(op.name[4]) >= (4 if op.name.startswith("add") else 2)
                Epl.sort(key=lambda op: (hi(op), done[(0, int(op.name[3]), 1)]))
            Epl = Epl + chk
            allops = Eexp + Epl
            def put(op, t): op.t = t; self.va_at[w][t].append(op); used[t % NG] += op.cost
            t = min(op.t0 for op in Eexp)
            while Eexp or Epl:
                free = 2 - used[t % NG]
                backlog = sum(1 for op in Epl if all(d.t is not None for d in op.deps if d.cost == 2) and op not in chk)
                re = [op for op in Eexp if rdy(op, t)]
                if free == 2 and re and backlog < o.backlog:
                    Eexp.remove(re[0]); put(re[0], t)
                else:
                    for op in list(Epl):
                        if free == 0: break
                        if rdy(op, t): Epl.remove(op); put(op, t); free -= 1
                    if free == 2 and re: Eexp.remove(re[0]); put(re[0], t)
                t += 1
            tb = t + o.br_delay
            if w: tb = max(tb, NG + 1)
            while busy(tb): tb += 1
            self.t_br[w] = tb
            t = tb
            while mg:
                if used[t % NG] < 2: put(mg.pop(0), t)
                else: t += 1
            tnext = t + 1
            for qt in range(4):
                last = max(op.t for op in allops if op.name[:4] in (f"add{qt}", f"cvt{qt}"))
                lim = start[(1, qt, 1)] if w == 0 else NG + start[(0, qt, 1)]
                assert last < lim, ("high quad released too late", w, qt, last, lim)
            if w == 0: assert tb < 126
            else: assert tb - NG < self.barM - 1 and tnext - NG <= min(op.t for tt in self.va_at[0] for op in tt if op.name.startswith("add")), (tb, tnext)
        assert self.t_br[1] - NG <= min(op.t for tt in self.va_at[0] for op in tt)
        self.part1 = {op.name for t in range(0, NG) for op in self.va_at[1][t]}
        self.part2 = {op.name for t in range(NG, 2 * NG) for op in self.va_at[1][t]}
        if o.verbose:
            print("br", self.t_br, "npre", self.npre, "part2", len(self.part2), file=sys.stderr)
            for h in range(2): print("".join(map(str, used[128 * h:128 * h + 128])), file=sys.stderr)

    def cread(self, c, f, part=None):
        j = 1 + 2 * c
        if f < 32: return [I(self.kread_t((j + 1 + (f >> 4)) % R, f & 15, f), "ds", tag=(c, f))]
        return [I(self.vread_t((j + (f & 1)) % R, (f - 32) >> 1, sec, f), "ds", tag=(c, f)) for sec in range(2) if part is None or part == sec]

    def body(self, c):
        o = self.o
        j = 1 + 2 * c
        mP, m1, m2 = (1, 4, 5) if c == 0 else (5, 4, 1)
        desc = lambda k: (("K", (j + 3) % R), ("K", j % R), ("V", (j + 2) % R), ("V", (j + 3) % R))[k >> 2] + (k & 3,)
        out = []
        for g in range(NG):
            f, qt, e = self.mf_at(g)
            if f < 32: t = self.qk_t(m1 if f < 16 else m2, f & 15, qt, f, first=((g >> 3) & 3) == 0 and e == 0)
            else: t = self.pv_t(m1 if f & 1 else mP, (f - 32) >> 1, qt, f)
            out.append(I(t, "m"))
            sc, ds, vm, va = [], [], [], []
            if g % 8 == 7:
                f1 = (g + 1) // 4 + 1
                sc.append(I(None, "wl", need=(c, f1) if f1 < 64 else (1 - c, 1)))
            if g == self.barE - 1: sc.append(I("s_waitcnt vmcnt(12) lgkmcnt(0)", "w0"))
            if g == self.barM - 1: sc.append(I("s_waitcnt vmcnt(12)"))
            if g == self.barV - 1: sc.append(I("s_waitcnt vmcnt(4)"))
            if g in (self.barE, self.barM, self.barV): sc.append(I("s_barrier"))
            if g + 1 in self.dma_at: sc.append(self.dma_m0(*desc(self.dma_at[g + 1])))
            if g in self.dma_at:
                wh, _, jj = desc(self.dma_at[g]); vm.append(self.dma_ld(wh, jj))
            if g - 2 in self.dma_at and self.dma_at[g - 2] % 4 == 3: sc.append(self.dma_adv(desc(self.dma_at[g - 2])[0]))
            for (ff, p, nx) in self.ds_at[g]: ds += self.cread(1 - c if nx else c, ff, p)
            if g == self.t_br[1] - NG:
                sc += [I(f"s_cbranch_vccnz L_rare{2*c}", "s"), I(f"L_back{2*c}:", "l")]
                self.rares.append(self.rare_q(str(2 * c), mP, j % R, [], m1))
            if g == self.t_br[0]:
                sc += [I(f"s_cbranch_vccnz L_rare{2*c+1}", "s"), I(f"L_back{2*c+1}:", "l")]
                self.rares.append(self.rare_q(str(2 * c + 1), m1, (j + 1) % R, [mP], m2))
            for op in self.va_at[1][g + NG]: va.append(I(op.fn(mP), "v"))
            for op in self.va_at[0][g]: va.append(I(op.fn(m1), "v"))
            for op in self.va_at[1][g]: va.append(I(op.fn(m2), "v"))
            if c == 1 and g == NG - 3: sc.append(I(f"s_sub_u32 s{sCnt}, s{sCnt}, 1", "s"))
            if c == 1 and g == NG - 2: sc.append(I(f"s_cmp_lg_u32 s{sCnt}, 0", "s"))
            out += sc + ds + vm + va
        if c == 1: out.append(I("s_cbranch_scc1 L_loop", "s"))
        return out

    def rare_q(self, name, m, kslot, pend, prog):
        out = [I(f"L_rare{name}:", "l")]
        a = lambda t: out.append(I(t))
        fb = ("v", vLt[0])
        m += 10
        t, t2, f = vLt[0], vLt[1], vLt[2]
        a("s_nop 7")
        for qt in range(4):
            for fr in range(16):
                a(self.kread_t(kslot, fr, fb))
                a("s_waitcnt lgkmcnt(0)")
                a(self.qk_t(m, fr, qt, fb))
                a("s_nop 7")
            a("s_nop 3")
            x = lambda k: X(m, qt, k)
            a(f"v_max3_f32 v{t}, v{x(0)}, v{x(1)}, v{x(2)}")
            a(f"v_max3_f32 v{t}, v{t}, v{x(3)}, v{x(4)}")
            a(f"v_max3_f32 v{t}, v{t}, v{x(5)}, v{x(6)}")
            a(f"v_max_f32 v{t}, v{t}, v{x(7)}")
            for sw in ("v_permlane16_swap_b32", "v_permlane32_swap_b32"):
                a(f"v_mov_b32 v{t2}, v{t}"); a("s_nop 1"); a(f"{sw} v{t}, v{t2}"); a("s_nop 1"); a(f"v_max_f32 v{t}, v{t}, v{t2}")
            a(f"v_ceil_f32 v{t}, v{t}")
            a(f"v_max_f32 v{t}, 0, v{t}")
            for k in range(4): a(f"v_sub_f32 v{Mb(qt)+k}, v{Mb(qt)+k}, v{t}")
            for k in range(8): a(f"v_sub_f32 v{x(k)}, v{x(k)}, v{t}")
            for k in range(8): a(f"v_sub_f32 v{X(prog,qt,k)}, v{X(prog,qt,k)}, v{t}")
            a(f"v_min_f32 v{t2}, 0x43480000, v{t}")
            a(f"v_cvt_i32_f32 v{t2}, v{t2}")
            a(f"v_sub_u32 v{t2}, 0, v{t2}")
            a(f"v_ldexp_f32 v{f}, 1.0, v{t2}")
            a(f"v_mul_f32 v{vL[qt]}, v{vL[qt]}, v{f}")
            for pm in pend:
                for j in range(4):
                    p = X(pm, qt, j)
                    a(f"v_lshlrev_b32 v{t}, 16, v{p}")
                    a(f"v_and_b32 v{t2}, 0xffff0000, v{p}")
                    a(f"v_mul_f32 v{t}, v{t}, v{f}")
                    a(f"v_mul_f32 v{t2}, v{t2}, v{f}")
                    a(f"v_cvt_pk_bf16_f32 v{p}, v{t}, v{t2}")
            for a0 in range(qt * 64, qt * 64 + 64, 2):
                a(f"v_accvgpr_read_b32 v{t}, a{a0}"); a(f"v_accvgpr_read_b32 v{t2}, a{a0+1}")
                a(f"v_mul_f32 v{t}, v{t}, v{f}"); a(f"v_mul_f32 v{t2}, v{t2}, v{f}")
                a(f"v_accvgpr_write_b32 a{a0}, v{t}"); a(f"v_accvgpr_write_b32 a{a0+1}, v{t2}")
            for k in range(8): a(f"v_exp_f32 v{x(k)}, v{x(k)}")
            a("s_nop 0")
            for k in range(8): a(f"v_add_f32 v{vL[qt]}, v{vL[qt]}, v{x(k)}")
            for j in range(4): a(f"v_cvt_pk_bf16_f32 v{x(j)}, v{x(2*j)}, v{x(2*j+1)}")
        for qt in range(4): a(f"v_mov_b32 v{vLt[qt]}, 0")
        a("s_nop 1")
        a(f"s_branch L_back{name}")
        return out

    def rare(self, name, m, kslot, pend, prog, mcopy=None):
        out = [I(f"L_rare{name}:", "l")]
        a = lambda t: out.append(I(t))
        fb = ("v", vLt[0])
        a("s_nop 7")
        for f in range(16):
            a(self.kread_t(kslot, f, fb))
            a("s_waitcnt lgkmcnt(0)")
            for qt in range(4): a(self.qk_t(m, f, qt, fb, zero=True))
            a("s_nop 7")
        a("s_nop 7")
        t, t2, f = vC, vLt[0], vLt[1]
        for qt in range(4):
            x = lambda k: X(m, qt, k)
            mreg = mcopy[qt] if mcopy else Mb(qt)
            for k in range(8): a(f"v_add_f32 v{x(k)}, v{x(k)}, v{mreg}")
            a(f"v_max3_f32 v{t}, v{x(0)}, v{x(1)}, v{x(2)}")
            a(f"v_max3_f32 v{t}, v{t}, v{x(3)}, v{x(4)}")
            a(f"v_max3_f32 v{t}, v{t}, v{x(5)}, v{x(6)}")
            a(f"v_max_f32 v{t}, v{t}, v{x(7)}")
            for sw in ("v_permlane16_swap_b32", "v_permlane32_swap_b32"):
                a(f"v_mov_b32 v{t2}, v{t}"); a("s_nop 1"); a(f"{sw} v{t}, v{t2}"); a("s_nop 1"); a(f"v_max_f32 v{t}, v{t}, v{t2}")
            a(f"v_ceil_f32 v{t}, v{t}")
            a(f"v_max_f32 v{t}, 0, v{t}")
            if mcopy: a(f"v_sub_f32 v{mreg}, v{mreg}, v{t}")
            else:
                for k in range(4): a(f"v_sub_f32 v{mreg+k}, v{mreg+k}, v{t}")
            for k in range(8): a(f"v_sub_f32 v{x(k)}, v{x(k)}, v{t}")
            if prog is not None:
                for k in range(8): a(f"v_sub_f32 v{X(prog,qt,k)}, v{X(prog,qt,k)}, v{t}")
            a(f"v_min_f32 v{t2}, 0x43480000, v{t}")
            a(f"v_cvt_i32_f32 v{t2}, v{t2}")
            a(f"v_sub_u32 v{t2}, 0, v{t2}")
            a(f"v_ldexp_f32 v{f}, 1.0, v{t2}")
            a(f"v_mul_f32 v{vL[qt]}, v{vL[qt]}, v{f}")
            for pm in pend:
                for j in range(4):
                    p = X(pm, qt, j)
                    a(f"v_lshlrev_b32 v{t}, 16, v{p}")
                    a(f"v_and_b32 v{t2}, 0xffff0000, v{p}")
                    a(f"v_mul_f32 v{t}, v{t}, v{f}")
                    a(f"v_mul_f32 v{t2}, v{t2}, v{f}")
                    a(f"v_cvt_pk_bf16_f32 v{p}, v{t}, v{t2}")
            for a0 in range(qt * 64, qt * 64 + 64, 2):
                a(f"v_accvgpr_read_b32 v{t}, a{a0}"); a(f"v_accvgpr_read_b32 v{t2}, a{a0+1}")
                a(f"v_mul_f32 v{t}, v{t}, v{f}"); a(f"v_mul_f32 v{t2}, v{t2}, v{f}")
                a(f"v_accvgpr_write_b32 a{a0}, v{t}"); a(f"v_accvgpr_write_b32 a{a0+1}, v{t2}")
        Eexp, Epl = self.E_ops()
        for op in Eexp: a(op.fn(m))
        a("s_nop 0")
        for op in Epl:
            if op.name.startswith("add"): a(op.fn(m))
        for op in Epl:
            if op.name.startswith("cvt"): a(op.fn(m))
        a("s_nop 1")
        a(f"s_branch L_back{name}")
        return out

    def stamp(self, idx):
        if not self.o.stamps: return []
        return [I(f"s_memtime s[{40+2*idx}:{41+2*idx}]", "sm"), I(f"s_memrealtime s[{68+2*idx}:{69+2*idx}]", "sm")]

    def frag_stream(self, specs, j0, users_prev=None):
        fr = []
        for j, (kind, slot, idx, tag, deps, *bb) in enumerate(specs):
            buf = bb[0] if bb else j0 + j
            if kind == "done": nodes = []
            elif kind == "K": nodes = [Nd(self.kread_t(slot, idx, buf), "ds", deps=list(deps), tag=tag)]
            else: nodes = [Nd(self.vread_t(slot, idx, s, buf), "ds", deps=list(deps), tag=tag) for s in range(2)]
            fr.append(dict(nodes=nodes, buf=buf, tag=tag, users=[]))
        prev = None
        for f in fr:
            for n in f["nodes"]:
                if prev: n.deps.append((prev, 0))
                prev = n
        return fr
    def link_users(self, fr, depth):
        for j, f in enumerate(fr):
            if j - depth >= 0 and fr[j - depth]["users"]:
                for n in f["nodes"]: n.deps.append((fr[j - depth]["users"][-1], 0))
    def mf(self, f, text, deps=(), cap=None):
        first = not f["users"]
        m = Nd(text, "m", deps=list(deps) + [(n, 0) for n in f["nodes"]], need=f["tag"] if first else None, cap=cap)
        f["users"].append(m)
        return m

    def prologue(self):
        o = self.o
        S = Sched()
        a = lambda t, k="o", **kw: S.raw([I(t, k, **kw)])
        lane, w, t0, t1, t2, vQr = vT + 8, vT + 9, vT + 10, vT + 11, vT + 12, vT + 14
        a("s_cmpk_ge_u32 s2, 0x100")
        a("s_cbranch_scc1 L_end")
        a("s_load_dwordx8 s[28:35], s[0:1], 0", "sm")
        if o.stamps:
            a(f"s_load_dwordx2 s[36:37], s[0:1], {32 if o.dbg else 40}", "sm")
            a("s_memrealtime s[38:39]", "sm")
            S.raw(self.stamp(0))
        if o.codepf:
            a("s_getpc_b64 s[96:97]")
            a(f"v_lshlrev_b32 v{t0}, 7, v0")
            a(f"global_load_dword v{vT+15}, v{t0}, s[96:97]", "vm")
        a(f"v_lshrrev_b32 v{w}, 6, v0")
        a(f"v_and_b32 v{lane}, 63, v0")
        a(f"v_and_b32 v{t1}, 32, v0")
        a(f"v_readfirstlane_b32 s{sWb}, v{w}")
        a(f"v_lshlrev_b32 v{vD}, 4, v{lane}")
        a(f"v_xor_b32 v{vD}, v{vD}, v{t1}")
        a("s_lshr_b32 s3, s2, 4")
        a("s_and_b32 s87, s2, 7")
        a("s_lshl3_add_u32 s3, s3, s87")
        a("s_and_b32 s87, s2, 8")
        a(f"s_lshl1_add_u32 s{sRow}, s{sWb}, s87")
        a(f"s_lshl_b32 s{sQoff}, s{sRow}, 14")
        a(f"s_lshl_b32 s{sKoff}, s{sWb}, 12")
        a(f"s_mulk_i32 s{sWb}, {4*PIECE}")
        a("s_mul_i32 s87, s3, 253952")
        a(f"s_mov_b32 s{sQ+2}, 253952")
        a(f"s_mov_b32 s{sQ+3}, 0x20000")
        a(f"s_add_u32 m0, s{sWb}, {8*TILE}")
        a(f"s_movk_i32 s{sCnt}, 2")
        a("s_waitcnt lgkmcnt(0)", "w0")
        a(f"s_add_u32 s{sQ}, s28, s87")
        a(f"s_addc_u32 s{sQ+1}, s29, 0")
        if o.exp_delay:
            a(f"s_bitcmp1_b32 s2, {o.exp_bit}")
            a("s_cbranch_scc0 L_q")
            a(f"s_sleep {o.exp_delay}")
        a("L_q:", "l")
        for j in range(4):
            S.raw([self.dma_ld("Q", j)])
            if j < 3:
                a(f"s_addk_i32 m0, {PIECE-1024}", "s")
                a(f"s_sub_u32 s{sCnt}, s{sCnt}, 1" if j == 0 else "s_nop 0")
        a(f"s_addk_i32 m0, {-(TILE + 3*(PIECE-1024))}", "s")
        S.raw([self.dma_adv("Q")])
        a(f"s_cmp_lg_u32 s{sCnt}, 0")
        a("s_cbranch_scc1 L_q")
        a("s_lshl_b32 s3, s3, 19")
        for (s, p) in ((sK, 30), (sV, 32)):
            a(f"s_add_u32 s{s}, s{p}, s3")
            a(f"s_addc_u32 s{s+1}, s{p+1}, 0")
            a(f"s_mov_b32 s{s+2}, 524288")
            a(f"s_mov_b32 s{s+3}, 0x20000")
        a(f"s_mov_b32 s{sVoff}, s{sKoff}")
        S.raw(self.dma_tile("K", 0) + self.dma_tile("K", 1) + self.dma_tile("V", 0))
        a(f"s_add_u32 s{sO}, s34, s87")
        a(f"s_addc_u32 s{sO+1}, s35, 0")
        a(f"s_mov_b32 s{sO+2}, 253952")
        a(f"s_mov_b32 s{sO+3}, 0x20000")
        a(f"s_lshl_b32 s{sRow}, s{sRow}, 14")
        for k in range(1, 8): a(f"s_add_u32 s{sRG[k]}, s{sRow}, {k*4096}")
        a(f"v_and_b32 v{t2}, 1, v{lane}")
        a(f"v_lshlrev_b32 v{t0}, 9, v{t2}")
        a(f"v_lshlrev_b32 v{t2}, 5, v{t2}")
        a(f"v_lshrrev_b32 v{t1}, 4, v{lane}")
        a(f"v_lshlrev_b32 v{t1}, 4, v{t1}")
        a(f"v_xor_b32 v{t1}, v{t1}, v{t2}")
        a(f"v_add_u32 v{t0}, v{t0}, v{t1}")
        a(f"v_bfe_u32 v{t1}, v{lane}, 1, 2")
        a(f"v_mul_u32_u24 v{t1}, {PIECE}, v{t1}")
        a(f"v_add_u32 v{t0}, v{t0}, v{t1}")
        a(f"v_bfe_u32 v{t1}, v{lane}, 3, 1")
        a(f"v_mul_u32_u24 v{vK}, {4*PIECE}, v{t1}")
        a(f"v_add_u32 v{vK}, v{vK}, v{t0}")
        a(f"v_xor_b32 v{t1}, 1, v{t1}")
        a(f"v_mul_u32_u24 v{vQr}, {TILE}, v{t1}")
        a(f"v_add_u32 v{vQr}, v{vQr}, v{t0}")
        a(f"s_add_u32 s87, s{sWb}, {5*TILE}")
        a(f"v_add_u32 v{vQr}, s87, v{vQr}")
        a(f"v_subrev_u32 v{vQr-1}, {3*TILE}, v{vQr}")
        a(f"v_lshrrev_b32 v{t0}, 3, v{lane}")
        a(f"v_mul_u32_u24 v{t0}, {PIECE}, v{t0}")
        a(f"v_bfe_u32 v{t2}, v{lane}, 2, 1")
        a(f"v_lshl_add_u32 v{t0}, v{t2}, 9, v{t0}")
        a(f"v_and_b32 v{t1}, 3, v{lane}")
        a(f"v_lshl_add_u32 v{t0}, v{t1}, 3, v{t0}")
        a(f"v_add_u32 v{t0}, {VBASE}, v{t0}")
        a(f"v_lshl_add_u32 v{vVe}, v{t2}, 5, v{t0}")
        a(f"v_xor_b32 v{vVo}, 32, v{vVe}")
        c = 1.4426950408889634 / 16.0
        a(f"s_mov_b32 s{sC}, {hex(f32bits(c))}")
        a(f"s_mov_b32 s{sNC}, {hex(f32bits(-c))}")
        a(f"s_mov_b32 s{sThr}, {hex(f32bits(o.thr))}")
        a(f"s_movk_i32 s{sCnt}, 7")
        a(f"s_mov_b32 s{sMask}, 0xffff0000")
        def qchunks(hi_slot):
            return self.dma_tile("Q", hi_slot) + self.dma_tile("Q", hi_slot - 1)
        def qread(qt):
            base, off = {0: (vQr, 2 * TILE), 1: (vQr, 0), 2: (vQr - 1, 0), 3: (vQr, 2 * TILE)}[(3 - qt) if (o.deep and qt in (1, 2)) else qt]
            return [I(f"ds_read_b128 {Qr(qt,d8)}, v{base} offset:{off + 64*d8}", "ds", tag=("q", qt, d8)) for d8 in range(8)]
        def prescale(qt, tb, nt, pk, deps=()):
            out, lastcv = [], {}
            for g in range(0, 32, nt):
                rs = [(32 * qt + g + i, tb + 2 * i) for i in range(nt)]
                w = lambda t: [lastcv[t]] if t in lastcv else []
                lo = [Nd(f"v_lshlrev_b32 v{t}, 16, v{r}", "v", deps=list(deps) + w(t)) for r, t in rs]
                hi = [Nd(f"v_and_b32 v{t+1}, s{sMask}, v{r}", "v", deps=list(deps) + w(t)) for r, t in rs]
                if pk: mu = [[Nd(f"v_pk_mul_f32 v[{t}:{t+1}], v[{t}:{t+1}], s[{sC}:{sC+1}] op_sel_hi:[1,0]", "v", deps=[lo[i], hi[i]])] for i, (r, t) in enumerate(rs)]
                else: mu = [[Nd(f"v_mul_f32 v{t}, s{sC}, v{t}", "v", deps=[lo[i]]), Nd(f"v_mul_f32 v{t+1}, s{sC}, v{t+1}", "v", deps=[hi[i]])] for i, (r, t) in enumerate(rs)]
                cv = [Nd(f"v_cvt_pk_bf16_f32 v{r}, v{t}, v{t+1}", "v", deps=mu[i]) for i, (r, t) in enumerate(rs)]
                for i, (r, t) in enumerate(rs): lastcv[t] = cv[i]
                out += lo + hi + sum(mu, []) + cv
            return out
        S.raw(qchunks(3 if o.deep else 6))
        a("s_waitcnt vmcnt(20)")
        S.raw(qread(0))
        a("s_waitcnt lgkmcnt(0)", "w0")
        S.run([], prescale(0, 128, 4, True))
        if o.deep:
            S.raw(qchunks(6))
            a("s_waitcnt vmcnt(16)")
        else:
            S.raw(self.dma_tile("Q", 3))
            a("s_waitcnt vmcnt(12)")
        a("s_barrier")
        if o.stamps: S.raw(self.stamp(1))
        groups = [[0], [1], [2], [3]]
        bar = Nd([I("s_waitcnt vmcnt(12) lgkmcnt(0)", "w0"), I("s_barrier")], "s")
        one = lambda kind, slot, idx, tag, buf, deps=(): self.frag_stream([(kind, slot, idx, tag, list(deps), buf)], 0)[0]
        K0p = [one("K", 0, f, ("k0", f), ("a", 192 + 4 * f)) for f in range(16)]
        K1p = [one("K", 1, f, ("k1", f), ("v", 96 + 4 * f) if f < 8 else f) for f in range(16)]
        assert {"cvt03", "cvt13", "add07", "add17"} <= self.part1
        K1q = [one("K", 1, f, ("k1b", f), ("v", b)) for f, b in enumerate([128, 132, 136, 140, X(1, 0, 4), X(1, 1, 4), 144, 148])]
        lastq = [("a", 64), ("a", 128), ("v", 152), ("v", 128)]
        Vp = [[one("V", 0, d, ("vp", r, d), ("a", 64 * r + 4 + 4 * d) if d < 15 else lastq[r]) for d in range(16)] for r in range(4)]
        K2p = self.frag_stream([("K", 2, f, (0, f), [bar], f) for f in range(self.npre)], 0)
        again = lambda F: [dict(nodes=f["nodes"], buf=f["buf"], tag=f["tag"], users=[]) for f in F]
        fr_all = []
        for r in range(4): fr_all += again(K0p) + (again(K1p) if r < 3 else K1q + again(K1p[8:])) + Vp[r]
        regions = []
        for gi, qts in enumerate(groups):
            F = fr_all[48 * gi:48 * gi + 48]
            mfs, pool = [], []
            lastm = {}
            neg, pos = ("-1.0", "1.0") if gi < 3 else (f"s{sNC}", f"s{sC}")
            for tl in range(2):
                for f in range(16):
                    for qt in qts:
                        m = self.mf(F[16 * tl + f], self.qk_t(tl, f, qt, F[16 * tl + f]["buf"], zero=True)); mfs.append(m); lastm[(tl, qt, dk(f)[1])] = m
            pdone = {}
            for qi, qt in enumerate(qts):
                t, t2 = vC + 2 * qi, vC + 2 * qi + 1
                vals = [(tl, k) for tl in range(2) for k in range(8)]
                src = lambda v: (lastm[(v[0], qt, v[1] >> 2)], 8)
                rg = lambda v: f"v{X(v[0], qt, v[1])}"
                ch = [Nd(f"v_max3_f32 v{t}, {rg(vals[0])}, {rg(vals[1])}, {rg(vals[2])}", "v", deps=[src(v) for v in vals[:3]])]
                for j in range(3, 15, 2):
                    ch.append(Nd(f"v_max3_f32 v{t}, v{t}, {rg(vals[j])}, {rg(vals[j+1])}", "v", deps=[ch[-1], src(vals[j]), src(vals[j + 1])]))
                ch.append(Nd(f"v_max_f32 v{t}, v{t}, {rg(vals[15])}", "v", deps=[ch[-1], src(vals[15])]))
                for sw in ("v_permlane16_swap_b32", "v_permlane32_swap_b32"):
                    ch.append(Nd(f"v_mov_b32 v{t2}, v{t}", "v", deps=[ch[-1]]))
                    ch.append(Nd(f"{sw} v{t}, v{t2}", "v", deps=[(ch[-1], 2)]))
                    ch.append(Nd(f"v_max_f32 v{t}, v{t}, v{t2}", "v", deps=[(ch[-1], 1)]))
                mm = Nd(f"v_mul_f32 v{Mb(qt)}, {neg}, v{t}", "v", deps=[ch[-1]]); ch.append(mm)
                cp = [Nd(f"v_mov_b32 v{Mb(qt)+k}, v{Mb(qt)}", "v", deps=[mm]) for k in range(1, 4)]
                fma = {v: Nd(f"v_fma_f32 {rg(v)}, {rg(v)}, {pos}, v{Mb(qt)}", "v", deps=[mm]) for v in vals}
                E0 = self.to_nodes(self.E_order(*self.E_ops([qt], vL)), 0, extra=lambda op: [(fma[(0, int(op.name[4]))], 0)] if op.name.startswith("exp") else [])
                E1 = self.to_nodes(self.E_order(*self.E_ops([qt])), 1, only=self.part1,
                                   extra=lambda op: [(fma[(1, int(op.name[4]))], 0)] if op.name.startswith("exp") else [])
                pdone[qt] = [n for n in E0 if n.name.startswith("cvt")]
                crit = [n for n in E0 if not n.name.startswith("add") or int(n.name[4]) < 4]
                rest = [n for n in E0 if n not in crit]
                pool.append((ch + [fma[v] for v in vals[:8]] + crit, rest + cp + [fma[v] for v in vals[8:]] + E1))
            for d in range(16):
                for qt in qts:
                    mfs.append(self.mf(F[32 + d], self.pv_t(0, d, qt, F[32 + d]["buf"], zero=True), deps=[(n, 2) for n in pdone[qt]], cap=o.pro_cap3 if gi == 3 else None))
            hi = [n for tup in zip(*[p[0] for p in pool]) for n in tup]
            lo = sum((p[1] for p in pool), [])
            regions.append((mfs, hi + lo))
        assert not any(n.startswith(("chk", "cmp")) for n in self.part1)
        dsn = lambda F: [n for f in F for n in f["nodes"]]
        def after(F, m):
            for n in dsn(F): n.deps.append((m, 0))
        def spread(dm, ms, g0, step):
            k = 0
            for n in dm:
                if n.k == "vm":
                    n.soft.append((ms[min(len(ms) - 1, g0 + step * k)], 0)); k += 1
        m0, m1, m2, mfs = [r[0] for r in regions]
        V3p = Vp[3]
        for n in dsn(Vp[1] + Vp[2] + K1q): n.low = True
        for n in regions[2][1] + [m2[-1]]: after(K1q[6:], n)
        for d in range(16): after([V3p[d]], mfs[d + 1])
        plan = [("Q", 8), ("Q", 7), ("K", 2), ("V", 1), ("K", 3)] if o.deep else [("Q", 2), ("Q", 8), ("Q", 7), ("K", 2), ("K", 3)]
        vw = 12 if o.deep else 8
        qb, e = self.dma_nodes(*plan[0], [], None)
        spread(qb, m0, 4, 6)
        S.run([], dsn(K0p[:6]))
        S.run(m0, qb + dsn(K0p[6:] + K1p + Vp[0]) + regions[0][1] + dsn(Vp[1]), cap=4, dsmax=2)
        a(f"s_waitcnt vmcnt({vw})")
        S.raw(qread(1))
        a("s_waitcnt lgkmcnt(0)", "w0")
        qa, e = self.dma_nodes(*plan[1], [], None)
        qb, e = self.dma_nodes(*plan[2], [], e)
        S.run([], qa + prescale(1, 128, 4, True))
        spread(qb, m1, 0, 8)
        a("s_nop 1")
        S.run(m1, qb + regions[1][1] + dsn(Vp[2]), cap=o.pro_cap)
        a(f"s_waitcnt vmcnt({vw})")
        S.raw(qread(2))
        a("s_waitcnt lgkmcnt(0)", "w0")
        v1, e = self.dma_nodes(*plan[3], [], None)
        k2, e = self.dma_nodes(*plan[4], [], e)
        S.run([], v1 + prescale(2, 128, 4, True))
        spread(k2, m2, 0, 8)
        a("s_nop 1")
        S.run(m2, k2 + regions[2][1] + dsn(K1q), cap=o.pro_cap)
        a(f"s_waitcnt vmcnt({vw})")
        if o.stamps: S.raw(self.stamp(2))
        S.raw(qread(3))
        for f in range(16):
            if dk(f)[1] == 0: mfs[f].need = ("q", 3, dk(f)[0])
        d1, e1 = self.dma_nodes("V", 1, [(mfs[o.pro_dma], 0)], None)
        d2, e2 = self.dma_nodes("V", 2, [], e1)
        d3 = []
        for j in range(1, 16): V3p[j]["nodes"][0].deps.append((V3p[j - 1]["nodes"][-1], 0))
        bar.deps = [(V3p[15]["nodes"][-1], o.pro_bar), (mfs[o.pro_barm], 0), (e2, 0)]
        ps3 = prescale(3, 132, 4, False, deps=[(mfs[31], 0)])
        S.run(mfs, dsn(V3p) + regions[3][1] + d1 + d2 + d3 + [bar] + dsn(K2p) + ps3, cap=o.pro_cap, dsmax=1)
        a("s_nop 1")
        S.raw([I(None, "wl", need=(0, 1))])
        if o.stamps: S.raw(self.stamp(3) + self.stamp(4))
        return S.out

    def tail(self):
        o = self.o
        S = Sched()
        a = lambda t, k="o", **kw: S.raw([I(t, k, **kw)])
        M29, M30, M31 = 1, 0, 2
        bar = Nd([I("s_waitcnt vmcnt(12)"), I("s_barrier")], "s")
        barV = Nd([I("s_waitcnt vmcnt(0)"), I("s_barrier")], "s")
        dv, ev = self.dma_nodes("V", 3, [], None)
        touch = []
        if o.otouch:
            tm = Nd(f"s_add_u32 m0, s{sWb}, {8*TILE}", "s", deps=[bar])
            touch = [tm, Nd(f"buffer_load_dword off, {srd(sO)}, s{sRow} lds", "vm", deps=[(tm, 1)])]
        specs = [("done" if f < self.npre else "K", 2, f, (0, f), []) for f in range(16)]
        o31 = list(range(16))
        specs += [("K", 3, f, ("t", 31, f), [bar] if f == 0 else []) for f in o31]
        pvgroups = [[(0, d), (1, d)] for d in range(4)] + ([[(2, d) for d in range(4)]] if o.cb0quad else [[(2, 0), (2, 1)], [(2, 2), (2, 3)]])
        pvgroups += [[(tl, dt) for tl in range(3)] for dt in range(4, 16)]
        pvorder = sum(pvgroups, [])
        specs += [("V", 1 + tl, dt, ("t", "v", tl, dt), [barV]) for tl, dt in pvorder]
        fr = self.frag_stream(specs, 0)
        mfs, lastm = [], {}
        for p in range(8):
            for j, qt, e in walk(2, p):
                f = 2 * p + j
                m = self.mf(fr[f], self.qk_t(M30, f, qt, f, first=(p & 3) == 0 and e == 0)); mfs.append(m); lastm[(30, qt, dk(f)[1])] = m
        mfs[0].waited = True; mfs[1].waited = True
        mcopy = vS + [vD]
        def EC(tile, m, only, prevbr, prevmg, brdeps, rare_args):
            Eexp, Epl = self.E_ops()
            chk, mg = self.C_ops(Epl)
            def ex(op):
                d = []
                if op.name.startswith("exp"):
                    if (tile,) + op.src in lastm: d.append((lastm[(tile,) + op.src], 8))
                    if prevbr: d.append((prevbr, 0))
                if op.name.startswith("add") and op.name.endswith("1") and prevmg: d.append((prevmg[int(op.name[3])], 0))
                return d
            En = self.to_nodes(Epl + chk + Eexp, m, extra=ex, only=only)
            cn = [n for n in En if n.name == "cmp"][0]
            br = Nd([I(f"s_cbranch_vccnz L_rare{tile}", "s"), I(f"L_back{tile}:", "l")], "s", deps=[(cn, 1)] + [(n, 0) for n in En] + brdeps)
            self.rares.append(self.rare(str(tile), m, tile % R, *rare_args))
            mn = self.to_nodes(mg, m, extra=lambda op: [(br, 0)])
            return En, br, mn
        E29, br29, mg29 = EC(29, M29, self.part2, None, None, [], ([], M30))
        cpy = [Nd(f"v_mov_b32 v{mcopy[qt]}, v{Mb(qt)}", "v", deps=[br29, ev]) for qt in range(4)]
        q31 = []
        for p in range(8):
            for jj, qt, e in walk(2, p):
                j = 2 * p + jj; f = o31[j]
                deps = [(br29, 0)] if p == 0 else ([(n, 0) for n in cpy] if p == 4 else [])
                m = self.mf(fr[16 + j], self.qk_t(M31, f, qt, 16 + j, first=(p & 3) == 0 and e == 0), deps=deps, cap=o.cap31)
                mfs.append(m); q31.append(m); lastm[(31, qt, dk(f)[1])] = m
        bar.deps = [(mfs[o.tail_bar], 0), (br29, 0), (ev, 0)]
        barV.deps = [(q31[30], 0)]
        E30, br30, mg30 = EC(30, M30, None, br29, mg29, [(n, 0) for n in cpy], ([M29], M31, mcopy))
        E31, br31, mg31 = EC(31, M31, None, br30, mg30, [], ([M29, M30], None, mcopy))
        ln, t0, t1, t2 = 108, 109, 110, 111
        vW0, vR, vQ = 123, 124, 125
        ad = [f"v_mbcnt_lo_u32_b32 v{ln}, -1, 0", f"v_mbcnt_hi_u32_b32 v{ln}, -1, v{ln}",
              f"v_and_b32 v{t0}, 15, v{ln}", f"v_lshlrev_b32 v{t0}, 7, v{t0}",
              f"v_bfe_u32 v{t1}, v{ln}, 4, 1", f"v_lshl_add_u32 v{t0}, v{t1}, 3, v{t0}", f"v_add_u32 v{t0}, s{sWb}, v{t0}",
              f"v_lshrrev_b32 v{t1}, 5, v{ln}", f"v_and_b32 v{t2}, 7, v{ln}", f"v_xor_b32 v{t1}, v{t1}, v{t2}",
              f"v_lshl_add_u32 v{vW0}, v{t1}, 4, v{t0}",
              f"v_lshrrev_b32 v{t0}, 3, v{ln}", f"v_xor_b32 v{t1}, v{t0}, v{t2}", f"v_lshlrev_b32 v{t1}, 4, v{t1}",
              f"v_lshl_add_u32 v{vR}, v{t0}, 7, v{t1}", f"v_add_u32 v{vR}, s{sWb}, v{vR}",
              f"v_lshlrev_b32 v{t2}, 4, v{t2}", f"v_lshl_add_u32 v{vQ}, v{t0}, 9, v{t2}"]
        adn = []
        for x in ad: adn.append(Nd(x, "v", deps=[adn[-1]] if adn else [br31]))
        brs = [br29, br30, br31]
        Pd = {}
        for tl, E in enumerate((E29, E30, E31)):
            for qt in range(4): Pd[(tl, qt)] = [n for n in E if n.name.startswith(f"cvt{qt}")]
        lastpv = {}
        maps = [M29, M30, M31]
        j0 = 0
        for gi, grp in enumerate(pvgroups):
            for jj, qt, e in walk(len(grp), gi):
                if True:
                    tl, dt = grp[jj]
                    j = j0 + jj
                    cap = o.cap_a if j < 8 else (o.cap_b if j < 12 else (o.cap_d if j < 15 else o.cap_c))
                    if o.pkall and j >= 8: cap = o.cap_hi if len(mfs) % o.clus == o.clus - 1 else 2
                    m = self.mf(fr[32 + j], self.pv_t(maps[tl], dt, qt, 32 + j), deps=[(n, 2) for n in Pd[(tl, qt)]] + [(brs[tl], 0)], cap=cap)
                    mfs.append(m); lastpv[(qt, dt)] = m
            j0 += len(grp)
        self.link_users(fr, 8)
        inv = [112 + 2 * qt for qt in range(4)]
        vW = [vW0, 120, 121, 122]
        small = []
        chains = []
        for qt in range(4):
            t, t2 = inv[qt], inv[qt] + 1
            ch = [Nd(f"v_mov_b32 v{t2}, v{vL[qt]}", "v", deps=[mg31[qt]])]
            ch.append(Nd(f"v_permlane16_swap_b32 v{vL[qt]}, v{t2}", "v", deps=[(ch[-1], 2)]))
            ch.append(Nd(f"v_add_f32 v{t}, v{vL[qt]}, v{t2}", "v", deps=[(ch[-1], 1)]))
            ch.append(Nd(f"v_mov_b32 v{t2}, v{t}", "v", deps=[ch[-1]]))
            ch.append(Nd(f"v_permlane32_swap_b32 v{t}, v{t2}", "v", deps=[(ch[-1], 2)]))
            ch.append(Nd(f"v_add_f32 v{t}, v{t}, v{t2}", "v", deps=[(ch[-1], 1)]))
            ch.append(Nd(f"v_rcp_f32 v{t}, v{t}", "t", deps=[ch[-1]]))
            chains.append(ch)
        small = [n for tup in zip(*chains) for n in tup]
        wn = [Nd(f"v_xor_b32 v{vW[k]}, {32*k}, v{vW0}", "v", deps=[adn[-1]]) for k in range(1, 4)]
        conv = []
        opol = [pol(x) for x in (o.opol.split(",") * 4)[:4]]
        wr_prev = {}; st_prev = {}; rd_prev = {}
        lastds = None
        for i, (cb, qt) in enumerate([(cb, qt) for cb in range(4) for qt in range(4)]):
            b = 16 * (i % 4)
            pk = cb == 3 or o.pkall
            a0 = Ob(qt, 4 * cb)
            war = [(wr_prev[i % 4], 1)] if i % 4 in wr_prev else [(br31, 0)]
            rdn = [Nd(f"v_accvgpr_read_b32 v{b+k}, a{a0+k}", "v", deps=[(lastpv[(qt, 4 * cb + (k >> 2))], 8)] + war) for k in range(16)]
            iv = (chains[qt][-1], 1)
            if pk: mu = [Nd(f"v_pk_mul_f32 v[{b+2*k}:{b+2*k+1}], v[{b+2*k}:{b+2*k+1}], v[{inv[qt]}:{inv[qt]+1}] op_sel_hi:[1,0]", "v", deps=[rdn[2 * k], rdn[2 * k + 1], iv]) for k in range(8)]
            else: mu = [Nd(f"v_mul_f32 v{b+k}, v{b+k}, v{inv[qt]}", "v", deps=[rdn[k], iv]) for k in range(16)]
            if pk:
                for n in mu: n.pk = True
            cv = []
            for k in range(8):
                deps = ([mu[k]] if pk else [mu[2 * k], mu[2 * k + 1]]) + ([cv[-1]] if cv else [])
                cv.append(Nd(f"v_cvt_pk_bf16_f32 v{b+k}, v{b+2*k}, v{b+2*k+1}", "v", deps=deps))
            rb = qt >> 1
            wr = []
            for k in range(4):
                deps = [cv[2 * k + 1], adn[-1]] + ([wn[k - 1]] if k else []) + ([rd_prev[rb]] if rb in rd_prev else [(bar, 0)]) + ([wr[-1]] if wr else [])
                wr.append(Nd(f"ds_write_b64 v{vW[k]}, v[{b+2*k}:{b+2*k+1}] offset:{rb*TILE + (qt&1)*2048}", "ds", deps=deps, tag=("w", i, k)))
            for n in wr: n.cost = o.wcost
            wr_prev[i % 4] = wr[-1]
            conv += wr + rdn + mu + cv
            if qt & 1:
                rbuf = 64 + 16 * ((i >> 1) % 3)
                u2 = (i >> 1) % 3
                rds = []
                for k in range(4):
                    deps = [wr[-1], prev_wr] + ([(st_prev[u2], 2)] if u2 in st_prev else []) + ([rds[-1]] if rds else [])
                    rds.append(Nd(f"ds_read_b128 v[{rbuf+4*k}:{rbuf+4*k+3}], v{vR} offset:{rb*TILE + k*1024}", "ds", deps=deps, tag=("r", i, k)))
                rd_prev[rb] = rds[-1]
                sts = []
                for k in range(4):
                    kk = 4 * rb + k
                    so = f"s{sRow}" if kk == 0 else f"s{sRG[kk]}"
                    sts.append(Nd(f"buffer_store_dwordx4 v[{rbuf+4*k}:{rbuf+4*k+3}], v{vQ}, {srd(sO)}, {so} offen offset:{128*cb}{opol[cb]}", "vm",
                                  deps=[rds[k]] + ([sts[-1]] if sts else []), soft=[(rds[k], o.st_dist)], need=("r", i, k)))
                st_prev[u2] = sts[-1]
                conv = self._hoist(conv, rds + sts)
            prev_wr = wr[-1]
        ds = [n for f in fr for n in f["nodes"]]
        pool = ds + dv + [br29, bar, barV] + touch + E29 + mg29 + cpy + [br30] + E30 + mg30 + [br31] + E31 + mg31 + small + adn + wn + conv
        S.run(mfs, pool, dsmax=o.tail_dsmax)
        T = S.out
        if o.ab_drop:
            dr = tuple(o.ab_drop.split(","))
            for it in T:
                if it.t and it.t.startswith(dr): it.t = "s_nop 0" if o.ab_nop else None; it.k = "ds" if it.k == "ds" else "o"
        a2 = lambda t, k="o": T.append(I(t, k))
        if o.stamps:
            i1 = max(i for i, it in enumerate(T) if it.k == "m")
            T[i1 + 1:i1 + 1] = self.stamp(7)
            i0 = min(i for i, it in enumerate(T) if it.t and it.t.startswith("buffer_store"))
            T[i0:i0] = self.stamp(6)
            a2("s_waitcnt vmcnt(0)")
            T += self.stamp(8)
            a2("s_memrealtime s[58:59]", "sm")
            a2("s_getreg_b32 s60, hwreg(HW_REG_XCC_ID)")
            a2("s_getreg_b32 s61, hwreg(HW_REG_HW_ID)")
            a2("s_waitcnt lgkmcnt(0)")
            a2(f"s_mov_b32 s64, s36"); a2("s_mov_b32 s65, s37"); a2(f"s_mov_b32 s66, 0x1000000"); a2("s_mov_b32 s67, 0x20000")
            a2(f"s_lshl_b32 s62, s2, 10")
            a2(f"s_mul_hi_u32 s63, s{sWb}, {(2**32)//(4*PIECE)+1}")
            a2(f"s_lshl_b32 s63, s63, 8")
            a2(f"s_add_u32 s62, s62, s63")
            a2(f"v_mov_b32 v1, 0")
            for k in range(24):
                a2(f"v_mov_b32 v0, s{38+k}")
                a2(f"buffer_store_dword v0, v1, s[64:67], s62 offen offset:{4*k}")
            for k in range(18):
                a2(f"v_mov_b32 v0, s{68+k}")
                a2(f"buffer_store_dword v0, v1, s[64:67], s62 offen offset:{128+4*k}")
        return T

    @staticmethod
    def _hoist(conv, hot):
        k = 0
        while k < len(conv) and getattr(conv[k], "hot", False): k += 1
        for n in hot: n.hot = True
        return conv[:k] + hot + conv[k:]

    def build(self):
        o = self.o
        pro = self.prologue()
        loop = [I("L_loop:", "l")] + self.body(0) + self.body(1)
        tl = self.stamp(5) + self.tail()
        trace = pro + loop + loop + tl
        self.resolve_waits(trace)
        lines = [it.t for it in trace if it.t and not it.skip and it.k != "l"]
        errs = hz.check(lines)
        for r in self.rares: errs += hz.check([it.t for it in r if it.k != "l"])
        for e in sorted(set(errs))[:20]: print(e, file=sys.stderr)
        assert not errs or o.ab_drop, "hazards"
        if o.verbose:
            cnt = lambda l: sum(1 for it in l if it.t and not it.skip and it.k != "l")
            print("instr: prologue", cnt(pro), "loop", cnt(loop), "tail", cnt(tl), file=sys.stderr)
        return pro + [I(".p2align 6" if o.align else "", "l")] + loop + tl + [I("L_end:", "l"), I("s_endpgm")] + sum(self.rares, [])

    def resolve_waits(self, trace):
        ds = []
        for it in trace:
            if it.k == "ds": ds.append(it.tag)
            elif it.k == "wl":
                idx = max(j for j, t in enumerate(ds) if t == it.need)
                n = min(14, len(ds) - 1 - idx)
                it.n = n if it.n is None else min(it.n, n)
        needed = set()
        ds = []; done = 0
        for it in trace:
            if it.k == "ds": ds.append(it.tag)
            elif it.k == "w0": done = len(ds)
            elif it.k == "wl":
                idx = max(j for j, t in enumerate(ds) if t == it.need)
                if idx >= done: needed.add(id(it))
                done = max(done, len(ds) - it.n) if id(it) in needed else done
        for it in trace:
            if it.k == "wl":
                it.skip = id(it) not in needed
                it.t = f"s_waitcnt lgkmcnt({it.n})"

    def text(self):
        body = self.build()
        hdr = open("standalone__mha_softmax__near_ridge.s.ref").read().split("\n")
        top = []
        for ln in hdr:
            if ln.startswith("; @launch"): break
            top.append(ln)
        out = top + [f"; @launch grid=(256,1,1) block=(256,1,1) lds={LDS_BYTES}",
                     "; generated by my own generator script (flash-attention forward, 4 waves x 64 q rows, 32-key tiles)",
                     '.amdgcn_target "amdgcn-amd-amdhsa--gfx950"', ".text", f".globl {KNAME}"] + ([".p2align 12"] if self.o.al12 else []) + [".p2align 8",
                     f".type {KNAME},@function", f"{KNAME}:"]
        for it in body:
            if it.skip or not it.t: continue
            out.append(("" if it.k == "l" else "    ") + it.t)
        out += ['.section .rodata,"a"', ".p2align 6", f".amdhsa_kernel {KNAME}",
                "  .amdhsa_next_free_vgpr 512", "  .amdhsa_next_free_sgpr 100", "  .amdhsa_accum_offset 256",
                "  .amdhsa_group_segment_fixed_size 0", "  .amdhsa_kernarg_size 48", "  .amdhsa_user_sgpr_count 2",
                "  .amdhsa_user_sgpr_kernarg_segment_ptr 1", "  .amdhsa_system_sgpr_workgroup_id_x 1",
                ".end_amdhsa_kernel", ""]
        return "\n".join(out)

def parse(argv):
    p = argparse.ArgumentParser()
    p.add_argument("-o", default="standalone__mha_softmax__near_ridge.s")
    for f in ("stamps", "verbose", "dbg", "no_bar", "no_dma", "no_br"):
        p.add_argument("--" + f, action="store_true")
    for name, d in dict(align=1, look=24, bar_gap=113, bar_quiet=1, kstep=2, sgap=5, e2start=206, dma1=106, dmastep1=8, fake_chain=0, exp_delay=0, exp_bit=3, pkall=0, wcost=1, cap_hi=10, clus=2, deep=0, cb0quad=1, cap_d=5, otouch=0, snake=1, pvchain=1, pace=0, al12=0, late_v1=0, br_delay=1, dma0=2, dmastep=4, sdelay=28, backlog=5,
                        codepf=1, pdepth=7, g0_dma0=2, g0_dmastep=6, pro_dma=2, pro_bar=10, pro_barm=43, pro_cap=3, pro_cap3=12, tail_bar=30, cap31=2, cap_a=7, cap_b=3, cap_c=5, st_dist=24, tail_dsmax=1).items():
        p.add_argument("--" + name, type=int, default=d)
    p.add_argument("--thr", type=float, default=1048576.0)
    p.add_argument("--ab_drop", default="")
    p.add_argument("--ab_nop", type=int, default=0)
    p.add_argument("--kvpol", default="nt")
    p.add_argument("--qpol", default="nt")
    p.add_argument("--opol", default="nt")
    return p.parse_args(argv)

if __name__ == "__main__":
    o = parse(sys.argv[1:])
    open(o.o, "w").write(Gen(o).text())
```

```python
import sys, struct, argparse
sys.path.insert(0, "dev")
import hz

KNAME = "standalone__mha_softmax__near_ridge_kernel"
MF = "v_mfma_f32_16x16x32_bf16"

def f32bits(x): return struct.unpack("<I", struct.pack("<f", x))[0]
def pol(x): return (" " + x.replace("+", " ")) if x else ""
def srd(s): return f"s[{s}:{s+3}]"

class I:
    __slots__ = ("t", "k", "tag", "need", "n", "skip")
    def __init__(self, t, k="o", tag=None, need=None):
        self.t = t; self.k = k; self.tag = tag; self.need = need; self.n = None; self.skip = False

def Qr(qt, d8): b = (qt * 8 + d8) * 4; return f"v[{b}:{b+3}]"
vT = 240
def X(m, qt, k):
    if m < 2: return 128 + m * 32 + qt * 8 + k
    if m == 4: return 128 + qt * 8 + k if k < 4 else 160 + qt * 8 + k
    if m == 5: return 128 + qt * 8 + 4 + k if k < 4 else 160 + qt * 8 + k
    if m >= 10: return X(m - 10, qt, k) if k < 4 else vC + k - 4
    return 128 + 32 + qt * 8 + 4 + k if k < 4 else vT + 4 * qt + k - 4
def Sr(m, qt, kt): b = X(m, qt, 4 * kt); return f"v[{b}:{b+3}]"
def Pr(m, qt): return Sr(m, qt, 0)
NF = 8
def Fx(f): return f if isinstance(f, tuple) else ("v", 192 + (f % NF) * 4)
def Fr(f): c, b = Fx(f); return f"{c}[{b}:{b+3}]"
def Ob(qt, dt): return (qt * 16 + dt) * 4
def Or(qt, dt): b = Ob(qt, dt); return f"a[{b}:{b+3}]"
vK, vVe, vVo, vD = 224, 225, 226, 227
vL = [228, 229, 230, 231]
vLt = [232, 233, 234, 235]
vC = 236
vS = [237, 238, 239]
def Mb(qt): return vT + 4 * qt
def Mr(qt): b = Mb(qt); return f"v[{b}:{b+3}]"
sQ, sK, sV, sO = 4, 8, 12, 16
sC, sKoff, sVoff, sWb, sCnt, sNC, sThr, sRow = 20, 21, 22, 23, 24, 25, 26, 27
sQoff, sMask = 86, 95
sRG = [None, 88, 89, 90, 91, 92, 93, 94]
PIECE = 1088
TILE = 16 * PIECE
R = 4
VBASE = R * TILE
LDS_BYTES = (2 * R + 1) * TILE
NG = 256
def dk(f): return (f & 7, f >> 3)
def walk(n, par):
    for qi in range(4):
        for e in range(n):
            yield (e if qi % 2 == 0 else n - 1 - e, qi if par % 2 == 0 else 3 - qi, e)

class Op:
    def __init__(self, name, fn, cost=1, deps=(), t0=0):
        self.name = name; self.fn = fn; self.cost = cost; self.deps = list(deps); self.t0 = t0; self.t = None

class Nd:
    def __init__(self, t, k, deps=(), tag=None, need=None, cap=None, soft=()):
        self.t = t if isinstance(t, list) else [t]
        self.k = k; self.deps = [d if isinstance(d, tuple) else (d, 0) for d in deps]
        self.tag = tag; self.need = need; self.idx = None; self.cap = cap; self.waited = False; self.soft = list(soft); self.low = False; self.pk = False
        self.cost = {"t": 2, "vm": 2, "s": 0}.get(k, 1)

class Sched:
    def __init__(self):
        self.out = []; self.n = 0; self.issued = set()
    def ok(self, nd, relax=False):
        if not relax and any(d.idx is None or self.n - d.idx - 1 < dist for d, dist in nd.soft): return False
        return all(d.idx is not None and self.n - d.idx - 1 >= dist for d, dist in nd.deps)
    def wait(self, nd):
        if nd.need is not None and not nd.waited:
            self.out.append(I(None, "wl", need=nd.need)); nd.waited = True
    def emit(self, nd):
        self.wait(nd)
        for t in nd.t:
            if isinstance(t, I):
                self.out.append(t)
                if t.k != "l": self.n += 1
            else:
                self.out.append(I(t, nd.k, tag=nd.tag)); self.n += 1
        nd.idx = self.n - 1
    def raw(self, lst):
        for t in lst:
            t = t if isinstance(t, I) else I(t)
            self.out.append(t)
            if t.k not in ("l", "wl"): self.n += 1
    def pick(self, pool, free, dsmax):
        got = []; nds = 0; nsc = 0
        for nd in list(pool):
            if not self.ok(nd): continue
            if nd.k == "s":
                if nsc: continue
                nsc += 1
            else:
                if nd.cost > free: continue
                if nd.k == "ds":
                    if nds >= dsmax: continue
                    nds += 1
                free -= nd.cost
            got.append(nd); pool.remove(nd)
            if free <= 0 and nsc: break
        order = {"s": 0, "ds": 1, "vm": 2}
        got.sort(key=lambda nd: order.get(nd.k, 3))
        return got
    def drain_one(self, pool, relax=False):
        for nd in pool:
            if self.ok(nd, relax):
                pool.remove(nd); self.emit(nd); return True
        return False
    def run(self, mfs, pool, cap=2, dsmax=1, keep=()):
        for i, m in enumerate(mfs):
            guard = 0
            while not self.ok(m):
                if not self.drain_one(pool):
                    self.raw(["s_nop 0"]); guard += 1
                    assert guard < 40, ("stuck", m.t, [d.t for d, _ in m.deps if d.idx is None])
            self.emit(m)
            c = m.cap or cap
            left = c
            pkok = lambda: c - left >= 5
            nx = mfs[i + 1] if i + 1 < len(mfs) else None
            if nx is not None and nx.need is not None and not nx.waited and all(d.idx is not None for d, _ in nx.deps if d.k == "ds"):
                self.wait(nx)
            def take(kinds, maxcost, low=True):
                for nd in pool:
                    if nd.k in kinds and nd.cost <= maxcost and (low or not nd.low) and self.ok(nd) and (not nd.pk or pkok()):
                        pool.remove(nd); self.emit(nd); return nd
                return None
            take(("s",), 0)
            nds = 0
            for lowok in (False, True):
                while nds < dsmax and left > 0:
                    nd = take(("ds",), left, lowok)
                    if not nd: break
                    left -= nd.cost; nds += 1
                if not lowok and left >= 2 and take(("vm",), left): left -= 2
            while left > 0:
                nd = None
                if pkok():
                    for x in pool:
                        if x.pk and self.ok(x):
                            pool.remove(x); self.emit(x); nd = x; break
                if not nd and left >= 2:
                    rdy = []
                    for x in pool:
                        if x.k in ("v", "t") and self.ok(x):
                            rdy.append(x)
                            if x.k == "t" or len(rdy) > 4: break
                    if rdy and rdy[-1].k == "t": nd = take(("t",), left)
                if not nd: nd = take(("v", "t"), left)
                if not nd: break
                left -= nd.cost
        guard = 0
        while any(nd not in keep for nd in pool):
            if not self.drain_one(pool) and not self.drain_one(pool, True):
                self.raw(["s_nop 0"]); guard += 1
                assert guard < 40, ("stuck", [nd.t for nd in pool[:3]])
            else: guard = 0

class Gen:
    def __init__(self, o):
        self.o = o
        self.rares = []
        self.plan()

    def kread_t(self, slot, f, buf):
        d8, kt = dk(f)
        return f"ds_read_b128 {Fr(buf)}, v{vK} offset:{slot*TILE + kt*8*PIECE + 64*d8}"
    def vread_t(self, slot, dt, sec, buf):
        c, b = Fx(buf); b += 2 * sec
        return f"ds_read_b64_tr_b16 {c}[{b}:{b+1}], v{vVo if dt & 1 else vVe} offset:{slot*TILE + sec*8*PIECE + 64*(dt>>1)}"
    def fread(self, u, f, part=None):
        if f < 16: return [I(self.kread_t((u + 1) % R, f, f), "ds", tag=(u, f))]
        return [I(self.vread_t(u % R, f - 16, sec, f), "ds", tag=(u, f)) for sec in range(2) if part is None or part == sec]

    def dma_m0(self, which, slot, j):
        base = slot * TILE + (VBASE if which == "V" else 0) + (PIECE - 1024) * j
        return I(f"s_add_u32 m0, s{sWb}, {base}", "s")
    def dma_ld(self, which, j):
        s, so, p = {"K": (sK, sKoff, self.o.kvpol), "V": (sV, sVoff, self.o.kvpol), "Q": (sQ, sQoff, self.o.qpol)}[which]
        return I(f"buffer_load_dwordx4 v{vD}, {srd(s)}, s{so} offen offset:{j*1024}{pol(p)} lds", "vm")
    def dma_adv(self, which):
        so = {"K": sKoff, "V": sVoff, "Q": sQoff}[which]
        return I(f"s_addk_i32 s{so}, {4096 if which == 'Q' else 16384}", "s")
    def dma_tile(self, which, slot):
        out = [self.dma_m0(which, slot, 0)]
        for j in range(4):
            out += [I("s_nop 0"), self.dma_ld(which, j)]
            if j < 3: out.append(I(f"s_addk_i32 m0, {PIECE-1024}", "s"))
        out.append(self.dma_adv(which))
        return out
    def dma_nodes(self, which, slot, deps, prev):
        out = []
        for j in range(4):
            m = Nd(self.dma_m0(which, slot, j).t, "s", deps=list(deps) + ([prev] if prev else []))
            l = Nd(self.dma_ld(which, j).t, "vm", deps=[(m, 1)])
            out += [m, l]; prev = l
        adv = Nd(self.dma_adv(which).t, "s", deps=[prev]); out.append(adv)
        return out, adv

    def qk_t(self, m, f, qt, buf, zero=False, first=None):
        d8, kt = dk(f)
        if first is None: first = d8 == 0
        c = ("0" if zero else Mr(qt)) if first else Sr(m, qt, kt)
        return f"{MF} {Sr(m,qt,kt)}, {Fr(buf)}, {Qr(qt,d8)}, {c}"
    def pv_t(self, m, dt, qt, buf, zero=False):
        return f"{MF} {Or(qt,dt)}, {Fr(buf)}, {Pr(m,qt)}, {'0' if zero else Or(qt,dt)}"

    def E_ops(self, qts=range(4), acc=None):
        o = self.o
        acc = acc or vLt
        ex, ad, cv, Eexp, Epl = {}, {}, {}, [], []
        for qt in qts:
            for k in range(8):
                ex[(qt, k)] = Op(f"exp{qt}{k}", (lambda m, qt=qt, k=k: f"v_exp_f32 v{X(m,qt,k)}, v{X(m,qt,k)}"), cost=2, t0=(25 if k < 4 else 57) + 2 * (3 - qt) + 6)
                ex[(qt, k)].src = (qt, k >> 2)
                Eexp.append(ex[(qt, k)])
            ad[(qt, 1)] = Op(f"add{qt}1", (lambda m, qt=qt: f"v_add_f32 v{acc[qt]}, v{X(m,qt,0)}, v{X(m,qt,1)}"), deps=[ex[(qt, 0)], ex[(qt, 1)]])
            ad[(qt, 0)] = ad[(qt, 1)]
            for k in range(2, 8):
                ad[(qt, k)] = Op(f"add{qt}{k}", (lambda m, qt=qt, k=k: f"v_add_f32 v{acc[qt]}, v{acc[qt]}, v{X(m,qt,k)}"), deps=[ex[(qt, k)], ad[(qt, k - 1)]])
            for j in range(4):
                deps = [ex[(qt, 2 * j)], ex[(qt, 2 * j + 1)], ad[(qt, j)]] + ([cv[(qt, j >> 1)]] if j else [])
                cv[(qt, j)] = Op(f"cvt{qt}{j}", (lambda m, qt=qt, j=j: f"v_cvt_pk_bf16_f32 v{X(m,qt,j)}, v{X(m,qt,2*j)}, v{X(m,qt,2*j+1)}"), deps=deps)
            for k in range(1, 8):
                Epl.append(ad[(qt, k)])
                if k & 1: Epl.append(cv[(qt, k >> 1)])
        return Eexp, Epl
    def C_ops(self, Epl):
        la = [op for op in Epl if op.name.startswith("add") and op.name.endswith("7")]
        c1 = Op("chk1", (lambda m: f"v_max3_f32 v{vC}, v{vLt[0]}, v{vLt[1]}, v{vLt[2]}"), deps=la[:3])
        c2 = Op("chk2", (lambda m: f"v_max_f32 v{vC}, v{vC}, v{vLt[3]}"), deps=[c1, la[3]])
        cmp = Op("cmp", (lambda m: f"v_cmp_lt_f32 vcc, s{sThr}, v{vC}"), deps=[c2])
        mg = [Op(f"mrg{qt}", (lambda m, qt=qt: f"v_add_f32 v{vL[qt]}, v{vL[qt]}, v{vLt[qt]}")) for qt in range(4)]
        return [c1, c2, cmp], mg
    def to_nodes(self, ops, m, extra=None, only=None):
        nd = {}
        for op in ops:
            if only is not None and op.name not in only: continue
            nd[op] = Nd(op.fn(m), "t" if op.cost == 2 else "v"); nd[op].name = op.name
        for op, n in nd.items():
            for d in op.deps:
                if d in nd: n.deps.append((nd[d], 1 if d.cost == 2 else 0))
            if extra: n.deps += extra(op)
        return list(nd.values())
    @staticmethod
    def E_order(Eexp, Epl):
        return Epl + Eexp

    def mf_at(self, g):
        p = g >> 3
        j, qt, e = list(walk(2, p + (1 if 8 <= p < 16 else 0)))[g & 7]
        return 2 * p + j, qt, e

    def plan(self):
        o = self.o
        used = [0] * NG
        self.ds_at = [[] for _ in range(NG)]
        self.barE, self.barM, self.barV = o.bar_gap + 128, 64 - o.look - 2, 128 - o.look - 2
        g = self.barE + 1
        self.npre = 0
        for f in range(64):
            want = 4 * f - o.look
            if want < 0:
                pos = max(want + NG, g)
                assert pos < NG - 1
                self.ds_at[pos].append((f, None, True)); used[pos] += 1
                g = pos + o.kstep; self.npre = f + 1
                continue
            pos = want
            for p in ([None] if f < 32 else [0, 1]):
                while used[pos] > 0: pos += 1
                assert pos < self.barE - 6
                self.ds_at[pos].append((f, p, False)); used[pos] += 1
        self.dma_at = {}
        pos = o.dma0
        for k in range(16):
            if k == 4: pos = o.dma1
            while used[pos] > 0 or pos % 8 == 0: pos += 1
            assert (0 < pos < self.barM - 3) if k < 4 else (self.barV + 1 < pos < self.barE - 3)
            self.dma_at[pos] = k
            used[pos] = 2
            pos += o.dmastep if k < 4 else o.dmastep1
        used[NG - 1] += 1
        used[self.barE] = 2
        done, start = {}, {}
        for g in range(128):
            f, qt, e = self.mf_at(g)
            done[(f >> 4, qt, dk(f & 15)[1])] = g
            start.setdefault((f >> 4, qt, dk(f & 15)[1]), g)
        scal = set()
        for g, k in self.dma_at.items():
            scal.add(g - 1)
            if k % 4 == 3: scal.add(g + 2)
        for b in (self.barE, self.barM, self.barV): scal |= {b, b - 1}
        busy = lambda g: g % 8 == 7 or (g % NG) in scal
        self.va_at = [[[] for _ in range(2 * NG)] for _ in range(2)]
        self.t_br = [None, None]
        rdy = lambda op, t: op.t0 <= t and all(d.t is not None and d.t < t for d in op.deps)
        tnext = 0
        for w in range(2):
            Eexp, Epl = self.E_ops()
            chk, mg = self.C_ops(Epl)
            for op in Eexp: op.t0 = max(done[(w,) + op.src] + o.sgap, tnext, o.e2start if w else 0)
            if w == 1:
                chk[0].t0 = NG
                for k, op in enumerate(Eexp): op.t0 = max(op.t0, o.e2start + k * o.pace // 10)
            if w == 0:
                Eexp.sort(key=lambda op: op.t0)
                hi = lambda op: int(op.name[4]) >= (4 if op.name.startswith("add") else 2)
                Epl.sort(key=lambda op: (hi(op), done[(0, int(op.name[3]), 1)]))
            Epl = Epl + chk
            allops = Eexp + Epl
            def put(op, t): op.t = t; self.va_at[w][t].append(op); used[t % NG] += op.cost
            t = min(op.t0 for op in Eexp)
            while Eexp or Epl:
                free = 2 - used[t % NG]
                backlog = sum(1 for op in Epl if all(d.t is not None for d in op.deps if d.cost == 2) and op not in chk)
                re = [op for op in Eexp if rdy(op, t)]
                if free == 2 and re and backlog < o.backlog:
                    Eexp.remove(re[0]); put(re[0], t)
                else:
                    for op in list(Epl):
                        if free == 0: break
                        if rdy(op, t): Epl.remove(op); put(op, t); free -= 1
                    if free == 2 and re: Eexp.remove(re[0]); put(re[0], t)
                t += 1
            tb = t + o.br_delay
            if w: tb = max(tb, NG + 1)
            while busy(tb): tb += 1
            self.t_br[w] = tb
            t = tb
            while mg:
                if used[t % NG] < 2: put(mg.pop(0), t)
                else: t += 1
            tnext = t + 1
            for qt in range(4):
                last = max(op.t for op in allops if op.name[:4] in (f"add{qt}", f"cvt{qt}"))
                lim = start[(1, qt, 1)] if w == 0 else NG + start[(0, qt, 1)]
                assert last < lim, ("high quad released too late", w, qt, last, lim)
            if w == 0: assert tb < 126
            else: assert tb - NG < self.barM - 1 and tnext - NG <= min(op.t for tt in self.va_at[0] for op in tt if op.name.startswith("add")), (tb, tnext)
        assert self.t_br[1] - NG <= min(op.t for tt in self.va_at[0] for op in tt)
        self.part1 = {op.name for t in range(0, NG) for op in self.va_at[1][t]}
        self.part2 = {op.name for t in range(NG, 2 * NG) for op in self.va_at[1][t]}
        if o.verbose:
            print("br", self.t_br, "npre", self.npre, "part2", len(self.part2), file=sys.stderr)
            for h in range(2): print("".join(map(str, used[128 * h:128 * h + 128])), file=sys.stderr)

    def cread(self, c, f, part=None):
        j = 1 + 2 * c
        if f < 32: return [I(self.kread_t((j + 1 + (f >> 4)) % R, f & 15, f), "ds", tag=(c, f))]
        return [I(self.vread_t((j + (f & 1)) % R, (f - 32) >> 1, sec, f), "ds", tag=(c, f)) for sec in range(2) if part is None or part == sec]

    def body(self, c):
        o = self.o
        j = 1 + 2 * c
        mP, m1, m2 = (1, 4, 5) if c == 0 else (5, 4, 1)
        desc = lambda k: (("K", (j + 3) % R), ("K", j % R), ("V", (j + 2) % R), ("V", (j + 3) % R))[k >> 2] + (k & 3,)
        out = []
        for g in range(NG):
            f, qt, e = self.mf_at(g)
            if f < 32: t = self.qk_t(m1 if f < 16 else m2, f & 15, qt, f, first=((g >> 3) & 3) == 0 and e == 0)
            else: t = self.pv_t(m1 if f & 1 else mP, (f - 32) >> 1, qt, f)
            out.append(I(t, "m"))
            sc, ds, vm, va = [], [], [], []
            if g % 8 == 7:
                f1 = (g + 1) // 4 + 1
                sc.append(I(None, "wl", need=(c, f1) if f1 < 64 else (1 - c, 1)))
            if g == self.barE - 1: sc.append(I("s_waitcnt vmcnt(12) lgkmcnt(0)", "w0"))
            if g == self.barM - 1: sc.append(I("s_waitcnt vmcnt(12)"))
            if g == self.barV - 1: sc.append(I("s_waitcnt vmcnt(4)"))
            if g in (self.barE, self.barM, self.barV): sc.append(I("s_barrier"))
            if g + 1 in self.dma_at: sc.append(self.dma_m0(*desc(self.dma_at[g + 1])))
            if g in self.dma_at:
                wh, _, jj = desc(self.dma_at[g]); vm.append(self.dma_ld(wh, jj))
            if g - 2 in self.dma_at and self.dma_at[g - 2] % 4 == 3: sc.append(self.dma_adv(desc(self.dma_at[g - 2])[0]))
            for (ff, p, nx) in self.ds_at[g]: ds += self.cread(1 - c if nx else c, ff, p)
            if g == self.t_br[1] - NG:
                sc += [I(f"s_cbranch_vccnz L_rare{2*c}", "s"), I(f"L_back{2*c}:", "l")]
                self.rares.append(self.rare_q(str(2 * c), mP, j % R, [], m1))
            if g == self.t_br[0]:
                sc += [I(f"s_cbranch_vccnz L_rare{2*c+1}", "s"), I(f"L_back{2*c+1}:", "l")]
                self.rares.append(self.rare_q(str(2 * c + 1), m1, (j + 1) % R, [mP], m2))
            for op in self.va_at[1][g + NG]: va.append(I(op.fn(mP), "v"))
            for op in self.va_at[0][g]: va.append(I(op.fn(m1), "v"))
            for op in self.va_at[1][g]: va.append(I(op.fn(m2), "v"))
            if c == 1 and g == NG - 3: sc.append(I(f"s_sub_u32 s{sCnt}, s{sCnt}, 1", "s"))
            if c == 1 and g == NG - 2: sc.append(I(f"s_cmp_lg_u32 s{sCnt}, 0", "s"))
            out += sc + ds + vm + va
        if c == 1: out.append(I("s_cbranch_scc1 L_loop", "s"))
        return out

    def rare_q(self, name, m, kslot, pend, prog):
        out = [I(f"L_rare{name}:", "l")]
        a = lambda t: out.append(I(t))
        fb = ("v", vLt[0])
        m += 10
        t, t2, f = vLt[0], vLt[1], vLt[2]
        a("s_nop 7")
        for qt in range(4):
            for fr in range(16):
                a(self.kread_t(kslot, fr, fb))
                a("s_waitcnt lgkmcnt(0)")
                a(self.qk_t(m, fr, qt, fb))
                a("s_nop 7")
            a("s_nop 3")
            x = lambda k: X(m, qt, k)
            a(f"v_max3_f32 v{t}, v{x(0)}, v{x(1)}, v{x(2)}")
            a(f"v_max3_f32 v{t}, v{t}, v{x(3)}, v{x(4)}")
            a(f"v_max3_f32 v{t}, v{t}, v{x(5)}, v{x(6)}")
            a(f"v_max_f32 v{t}, v{t}, v{x(7)}")
            for sw in ("v_permlane16_swap_b32", "v_permlane32_swap_b32"):
                a(f"v_mov_b32 v{t2}, v{t}"); a("s_nop 1"); a(f"{sw} v{t}, v{t2}"); a("s_nop 1"); a(f"v_max_f32 v{t}, v{t}, v{t2}")
            a(f"v_ceil_f32 v{t}, v{t}")
            a(f"v_max_f32 v{t}, 0, v{t}")
            for k in range(4): a(f"v_sub_f32 v{Mb(qt)+k}, v{Mb(qt)+k}, v{t}")
            for k in range(8): a(f"v_sub_f32 v{x(k)}, v{x(k)}, v{t}")
            for k in range(8): a(f"v_sub_f32 v{X(prog,qt,k)}, v{X(prog,qt,k)}, v{t}")
            a(f"v_min_f32 v{t2}, 0x43480000, v{t}")
            a(f"v_cvt_i32_f32 v{t2}, v{t2}")
            a(f"v_sub_u32 v{t2}, 0, v{t2}")
            a(f"v_ldexp_f32 v{f}, 1.0, v{t2}")
            a(f"v_mul_f32 v{vL[qt]}, v{vL[qt]}, v{f}")
            for pm in pend:
                for j in range(4):
                    p = X(pm, qt, j)
                    a(f"v_lshlrev_b32 v{t}, 16, v{p}")
                    a(f"v_and_b32 v{t2}, 0xffff0000, v{p}")
                    a(f"v_mul_f32 v{t}, v{t}, v{f}")
                    a(f"v_mul_f32 v{t2}, v{t2}, v{f}")
                    a(f"v_cvt_pk_bf16_f32 v{p}, v{t}, v{t2}")
            for a0 in range(qt * 64, qt * 64 + 64, 2):
                a(f"v_accvgpr_read_b32 v{t}, a{a0}"); a(f"v_accvgpr_read_b32 v{t2}, a{a0+1}")
                a(f"v_mul_f32 v{t}, v{t}, v{f}"); a(f"v_mul_f32 v{t2}, v{t2}, v{f}")
                a(f"v_accvgpr_write_b32 a{a0}, v{t}"); a(f"v_accvgpr_write_b32 a{a0+1}, v{t2}")
            for k in range(8): a(f"v_exp_f32 v{x(k)}, v{x(k)}")
            a("s_nop 0")
            for k in range(8): a(f"v_add_f32 v{vL[qt]}, v{vL[qt]}, v{x(k)}")
            for j in range(4): a(f"v_cvt_pk_bf16_f32 v{x(j)}, v{x(2*j)}, v{x(2*j+1)}")
        for qt in range(4): a(f"v_mov_b32 v{vLt[qt]}, 0")
        a("s_nop 1")
        a(f"s_branch L_back{name}")
        return out

    def rare(self, name, m, kslot, pend, prog, mcopy=None):
        out = [I(f"L_rare{name}:", "l")]
        a = lambda t: out.append(I(t))
        fb = ("v", vLt[0])
        a("s_nop 7")
        for f in range(16):
            a(self.kread_t(kslot, f, fb))
            a("s_waitcnt lgkmcnt(0)")
            for qt in range(4): a(self.qk_t(m, f, qt, fb, zero=True))
            a("s_nop 7")
        a("s_nop 7")
        t, t2, f = vC, vLt[0], vLt[1]
        for qt in range(4):
            x = lambda k: X(m, qt, k)
            mreg = mcopy[qt] if mcopy else Mb(qt)
            for k in range(8): a(f"v_add_f32 v{x(k)}, v{x(k)}, v{mreg}")
            a(f"v_max3_f32 v{t}, v{x(0)}, v{x(1)}, v{x(2)}")
            a(f"v_max3_f32 v{t}, v{t}, v{x(3)}, v{x(4)}")
            a(f"v_max3_f32 v{t}, v{t}, v{x(5)}, v{x(6)}")
            a(f"v_max_f32 v{t}, v{t}, v{x(7)}")
            for sw in ("v_permlane16_swap_b32", "v_permlane32_swap_b32"):
                a(f"v_mov_b32 v{t2}, v{t}"); a("s_nop 1"); a(f"{sw} v{t}, v{t2}"); a("s_nop 1"); a(f"v_max_f32 v{t}, v{t}, v{t2}")
            a(f"v_ceil_f32 v{t}, v{t}")
            a(f"v_max_f32 v{t}, 0, v{t}")
            if mcopy: a(f"v_sub_f32 v{mreg}, v{mreg}, v{t}")
            else:
                for k in range(4): a(f"v_sub_f32 v{mreg+k}, v{mreg+k}, v{t}")
            for k in range(8): a(f"v_sub_f32 v{x(k)}, v{x(k)}, v{t}")
            if prog is not None:
                for k in range(8): a(f"v_sub_f32 v{X(prog,qt,k)}, v{X(prog,qt,k)}, v{t}")
            a(f"v_min_f32 v{t2}, 0x43480000, v{t}")
            a(f"v_cvt_i32_f32 v{t2}, v{t2}")
            a(f"v_sub_u32 v{t2}, 0, v{t2}")
            a(f"v_ldexp_f32 v{f}, 1.0, v{t2}")
            a(f"v_mul_f32 v{vL[qt]}, v{vL[qt]}, v{f}")
            for pm in pend:
                for j in range(4):
                    p = X(pm, qt, j)
                    a(f"v_lshlrev_b32 v{t}, 16, v{p}")
                    a(f"v_and_b32 v{t2}, 0xffff0000, v{p}")
                    a(f"v_mul_f32 v{t}, v{t}, v{f}")
                    a(f"v_mul_f32 v{t2}, v{t2}, v{f}")
                    a(f"v_cvt_pk_bf16_f32 v{p}, v{t}, v{t2}")
            for a0 in range(qt * 64, qt * 64 + 64, 2):
                a(f"v_accvgpr_read_b32 v{t}, a{a0}"); a(f"v_accvgpr_read_b32 v{t2}, a{a0+1}")
                a(f"v_mul_f32 v{t}, v{t}, v{f}"); a(f"v_mul_f32 v{t2}, v{t2}, v{f}")
                a(f"v_accvgpr_write_b32 a{a0}, v{t}"); a(f"v_accvgpr_write_b32 a{a0+1}, v{t2}")
        Eexp, Epl = self.E_ops()
        for op in Eexp: a(op.fn(m))
        a("s_nop 0")
        for op in Epl:
            if op.name.startswith("add"): a(op.fn(m))
        for op in Epl:
            if op.name.startswith("cvt"): a(op.fn(m))
        a("s_nop 1")
        a(f"s_branch L_back{name}")
        return out

    def stamp(self, idx):
        if not self.o.stamps: return []
        return [I(f"s_memtime s[{40+2*idx}:{41+2*idx}]", "sm"), I(f"s_memrealtime s[{68+2*idx}:{69+2*idx}]", "sm")]

    def frag_stream(self, specs, j0, users_prev=None):
        fr = []
        for j, (kind, slot, idx, tag, deps, *bb) in enumerate(specs):
            buf = bb[0] if bb else j0 + j
            if kind == "done": nodes = []
            elif kind == "K": nodes = [Nd(self.kread_t(slot, idx, buf), "ds", deps=list(deps), tag=tag)]
            else: nodes = [Nd(self.vread_t(slot, idx, s, buf), "ds", deps=list(deps), tag=tag) for s in range(2)]
            fr.append(dict(nodes=nodes, buf=buf, tag=tag, users=[]))
        prev = None
        for f in fr:
            for n in f["nodes"]:
                if prev: n.deps.append((prev, 0))
                prev = n
        return fr
    def link_users(self, fr, depth):
        for j, f in enumerate(fr):
            if j - depth >= 0 and fr[j - depth]["users"]:
                for n in f["nodes"]: n.deps.append((fr[j - depth]["users"][-1], 0))
    def mf(self, f, text, deps=(), cap=None):
        first = not f["users"]
        m = Nd(text, "m", deps=list(deps) + [(n, 0) for n in f["nodes"]], need=f["tag"] if first else None, cap=cap)
        f["users"].append(m)
        return m

    def prologue(self):
        o = self.o
        S = Sched()
        a = lambda t, k="o", **kw: S.raw([I(t, k, **kw)])
        lane, w, t0, t1, t2, vQr = vT + 8, vT + 9, vT + 10, vT + 11, vT + 12, vT + 14
        a("s_cmpk_ge_u32 s2, 0x100")
        a("s_cbranch_scc1 L_end")
        a("s_load_dwordx8 s[28:35], s[0:1], 0", "sm")
        if o.stamps:
            a(f"s_load_dwordx2 s[36:37], s[0:1], {32 if o.dbg else 40}", "sm")
            a("s_memrealtime s[38:39]", "sm")
            S.raw(self.stamp(0))
        if o.codepf:
            a("s_getpc_b64 s[96:97]")
            a(f"v_lshlrev_b32 v{t0}, 7, v0")
            a(f"global_load_dword v{vT+15}, v{t0}, s[96:97]", "vm")
        a(f"v_lshrrev_b32 v{w}, 6, v0")
        a(f"v_and_b32 v{lane}, 63, v0")
        a(f"v_and_b32 v{t1}, 32, v0")
        a(f"v_readfirstlane_b32 s{sWb}, v{w}")
        a(f"v_lshlrev_b32 v{vD}, 4, v{lane}")
        a(f"v_xor_b32 v{vD}, v{vD}, v{t1}")
        a("s_lshr_b32 s3, s2, 4")
        a("s_and_b32 s87, s2, 7")
        a("s_lshl3_add_u32 s3, s3, s87")
        a("s_and_b32 s87, s2, 8")
        a(f"s_lshl1_add_u32 s{sRow}, s{sWb}, s87")
        a(f"s_lshl_b32 s{sQoff}, s{sRow}, 14")
        a(f"s_lshl_b32 s{sKoff}, s{sWb}, 12")
        a(f"s_mulk_i32 s{sWb}, {4*PIECE}")
        a("s_mul_i32 s87, s3, 253952")
        a(f"s_mov_b32 s{sQ+2}, 253952")
        a(f"s_mov_b32 s{sQ+3}, 0x20000")
        a(f"s_add_u32 m0, s{sWb}, {8*TILE}")
        a(f"s_movk_i32 s{sCnt}, 2")
        a("s_waitcnt lgkmcnt(0)", "w0")
        a(f"s_add_u32 s{sQ}, s28, s87")
        a(f"s_addc_u32 s{sQ+1}, s29, 0")
        if o.exp_delay:
            a(f"s_bitcmp1_b32 s2, {o.exp_bit}")
            a("s_cbranch_scc0 L_q")
            a(f"s_sleep {o.exp_delay}")
        a("L_q:", "l")
        for j in range(4):
            S.raw([self.dma_ld("Q", j)])
            if j < 3:
                a(f"s_addk_i32 m0, {PIECE-1024}", "s")
                a(f"s_sub_u32 s{sCnt}, s{sCnt}, 1" if j == 0 else "s_nop 0")
        a(f"s_addk_i32 m0, {-(TILE + 3*(PIECE-1024))}", "s")
        S.raw([self.dma_adv("Q")])
        a(f"s_cmp_lg_u32 s{sCnt}, 0")
        a("s_cbranch_scc1 L_q")
        a("s_lshl_b32 s3, s3, 19")
        for (s, p) in ((sK, 30), (sV, 32)):
            a(f"s_add_u32 s{s}, s{p}, s3")
            a(f"s_addc_u32 s{s+1}, s{p+1}, 0")
            a(f"s_mov_b32 s{s+2}, 524288")
            a(f"s_mov_b32 s{s+3}, 0x20000")
        a(f"s_mov_b32 s{sVoff}, s{sKoff}")
        S.raw(self.dma_tile("K", 0) + self.dma_tile("K", 1) + self.dma_tile("V", 0))
        a(f"s_add_u32 s{sO}, s34, s87")
        a(f"s_addc_u32 s{sO+1}, s35, 0")
        a(f"s_mov_b32 s{sO+2}, 253952")
        a(f"s_mov_b32 s{sO+3}, 0x20000")
        a(f"s_lshl_b32 s{sRow}, s{sRow}, 14")
        for k in range(1, 8): a(f"s_add_u32 s{sRG[k]}, s{sRow}, {k*4096}")
        a(f"v_and_b32 v{t2}, 1, v{lane}")
        a(f"v_lshlrev_b32 v{t0}, 9, v{t2}")
        a(f"v_lshlrev_b32 v{t2}, 5, v{t2}")
        a(f"v_lshrrev_b32 v{t1}, 4, v{lane}")
        a(f"v_lshlrev_b32 v{t1}, 4, v{t1}")
        a(f"v_xor_b32 v{t1}, v{t1}, v{t2}")
        a(f"v_add_u32 v{t0}, v{t0}, v{t1}")
        a(f"v_bfe_u32 v{t1}, v{lane}, 1, 2")
        a(f"v_mul_u32_u24 v{t1}, {PIECE}, v{t1}")
        a(f"v_add_u32 v{t0}, v{t0}, v{t1}")
        a(f"v_bfe_u32 v{t1}, v{lane}, 3, 1")
        a(f"v_mul_u32_u24 v{vK}, {4*PIECE}, v{t1}")
        a(f"v_add_u32 v{vK}, v{vK}, v{t0}")
        a(f"v_xor_b32 v{t1}, 1, v{t1}")
        a(f"v_mul_u32_u24 v{vQr}, {TILE}, v{t1}")
        a(f"v_add_u32 v{vQr}, v{vQr}, v{t0}")
        a(f"s_add_u32 s87, s{sWb}, {5*TILE}")
        a(f"v_add_u32 v{vQr}, s87, v{vQr}")
        a(f"v_subrev_u32 v{vQr-1}, {3*TILE}, v{vQr}")
        a(f"v_lshrrev_b32 v{t0}, 3, v{lane}")
        a(f"v_mul_u32_u24 v{t0}, {PIECE}, v{t0}")
        a(f"v_bfe_u32 v{t2}, v{lane}, 2, 1")
        a(f"v_lshl_add_u32 v{t0}, v{t2}, 9, v{t0}")
        a(f"v_and_b32 v{t1}, 3, v{lane}")
        a(f"v_lshl_add_u32 v{t0}, v{t1}, 3, v{t0}")
        a(f"v_add_u32 v{t0}, {VBASE}, v{t0}")
        a(f"v_lshl_add_u32 v{vVe}, v{t2}, 5, v{t0}")
        a(f"v_xor_b32 v{vVo}, 32, v{vVe}")
        c = 1.4426950408889634 / 16.0
        a(f"s_mov_b32 s{sC}, {hex(f32bits(c))}")
        a(f"s_mov_b32 s{sNC}, {hex(f32bits(-c))}")
        a(f"s_mov_b32 s{sThr}, {hex(f32bits(o.thr))}")
        a(f"s_movk_i32 s{sCnt}, 7")
        a(f"s_mov_b32 s{sMask}, 0xffff0000")
        def qchunks(hi_slot):
            return self.dma_tile("Q", hi_slot) + self.dma_tile("Q", hi_slot - 1)
        def qread(qt):
            base, off = {0: (vQr, 2 * TILE), 1: (vQr, 0), 2: (vQr - 1, 0), 3: (vQr, 2 * TILE)}[(3 - qt) if (o.deep and qt in (1, 2)) else qt]
            return [I(f"ds_read_b128 {Qr(qt,d8)}, v{base} offset:{off + 64*d8}", "ds", tag=("q", qt, d8)) for d8 in range(8)]
        def prescale(qt, tb, nt, pk, deps=()):
            out, lastcv = [], {}
            for g in range(0, 32, nt):
                rs = [(32 * qt + g + i, tb + 2 * i) for i in range(nt)]
                w = lambda t: [lastcv[t]] if t in lastcv else []
                lo = [Nd(f"v_lshlrev_b32 v{t}, 16, v{r}", "v", deps=list(deps) + w(t)) for r, t in rs]
                hi = [Nd(f"v_and_b32 v{t+1}, s{sMask}, v{r}", "v", deps=list(deps) + w(t)) for r, t in rs]
                if pk: mu = [[Nd(f"v_pk_mul_f32 v[{t}:{t+1}], v[{t}:{t+1}], s[{sC}:{sC+1}] op_sel_hi:[1,0]", "v", deps=[lo[i], hi[i]])] for i, (r, t) in enumerate(rs)]
                else: mu = [[Nd(f"v_mul_f32 v{t}, s{sC}, v{t}", "v", deps=[lo[i]]), Nd(f"v_mul_f32 v{t+1}, s{sC}, v{t+1}", "v", deps=[hi[i]])] for i, (r, t) in enumerate(rs)]
                cv = [Nd(f"v_cvt_pk_bf16_f32 v{r}, v{t}, v{t+1}", "v", deps=mu[i]) for i, (r, t) in enumerate(rs)]
                for i, (r, t) in enumerate(rs): lastcv[t] = cv[i]
                out += lo + hi + sum(mu, []) + cv
            return out
        S.raw(qchunks(3 if o.deep else 6))
        a("s_waitcnt vmcnt(20)")
        S.raw(qread(0))
        a("s_waitcnt lgkmcnt(0)", "w0")
        S.run([], prescale(0, 128, 4, True))
        if o.deep:
            S.raw(qchunks(6))
            a("s_waitcnt vmcnt(16)")
        else:
            S.raw(self.dma_tile("Q", 3))
            a("s_waitcnt vmcnt(12)")
        a("s_barrier")
        if o.stamps: S.raw(self.stamp(1))
        groups = [[0], [1], [2], [3]]
        bar = Nd([I("s_waitcnt vmcnt(12) lgkmcnt(0)", "w0"), I("s_barrier")], "s")
        one = lambda kind, slot, idx, tag, buf, deps=(): self.frag_stream([(kind, slot, idx, tag, list(deps), buf)], 0)[0]
        K0p = [one("K", 0, f, ("k0", f), ("a", 192 + 4 * f)) for f in range(16)]
        K1p = [one("K", 1, f, ("k1", f), ("v", 96 + 4 * f) if f < 8 else f) for f in range(16)]
        assert {"cvt03", "cvt13", "add07", "add17"} <= self.part1
        K1q = [one("K", 1, f, ("k1b", f), ("v", b)) for f, b in enumerate([128, 132, 136, 140, X(1, 0, 4), X(1, 1, 4), 144, 148])]
        lastq = [("a", 64), ("a", 128), ("v", 152), ("v", 128)]
        Vp = [[one("V", 0, d, ("vp", r, d), ("a", 64 * r + 4 + 4 * d) if d < 15 else lastq[r]) for d in range(16)] for r in range(4)]
        K2p = self.frag_stream([("K", 2, f, (0, f), [bar], f) for f in range(self.npre)], 0)
        again = lambda F: [dict(nodes=f["nodes"], buf=f["buf"], tag=f["tag"], users=[]) for f in F]
        fr_all = []
        for r in range(4): fr_all += again(K0p) + (again(K1p) if r < 3 else K1q + again(K1p[8:])) + Vp[r]
        regions = []
        for gi, qts in enumerate(groups):
            F = fr_all[48 * gi:48 * gi + 48]
            mfs, pool = [], []
            lastm = {}
            neg, pos = ("-1.0", "1.0") if gi < 3 else (f"s{sNC}", f"s{sC}")
            for tl in range(2):
                for f in range(16):
                    for qt in qts:
                        m = self.mf(F[16 * tl + f], self.qk_t(tl, f, qt, F[16 * tl + f]["buf"], zero=True)); mfs.append(m); lastm[(tl, qt, dk(f)[1])] = m
            pdone = {}
            for qi, qt in enumerate(qts):
                t, t2 = vC + 2 * qi, vC + 2 * qi + 1
                vals = [(tl, k) for tl in range(2) for k in range(8)]
                src = lambda v: (lastm[(v[0], qt, v[1] >> 2)], 8)
                rg = lambda v: f"v{X(v[0], qt, v[1])}"
                ch = [Nd(f"v_max3_f32 v{t}, {rg(vals[0])}, {rg(vals[1])}, {rg(vals[2])}", "v", deps=[src(v) for v in vals[:3]])]
                for j in range(3, 15, 2):
                    ch.append(Nd(f"v_max3_f32 v{t}, v{t}, {rg(vals[j])}, {rg(vals[j+1])}", "v", deps=[ch[-1], src(vals[j]), src(vals[j + 1])]))
                ch.append(Nd(f"v_max_f32 v{t}, v{t}, {rg(vals[15])}", "v", deps=[ch[-1], src(vals[15])]))
                for sw in ("v_permlane16_swap_b32", "v_permlane32_swap_b32"):
                    ch.append(Nd(f"v_mov_b32 v{t2}, v{t}", "v", deps=[ch[-1]]))
                    ch.append(Nd(f"{sw} v{t}, v{t2}", "v", deps=[(ch[-1], 2)]))
                    ch.append(Nd(f"v_max_f32 v{t}, v{t}, v{t2}", "v", deps=[(ch[-1], 1)]))
                mm = Nd(f"v_mul_f32 v{Mb(qt)}, {neg}, v{t}", "v", deps=[ch[-1]]); ch.append(mm)
                cp = [Nd(f"v_mov_b32 v{Mb(qt)+k}, v{Mb(qt)}", "v", deps=[mm]) for k in range(1, 4)]
                fma = {v: Nd(f"v_fma_f32 {rg(v)}, {rg(v)}, {pos}, v{Mb(qt)}", "v", deps=[mm]) for v in vals}
                E0 = self.to_nodes(self.E_order(*self.E_ops([qt], vL)), 0, extra=lambda op: [(fma[(0, int(op.name[4]))], 0)] if op.name.startswith("exp") else [])
                E1 = self.to_nodes(self.E_order(*self.E_ops([qt])), 1, only=self.part1,
                                   extra=lambda op: [(fma[(1, int(op.name[4]))], 0)] if op.name.startswith("exp") else [])
                pdone[qt] = [n for n in E0 if n.name.startswith("cvt")]
                crit = [n for n in E0 if not n.name.startswith("add") or int(n.name[4]) < 4]
                rest = [n for n in E0 if n not in crit]
                pool.append((ch + [fma[v] for v in vals[:8]] + crit, rest + cp + [fma[v] for v in vals[8:]] + E1))
            for d in range(16):
                for qt in qts:
                    mfs.append(self.mf(F[32 + d], self.pv_t(0, d, qt, F[32 + d]["buf"], zero=True), deps=[(n, 2) for n in pdone[qt]], cap=o.pro_cap3 if gi == 3 else None))
            hi = [n for tup in zip(*[p[0] for p in pool]) for n in tup]
            lo = sum((p[1] for p in pool), [])
            regions.append((mfs, hi + lo))
        assert not any(n.startswith(("chk", "cmp")) for n in self.part1)
        dsn = lambda F: [n for f in F for n in f["nodes"]]
        def after(F, m):
            for n in dsn(F): n.deps.append((m, 0))
        def spread(dm, ms, g0, step):
            k = 0
            for n in dm:
                if n.k == "vm":
                    n.soft.append((ms[min(len(ms) - 1, g0 + step * k)], 0)); k += 1
        m0, m1, m2, mfs = [r[0] for r in regions]
        V3p = Vp[3]
        for n in dsn(Vp[1] + Vp[2] + K1q): n.low = True
        for n in regions[2][1] + [m2[-1]]: after(K1q[6:], n)
        for d in range(16): after([V3p[d]], mfs[d + 1])
        plan = [("Q", 8), ("Q", 7), ("K", 2), ("V", 1), ("K", 3)] if o.deep else [("Q", 2), ("Q", 8), ("Q", 7), ("K", 2), ("K", 3)]
        vw = 12 if o.deep else 8
        qb, e = self.dma_nodes(*plan[0], [], None)
        spread(qb, m0, 4, 6)
        S.run([], dsn(K0p[:6]))
        S.run(m0, qb + dsn(K0p[6:] + K1p + Vp[0]) + regions[0][1] + dsn(Vp[1]), cap=4, dsmax=2)
        a(f"s_waitcnt vmcnt({vw})")
        S.raw(qread(1))
        a("s_waitcnt lgkmcnt(0)", "w0")
        qa, e = self.dma_nodes(*plan[1], [], None)
        qb, e = self.dma_nodes(*plan[2], [], e)
        S.run([], qa + prescale(1, 128, 4, True))
        spread(qb, m1, 0, 8)
        a("s_nop 1")
        S.run(m1, qb + regions[1][1] + dsn(Vp[2]), cap=o.pro_cap)
        a(f"s_waitcnt vmcnt({vw})")
        S.raw(qread(2))
        a("s_waitcnt lgkmcnt(0)", "w0")
        v1, e = self.dma_nodes(*plan[3], [], None)
        k2, e = self.dma_nodes(*plan[4], [], e)
        S.run([], v1 + prescale(2, 128, 4, True))
        spread(k2, m2, 0, 8)
        a("s_nop 1")
        S.run(m2, k2 + regions[2][1] + dsn(K1q), cap=o.pro_cap)
        a(f"s_waitcnt vmcnt({vw})")
        if o.stamps: S.raw(self.stamp(2))
        S.raw(qread(3))
        for f in range(16):
            if dk(f)[1] == 0: mfs[f].need = ("q", 3, dk(f)[0])
        d1, e1 = self.dma_nodes("V", 1, [(mfs[o.pro_dma], 0)], None)
        d2, e2 = self.dma_nodes("V", 2, [], e1)
        d3 = []
        for j in range(1, 16): V3p[j]["nodes"][0].deps.append((V3p[j - 1]["nodes"][-1], 0))
        bar.deps = [(V3p[15]["nodes"][-1], o.pro_bar), (mfs[o.pro_barm], 0), (e2, 0)]
        ps3 = prescale(3, 132, 4, False, deps=[(mfs[31], 0)])
        S.run(mfs, dsn(V3p) + regions[3][1] + d1 + d2 + d3 + [bar] + dsn(K2p) + ps3, cap=o.pro_cap, dsmax=1)
        a("s_nop 1")
        S.raw([I(None, "wl", need=(0, 1))])
        if o.stamps: S.raw(self.stamp(3) + self.stamp(4))
        return S.out

    def tail(self):
        o = self.o
        S = Sched()
        a = lambda t, k="o", **kw: S.raw([I(t, k, **kw)])
        M29, M30, M31 = 1, 0, 2
        bar = Nd([I("s_waitcnt vmcnt(12)"), I("s_barrier")], "s")
        barV = Nd([I("s_waitcnt vmcnt(0)"), I("s_barrier")], "s")
        dv, ev = self.dma_nodes("V", 3, [], None)
        touch = []
        if o.otouch:
            tm = Nd(f"s_add_u32 m0, s{sWb}, {8*TILE}", "s", deps=[bar])
            touch = [tm, Nd(f"buffer_load_dword off, {srd(sO)}, s{sRow} lds", "vm", deps=[(tm, 1)])]
        specs = [("done" if f < self.npre else "K", 2, f, (0, f), []) for f in range(16)]
        o31 = list(range(16))
        specs += [("K", 3, f, ("t", 31, f), [bar] if f == 0 else []) for f in o31]
        pvgroups = [[(0, d), (1, d)] for d in range(4)] + ([[(2, d) for d in range(4)]] if o.cb0quad else [[(2, 0), (2, 1)], [(2, 2), (2, 3)]])
        pvgroups += [[(tl, dt) for tl in range(3)] for dt in range(4, 16)]
        nlate = 0
        if o.late29:
            pvgroups = [[(0, d), (0, d + 1)] for d in range(4, 16, 2)] + pvgroups[:5] + [[(tl, dt) for tl in (1, 2)] for dt in range(4, 16)]
            nlate = 12
        pvorder = sum(pvgroups, [])
        specs += [("V", 1 + tl, dt, ("t", "v", tl, dt), [barV]) for tl, dt in pvorder]
        fr = self.frag_stream(specs, 0)
        mfs, lastm = [], {}
        for p in range(8):
            for j, qt, e in walk(2, p):
                f = 2 * p + j
                m = self.mf(fr[f], self.qk_t(M30, f, qt, f, first=(p & 3) == 0 and e == 0)); mfs.append(m); lastm[(30, qt, dk(f)[1])] = m
        mfs[0].waited = True; mfs[1].waited = True
        mcopy = vS + [vD]
        def EC(tile, m, only, prevbr, prevmg, brdeps, rare_args):
            Eexp, Epl = self.E_ops()
            chk, mg = self.C_ops(Epl)
            def ex(op):
                d = []
                if op.name.startswith("exp"):
                    if (tile,) + op.src in lastm: d.append((lastm[(tile,) + op.src], 8))
                    if prevbr: d.append((prevbr, 0))
                if op.name.startswith("add") and op.name.endswith("1") and prevmg: d.append((prevmg[int(op.name[3])], 0))
                return d
            En = self.to_nodes(Epl + chk + Eexp, m, extra=ex, only=only)
            cn = [n for n in En if n.name == "cmp"][0]
            br = Nd([I(f"s_cbranch_vccnz L_rare{tile}", "s"), I(f"L_back{tile}:", "l")], "s", deps=[(cn, 1)] + [(n, 0) for n in En] + brdeps)
            self.rares.append(self.rare(str(tile), m, tile % R, *rare_args))
            mn = self.to_nodes(mg, m, extra=lambda op: [(br, 0)])
            return En, br, mn
        E29, br29, mg29 = EC(29, M29, self.part2, None, None, [], ([], M30))
        cpy = [Nd(f"v_mov_b32 v{mcopy[qt]}, v{Mb(qt)}", "v", deps=[br29, ev]) for qt in range(4)]
        q31 = []
        for p in range(8):
            for jj, qt, e in walk(2, p):
                j = 2 * p + jj; f = o31[j]
                deps = [(br29, 0)] if p == 0 else ([(n, 0) for n in cpy] if p == 4 else [])
                m = self.mf(fr[16 + j], self.qk_t(M31, f, qt, 16 + j, first=(p & 3) == 0 and e == 0), deps=deps, cap=o.cap31)
                mfs.append(m); q31.append(m); lastm[(31, qt, dk(f)[1])] = m
        bar.deps = [(mfs[o.tail_bar], 0), (br29, 0), (ev, 0)]
        barV.deps = [(q31[30], 0)]
        E30, br30, mg30 = EC(30, M30, None, br29, mg29, [(n, 0) for n in cpy], ([M29], M31, mcopy))
        E31, br31, mg31 = EC(31, M31, None, br30, mg30, [], ([M29, M30], None, mcopy))
        ln, t0, t1, t2 = 108, 109, 110, 111
        vW0, vR, vQ = 123, 124, 125
        ad = [f"v_mbcnt_lo_u32_b32 v{ln}, -1, 0", f"v_mbcnt_hi_u32_b32 v{ln}, -1, v{ln}",
              f"v_and_b32 v{t0}, 15, v{ln}", f"v_lshlrev_b32 v{t0}, 7, v{t0}",
              f"v_bfe_u32 v{t1}, v{ln}, 4, 1", f"v_lshl_add_u32 v{t0}, v{t1}, 3, v{t0}", f"v_add_u32 v{t0}, s{sWb}, v{t0}",
              f"v_lshrrev_b32 v{t1}, 5, v{ln}", f"v_and_b32 v{t2}, 7, v{ln}", f"v_xor_b32 v{t1}, v{t1}, v{t2}",
              f"v_lshl_add_u32 v{vW0}, v{t1}, 4, v{t0}",
              f"v_lshrrev_b32 v{t0}, 3, v{ln}", f"v_xor_b32 v{t1}, v{t0}, v{t2}", f"v_lshlrev_b32 v{t1}, 4, v{t1}",
              f"v_lshl_add_u32 v{vR}, v{t0}, 7, v{t1}", f"v_add_u32 v{vR}, s{sWb}, v{vR}",
              f"v_lshlrev_b32 v{t2}, 4, v{t2}", f"v_lshl_add_u32 v{vQ}, v{t0}, 9, v{t2}"]
        adn = []
        for x in ad: adn.append(Nd(x, "v", deps=[adn[-1]] if adn else [br31]))
        brs = [br29, br30, br31]
        Pd = {}
        for tl, E in enumerate((E29, E30, E31)):
            for qt in range(4): Pd[(tl, qt)] = [n for n in E if n.name.startswith(f"cvt{qt}")]
        lastpv = {}
        maps = [M29, M30, M31]
        j0 = 0
        for gi, grp in enumerate(pvgroups):
            for jj, qt, e in walk(len(grp), gi):
                if True:
                    tl, dt = grp[jj]
                    j = j0 + jj
                    cap = o.cap_a if j < 8 + nlate else (o.cap_b if j < 12 + nlate else (o.cap_d if j < 15 + nlate else o.cap_c))
                    if o.pkall and j >= 8: cap = o.cap_hi if len(mfs) % o.clus == o.clus - 1 else 2
                    m = self.mf(fr[32 + j], self.pv_t(maps[tl], dt, qt, 32 + j), deps=[(n, 2) for n in Pd[(tl, qt)]] + [(brs[tl], 0)], cap=cap)
                    mfs.append(m); lastpv[(qt, dt)] = m
            j0 += len(grp)
        self.link_users(fr, 8)
        inv = [112 + 2 * qt for qt in range(4)]
        vW = [vW0, 120, 121, 122]
        small = []
        chains = []
        for qt in range(4):
            t, t2 = inv[qt], inv[qt] + 1
            ch = [Nd(f"v_mov_b32 v{t2}, v{vL[qt]}", "v", deps=[mg31[qt]])]
            ch.append(Nd(f"v_permlane16_swap_b32 v{vL[qt]}, v{t2}", "v", deps=[(ch[-1], 2)]))
            ch.append(Nd(f"v_add_f32 v{t}, v{vL[qt]}, v{t2}", "v", deps=[(ch[-1], 1)]))
            ch.append(Nd(f"v_mov_b32 v{t2}, v{t}", "v", deps=[ch[-1]]))
            ch.append(Nd(f"v_permlane32_swap_b32 v{t}, v{t2}", "v", deps=[(ch[-1], 2)]))
            ch.append(Nd(f"v_add_f32 v{t}, v{t}, v{t2}", "v", deps=[(ch[-1], 1)]))
            ch.append(Nd(f"v_rcp_f32 v{t}, v{t}", "t", deps=[ch[-1]]))
            chains.append(ch)
        small = [n for tup in zip(*chains) for n in tup]
        wn = [Nd(f"v_xor_b32 v{vW[k]}, {32*k}, v{vW0}", "v", deps=[adn[-1]]) for k in range(1, 4)]
        conv = []
        opol = [pol(x) for x in (o.opol.split(",") * 4)[:4]]
        wr_prev = {}; st_prev = {}; rd_prev = {}
        lastds = None
        for i, (cb, qt) in enumerate([(cb, qt) for cb in range(4) for qt in range(4)]):
            b = 16 * (i % 4)
            pk = cb == 3 or o.pkall
            a0 = Ob(qt, 4 * cb)
            war = [(wr_prev[i % 4], 1)] if i % 4 in wr_prev else [(br31, 0)]
            rdn = [Nd(f"v_accvgpr_read_b32 v{b+k}, a{a0+k}", "v", deps=[(lastpv[(qt, 4 * cb + (k >> 2))], 8)] + war) for k in range(16)]
            iv = (chains[qt][-1], 1)
            if pk: mu = [Nd(f"v_pk_mul_f32 v[{b+2*k}:{b+2*k+1}], v[{b+2*k}:{b+2*k+1}], v[{inv[qt]}:{inv[qt]+1}] op_sel_hi:[1,0]", "v", deps=[rdn[2 * k], rdn[2 * k + 1], iv]) for k in range(8)]
            else: mu = [Nd(f"v_mul_f32 v{b+k}, v{b+k}, v{inv[qt]}", "v", deps=[rdn[k], iv]) for k in range(16)]
            if pk:
                for n in mu: n.pk = True
            cv = []
            for k in range(8):
                deps = ([mu[k]] if pk else [mu[2 * k], mu[2 * k + 1]]) + ([cv[-1]] if cv else [])
                cv.append(Nd(f"v_cvt_pk_bf16_f32 v{b+k}, v{b+2*k}, v{b+2*k+1}", "v", deps=deps))
            rb = qt >> 1
            wr = []
            for k in range(4):
                deps = [cv[2 * k + 1], adn[-1]] + ([wn[k - 1]] if k else []) + ([rd_prev[rb]] if rb in rd_prev else [(bar, 0)]) + ([wr[-1]] if wr else [])
                wr.append(Nd(f"ds_write_b64 v{vW[k]}, v[{b+2*k}:{b+2*k+1}] offset:{rb*TILE + (qt&1)*2048}", "ds", deps=deps, tag=("w", i, k)))
            for n in wr: n.cost = o.wcost
            wr_prev[i % 4] = wr[-1]
            conv += wr + rdn + mu + cv
            if qt & 1:
                rbuf = 64 + 16 * ((i >> 1) % 3)
                u2 = (i >> 1) % 3
                rds = []
                for k in range(4):
                    deps = [wr[-1], prev_wr] + ([(st_prev[u2], 2)] if u2 in st_prev else []) + ([rds[-1]] if rds else [])
                    rds.append(Nd(f"ds_read_b128 v[{rbuf+4*k}:{rbuf+4*k+3}], v{vR} offset:{rb*TILE + k*1024}", "ds", deps=deps, tag=("r", i, k)))
                rd_prev[rb] = rds[-1]
                sts = []
                for k in range(4):
                    kk = 4 * rb + k
                    so = f"s{sRow}" if kk == 0 else f"s{sRG[kk]}"
                    sts.append(Nd(f"buffer_store_dwordx4 v[{rbuf+4*k}:{rbuf+4*k+3}], v{vQ}, {srd(sO)}, {so} offen offset:{128*cb}{opol[cb]}", "vm",
                                  deps=[rds[k]] + ([sts[-1]] if sts else []), soft=[(rds[k], o.st_dist)], need=("r", i, k)))
                st_prev[u2] = sts[-1]
                conv = self._hoist(conv, rds + sts)
            prev_wr = wr[-1]
        ds = [n for f in fr for n in f["nodes"]]
        pool = ds + dv + [br29, bar, barV] + touch + E29 + mg29 + cpy + [br30] + E30 + mg30 + [br31] + E31 + mg31 + small + adn + wn + conv
        S.run(mfs, pool, dsmax=o.tail_dsmax)
        T = S.out
        if o.ab_drop:
            dr = tuple(o.ab_drop.split(","))
            for it in T:
                if it.t and it.t.startswith(dr): it.t = "s_nop 0" if o.ab_nop else None; it.k = "ds" if it.k == "ds" else "o"
        a2 = lambda t, k="o": T.append(I(t, k))
        if o.stamps:
            i1 = max(i for i, it in enumerate(T) if it.k == "m")
            T[i1 + 1:i1 + 1] = self.stamp(7)
            i0 = min(i for i, it in enumerate(T) if it.t and it.t.startswith("buffer_store"))
            T[i0:i0] = self.stamp(6)
            a2("s_waitcnt vmcnt(0)")
            T += self.stamp(8)
            a2("s_memrealtime s[58:59]", "sm")
            a2("s_getreg_b32 s60, hwreg(HW_REG_XCC_ID)")
            a2("s_getreg_b32 s61, hwreg(HW_REG_HW_ID)")
            a2("s_waitcnt lgkmcnt(0)")
            a2(f"s_mov_b32 s64, s36"); a2("s_mov_b32 s65, s37"); a2(f"s_mov_b32 s66, 0x1000000"); a2("s_mov_b32 s67, 0x20000")
            a2(f"s_lshl_b32 s62, s2, 10")
            a2(f"s_mul_hi_u32 s63, s{sWb}, {(2**32)//(4*PIECE)+1}")
            a2(f"s_lshl_b32 s63, s63, 8")
            a2(f"s_add_u32 s62, s62, s63")
            a2(f"v_mov_b32 v1, 0")
            for k in range(24):
                a2(f"v_mov_b32 v0, s{38+k}")
                a2(f"buffer_store_dword v0, v1, s[64:67], s62 offen offset:{4*k}")
            for k in range(18):
                a2(f"v_mov_b32 v0, s{68+k}")
                a2(f"buffer_store_dword v0, v1, s[64:67], s62 offen offset:{128+4*k}")
        return T

    @staticmethod
    def _hoist(conv, hot):
        k = 0
        while k < len(conv) and getattr(conv[k], "hot", False): k += 1
        for n in hot: n.hot = True
        return conv[:k] + hot + conv[k:]

    def build(self):
        o = self.o
        pro = self.prologue()
        loop = [I("L_loop:", "l")] + self.body(0) + self.body(1)
        tl = self.stamp(5) + self.tail()
        trace = pro + loop + loop + tl
        self.resolve_waits(trace)
        lines = [it.t for it in trace if it.t and not it.skip and it.k != "l"]
        errs = hz.check(lines)
        for r in self.rares: errs += hz.check([it.t for it in r if it.k != "l"])
        for e in sorted(set(errs))[:20]: print(e, file=sys.stderr)
        assert not errs or o.ab_drop, "hazards"
        if o.verbose:
            cnt = lambda l: sum(1 for it in l if it.t and not it.skip and it.k != "l")
            print("instr: prologue", cnt(pro), "loop", cnt(loop), "tail", cnt(tl), file=sys.stderr)
        return pro + [I(".p2align 6" if o.align else "", "l")] + loop + tl + [I("L_end:", "l"), I("s_endpgm")] + sum(self.rares, [])

    def resolve_waits(self, trace):
        ds = []
        for it in trace:
            if it.k == "ds": ds.append(it.tag)
            elif it.k == "wl":
                idx = max(j for j, t in enumerate(ds) if t == it.need)
                n = min(14, len(ds) - 1 - idx)
                it.n = n if it.n is None else min(it.n, n)
        needed = set()
        ds = []; done = 0
        for it in trace:
            if it.k == "ds": ds.append(it.tag)
            elif it.k == "w0": done = len(ds)
            elif it.k == "wl":
                idx = max(j for j, t in enumerate(ds) if t == it.need)
                if idx >= done: needed.add(id(it))
                done = max(done, len(ds) - it.n) if id(it) in needed else done
        for it in trace:
            if it.k == "wl":
                it.skip = id(it) not in needed
                it.t = f"s_waitcnt lgkmcnt({it.n})"

    def text(self):
        body = self.build()
        hdr = open("standalone__mha_softmax__near_ridge.s.ref").read().split("\n")
        top = []
        for ln in hdr:
            if ln.startswith("; @launch"): break
            top.append(ln)
        out = top + [f"; @launch grid=(256,1,1) block=(256,1,1) lds={LDS_BYTES}",
                     "; Flash-attention forward, written with my own generator script (static scheduler + hazard checker).",
                     "; One workgroup per CU: 256 q rows of one head (4 waves x 64 rows), 32-key tiles, v_mfma_f32_16x16x32_bf16.",
                     ";  * S^T = K Q^T and O^T = V^T P^T, so P never leaves its lanes; O lives in the 256 AGPRs, Q in v0..v127.",
                     ";  * K/V/Q reach LDS by LDS-DMA (4-slot rings, padded + xor layout, no bank conflicts); V is read with ds_read_b64_tr_b16.",
                     ";  * Q is scaled once by log2(e)/sqrt(D); -(reference max) enters as the C operand of each QK chain.",
                     ";  * The reference max is the true row max of the first 64 keys.  Every tile's row sums are checked at run time; if a",
                     ";    probability leaves the safe range the tile is recomputed from K against the true running max and O, l, P are",
                     ";    rescaled exactly (L_rare*).",
                     ";  * prologue: tile 0 and QK(1) q-tile by q-tile while Q streams in; loop: cycles QK(j+1) QK(j+2) PV(j,j+1);",
                     ";    tail: PV of the last three tiles column block by column block, transposed through LDS into full-line stores.",
                     '.amdgcn_target "amdgcn-amd-amdhsa--gfx950"', ".text", f".globl {KNAME}"] + ([".p2align 12"] if self.o.al12 else []) + [".p2align 8",
                     f".type {KNAME},@function", f"{KNAME}:"]
        for it in body:
            if it.skip or not it.t: continue
            out.append(("" if it.k == "l" else "    ") + it.t)
        out += ['.section .rodata,"a"', ".p2align 6", f".amdhsa_kernel {KNAME}",
                "  .amdhsa_next_free_vgpr 512", "  .amdhsa_next_free_sgpr 100", "  .amdhsa_accum_offset 256",
                "  .amdhsa_group_segment_fixed_size 0", "  .amdhsa_kernarg_size 48", "  .amdhsa_user_sgpr_count 2",
                "  .amdhsa_user_sgpr_kernarg_segment_ptr 1", "  .amdhsa_system_sgpr_workgroup_id_x 1",
                ".end_amdhsa_kernel", ""]
        return "\n".join(out)

def parse(argv):
    p = argparse.ArgumentParser()
    p.add_argument("-o", default="standalone__mha_softmax__near_ridge.s")
    for f in ("stamps", "verbose", "dbg", "no_bar", "no_dma", "no_br"):
        p.add_argument("--" + f, action="store_true")
    for name, d in dict(align=1, look=24, bar_gap=113, bar_quiet=1, kstep=2, sgap=5, late29=0, e2start=206, dma1=106, dmastep1=8, fake_chain=0, exp_delay=0, exp_bit=3, pkall=0, wcost=1, cap_hi=10, clus=2, deep=0, cb0quad=1, cap_d=5, otouch=0, snake=1, pvchain=1, pace=0, al12=0, late_v1=0, br_delay=1, dma0=2, dmastep=4, sdelay=28, backlog=5,
                        codepf=1, pdepth=7, g0_dma0=2, g0_dmastep=6, pro_dma=2, pro_bar=10, pro_barm=43, pro_cap=3, pro_cap3=12, tail_bar=30, cap31=2, cap_a=7, cap_b=3, cap_c=5, st_dist=24, tail_dsmax=1).items():
        p.add_argument("--" + name, type=int, default=d)
    p.add_argument("--thr", type=float, default=1048576.0)
    p.add_argument("--ab_drop", default="")
    p.add_argument("--ab_nop", type=int, default=0)
    p.add_argument("--kvpol", default="nt")
    p.add_argument("--qpol", default="nt")
    p.add_argument("--opol", default="nt")
    return p.parse_args(argv)

if __name__ == "__main__":
    o = parse(sys.argv[1:])
    open(o.o, "w").write(Gen(o).text())
```

```python
import sys, struct, argparse
sys.path.insert(0, "dev")
import hz

KNAME = "standalone__mha_softmax__near_ridge_kernel"
MF = "v_mfma_f32_16x16x32_bf16"

def f32bits(x): return struct.unpack("<I", struct.pack("<f", x))[0]
def pol(x): return (" " + x.replace("+", " ")) if x else ""
def srd(s): return f"s[{s}:{s+3}]"

class I:
    __slots__ = ("t", "k", "tag", "need", "n", "skip")
    def __init__(self, t, k="o", tag=None, need=None):
        self.t = t; self.k = k; self.tag = tag; self.need = need; self.n = None; self.skip = False

def Qr(qt, d8): b = (qt * 8 + d8) * 4; return f"v[{b}:{b+3}]"
vT = 240
def X(m, qt, k):
    if m < 2: return 128 + m * 32 + qt * 8 + k
    if m == 4: return 128 + qt * 8 + k if k < 4 else 160 + qt * 8 + k
    if m == 5: return 128 + qt * 8 + 4 + k if k < 4 else 160 + qt * 8 + k
    if m >= 10: return X(m - 10, qt, k) if k < 4 else vC + k - 4
    return 128 + 32 + qt * 8 + 4 + k if k < 4 else vT + 4 * qt + k - 4
def Sr(m, qt, kt): b = X(m, qt, 4 * kt); return f"v[{b}:{b+3}]"
def Pr(m, qt): return Sr(m, qt, 0)
NF = 8
def Fx(f): return f if isinstance(f, tuple) else ("v", 192 + (f % NF) * 4)
def Fr(f): c, b = Fx(f); return f"{c}[{b}:{b+3}]"
def Ob(qt, dt): return (qt * 16 + dt) * 4
def Or(qt, dt): b = Ob(qt, dt); return f"a[{b}:{b+3}]"
vK, vVe, vVo, vD = 224, 225, 226, 227
vL = [228, 229, 230, 231]
vLt = [232, 233, 234, 235]
vC = 236
vS = [237, 238, 239]
def Mb(qt): return vT + 4 * qt
def Mr(qt): b = Mb(qt); return f"v[{b}:{b+3}]"
sQ, sK, sV, sO = 4, 8, 12, 16
sC, sKoff, sVoff, sWb, sCnt, sNC, sThr, sRow = 20, 21, 22, 23, 24, 25, 26, 27
sQoff, sMask = 86, 95
sRG = [None, 88, 89, 90, 91, 92, 93, 94]
PIECE = 1088
TILE = 16 * PIECE
R = 4
VBASE = R * TILE
LDS_BYTES = (2 * R + 1) * TILE
NG = 256
def dk(f): return (f & 7, f >> 3)
def walk(n, par):
    for qi in range(4):
        for e in range(n):
            yield (e if qi % 2 == 0 else n - 1 - e, qi if par % 2 == 0 else 3 - qi, e)

class Op:
    def __init__(self, name, fn, cost=1, deps=(), t0=0):
        self.name = name; self.fn = fn; self.cost = cost; self.deps = list(deps); self.t0 = t0; self.t = None

class Nd:
    def __init__(self, t, k, deps=(), tag=None, need=None, cap=None, soft=()):
        self.t = t if isinstance(t, list) else [t]
        self.k = k; self.deps = [d if isinstance(d, tuple) else (d, 0) for d in deps]
        self.tag = tag; self.need = need; self.idx = None; self.cap = cap; self.waited = False; self.soft = list(soft); self.low = False; self.pk = False
        self.cost = {"t": 2, "vm": 2, "s": 0}.get(k, 1)

class Sched:
    def __init__(self):
        self.out = []; self.n = 0; self.issued = set()
    def ok(self, nd, relax=False):
        if not relax and any(d.idx is None or self.n - d.idx - 1 < dist for d, dist in nd.soft): return False
        return all(d.idx is not None and self.n - d.idx - 1 >= dist for d, dist in nd.deps)
    def wait(self, nd):
        if nd.need is not None and not nd.waited:
            self.out.append(I(None, "wl", need=nd.need)); nd.waited = True
    def emit(self, nd):
        self.wait(nd)
        for t in nd.t:
            if isinstance(t, I):
                self.out.append(t)
                if t.k != "l": self.n += 1
            else:
                self.out.append(I(t, nd.k, tag=nd.tag)); self.n += 1
        nd.idx = self.n - 1
    def raw(self, lst):
        for t in lst:
            t = t if isinstance(t, I) else I(t)
            self.out.append(t)
            if t.k not in ("l", "wl"): self.n += 1
    def pick(self, pool, free, dsmax):
        got = []; nds = 0; nsc = 0
        for nd in list(pool):
            if not self.ok(nd): continue
            if nd.k == "s":
                if nsc: continue
                nsc += 1
            else:
                if nd.cost > free: continue
                if nd.k == "ds":
                    if nds >= dsmax: continue
                    nds += 1
                free -= nd.cost
            got.append(nd); pool.remove(nd)
            if free <= 0 and nsc: break
        order = {"s": 0, "ds": 1, "vm": 2}
        got.sort(key=lambda nd: order.get(nd.k, 3))
        return got
    def drain_one(self, pool, relax=False):
        for nd in pool:
            if self.ok(nd, relax):
                pool.remove(nd); self.emit(nd); return True
        return False
    def run(self, mfs, pool, cap=2, dsmax=1, keep=()):
        for i, m in enumerate(mfs):
            guard = 0
            while not self.ok(m):
                if not self.drain_one(pool):
                    self.raw(["s_nop 0"]); guard += 1
                    assert guard < 40, ("stuck", m.t, [d.t for d, _ in m.deps if d.idx is None])
            self.emit(m)
            c = m.cap or cap
            left = c
            pkok = lambda: c - left >= 5
            nx = mfs[i + 1] if i + 1 < len(mfs) else None
            if nx is not None and nx.need is not None and not nx.waited and all(d.idx is not None for d, _ in nx.deps if d.k == "ds"):
                self.wait(nx)
            def take(kinds, maxcost, low=True):
                for nd in pool:
                    if nd.k in kinds and nd.cost <= maxcost and (low or not nd.low) and self.ok(nd) and (not nd.pk or pkok()):
                        pool.remove(nd); self.emit(nd); return nd
                return None
            take(("s",), 0)
            nds = 0
            for lowok in (False, True):
                while nds < dsmax and left > 0:
                    nd = take(("ds",), left, lowok)
                    if not nd: break
                    left -= nd.cost; nds += 1
                if not lowok and left >= 2 and take(("vm",), left): left -= 2
            while left > 0:
                nd = None
                if pkok():
                    for x in pool:
                        if x.pk and self.ok(x):
                            pool.remove(x); self.emit(x); nd = x; break
                if not nd and left >= 2:
                    rdy = []
                    for x in pool:
                        if x.k in ("v", "t") and self.ok(x):
                            rdy.append(x)
                            if x.k == "t" or len(rdy) > 4: break
                    if rdy and rdy[-1].k == "t": nd = take(("t",), left)
                if not nd: nd = take(("v", "t"), left)
                if not nd: break
                left -= nd.cost
        guard = 0
        while any(nd not in keep for nd in pool):
            if not self.drain_one(pool) and not self.drain_one(pool, True):
                self.raw(["s_nop 0"]); guard += 1
                assert guard < 40, ("stuck", [nd.t for nd in pool[:3]])
            else: guard = 0

class Gen:
    def __init__(self, o):
        self.o = o
        self.rares = []
        self.plan()

    def kread_t(self, slot, f, buf):
        d8, kt = dk(f)
        return f"ds_read_b128 {Fr(buf)}, v{vK} offset:{slot*TILE + kt*8*PIECE + 64*d8}"
    def vread_t(self, slot, dt, sec, buf):
        c, b = Fx(buf); b += 2 * sec
        return f"ds_read_b64_tr_b16 {c}[{b}:{b+1}], v{vVo if dt & 1 else vVe} offset:{slot*TILE + sec*8*PIECE + 64*(dt>>1)}"
    def fread(self, u, f, part=None):
        if f < 16: return [I(self.kread_t((u + 1) % R, f, f), "ds", tag=(u, f))]
        return [I(self.vread_t(u % R, f - 16, sec, f), "ds", tag=(u, f)) for sec in range(2) if part is None or part == sec]

    def dma_m0(self, which, slot, j):
        base = slot * TILE + (VBASE if which == "V" else 0) + (PIECE - 1024) * j
        return I(f"s_add_u32 m0, s{sWb}, {base}", "s")
    def dma_ld(self, which, j):
        s, so, p = {"K": (sK, sKoff, self.o.kvpol), "V": (sV, sVoff, self.o.kvpol), "Q": (sQ, sQoff, self.o.qpol)}[which]
        return I(f"buffer_load_dwordx4 v{vD}, {srd(s)}, s{so} offen offset:{j*1024}{pol(p)} lds", "vm")
    def dma_adv(self, which):
        so = {"K": sKoff, "V": sVoff, "Q": sQoff}[which]
        return I(f"s_addk_i32 s{so}, {4096 if which == 'Q' else 16384}", "s")
    def dma_tile(self, which, slot):
        out = [self.dma_m0(which, slot, 0)]
        for j in range(4):
            out += [I("s_nop 0"), self.dma_ld(which, j)]
            if j < 3: out.append(I(f"s_addk_i32 m0, {PIECE-1024}", "s"))
        out.append(self.dma_adv(which))
        return out
    def dma_nodes(self, which, slot, deps, prev):
        out = []
        for j in range(4):
            m = Nd(self.dma_m0(which, slot, j).t, "s", deps=list(deps) + ([prev] if prev else []))
            l = Nd(self.dma_ld(which, j).t, "vm", deps=[(m, 1)])
            out += [m, l]; prev = l
        adv = Nd(self.dma_adv(which).t, "s", deps=[prev]); out.append(adv)
        return out, adv

    def qk_t(self, m, f, qt, buf, zero=False, first=None):
        d8, kt = dk(f)
        if first is None: first = d8 == 0
        c = ("0" if zero else Mr(qt)) if first else Sr(m, qt, kt)
        return f"{MF} {Sr(m,qt,kt)}, {Fr(buf)}, {Qr(qt,d8)}, {c}"
    def pv_t(self, m, dt, qt, buf, zero=False):
        return f"{MF} {Or(qt,dt)}, {Fr(buf)}, {Pr(m,qt)}, {'0' if zero else Or(qt,dt)}"

    def E_ops(self, qts=range(4), acc=None):
        o = self.o
        acc = acc or vLt
        ex, ad, cv, Eexp, Epl = {}, {}, {}, [], []
        for qt in qts:
            for k in range(8):
                ex[(qt, k)] = Op(f"exp{qt}{k}", (lambda m, qt=qt, k=k: f"v_exp_f32 v{X(m,qt,k)}, v{X(m,qt,k)}"), cost=2, t0=(25 if k < 4 else 57) + 2 * (3 - qt) + 6)
                ex[(qt, k)].src = (qt, k >> 2)
                Eexp.append(ex[(qt, k)])
            ad[(qt, 1)] = Op(f"add{qt}1", (lambda m, qt=qt: f"v_add_f32 v{acc[qt]}, v{X(m,qt,0)}, v{X(m,qt,1)}"), deps=[ex[(qt, 0)], ex[(qt, 1)]])
            ad[(qt, 0)] = ad[(qt, 1)]
            for k in range(2, 8):
                ad[(qt, k)] = Op(f"add{qt}{k}", (lambda m, qt=qt, k=k: f"v_add_f32 v{acc[qt]}, v{acc[qt]}, v{X(m,qt,k)}"), deps=[ex[(qt, k)], ad[(qt, k - 1)]])
            for j in range(4):
                deps = [ex[(qt, 2 * j)], ex[(qt, 2 * j + 1)], ad[(qt, j)]] + ([cv[(qt, j >> 1)]] if j else [])
                cv[(qt, j)] = Op(f"cvt{qt}{j}", (lambda m, qt=qt, j=j: f"v_cvt_pk_bf16_f32 v{X(m,qt,j)}, v{X(m,qt,2*j)}, v{X(m,qt,2*j+1)}"), deps=deps)
            for k in range(1, 8):
                Epl.append(ad[(qt, k)])
                if k & 1: Epl.append(cv[(qt, k >> 1)])
        return Eexp, Epl
    def C_ops(self, Epl):
        la = [op for op in Epl if op.name.startswith("add") and op.name.endswith("7")]
        c1 = Op("chk1", (lambda m: f"v_max3_f32 v{vC}, v{vLt[0]}, v{vLt[1]}, v{vLt[2]}"), deps=la[:3])
        c2 = Op("chk2", (lambda m: f"v_max_f32 v{vC}, v{vC}, v{vLt[3]}"), deps=[c1, la[3]])
        cmp = Op("cmp", (lambda m: f"v_cmp_lt_f32 vcc, s{sThr}, v{vC}"), deps=[c2])
        mg = [Op(f"mrg{qt}", (lambda m, qt=qt: f"v_add_f32 v{vL[qt]}, v{vL[qt]}, v{vLt[qt]}")) for qt in range(4)]
        return [c1, c2, cmp], mg
    def to_nodes(self, ops, m, extra=None, only=None):
        nd = {}
        for op in ops:
            if only is not None and op.name not in only: continue
            nd[op] = Nd(op.fn(m), "t" if op.cost == 2 else "v"); nd[op].name = op.name
        for op, n in nd.items():
            for d in op.deps:
                if d in nd: n.deps.append((nd[d], 1 if d.cost == 2 else 0))
            if extra: n.deps += extra(op)
        return list(nd.values())
    @staticmethod
    def E_order(Eexp, Epl):
        return Epl + Eexp

    def mf_at(self, g):
        p = g >> 3
        j, qt, e = list(walk(2, p + (1 if 8 <= p < 16 else 0)))[g & 7]
        return 2 * p + j, qt, e

    def plan(self):
        o = self.o
        used = [0] * NG
        self.ds_at = [[] for _ in range(NG)]
        self.barE, self.barM, self.barV = o.bar_gap + 128, 64 - o.look - 2, 128 - o.look - 2
        g = self.barE + 1
        self.npre = 0
        for f in range(64):
            want = 4 * f - o.look
            if want < 0:
                pos = max(want + NG, g)
                assert pos < NG - 1
                self.ds_at[pos].append((f, None, True)); used[pos] += 1
                g = pos + o.kstep; self.npre = f + 1
                continue
            pos = want
            for p in ([None] if f < 32 else [0, 1]):
                while used[pos] > 0: pos += 1
                assert pos < self.barE - 6
                self.ds_at[pos].append((f, p, False)); used[pos] += 1
        self.dma_at = {}
        pos = o.dma0
        for k in range(16):
            if k == 4: pos = o.dma1
            while used[pos] > 0 or pos % 8 == 0: pos += 1
            assert (0 < pos < self.barM - 3) if k < 4 else (self.barV + 1 < pos < self.barE - 3)
            self.dma_at[pos] = k
            used[pos] = 2
            pos += o.dmastep if k < 4 else o.dmastep1
        used[NG - 1] += 1
        used[self.barE] = 2
        done, start = {}, {}
        for g in range(128):
            f, qt, e = self.mf_at(g)
            done[(f >> 4, qt, dk(f & 15)[1])] = g
            start.setdefault((f >> 4, qt, dk(f & 15)[1]), g)
        scal = set()
        for g, k in self.dma_at.items():
            scal.add(g - 1)
            if k % 4 == 3: scal.add(g + 2)
        for b in (self.barE, self.barM, self.barV): scal |= {b, b - 1}
        busy = lambda g: g % 8 == 7 or (g % NG) in scal
        self.va_at = [[[] for _ in range(2 * NG)] for _ in range(2)]
        self.t_br = [None, None]
        rdy = lambda op, t: op.t0 <= t and all(d.t is not None and d.t < t for d in op.deps)
        tnext = 0
        for w in range(2):
            Eexp, Epl = self.E_ops()
            chk, mg = self.C_ops(Epl)
            for op in Eexp: op.t0 = max(done[(w,) + op.src] + o.sgap, tnext, o.e2start if w else 0)
            if w == 1:
                chk[0].t0 = NG
                for k, op in enumerate(Eexp): op.t0 = max(op.t0, o.e2start + k * o.pace // 10)
            if w == 0:
                Eexp.sort(key=lambda op: op.t0)
                hi = lambda op: int(op.name[4]) >= (4 if op.name.startswith("add") else 2)
                Epl.sort(key=lambda op: (hi(op), done[(0, int(op.name[3]), 1)]))
            Epl = Epl + chk
            allops = Eexp + Epl
            def put(op, t): op.t = t; self.va_at[w][t].append(op); used[t % NG] += op.cost
            t = min(op.t0 for op in Eexp)
            while Eexp or Epl:
                free = 2 - used[t % NG]
                backlog = sum(1 for op in Epl if all(d.t is not None for d in op.deps if d.cost == 2) and op not in chk)
                re = [op for op in Eexp if rdy(op, t)]
                if free == 2 and re and backlog < o.backlog:
                    Eexp.remove(re[0]); put(re[0], t)
                else:
                    for op in list(Epl):
                        if free == 0: break
                        if rdy(op, t): Epl.remove(op); put(op, t); free -= 1
                    if free == 2 and re: Eexp.remove(re[0]); put(re[0], t)
                t += 1
            tb = t + o.br_delay
            if w: tb = max(tb, NG + 1)
            while busy(tb): tb += 1
            self.t_br[w] = tb
            t = tb
            while mg:
                if used[t % NG] < 2: put(mg.pop(0), t)
                else: t += 1
            tnext = t + 1
            for qt in range(4):
                last = max(op.t for op in allops if op.name[:4] in (f"add{qt}", f"cvt{qt}"))
                lim = start[(1, qt, 1)] if w == 0 else NG + start[(0, qt, 1)]
                assert last < lim, ("high quad released too late", w, qt, last, lim)
            if w == 0: assert tb < 126
            else: assert tb - NG < self.barM - 1 and tnext - NG <= min(op.t for tt in self.va_at[0] for op in tt if op.name.startswith("add")), (tb, tnext)
        assert self.t_br[1] - NG <= min(op.t for tt in self.va_at[0] for op in tt)
        self.part1 = {op.name for t in range(0, NG) for op in self.va_at[1][t]}
        self.part2 = {op.name for t in range(NG, 2 * NG) for op in self.va_at[1][t]}
        if o.verbose:
            print("br", self.t_br, "npre", self.npre, "part2", len(self.part2), file=sys.stderr)
            for h in range(2): print("".join(map(str, used[128 * h:128 * h + 128])), file=sys.stderr)

    def cread(self, c, f, part=None):
        j = 1 + 2 * c
        if f < 32: return [I(self.kread_t((j + 1 + (f >> 4)) % R, f & 15, f), "ds", tag=(c, f))]
        return [I(self.vread_t((j + (f & 1)) % R, (f - 32) >> 1, sec, f), "ds", tag=(c, f)) for sec in range(2) if part is None or part == sec]

    def body(self, c):
        o = self.o
        j = 1 + 2 * c
        mP, m1, m2 = (1, 4, 5) if c == 0 else (5, 4, 1)
        desc = lambda k: (("K", (j + 3) % R), ("K", j % R), ("V", (j + 2) % R), ("V", (j + 3) % R))[k >> 2] + (k & 3,)
        out = []
        for g in range(NG):
            f, qt, e = self.mf_at(g)
            if f < 32: t = self.qk_t(m1 if f < 16 else m2, f & 15, qt, f, first=((g >> 3) & 3) == 0 and e == 0)
            else: t = self.pv_t(m1 if f & 1 else mP, (f - 32) >> 1, qt, f)
            out.append(I(t, "m"))
            sc, ds, vm, va = [], [], [], []
            if g % 8 == 7:
                f1 = (g + 1) // 4 + 1
                sc.append(I(None, "wl", need=(c, f1) if f1 < 64 else (1 - c, 1)))
            if g == self.barE - 1: sc.append(I("s_waitcnt vmcnt(12) lgkmcnt(0)", "w0"))
            if g == self.barM - 1: sc.append(I("s_waitcnt vmcnt(12)"))
            if g == self.barV - 1: sc.append(I("s_waitcnt vmcnt(4)"))
            if g in (self.barE, self.barM, self.barV): sc.append(I("s_barrier"))
            if g + 1 in self.dma_at: sc.append(self.dma_m0(*desc(self.dma_at[g + 1])))
            if g in self.dma_at:
                wh, _, jj = desc(self.dma_at[g]); vm.append(self.dma_ld(wh, jj))
            if g - 2 in self.dma_at and self.dma_at[g - 2] % 4 == 3: sc.append(self.dma_adv(desc(self.dma_at[g - 2])[0]))
            for (ff, p, nx) in self.ds_at[g]: ds += self.cread(1 - c if nx else c, ff, p)
            if g == self.t_br[1] - NG:
                sc += [I(f"s_cbranch_vccnz L_rare{2*c}", "s"), I(f"L_back{2*c}:", "l")]
                self.rares.append(self.rare_q(str(2 * c), mP, j % R, [], m1))
            if g == self.t_br[0]:
                sc += [I(f"s_cbranch_vccnz L_rare{2*c+1}", "s"), I(f"L_back{2*c+1}:", "l")]
                self.rares.append(self.rare_q(str(2 * c + 1), m1, (j + 1) % R, [mP], m2))
            for op in self.va_at[1][g + NG]: va.append(I(op.fn(mP), "v"))
            for op in self.va_at[0][g]: va.append(I(op.fn(m1), "v"))
            for op in self.va_at[1][g]: va.append(I(op.fn(m2), "v"))
            if c == 1 and g == NG - 3: sc.append(I(f"s_sub_u32 s{sCnt}, s{sCnt}, 1", "s"))
            if c == 1 and g == NG - 2: sc.append(I(f"s_cmp_lg_u32 s{sCnt}, 0", "s"))
            out += sc + ds + vm + va
        if c == 1: out.append(I("s_cbranch_scc1 L_loop", "s"))
        return out

    def rare_q(self, name, m, kslot, pend, prog):
        out = [I(f"L_rare{name}:", "l")]
        a = lambda t: out.append(I(t))
        fb = ("v", vLt[0])
        m += 10
        t, t2, f = vLt[0], vLt[1], vLt[2]
        a("s_nop 7")
        for qt in range(4):
            for fr in range(16):
                a(self.kread_t(kslot, fr, fb))
                a("s_waitcnt lgkmcnt(0)")
                a(self.qk_t(m, fr, qt, fb))
                a("s_nop 7")
            a("s_nop 3")
            x = lambda k: X(m, qt, k)
            a(f"v_max3_f32 v{t}, v{x(0)}, v{x(1)}, v{x(2)}")
            a(f"v_max3_f32 v{t}, v{t}, v{x(3)}, v{x(4)}")
            a(f"v_max3_f32 v{t}, v{t}, v{x(5)}, v{x(6)}")
            a(f"v_max_f32 v{t}, v{t}, v{x(7)}")
            for sw in ("v_permlane16_swap_b32", "v_permlane32_swap_b32"):
                a(f"v_mov_b32 v{t2}, v{t}"); a("s_nop 1"); a(f"{sw} v{t}, v{t2}"); a("s_nop 1"); a(f"v_max_f32 v{t}, v{t}, v{t2}")
            a(f"v_ceil_f32 v{t}, v{t}")
            a(f"v_max_f32 v{t}, 0, v{t}")
            for k in range(4): a(f"v_sub_f32 v{Mb(qt)+k}, v{Mb(qt)+k}, v{t}")
            for k in range(8): a(f"v_sub_f32 v{x(k)}, v{x(k)}, v{t}")
            for k in range(8): a(f"v_sub_f32 v{X(prog,qt,k)}, v{X(prog,qt,k)}, v{t}")
            a(f"v_min_f32 v{t2}, 0x43480000, v{t}")
            a(f"v_cvt_i32_f32 v{t2}, v{t2}")
            a(f"v_sub_u32 v{t2}, 0, v{t2}")
            a(f"v_ldexp_f32 v{f}, 1.0, v{t2}")
            a(f"v_mul_f32 v{vL[qt]}, v{vL[qt]}, v{f}")
            for pm in pend:
                for j in range(4):
                    p = X(pm, qt, j)
                    a(f"v_lshlrev_b32 v{t}, 16, v{p}")
                    a(f"v_and_b32 v{t2}, 0xffff0000, v{p}")
                    a(f"v_mul_f32 v{t}, v{t}, v{f}")
                    a(f"v_mul_f32 v{t2}, v{t2}, v{f}")
                    a(f"v_cvt_pk_bf16_f32 v{p}, v{t}, v{t2}")
            for a0 in range(qt * 64, qt * 64 + 64, 2):
                a(f"v_accvgpr_read_b32 v{t}, a{a0}"); a(f"v_accvgpr_read_b32 v{t2}, a{a0+1}")
                a(f"v_mul_f32 v{t}, v{t}, v{f}"); a(f"v_mul_f32 v{t2}, v{t2}, v{f}")
                a(f"v_accvgpr_write_b32 a{a0}, v{t}"); a(f"v_accvgpr_write_b32 a{a0+1}, v{t2}")
            for k in range(8): a(f"v_exp_f32 v{x(k)}, v{x(k)}")
            a("s_nop 0")
            for k in range(8): a(f"v_add_f32 v{vL[qt]}, v{vL[qt]}, v{x(k)}")
            for j in range(4): a(f"v_cvt_pk_bf16_f32 v{x(j)}, v{x(2*j)}, v{x(2*j+1)}")
        for qt in range(4): a(f"v_mov_b32 v{vLt[qt]}, 0")
        a("s_nop 1")
        a(f"s_branch L_back{name}")
        return out

    def rare(self, name, m, kslot, pend, prog, mcopy=None):
        out = [I(f"L_rare{name}:", "l")]
        a = lambda t: out.append(I(t))
        fb = ("v", vLt[0])
        a("s_nop 7")
        for f in range(16):
            a(self.kread_t(kslot, f, fb))
            a("s_waitcnt lgkmcnt(0)")
            for qt in range(4): a(self.qk_t(m, f, qt, fb, zero=True))
            a("s_nop 7")
        a("s_nop 7")
        t, t2, f = vC, vLt[0], vLt[1]
        for qt in range(4):
            x = lambda k: X(m, qt, k)
            mreg = mcopy[qt] if mcopy else Mb(qt)
            for k in range(8): a(f"v_add_f32 v{x(k)}, v{x(k)}, v{mreg}")
            a(f"v_max3_f32 v{t}, v{x(0)}, v{x(1)}, v{x(2)}")
            a(f"v_max3_f32 v{t}, v{t}, v{x(3)}, v{x(4)}")
            a(f"v_max3_f32 v{t}, v{t}, v{x(5)}, v{x(6)}")
            a(f"v_max_f32 v{t}, v{t}, v{x(7)}")
            for sw in ("v_permlane16_swap_b32", "v_permlane32_swap_b32"):
                a(f"v_mov_b32 v{t2}, v{t}"); a("s_nop 1"); a(f"{sw} v{t}, v{t2}"); a("s_nop 1"); a(f"v_max_f32 v{t}, v{t}, v{t2}")
            a(f"v_ceil_f32 v{t}, v{t}")
            a(f"v_max_f32 v{t}, 0, v{t}")
            if mcopy: a(f"v_sub_f32 v{mreg}, v{mreg}, v{t}")
            else:
                for k in range(4): a(f"v_sub_f32 v{mreg+k}, v{mreg+k}, v{t}")
            for k in range(8): a(f"v_sub_f32 v{x(k)}, v{x(k)}, v{t}")
            if prog is not None:
                for k in range(8): a(f"v_sub_f32 v{X(prog,qt,k)}, v{X(prog,qt,k)}, v{t}")
            a(f"v_min_f32 v{t2}, 0x43480000, v{t}")
            a(f"v_cvt_i32_f32 v{t2}, v{t2}")
            a(f"v_sub_u32 v{t2}, 0, v{t2}")
            a(f"v_ldexp_f32 v{f}, 1.0, v{t2}")
            a(f"v_mul_f32 v{vL[qt]}, v{vL[qt]}, v{f}")
            for pm in pend:
                for j in range(4):
                    p = X(pm, qt, j)
                    a(f"v_lshlrev_b32 v{t}, 16, v{p}")
                    a(f"v_and_b32 v{t2}, 0xffff0000, v{p}")
                    a(f"v_mul_f32 v{t}, v{t}, v{f}")
                    a(f"v_mul_f32 v{t2}, v{t2}, v{f}")
                    a(f"v_cvt_pk_bf16_f32 v{p}, v{t}, v{t2}")
            for a0 in range(qt * 64, qt * 64 + 64, 2):
                a(f"v_accvgpr_read_b32 v{t}, a{a0}"); a(f"v_accvgpr_read_b32 v{t2}, a{a0+1}")
                a(f"v_mul_f32 v{t}, v{t}, v{f}"); a(f"v_mul_f32 v{t2}, v{t2}, v{f}")
                a(f"v_accvgpr_write_b32 a{a0}, v{t}"); a(f"v_accvgpr_write_b32 a{a0+1}, v{t2}")
        Eexp, Epl = self.E_ops()
        for op in Eexp: a(op.fn(m))
        a("s_nop 0")
        for op in Epl:
            if op.name.startswith("add"): a(op.fn(m))
        for op in Epl:
            if op.name.startswith("cvt"): a(op.fn(m))
        a("s_nop 1")
        a(f"s_branch L_back{name}")
        return out

    def stamp(self, idx):
        if not self.o.stamps: return []
        return [I(f"s_memtime s[{40+2*idx}:{41+2*idx}]", "sm"), I(f"s_memrealtime s[{68+2*idx}:{69+2*idx}]", "sm")]

    def frag_stream(self, specs, j0, users_prev=None):
        fr = []
        for j, (kind, slot, idx, tag, deps, *bb) in enumerate(specs):
            buf = bb[0] if bb else j0 + j
            if kind == "done": nodes = []
            elif kind == "K": nodes = [Nd(self.kread_t(slot, idx, buf), "ds", deps=list(deps), tag=tag)]
            else: nodes = [Nd(self.vread_t(slot, idx, s, buf), "ds", deps=list(deps), tag=tag) for s in range(2)]
            fr.append(dict(nodes=nodes, buf=buf, tag=tag, users=[]))
        prev = None
        for f in fr:
            for n in f["nodes"]:
                if prev: n.deps.append((prev, 0))
                prev = n
        return fr
    def link_users(self, fr, depth):
        for j, f in enumerate(fr):
            if j - depth >= 0 and fr[j - depth]["users"]:
                for n in f["nodes"]: n.deps.append((fr[j - depth]["users"][-1], 0))
    def mf(self, f, text, deps=(), cap=None):
        first = not f["users"]
        m = Nd(text, "m", deps=list(deps) + [(n, 0) for n in f["nodes"]], need=f["tag"] if first else None, cap=cap)
        f["users"].append(m)
        return m

    def prologue(self):
        o = self.o
        S = Sched()
        a = lambda t, k="o", **kw: S.raw([I(t, k, **kw)])
        lane, w, t0, t1, t2, vQr = vT + 8, vT + 9, vT + 10, vT + 11, vT + 12, vT + 14
        a("s_cmpk_ge_u32 s2, 0x100")
        a("s_cbranch_scc1 L_end")
        a("s_load_dwordx8 s[28:35], s[0:1], 0", "sm")
        if o.stamps:
            a(f"s_load_dwordx2 s[36:37], s[0:1], {32 if o.dbg else 40}", "sm")
            a("s_memrealtime s[38:39]", "sm")
            S.raw(self.stamp(0))
        if o.codepf:
            a("s_getpc_b64 s[96:97]")
            a(f"v_lshlrev_b32 v{t0}, 7, v0")
            a(f"v_add_co_u32 v{t0}, vcc, s96, v{t0}")
            a(f"v_mov_b32 v{t1}, s97")
        a(f"v_lshrrev_b32 v{w}, 6, v0")
        if o.codepf: a(f"v_addc_co_u32 v{t1}, vcc, 0, v{t1}, vcc")
        a(f"v_and_b32 v{lane}, 63, v0")
        if o.codepf: a(f"global_load_dword v{vT+15}, v[{t0}:{t1}], off", "vm")
        a(f"v_and_b32 v{t1}, 32, v0")
        a(f"v_readfirstlane_b32 s{sWb}, v{w}")
        a(f"v_lshlrev_b32 v{vD}, 4, v{lane}")
        a(f"v_xor_b32 v{vD}, v{vD}, v{t1}")
        a("s_lshr_b32 s3, s2, 4")
        a("s_and_b32 s87, s2, 7")
        a("s_lshl3_add_u32 s3, s3, s87")
        a("s_and_b32 s87, s2, 8")
        a(f"s_lshl1_add_u32 s{sRow}, s{sWb}, s87")
        a(f"s_lshl_b32 s{sQoff}, s{sRow}, 14")
        a(f"s_lshl_b32 s{sKoff}, s{sWb}, 12")
        a(f"s_mulk_i32 s{sWb}, {4*PIECE}")
        a("s_mul_i32 s87, s3, 253952")
        a(f"s_mov_b32 s{sQ+2}, 253952")
        a(f"s_mov_b32 s{sQ+3}, 0x20000")
        a(f"s_add_u32 m0, s{sWb}, {8*TILE}")
        a(f"s_movk_i32 s{sCnt}, 2")
        a("s_waitcnt lgkmcnt(0)", "w0")
        a(f"s_add_u32 s{sQ}, s28, s87")
        a(f"s_addc_u32 s{sQ+1}, s29, 0")
        if o.exp_delay:
            a(f"s_bitcmp1_b32 s2, {o.exp_bit}")
            a("s_cbranch_scc0 L_q")
            a(f"s_sleep {o.exp_delay}")
        a("L_q:", "l")
        for j in range(4):
            S.raw([self.dma_ld("Q", j)])
            if j < 3:
                a(f"s_addk_i32 m0, {PIECE-1024}", "s")
                a(f"s_sub_u32 s{sCnt}, s{sCnt}, 1" if j == 0 else "s_nop 0")
        a(f"s_addk_i32 m0, {-(TILE + 3*(PIECE-1024))}", "s")
        S.raw([self.dma_adv("Q")])
        a(f"s_cmp_lg_u32 s{sCnt}, 0")
        a("s_cbranch_scc1 L_q")
        a("s_lshl_b32 s3, s3, 19")
        for (s, p) in ((sK, 30), (sV, 32)):
            a(f"s_add_u32 s{s}, s{p}, s3")
            a(f"s_addc_u32 s{s+1}, s{p+1}, 0")
            a(f"s_mov_b32 s{s+2}, 524288")
            a(f"s_mov_b32 s{s+3}, 0x20000")
        a(f"s_mov_b32 s{sVoff}, s{sKoff}")
        S.raw(self.dma_tile("K", 0) + self.dma_tile("K", 1) + self.dma_tile("V", 0))
        a(f"s_add_u32 s{sO}, s34, s87")
        a(f"s_addc_u32 s{sO+1}, s35, 0")
        a(f"s_mov_b32 s{sO+2}, 253952")
        a(f"s_mov_b32 s{sO+3}, 0x20000")
        a(f"s_lshl_b32 s{sRow}, s{sRow}, 14")
        for k in range(1, 8): a(f"s_add_u32 s{sRG[k]}, s{sRow}, {k*4096}")
        a(f"v_and_b32 v{t2}, 1, v{lane}")
        a(f"v_lshlrev_b32 v{t0}, 9, v{t2}")
        a(f"v_lshlrev_b32 v{t2}, 5, v{t2}")
        a(f"v_lshrrev_b32 v{t1}, 4, v{lane}")
        a(f"v_lshlrev_b32 v{t1}, 4, v{t1}")
        a(f"v_xor_b32 v{t1}, v{t1}, v{t2}")
        a(f"v_add_u32 v{t0}, v{t0}, v{t1}")
        a(f"v_bfe_u32 v{t1}, v{lane}, 1, 2")
        a(f"v_mul_u32_u24 v{t1}, {PIECE}, v{t1}")
        a(f"v_add_u32 v{t0}, v{t0}, v{t1}")
        a(f"v_bfe_u32 v{t1}, v{lane}, 3, 1")
        a(f"v_mul_u32_u24 v{vK}, {4*PIECE}, v{t1}")
        a(f"v_add_u32 v{vK}, v{vK}, v{t0}")
        a(f"v_xor_b32 v{t1}, 1, v{t1}")
        a(f"v_mul_u32_u24 v{vQr}, {TILE}, v{t1}")
        a(f"v_add_u32 v{vQr}, v{vQr}, v{t0}")
        a(f"s_add_u32 s87, s{sWb}, {5*TILE}")
        a(f"v_add_u32 v{vQr}, s87, v{vQr}")
        a(f"v_subrev_u32 v{vQr-1}, {3*TILE}, v{vQr}")
        a(f"v_lshrrev_b32 v{t0}, 3, v{lane}")
        a(f"v_mul_u32_u24 v{t0}, {PIECE}, v{t0}")
        a(f"v_bfe_u32 v{t2}, v{lane}, 2, 1")
        a(f"v_lshl_add_u32 v{t0}, v{t2}, 9, v{t0}")
        a(f"v_and_b32 v{t1}, 3, v{lane}")
        a(f"v_lshl_add_u32 v{t0}, v{t1}, 3, v{t0}")
        a(f"v_add_u32 v{t0}, {VBASE}, v{t0}")
        a(f"v_lshl_add_u32 v{vVe}, v{t2}, 5, v{t0}")
        a(f"v_xor_b32 v{vVo}, 32, v{vVe}")
        c = 1.4426950408889634 / 16.0
        a(f"s_mov_b32 s{sC}, {hex(f32bits(c))}")
        a(f"s_mov_b32 s{sNC}, {hex(f32bits(-c))}")
        a(f"s_mov_b32 s{sThr}, {hex(f32bits(o.thr))}")
        a(f"s_movk_i32 s{sCnt}, 7")
        a(f"s_mov_b32 s{sMask}, 0xffff0000")
        def qchunks(hi_slot):
            return self.dma_tile("Q", hi_slot) + self.dma_tile("Q", hi_slot - 1)
        def qread(qt):
            base, off = {0: (vQr, 2 * TILE), 1: (vQr, 0), 2: (vQr - 1, 0), 3: (vQr, 2 * TILE)}[(3 - qt) if (o.deep and qt in (1, 2)) else qt]
            return [I(f"ds_read_b128 {Qr(qt,d8)}, v{base} offset:{off + 64*d8}", "ds", tag=("q", qt, d8)) for d8 in range(8)]
        def prescale(qt, tb, nt, pk, deps=()):
            out, lastcv = [], {}
            for g in range(0, 32, nt):
                rs = [(32 * qt + g + i, tb + 2 * i) for i in range(nt)]
                w = lambda t: [lastcv[t]] if t in lastcv else []
                lo = [Nd(f"v_lshlrev_b32 v{t}, 16, v{r}", "v", deps=list(deps) + w(t)) for r, t in rs]
                hi = [Nd(f"v_and_b32 v{t+1}, s{sMask}, v{r}", "v", deps=list(deps) + w(t)) for r, t in rs]
                if pk: mu = [[Nd(f"v_pk_mul_f32 v[{t}:{t+1}], v[{t}:{t+1}], s[{sC}:{sC+1}] op_sel_hi:[1,0]", "v", deps=[lo[i], hi[i]])] for i, (r, t) in enumerate(rs)]
                else: mu = [[Nd(f"v_mul_f32 v{t}, s{sC}, v{t}", "v", deps=[lo[i]]), Nd(f"v_mul_f32 v{t+1}, s{sC}, v{t+1}", "v", deps=[hi[i]])] for i, (r, t) in enumerate(rs)]
                cv = [Nd(f"v_cvt_pk_bf16_f32 v{r}, v{t}, v{t+1}", "v", deps=mu[i]) for i, (r, t) in enumerate(rs)]
                for i, (r, t) in enumerate(rs): lastcv[t] = cv[i]
                out += lo + hi + sum(mu, []) + cv
            return out
        S.raw(qchunks(3 if o.deep else 6))
        a("s_waitcnt vmcnt(20)")
        S.raw(qread(0))
        a("s_waitcnt lgkmcnt(0)", "w0")
        S.run([], prescale(0, 128, 4, True))
        if o.deep:
            S.raw(qchunks(6))
            a("s_waitcnt vmcnt(16)")
        else:
            S.raw(self.dma_tile("Q", 3))
            a("s_waitcnt vmcnt(12)")
        a("s_barrier")
        if o.stamps: S.raw(self.stamp(1))
        groups = [[0], [1], [2], [3]]
        bar = Nd([I("s_waitcnt vmcnt(12) lgkmcnt(0)", "w0"), I("s_barrier")], "s")
        one = lambda kind, slot, idx, tag, buf, deps=(): self.frag_stream([(kind, slot, idx, tag, list(deps), buf)], 0)[0]
        K0p = [one("K", 0, f, ("k0", f), ("a", 192 + 4 * f)) for f in range(16)]
        K1p = [one("K", 1, f, ("k1", f), ("v", 96 + 4 * f) if f < 8 else f) for f in range(16)]
        assert {"cvt03", "cvt13", "add07", "add17"} <= self.part1
        K1q = [one("K", 1, f, ("k1b", f), ("v", b)) for f, b in enumerate([128, 132, 136, 140, X(1, 0, 4), X(1, 1, 4), 144, 148])]
        lastq = [("a", 64), ("a", 128), ("v", 152), ("v", 128)]
        Vp = [[one("V", 0, d, ("vp", r, d), ("a", 64 * r + 4 + 4 * d) if d < 15 else lastq[r]) for d in range(16)] for r in range(4)]
        K2p = self.frag_stream([("K", 2, f, (0, f), [bar], f) for f in range(self.npre)], 0)
        again = lambda F: [dict(nodes=f["nodes"], buf=f["buf"], tag=f["tag"], users=[]) for f in F]
        fr_all = []
        for r in range(4): fr_all += again(K0p) + (again(K1p) if r < 3 else K1q + again(K1p[8:])) + Vp[r]
        regions = []
        for gi, qts in enumerate(groups):
            F = fr_all[48 * gi:48 * gi + 48]
            mfs, pool = [], []
            lastm = {}
            neg, pos = ("-1.0", "1.0") if gi < 3 else (f"s{sNC}", f"s{sC}")
            for tl in range(2):
                for f in range(16):
                    for qt in qts:
                        m = self.mf(F[16 * tl + f], self.qk_t(tl, f, qt, F[16 * tl + f]["buf"], zero=True)); mfs.append(m); lastm[(tl, qt, dk(f)[1])] = m
            pdone = {}
            for qi, qt in enumerate(qts):
                t, t2 = vC + 2 * qi, vC + 2 * qi + 1
                vals = [(tl, k) for tl in range(2) for k in range(8)]
                src = lambda v: (lastm[(v[0], qt, v[1] >> 2)], 8)
                rg = lambda v: f"v{X(v[0], qt, v[1])}"
                ch = [Nd(f"v_max3_f32 v{t}, {rg(vals[0])}, {rg(vals[1])}, {rg(vals[2])}", "v", deps=[src(v) for v in vals[:3]])]
                for j in range(3, 15, 2):
                    ch.append(Nd(f"v_max3_f32 v{t}, v{t}, {rg(vals[j])}, {rg(vals[j+1])}", "v", deps=[ch[-1], src(vals[j]), src(vals[j + 1])]))
                ch.append(Nd(f"v_max_f32 v{t}, v{t}, {rg(vals[15])}", "v", deps=[ch[-1], src(vals[15])]))
                for sw in ("v_permlane16_swap_b32", "v_permlane32_swap_b32"):
                    ch.append(Nd(f"v_mov_b32 v{t2}, v{t}", "v", deps=[ch[-1]]))
                    ch.append(Nd(f"{sw} v{t}, v{t2}", "v", deps=[(ch[-1], 2)]))
                    ch.append(Nd(f"v_max_f32 v{t}, v{t}, v{t2}", "v", deps=[(ch[-1], 1)]))
                mm = Nd(f"v_mul_f32 v{Mb(qt)}, {neg}, v{t}", "v", deps=[ch[-1]]); ch.append(mm)
                cp = [Nd(f"v_mov_b32 v{Mb(qt)+k}, v{Mb(qt)}", "v", deps=[mm]) for k in range(1, 4)]
                fma = {v: Nd(f"v_fma_f32 {rg(v)}, {rg(v)}, {pos}, v{Mb(qt)}", "v", deps=[mm]) for v in vals}
                E0 = self.to_nodes(self.E_order(*self.E_ops([qt], vL)), 0, extra=lambda op: [(fma[(0, int(op.name[4]))], 0)] if op.name.startswith("exp") else [])
                E1 = self.to_nodes(self.E_order(*self.E_ops([qt])), 1, only=self.part1,
                                   extra=lambda op: [(fma[(1, int(op.name[4]))], 0)] if op.name.startswith("exp") else [])
                pdone[qt] = [n for n in E0 if n.name.startswith("cvt")]
                crit = [n for n in E0 if not n.name.startswith("add") or int(n.name[4]) < 4]
                rest = [n for n in E0 if n not in crit]
                pool.append((ch + [fma[v] for v in vals[:8]] + crit, rest + cp + [fma[v] for v in vals[8:]] + E1))
            for d in range(16):
                for qt in qts:
                    mfs.append(self.mf(F[32 + d], self.pv_t(0, d, qt, F[32 + d]["buf"], zero=True), deps=[(n, 2) for n in pdone[qt]], cap=o.pro_cap3 if gi == 3 else None))
            hi = [n for tup in zip(*[p[0] for p in pool]) for n in tup]
            lo = sum((p[1] for p in pool), [])
            regions.append((mfs, hi + lo))
        assert not any(n.startswith(("chk", "cmp")) for n in self.part1)
        dsn = lambda F: [n for f in F for n in f["nodes"]]
        def after(F, m):
            for n in dsn(F): n.deps.append((m, 0))
        def spread(dm, ms, g0, step):
            k = 0
            for n in dm:
                if n.k == "vm":
                    n.soft.append((ms[min(len(ms) - 1, g0 + step * k)], 0)); k += 1
        m0, m1, m2, mfs = [r[0] for r in regions]
        V3p = Vp[3]
        for n in dsn(Vp[1] + Vp[2] + K1q): n.low = True
        for n in regions[2][1] + [m2[-1]]: after(K1q[6:], n)
        for d in range(16): after([V3p[d]], mfs[d + 1])
        plan = [("Q", 8), ("Q", 7), ("K", 2), ("V", 1), ("K", 3)] if o.deep else [("Q", 2), ("Q", 8), ("Q", 7), ("K", 2), ("K", 3)]
        vw = 12 if o.deep else 8
        qb, e = self.dma_nodes(*plan[0], [], None)
        spread(qb, m0, 4, 6)
        S.run([], dsn(K0p[:6]))
        S.run(m0, qb + dsn(K0p[6:] + K1p + Vp[0]) + regions[0][1] + dsn(Vp[1]), cap=4, dsmax=2)
        a(f"s_waitcnt vmcnt({vw})")
        S.raw(qread(1))
        a("s_waitcnt lgkmcnt(0)", "w0")
        qa, e = self.dma_nodes(*plan[1], [], None)
        qb, e = self.dma_nodes(*plan[2], [], e)
        S.run([], qa + prescale(1, 128, 4, True))
        spread(qb, m1, 0, 8)
        a("s_nop 1")
        S.run(m1, qb + regions[1][1] + dsn(Vp[2]), cap=o.pro_cap)
        a(f"s_waitcnt vmcnt({vw})")
        S.raw(qread(2))
        a("s_waitcnt lgkmcnt(0)", "w0")
        v1, e = self.dma_nodes(*plan[3], [], None)
        k2, e = self.dma_nodes(*plan[4], [], e)
        S.run([], v1 + prescale(2, 128, 4, True))
        spread(k2, m2, 0, 8)
        a("s_nop 1")
        S.run(m2, k2 + regions[2][1] + dsn(K1q), cap=o.pro_cap)
        a(f"s_waitcnt vmcnt({vw})")
        if o.stamps: S.raw(self.stamp(2))
        S.raw(qread(3))
        for f in range(16):
            if dk(f)[1] == 0: mfs[f].need = ("q", 3, dk(f)[0])
        d1, e1 = self.dma_nodes("V", 1, [(mfs[o.pro_dma], 0)], None)
        d2, e2 = self.dma_nodes("V", 2, [], e1)
        d3 = []
        for j in range(1, 16): V3p[j]["nodes"][0].deps.append((V3p[j - 1]["nodes"][-1], 0))
        bar.deps = [(V3p[15]["nodes"][-1], o.pro_bar), (mfs[o.pro_barm], 0), (e2, 0)]
        ps3 = prescale(3, 132, 4, False, deps=[(mfs[31], 0)])
        S.run(mfs, dsn(V3p) + regions[3][1] + d1 + d2 + d3 + [bar] + dsn(K2p) + ps3, cap=o.pro_cap, dsmax=1)
        a("s_nop 1")
        S.raw([I(None, "wl", need=(0, 1))])
        if o.stamps: S.raw(self.stamp(3) + self.stamp(4))
        return S.out

    def tail(self):
        o = self.o
        S = Sched()
        a = lambda t, k="o", **kw: S.raw([I(t, k, **kw)])
        M29, M30, M31 = 1, 0, 2
        bar = Nd([I("s_waitcnt vmcnt(12)"), I("s_barrier")], "s")
        barV = Nd([I("s_waitcnt vmcnt(0)"), I("s_barrier")], "s")
        dv, ev = self.dma_nodes("V", 3, [], None)
        touch = []
        if o.otouch:
            tm = Nd(f"s_add_u32 m0, s{sWb}, {8*TILE}", "s", deps=[bar])
            touch = [tm, Nd(f"buffer_load_dword off, {srd(sO)}, s{sRow} lds", "vm", deps=[(tm, 1)])]
        specs = [("done" if f < self.npre else "K", 2, f, (0, f), []) for f in range(16)]
        o31 = list(range(16))
        specs += [("K", 3, f, ("t", 31, f), [bar] if f == 0 else []) for f in o31]
        pvgroups = [[(0, d), (1, d)] for d in range(4)] + ([[(2, d) for d in range(4)]] if o.cb0quad else [[(2, 0), (2, 1)], [(2, 2), (2, 3)]])
        pvgroups += [[(tl, dt) for tl in range(3)] for dt in range(4, 16)]
        nlate = 0
        if o.late29:
            pvgroups = [[(0, d), (0, d + 1)] for d in range(4, 16, 2)] + pvgroups[:5] + [[(tl, dt) for tl in (1, 2)] for dt in range(4, 16)]
            nlate = 12
        pvorder = sum(pvgroups, [])
        specs += [("V", 1 + tl, dt, ("t", "v", tl, dt), [barV]) for tl, dt in pvorder]
        fr = self.frag_stream(specs, 0)
        mfs, lastm = [], {}
        for p in range(8):
            for j, qt, e in walk(2, p):
                f = 2 * p + j
                m = self.mf(fr[f], self.qk_t(M30, f, qt, f, first=(p & 3) == 0 and e == 0)); mfs.append(m); lastm[(30, qt, dk(f)[1])] = m
        mfs[0].waited = True; mfs[1].waited = True
        mcopy = vS + [vD]
        def EC(tile, m, only, prevbr, prevmg, brdeps, rare_args):
            Eexp, Epl = self.E_ops()
            chk, mg = self.C_ops(Epl)
            def ex(op):
                d = []
                if op.name.startswith("exp"):
                    if (tile,) + op.src in lastm: d.append((lastm[(tile,) + op.src], 8))
                    if prevbr: d.append((prevbr, 0))
                if op.name.startswith("add") and op.name.endswith("1") and prevmg: d.append((prevmg[int(op.name[3])], 0))
                return d
            En = self.to_nodes(Epl + chk + Eexp, m, extra=ex, only=only)
            cn = [n for n in En if n.name == "cmp"][0]
            br = Nd([I(f"s_cbranch_vccnz L_rare{tile}", "s"), I(f"L_back{tile}:", "l")], "s", deps=[(cn, 1)] + [(n, 0) for n in En] + brdeps)
            self.rares.append(self.rare(str(tile), m, tile % R, *rare_args))
            mn = self.to_nodes(mg, m, extra=lambda op: [(br, 0)])
            return En, br, mn
        E29, br29, mg29 = EC(29, M29, self.part2, None, None, [], ([], M30))
        cpy = [Nd(f"v_mov_b32 v{mcopy[qt]}, v{Mb(qt)}", "v", deps=[br29, ev]) for qt in range(4)]
        q31 = []
        for p in range(8):
            for jj, qt, e in walk(2, p):
                j = 2 * p + jj; f = o31[j]
                deps = [(br29, 0)] if p == 0 else ([(n, 0) for n in cpy] if p == 4 else [])
                m = self.mf(fr[16 + j], self.qk_t(M31, f, qt, 16 + j, first=(p & 3) == 0 and e == 0), deps=deps, cap=o.cap31)
                mfs.append(m); q31.append(m); lastm[(31, qt, dk(f)[1])] = m
        bar.deps = [(mfs[o.tail_bar], 0), (br29, 0), (ev, 0)]
        barV.deps = [(q31[30], 0)]
        E30, br30, mg30 = EC(30, M30, None, br29, mg29, [(n, 0) for n in cpy], ([M29], M31, mcopy))
        E31, br31, mg31 = EC(31, M31, None, br30, mg30, [], ([M29, M30], None, mcopy))
        ln, t0, t1, t2 = 108, 109, 110, 111
        vW0, vR, vQ = 123, 124, 125
        ad = [f"v_mbcnt_lo_u32_b32 v{ln}, -1, 0", f"v_mbcnt_hi_u32_b32 v{ln}, -1, v{ln}",
              f"v_and_b32 v{t0}, 15, v{ln}", f"v_lshlrev_b32 v{t0}, 7, v{t0}",
              f"v_bfe_u32 v{t1}, v{ln}, 4, 1", f"v_lshl_add_u32 v{t0}, v{t1}, 3, v{t0}", f"v_add_u32 v{t0}, s{sWb}, v{t0}",
              f"v_lshrrev_b32 v{t1}, 5, v{ln}", f"v_and_b32 v{t2}, 7, v{ln}", f"v_xor_b32 v{t1}, v{t1}, v{t2}",
              f"v_lshl_add_u32 v{vW0}, v{t1}, 4, v{t0}",
              f"v_lshrrev_b32 v{t0}, 3, v{ln}", f"v_xor_b32 v{t1}, v{t0}, v{t2}", f"v_lshlrev_b32 v{t1}, 4, v{t1}",
              f"v_lshl_add_u32 v{vR}, v{t0}, 7, v{t1}", f"v_add_u32 v{vR}, s{sWb}, v{vR}",
              f"v_lshlrev_b32 v{t2}, 4, v{t2}", f"v_lshl_add_u32 v{vQ}, v{t0}, 9, v{t2}"]
        adn = []
        for x in ad: adn.append(Nd(x, "v", deps=[adn[-1]] if adn else [br31]))
        brs = [br29, br30, br31]
        Pd = {}
        for tl, E in enumerate((E29, E30, E31)):
            for qt in range(4): Pd[(tl, qt)] = [n for n in E if n.name.startswith(f"cvt{qt}")]
        lastpv = {}
        maps = [M29, M30, M31]
        j0 = 0
        for gi, grp in enumerate(pvgroups):
            for jj, qt, e in walk(len(grp), gi):
                if True:
                    tl, dt = grp[jj]
                    j = j0 + jj
                    cap = o.cap_a if j < 8 + nlate else (o.cap_b if j < 12 + nlate else (o.cap_d if j < 15 + nlate else o.cap_c))
                    if o.pkall and j >= 8: cap = o.cap_hi if len(mfs) % o.clus == o.clus - 1 else 2
                    m = self.mf(fr[32 + j], self.pv_t(maps[tl], dt, qt, 32 + j), deps=[(n, 2) for n in Pd[(tl, qt)]] + [(brs[tl], 0)], cap=cap)
                    mfs.append(m); lastpv[(qt, dt)] = m
            j0 += len(grp)
        self.link_users(fr, 8)
        inv = [112 + 2 * qt for qt in range(4)]
        vW = [vW0, 120, 121, 122]
        small = []
        chains = []
        for qt in range(4):
            t, t2 = inv[qt], inv[qt] + 1
            ch = [Nd(f"v_mov_b32 v{t2}, v{vL[qt]}", "v", deps=[mg31[qt]])]
            ch.append(Nd(f"v_permlane16_swap_b32 v{vL[qt]}, v{t2}", "v", deps=[(ch[-1], 2)]))
            ch.append(Nd(f"v_add_f32 v{t}, v{vL[qt]}, v{t2}", "v", deps=[(ch[-1], 1)]))
            ch.append(Nd(f"v_mov_b32 v{t2}, v{t}", "v", deps=[ch[-1]]))
            ch.append(Nd(f"v_permlane32_swap_b32 v{t}, v{t2}", "v", deps=[(ch[-1], 2)]))
            ch.append(Nd(f"v_add_f32 v{t}, v{t}, v{t2}", "v", deps=[(ch[-1], 1)]))
            ch.append(Nd(f"v_rcp_f32 v{t}, v{t}", "t", deps=[ch[-1]]))
            chains.append(ch)
        small = [n for tup in zip(*chains) for n in tup]
        wn = [Nd(f"v_xor_b32 v{vW[k]}, {32*k}, v{vW0}", "v", deps=[adn[-1]]) for k in range(1, 4)]
        conv = []
        opol = [pol(x) for x in (o.opol.split(",") * 4)[:4]]
        wr_prev = {}; st_prev = {}; rd_prev = {}
        lastds = None
        for i, (cb, qt) in enumerate([(cb, qt) for cb in range(4) for qt in range(4)]):
            b = 16 * (i % 4)
            pk = cb == 3 or o.pkall
            a0 = Ob(qt, 4 * cb)
            war = [(wr_prev[i % 4], 1)] if i % 4 in wr_prev else [(br31, 0)]
            rdn = [Nd(f"v_accvgpr_read_b32 v{b+k}, a{a0+k}", "v", deps=[(lastpv[(qt, 4 * cb + (k >> 2))], 8)] + war) for k in range(16)]
            iv = (chains[qt][-1], 1)
            if pk: mu = [Nd(f"v_pk_mul_f32 v[{b+2*k}:{b+2*k+1}], v[{b+2*k}:{b+2*k+1}], v[{inv[qt]}:{inv[qt]+1}] op_sel_hi:[1,0]", "v", deps=[rdn[2 * k], rdn[2 * k + 1], iv]) for k in range(8)]
            else: mu = [Nd(f"v_mul_f32 v{b+k}, v{b+k}, v{inv[qt]}", "v", deps=[rdn[k], iv]) for k in range(16)]
            if pk:
                for n in mu: n.pk = True
            cv = []
            for k in range(8):
                deps = ([mu[k]] if pk else [mu[2 * k], mu[2 * k + 1]]) + ([cv[-1]] if cv else [])
                cv.append(Nd(f"v_cvt_pk_bf16_f32 v{b+k}, v{b+2*k}, v{b+2*k+1}", "v", deps=deps))
            rb = qt >> 1
            wr = []
            for k in range(4):
                deps = [cv[2 * k + 1], adn[-1]] + ([wn[k - 1]] if k else []) + ([rd_prev[rb]] if rb in rd_prev else [(bar, 0)]) + ([wr[-1]] if wr else [])
                wr.append(Nd(f"ds_write_b64 v{vW[k]}, v[{b+2*k}:{b+2*k+1}] offset:{rb*TILE + (qt&1)*2048}", "ds", deps=deps, tag=("w", i, k)))
            for n in wr: n.cost = o.wcost
            wr_prev[i % 4] = wr[-1]
            conv += wr + rdn + mu + cv
            if qt & 1:
                rbuf = 64 + 16 * ((i >> 1) % 3)
                u2 = (i >> 1) % 3
                rds = []
                for k in range(4):
                    deps = [wr[-1], prev_wr] + ([(st_prev[u2], 2)] if u2 in st_prev else []) + ([rds[-1]] if rds else [])
                    rds.append(Nd(f"ds_read_b128 v[{rbuf+4*k}:{rbuf+4*k+3}], v{vR} offset:{rb*TILE + k*1024}", "ds", deps=deps, tag=("r", i, k)))
                rd_prev[rb] = rds[-1]
                sts = []
                for k in range(4):
                    kk = 4 * rb + k
                    so = f"s{sRow}" if kk == 0 else f"s{sRG[kk]}"
                    sts.append(Nd(f"buffer_store_dwordx4 v[{rbuf+4*k}:{rbuf+4*k+3}], v{vQ}, {srd(sO)}, {so} offen offset:{128*cb}{opol[cb]}", "vm",
                                  deps=[rds[k]] + ([sts[-1]] if sts else []), soft=[(rds[k], o.st_dist)], need=("r", i, k)))
                st_prev[u2] = sts[-1]
                conv = self._hoist(conv, rds + sts)
            prev_wr = wr[-1]
        ds = [n for f in fr for n in f["nodes"]]
        pool = ds + dv + [br29, bar, barV] + touch + E29 + mg29 + cpy + [br30] + E30 + mg30 + [br31] + E31 + mg31 + small + adn + wn + conv
        S.run(mfs, pool, dsmax=o.tail_dsmax)
        T = S.out
        if o.ab_drop:
            dr = tuple(o.ab_drop.split(","))
            for it in T:
                if it.t and it.t.startswith(dr): it.t = "s_nop 0" if o.ab_nop else None; it.k = "ds" if it.k == "ds" else "o"
        a2 = lambda t, k="o": T.append(I(t, k))
        if o.stamps:
            i1 = max(i for i, it in enumerate(T) if it.k == "m")
            T[i1 + 1:i1 + 1] = self.stamp(7)
            i0 = min(i for i, it in enumerate(T) if it.t and it.t.startswith("buffer_store"))
            T[i0:i0] = self.stamp(6)
            a2("s_waitcnt vmcnt(0)")
            T += self.stamp(8)
            a2("s_memrealtime s[58:59]", "sm")
            a2("s_getreg_b32 s60, hwreg(HW_REG_XCC_ID)")
            a2("s_getreg_b32 s61, hwreg(HW_REG_HW_ID)")
            a2("s_waitcnt lgkmcnt(0)")
            a2(f"s_mov_b32 s64, s36"); a2("s_mov_b32 s65, s37"); a2(f"s_mov_b32 s66, 0x1000000"); a2("s_mov_b32 s67, 0x20000")
            a2(f"s_lshl_b32 s62, s2, 10")
            a2(f"s_mul_hi_u32 s63, s{sWb}, {(2**32)//(4*PIECE)+1}")
            a2(f"s_lshl_b32 s63, s63, 8")
            a2(f"s_add_u32 s62, s62, s63")
            a2(f"v_mov_b32 v1, 0")
            for k in range(24):
                a2(f"v_mov_b32 v0, s{38+k}")
                a2(f"buffer_store_dword v0, v1, s[64:67], s62 offen offset:{4*k}")
            for k in range(18):
                a2(f"v_mov_b32 v0, s{68+k}")
                a2(f"buffer_store_dword v0, v1, s[64:67], s62 offen offset:{128+4*k}")
        return T

    @staticmethod
    def _hoist(conv, hot):
        k = 0
        while k < len(conv) and getattr(conv[k], "hot", False): k += 1
        for n in hot: n.hot = True
        return conv[:k] + hot + conv[k:]

    def build(self):
        o = self.o
        pro = self.prologue()
        loop = [I("L_loop:", "l")] + self.body(0) + self.body(1)
        tl = self.stamp(5) + self.tail()
        trace = pro + loop + loop + tl
        self.resolve_waits(trace)
        lines = [it.t for it in trace if it.t and not it.skip and it.k != "l"]
        errs = hz.check(lines)
        for r in self.rares: errs += hz.check([it.t for it in r if it.k != "l"])
        for e in sorted(set(errs))[:20]: print(e, file=sys.stderr)
        assert not errs or o.ab_drop, "hazards"
        if o.verbose:
            cnt = lambda l: sum(1 for it in l if it.t and not it.skip and it.k != "l")
            print("instr: prologue", cnt(pro), "loop", cnt(loop), "tail", cnt(tl), file=sys.stderr)
        return pro + [I(".p2align 6" if o.align else "", "l")] + loop + tl + [I("L_end:", "l"), I("s_endpgm")] + sum(self.rares, [])

    def resolve_waits(self, trace):
        ds = []
        for it in trace:
            if it.k == "ds": ds.append(it.tag)
            elif it.k == "wl":
                idx = max(j for j, t in enumerate(ds) if t == it.need)
                n = min(14, len(ds) - 1 - idx)
                it.n = n if it.n is None else min(it.n, n)
        needed = set()
        ds = []; done = 0
        for it in trace:
            if it.k == "ds": ds.append(it.tag)
            elif it.k == "w0": done = len(ds)
            elif it.k == "wl":
                idx = max(j for j, t in enumerate(ds) if t == it.need)
                if idx >= done: needed.add(id(it))
                done = max(done, len(ds) - it.n) if id(it) in needed else done
        for it in trace:
            if it.k == "wl":
                it.skip = id(it) not in needed
                it.t = f"s_waitcnt lgkmcnt({it.n})"

    def text(self):
        body = self.build()
        hdr = open("standalone__mha_softmax__near_ridge.s.ref").read().split("\n")
        top = []
        for ln in hdr:
            if ln.startswith("; @launch"): break
            top.append(ln)
        out = top + [f"; @launch grid=(256,1,1) block=(256,1,1) lds={LDS_BYTES}",
                     "; Flash-attention forward, written with my own generator script (static scheduler + hazard checker).",
                     "; One workgroup per CU: 256 q rows of one head (4 waves x 64 rows), 32-key tiles, v_mfma_f32_16x16x32_bf16.",
                     ";  * S^T = K Q^T and O^T = V^T P^T, so P never leaves its lanes; O lives in the 256 AGPRs, Q in v0..v127.",
                     ";  * K/V/Q reach LDS by LDS-DMA (4-slot rings, padded + xor layout, no bank conflicts); V is read with ds_read_b64_tr_b16.",
                     ";  * Q is scaled once by log2(e)/sqrt(D); -(reference max) enters as the C operand of each QK chain.",
                     ";  * The reference max is the true row max of the first 64 keys.  Every tile's row sums are checked at run time; if a",
                     ";    probability leaves the safe range the tile is recomputed from K against the true running max and O, l, P are",
                     ";    rescaled exactly (L_rare*).",
                     ";  * prologue: tile 0 and QK(1) q-tile by q-tile while Q streams in; loop: cycles QK(j+1) QK(j+2) PV(j,j+1);",
                     ";    tail: PV of the last three tiles column block by column block, transposed through LDS into full-line stores.",
                     '.amdgcn_target "amdgcn-amd-amdhsa--gfx950"', ".text", f".globl {KNAME}"] + ([".p2align 12"] if self.o.al12 else []) + [".p2align 8",
                     f".type {KNAME},@function", f"{KNAME}:"]
        for it in body:
            if it.skip or not it.t: continue
            out.append(("" if it.k == "l" else "    ") + it.t)
        out += ['.section .rodata,"a"', ".p2align 6", f".amdhsa_kernel {KNAME}",
                "  .amdhsa_next_free_vgpr 512", "  .amdhsa_next_free_sgpr 100", "  .amdhsa_accum_offset 256",
                "  .amdhsa_group_segment_fixed_size 0", "  .amdhsa_kernarg_size 48", "  .amdhsa_user_sgpr_count 2",
                "  .amdhsa_user_sgpr_kernarg_segment_ptr 1", "  .amdhsa_system_sgpr_workgroup_id_x 1",
                ".end_amdhsa_kernel", ""]
        return "\n".join(out)

def parse(argv):
    p = argparse.ArgumentParser()
    p.add_argument("-o", default="standalone__mha_softmax__near_ridge.s")
    for f in ("stamps", "verbose", "dbg", "no_bar", "no_dma", "no_br"):
        p.add_argument("--" + f, action="store_true")
    for name, d in dict(align=1, look=24, bar_gap=113, bar_quiet=1, kstep=2, sgap=5, late29=0, e2start=206, dma1=106, dmastep1=8, fake_chain=0, exp_delay=0, exp_bit=3, pkall=0, wcost=1, cap_hi=10, clus=2, deep=0, cb0quad=1, cap_d=5, otouch=0, snake=1, pvchain=1, pace=0, al12=0, late_v1=0, br_delay=1, dma0=2, dmastep=4, sdelay=28, backlog=5,
                        codepf=1, pdepth=7, g0_dma0=2, g0_dmastep=6, pro_dma=2, pro_bar=10, pro_barm=43, pro_cap=3, pro_cap3=12, tail_bar=30, cap31=2, cap_a=7, cap_b=3, cap_c=5, st_dist=24, tail_dsmax=1).items():
        p.add_argument("--" + name, type=int, default=d)
    p.add_argument("--thr", type=float, default=1048576.0)
    p.add_argument("--ab_drop", default="")
    p.add_argument("--ab_nop", type=int, default=0)
    p.add_argument("--kvpol", default="nt")
    p.add_argument("--qpol", default="nt")
    p.add_argument("--opol", default="nt")
    return p.parse_args(argv)

if __name__ == "__main__":
    o = parse(sys.argv[1:])
    open(o.o, "w").write(Gen(o).text())
```

```python
import sys, struct, argparse
sys.path.insert(0, "dev")
import hz

KNAME = "standalone__mha_softmax__near_ridge_kernel"
MF = "v_mfma_f32_16x16x32_bf16"

def f32bits(x): return struct.unpack("<I", struct.pack("<f", x))[0]
def pol(x): return (" " + x.replace("+", " ")) if x else ""
def srd(s): return f"s[{s}:{s+3}]"

class I:
    __slots__ = ("t", "k", "tag", "need", "n", "skip")
    def __init__(self, t, k="o", tag=None, need=None):
        self.t = t; self.k = k; self.tag = tag; self.need = need; self.n = None; self.skip = False

def Qr(qt, d8): b = (qt * 8 + d8) * 4; return f"v[{b}:{b+3}]"
vT = 240
def X(m, qt, k):
    if m < 2: return 128 + m * 32 + qt * 8 + k
    if m == 4: return 128 + qt * 8 + k if k < 4 else 160 + qt * 8 + k
    if m == 5: return 128 + qt * 8 + 4 + k if k < 4 else 160 + qt * 8 + k
    if m >= 10: return X(m - 10, qt, k) if k < 4 else vC + k - 4
    return 128 + 32 + qt * 8 + 4 + k if k < 4 else vT + 4 * qt + k - 4
def Sr(m, qt, kt): b = X(m, qt, 4 * kt); return f"v[{b}:{b+3}]"
def Pr(m, qt): return Sr(m, qt, 0)
NF = 8
def Fx(f): return f if isinstance(f, tuple) else ("v", 192 + (f % NF) * 4)
def Fr(f): c, b = Fx(f); return f"{c}[{b}:{b+3}]"
def Ob(qt, dt): return (qt * 16 + dt) * 4
def Or(qt, dt): b = Ob(qt, dt); return f"a[{b}:{b+3}]"
vK, vVe, vVo, vD = 224, 225, 226, 227
vL = [228, 229, 230, 231]
vLt = [232, 233, 234, 235]
vC = 236
vS = [237, 238, 239]
def Mb(qt): return vT + 4 * qt
def Mr(qt): b = Mb(qt); return f"v[{b}:{b+3}]"
sQ, sK, sV, sO = 4, 8, 12, 16
sC, sKoff, sVoff, sWb, sCnt, sNC, sThr, sRow = 20, 21, 22, 23, 24, 25, 26, 27
sQoff, sMask = 86, 95
sRG = [None, 88, 89, 90, 91, 92, 93, 94]
PIECE = 1088
TILE = 16 * PIECE
R = 4
VBASE = R * TILE
LDS_BYTES = (2 * R + 1) * TILE
NG = 256
def dk(f): return (f & 7, f >> 3)
def walk(n, par):
    for qi in range(4):
        for e in range(n):
            yield (e if qi % 2 == 0 else n - 1 - e, qi if par % 2 == 0 else 3 - qi, e)

class Op:
    def __init__(self, name, fn, cost=1, deps=(), t0=0):
        self.name = name; self.fn = fn; self.cost = cost; self.deps = list(deps); self.t0 = t0; self.t = None

class Nd:
    def __init__(self, t, k, deps=(), tag=None, need=None, cap=None, soft=()):
        self.t = t if isinstance(t, list) else [t]
        self.k = k; self.deps = [d if isinstance(d, tuple) else (d, 0) for d in deps]
        self.tag = tag; self.need = need; self.idx = None; self.cap = cap; self.waited = False; self.soft = list(soft); self.low = False; self.pk = False
        self.cost = {"t": 2, "vm": 2, "s": 0}.get(k, 1)

class Sched:
    def __init__(self):
        self.out = []; self.n = 0; self.issued = set()
    def ok(self, nd, relax=False):
        if not relax and any(d.idx is None or self.n - d.idx - 1 < dist for d, dist in nd.soft): return False
        return all(d.idx is not None and self.n - d.idx - 1 >= dist for d, dist in nd.deps)
    def wait(self, nd):
        if nd.need is not None and not nd.waited:
            self.out.append(I(None, "wl", need=nd.need)); nd.waited = True
    def emit(self, nd):
        self.wait(nd)
        for t in nd.t:
            if isinstance(t, I):
                self.out.append(t)
                if t.k != "l": self.n += 1
            else:
                self.out.append(I(t, nd.k, tag=nd.tag)); self.n += 1
        nd.idx = self.n - 1
    def raw(self, lst):
        for t in lst:
            t = t if isinstance(t, I) else I(t)
            self.out.append(t)
            if t.k not in ("l", "wl"): self.n += 1
    def pick(self, pool, free, dsmax):
        got = []; nds = 0; nsc = 0
        for nd in list(pool):
            if not self.ok(nd): continue
            if nd.k == "s":
                if nsc: continue
                nsc += 1
            else:
                if nd.cost > free: continue
                if nd.k == "ds":
                    if nds >= dsmax: continue
                    nds += 1
                free -= nd.cost
            got.append(nd); pool.remove(nd)
            if free <= 0 and nsc: break
        order = {"s": 0, "ds": 1, "vm": 2}
        got.sort(key=lambda nd: order.get(nd.k, 3))
        return got
    def drain_one(self, pool, relax=False):
        for nd in pool:
            if self.ok(nd, relax):
                pool.remove(nd); self.emit(nd); return True
        return False
    def run(self, mfs, pool, cap=2, dsmax=1, keep=()):
        for i, m in enumerate(mfs):
            guard = 0
            while not self.ok(m):
                if not self.drain_one(pool):
                    self.raw(["s_nop 0"]); guard += 1
                    assert guard < 40, ("stuck", m.t, [d.t for d, _ in m.deps if d.idx is None])
            self.emit(m)
            c = m.cap or cap
            left = c
            pkok = lambda: c - left >= 5
            nx = mfs[i + 1] if i + 1 < len(mfs) else None
            if nx is not None and nx.need is not None and not nx.waited and all(d.idx is not None for d, _ in nx.deps if d.k == "ds"):
                self.wait(nx)
            def take(kinds, maxcost, low=True):
                for nd in pool:
                    if nd.k in kinds and nd.cost <= maxcost and (low or not nd.low) and self.ok(nd) and (not nd.pk or pkok()):
                        pool.remove(nd); self.emit(nd); return nd
                return None
            take(("s",), 0)
            nds = 0
            for lowok in (False, True):
                while nds < dsmax and left > 0:
                    nd = take(("ds",), left, lowok)
                    if not nd: break
                    left -= nd.cost; nds += 1
                if not lowok and left >= 2 and take(("vm",), left): left -= 2
            while left > 0:
                nd = None
                if pkok():
                    for x in pool:
                        if x.pk and self.ok(x):
                            pool.remove(x); self.emit(x); nd = x; break
                if not nd and left >= 2:
                    rdy = []
                    for x in pool:
                        if x.k in ("v", "t") and self.ok(x):
                            rdy.append(x)
                            if x.k == "t" or len(rdy) > 4: break
                    if rdy and rdy[-1].k == "t": nd = take(("t",), left)
                if not nd: nd = take(("v", "t"), left)
                if not nd: break
                left -= nd.cost
        guard = 0
        while any(nd not in keep for nd in pool):
            if not self.drain_one(pool) and not self.drain_one(pool, True):
                self.raw(["s_nop 0"]); guard += 1
                assert guard < 40, ("stuck", [nd.t for nd in pool[:3]])
            else: guard = 0

class Gen:
    def __init__(self, o):
        self.o = o
        self.rares = []
        self.plan()

    def kread_t(self, slot, f, buf):
        d8, kt = dk(f)
        return f"ds_read_b128 {Fr(buf)}, v{vK} offset:{slot*TILE + kt*8*PIECE + 64*d8}"
    def vread_t(self, slot, dt, sec, buf):
        c, b = Fx(buf); b += 2 * sec
        return f"ds_read_b64_tr_b16 {c}[{b}:{b+1}], v{vVo if dt & 1 else vVe} offset:{slot*TILE + sec*8*PIECE + 64*(dt>>1)}"
    def fread(self, u, f, part=None):
        if f < 16: return [I(self.kread_t((u + 1) % R, f, f), "ds", tag=(u, f))]
        return [I(self.vread_t(u % R, f - 16, sec, f), "ds", tag=(u, f)) for sec in range(2) if part is None or part == sec]

    def dma_m0(self, which, slot, j):
        base = slot * TILE + (VBASE if which == "V" else 0) + (PIECE - 1024) * j
        return I(f"s_add_u32 m0, s{sWb}, {base}", "s")
    def dma_ld(self, which, j):
        s, so, p = {"K": (sK, sKoff, self.o.kvpol), "V": (sV, sVoff, self.o.kvpol), "Q": (sQ, sQoff, self.o.qpol)}[which]
        return I(f"buffer_load_dwordx4 v{vD}, {srd(s)}, s{so} offen offset:{j*1024}{pol(p)} lds", "vm")
    def dma_adv(self, which):
        so = {"K": sKoff, "V": sVoff, "Q": sQoff}[which]
        return I(f"s_addk_i32 s{so}, {4096 if which == 'Q' else 16384}", "s")
    def dma_tile(self, which, slot):
        out = [self.dma_m0(which, slot, 0)]
        for j in range(4):
            out += [I("s_nop 0"), self.dma_ld(which, j)]
            if j < 3: out.append(I(f"s_addk_i32 m0, {PIECE-1024}", "s"))
        out.append(self.dma_adv(which))
        return out
    def dma_nodes(self, which, slot, deps, prev):
        out = []
        for j in range(4):
            m = Nd(self.dma_m0(which, slot, j).t, "s", deps=list(deps) + ([prev] if prev else []))
            l = Nd(self.dma_ld(which, j).t, "vm", deps=[(m, 1)])
            out += [m, l]; prev = l
        adv = Nd(self.dma_adv(which).t, "s", deps=[prev]); out.append(adv)
        return out, adv

    def qk_t(self, m, f, qt, buf, zero=False, first=None):
        d8, kt = dk(f)
        if first is None: first = d8 == 0
        c = ("0" if zero else Mr(qt)) if first else Sr(m, qt, kt)
        return f"{MF} {Sr(m,qt,kt)}, {Fr(buf)}, {Qr(qt,d8)}, {c}"
    def pv_t(self, m, dt, qt, buf, zero=False):
        return f"{MF} {Or(qt,dt)}, {Fr(buf)}, {Pr(m,qt)}, {'0' if zero else Or(qt,dt)}"

    def E_ops(self, qts=range(4), acc=None):
        o = self.o
        acc = acc or vLt
        ex, ad, cv, Eexp, Epl = {}, {}, {}, [], []
        for qt in qts:
            for k in range(8):
                ex[(qt, k)] = Op(f"exp{qt}{k}", (lambda m, qt=qt, k=k: f"v_exp_f32 v{X(m,qt,k)}, v{X(m,qt,k)}"), cost=2, t0=(25 if k < 4 else 57) + 2 * (3 - qt) + 6)
                ex[(qt, k)].src = (qt, k >> 2)
                Eexp.append(ex[(qt, k)])
            ad[(qt, 1)] = Op(f"add{qt}1", (lambda m, qt=qt: f"v_add_f32 v{acc[qt]}, v{X(m,qt,0)}, v{X(m,qt,1)}"), deps=[ex[(qt, 0)], ex[(qt, 1)]])
            ad[(qt, 0)] = ad[(qt, 1)]
            for k in range(2, 8):
                ad[(qt, k)] = Op(f"add{qt}{k}", (lambda m, qt=qt, k=k: f"v_add_f32 v{acc[qt]}, v{acc[qt]}, v{X(m,qt,k)}"), deps=[ex[(qt, k)], ad[(qt, k - 1)]])
            for j in range(4):
                deps = [ex[(qt, 2 * j)], ex[(qt, 2 * j + 1)], ad[(qt, j)]] + ([cv[(qt, j >> 1)]] if j else [])
                cv[(qt, j)] = Op(f"cvt{qt}{j}", (lambda m, qt=qt, j=j: f"v_cvt_pk_bf16_f32 v{X(m,qt,j)}, v{X(m,qt,2*j)}, v{X(m,qt,2*j+1)}"), deps=deps)
            for k in range(1, 8):
                Epl.append(ad[(qt, k)])
                if k & 1: Epl.append(cv[(qt, k >> 1)])
        return Eexp, Epl
    def C_ops(self, Epl):
        la = [op for op in Epl if op.name.startswith("add") and op.name.endswith("7")]
        c1 = Op("chk1", (lambda m: f"v_max3_f32 v{vC}, v{vLt[0]}, v{vLt[1]}, v{vLt[2]}"), deps=la[:3])
        c2 = Op("chk2", (lambda m: f"v_max_f32 v{vC}, v{vC}, v{vLt[3]}"), deps=[c1, la[3]])
        cmp = Op("cmp", (lambda m: f"v_cmp_lt_f32 vcc, s{sThr}, v{vC}"), deps=[c2])
        mg = [Op(f"mrg{qt}", (lambda m, qt=qt: f"v_add_f32 v{vL[qt]}, v{vL[qt]}, v{vLt[qt]}")) for qt in range(4)]
        return [c1, c2, cmp], mg
    def to_nodes(self, ops, m, extra=None, only=None):
        nd = {}
        for op in ops:
            if only is not None and op.name not in only: continue
            nd[op] = Nd(op.fn(m), "t" if op.cost == 2 else "v"); nd[op].name = op.name
        for op, n in nd.items():
            for d in op.deps:
                if d in nd: n.deps.append((nd[d], 1 if d.cost == 2 else 0))
            if extra: n.deps += extra(op)
        return list(nd.values())
    @staticmethod
    def E_order(Eexp, Epl):
        return Epl + Eexp

    def mf_at(self, g):
        p = g >> 3
        j, qt, e = list(walk(2, p + (1 if 8 <= p < 16 else 0)))[g & 7]
        return 2 * p + j, qt, e

    def plan(self):
        o = self.o
        used = [0] * NG
        self.ds_at = [[] for _ in range(NG)]
        self.barE, self.barM, self.barV = o.bar_gap + 128, 64 - o.look - 2, 128 - o.look - 2
        g = self.barE + 1
        self.npre = 0
        for f in range(64):
            want = 4 * f - o.look
            if want < 0:
                pos = max(want + NG, g)
                assert pos < NG - 1
                self.ds_at[pos].append((f, None, True)); used[pos] += 1
                g = pos + o.kstep; self.npre = f + 1
                continue
            pos = want
            for p in ([None] if f < 32 else [0, 1]):
                while used[pos] > 0: pos += 1
                assert pos < self.barE - 6
                self.ds_at[pos].append((f, p, False)); used[pos] += 1
        self.dma_at = {}
        pos = o.dma0
        for k in range(16):
            if k == 4: pos = o.dma1
            while used[pos] > 0 or pos % 8 == 0: pos += 1
            assert (0 < pos < self.barM - 3) if k < 4 else (self.barV + 1 < pos < self.barE - 3)
            self.dma_at[pos] = k
            used[pos] = 2
            pos += o.dmastep if k < 4 else o.dmastep1
        used[NG - 1] += 1
        used[self.barE] = 2
        done, start = {}, {}
        for g in range(128):
            f, qt, e = self.mf_at(g)
            done[(f >> 4, qt, dk(f & 15)[1])] = g
            start.setdefault((f >> 4, qt, dk(f & 15)[1]), g)
        scal = set()
        for g, k in self.dma_at.items():
            scal.add(g - 1)
            if k % 4 == 3: scal.add(g + 2)
        for b in (self.barE, self.barM, self.barV): scal |= {b, b - 1}
        busy = lambda g: g % 8 == 7 or (g % NG) in scal
        self.va_at = [[[] for _ in range(2 * NG)] for _ in range(2)]
        self.t_br = [None, None]
        rdy = lambda op, t: op.t0 <= t and all(d.t is not None and d.t < t for d in op.deps)
        tnext = 0
        for w in range(2):
            Eexp, Epl = self.E_ops()
            chk, mg = self.C_ops(Epl)
            for op in Eexp: op.t0 = max(done[(w,) + op.src] + o.sgap, tnext, o.e2start if w else 0)
            if w == 1:
                chk[0].t0 = NG
                for k, op in enumerate(Eexp): op.t0 = max(op.t0, o.e2start + k * o.pace // 10)
            if w == 0:
                Eexp.sort(key=lambda op: op.t0)
                hi = lambda op: int(op.name[4]) >= (4 if op.name.startswith("add") else 2)
                Epl.sort(key=lambda op: (hi(op), done[(0, int(op.name[3]), 1)]))
            Epl = Epl + chk
            allops = Eexp + Epl
            def put(op, t): op.t = t; self.va_at[w][t].append(op); used[t % NG] += op.cost
            t = min(op.t0 for op in Eexp)
            while Eexp or Epl:
                free = 2 - used[t % NG]
                backlog = sum(1 for op in Epl if all(d.t is not None for d in op.deps if d.cost == 2) and op not in chk)
                re = [op for op in Eexp if rdy(op, t)]
                if free == 2 and re and backlog < o.backlog:
                    Eexp.remove(re[0]); put(re[0], t)
                else:
                    for op in list(Epl):
                        if free == 0: break
                        if rdy(op, t): Epl.remove(op); put(op, t); free -= 1
                    if free == 2 and re: Eexp.remove(re[0]); put(re[0], t)
                t += 1
            tb = t + o.br_delay
            if w: tb = max(tb, NG + 1)
            while busy(tb): tb += 1
            self.t_br[w] = tb
            t = tb
            while mg:
                if used[t % NG] < 2: put(mg.pop(0), t)
                else: t += 1
            tnext = t + 1
            for qt in range(4):
                last = max(op.t for op in allops if op.name[:4] in (f"add{qt}", f"cvt{qt}"))
                lim = start[(1, qt, 1)] if w == 0 else NG + start[(0, qt, 1)]
                assert last < lim, ("high quad released too late", w, qt, last, lim)
            if w == 0: assert tb < 126
            else: assert tb - NG < self.barM - 1 and tnext - NG <= min(op.t for tt in self.va_at[0] for op in tt if op.name.startswith("add")), (tb, tnext)
        assert self.t_br[1] - NG <= min(op.t for tt in self.va_at[0] for op in tt)
        self.part1 = {op.name for t in range(0, NG) for op in self.va_at[1][t]}
        self.part2 = {op.name for t in range(NG, 2 * NG) for op in self.va_at[1][t]}
        if o.verbose:
            print("br", self.t_br, "npre", self.npre, "part2", len(self.part2), file=sys.stderr)
            for h in range(2): print("".join(map(str, used[128 * h:128 * h + 128])), file=sys.stderr)

    def cread(self, c, f, part=None):
        j = 1 + 2 * c
        if f < 32: return [I(self.kread_t((j + 1 + (f >> 4)) % R, f & 15, f), "ds", tag=(c, f))]
        return [I(self.vread_t((j + (f & 1)) % R, (f - 32) >> 1, sec, f), "ds", tag=(c, f)) for sec in range(2) if part is None or part == sec]

    def body(self, c):
        o = self.o
        j = 1 + 2 * c
        mP, m1, m2 = (1, 4, 5) if c == 0 else (5, 4, 1)
        desc = lambda k: (("K", (j + 3) % R), ("K", j % R), ("V", (j + 2) % R), ("V", (j + 3) % R))[k >> 2] + (k & 3,)
        out = []
        for g in range(NG):
            f, qt, e = self.mf_at(g)
            if f < 32: t = self.qk_t(m1 if f < 16 else m2, f & 15, qt, f, first=((g >> 3) & 3) == 0 and e == 0)
            else: t = self.pv_t(m1 if f & 1 else mP, (f - 32) >> 1, qt, f)
            out.append(I(t, "m"))
            sc, ds, vm, va = [], [], [], []
            if g % 8 == 7:
                f1 = (g + 1) // 4 + 1
                sc.append(I(None, "wl", need=(c, f1) if f1 < 64 else (1 - c, 1)))
            if g == self.barE - 1: sc.append(I("s_waitcnt vmcnt(12) lgkmcnt(0)", "w0"))
            if g == self.barM - 1: sc.append(I("s_waitcnt vmcnt(12)"))
            if g == self.barV - 1: sc.append(I("s_waitcnt vmcnt(4)"))
            if g in (self.barE, self.barM, self.barV): sc.append(I("s_barrier"))
            if g + 1 in self.dma_at: sc.append(self.dma_m0(*desc(self.dma_at[g + 1])))
            if g in self.dma_at:
                wh, _, jj = desc(self.dma_at[g]); vm.append(self.dma_ld(wh, jj))
            if g - 2 in self.dma_at and self.dma_at[g - 2] % 4 == 3: sc.append(self.dma_adv(desc(self.dma_at[g - 2])[0]))
            for (ff, p, nx) in self.ds_at[g]: ds += self.cread(1 - c if nx else c, ff, p)
            if g == self.t_br[1] - NG:
                sc += [I(f"s_cbranch_vccnz L_rare{2*c}", "s"), I(f"L_back{2*c}:", "l")]
                self.rares.append(self.rare_q(str(2 * c), mP, j % R, [], m1))
            if g == self.t_br[0]:
                sc += [I(f"s_cbranch_vccnz L_rare{2*c+1}", "s"), I(f"L_back{2*c+1}:", "l")]
                self.rares.append(self.rare_q(str(2 * c + 1), m1, (j + 1) % R, [mP], m2))
            for op in self.va_at[1][g + NG]: va.append(I(op.fn(mP), "v"))
            for op in self.va_at[0][g]: va.append(I(op.fn(m1), "v"))
            for op in self.va_at[1][g]: va.append(I(op.fn(m2), "v"))
            if c == 1 and g == NG - 3: sc.append(I(f"s_sub_u32 s{sCnt}, s{sCnt}, 1", "s"))
            if c == 1 and g == NG - 2: sc.append(I(f"s_cmp_lg_u32 s{sCnt}, 0", "s"))
            out += sc + ds + vm + va
        if c == 1: out.append(I("s_cbranch_scc1 L_loop", "s"))
        return out

    def rare_q(self, name, m, kslot, pend, prog):
        out = [I(f"L_rare{name}:", "l")]
        a = lambda t: out.append(I(t))
        fb = ("v", vLt[0])
        m += 10
        t, t2, f = vLt[0], vLt[1], vLt[2]
        a("s_nop 7")
        for qt in range(4):
            for fr in range(16):
                a(self.kread_t(kslot, fr, fb))
                a("s_waitcnt lgkmcnt(0)")
                a(self.qk_t(m, fr, qt, fb))
                a("s_nop 7")
            a("s_nop 3")
            x = lambda k: X(m, qt, k)
            a(f"v_max3_f32 v{t}, v{x(0)}, v{x(1)}, v{x(2)}")
            a(f"v_max3_f32 v{t}, v{t}, v{x(3)}, v{x(4)}")
            a(f"v_max3_f32 v{t}, v{t}, v{x(5)}, v{x(6)}")
            a(f"v_max_f32 v{t}, v{t}, v{x(7)}")
            for sw in ("v_permlane16_swap_b32", "v_permlane32_swap_b32"):
                a(f"v_mov_b32 v{t2}, v{t}"); a("s_nop 1"); a(f"{sw} v{t}, v{t2}"); a("s_nop 1"); a(f"v_max_f32 v{t}, v{t}, v{t2}")
            a(f"v_ceil_f32 v{t}, v{t}")
            a(f"v_max_f32 v{t}, 0, v{t}")
            for k in range(4): a(f"v_sub_f32 v{Mb(qt)+k}, v{Mb(qt)+k}, v{t}")
            for k in range(8): a(f"v_sub_f32 v{x(k)}, v{x(k)}, v{t}")
            for k in range(8): a(f"v_sub_f32 v{X(prog,qt,k)}, v{X(prog,qt,k)}, v{t}")
            a(f"v_min_f32 v{t2}, 0x43480000, v{t}")
            a(f"v_cvt_i32_f32 v{t2}, v{t2}")
            a(f"v_sub_u32 v{t2}, 0, v{t2}")
            a(f"v_ldexp_f32 v{f}, 1.0, v{t2}")
            a(f"v_mul_f32 v{vL[qt]}, v{vL[qt]}, v{f}")
            for pm in pend:
                for j in range(4):
                    p = X(pm, qt, j)
                    a(f"v_lshlrev_b32 v{t}, 16, v{p}")
                    a(f"v_and_b32 v{t2}, 0xffff0000, v{p}")
                    a(f"v_mul_f32 v{t}, v{t}, v{f}")
                    a(f"v_mul_f32 v{t2}, v{t2}, v{f}")
                    a(f"v_cvt_pk_bf16_f32 v{p}, v{t}, v{t2}")
            for a0 in range(qt * 64, qt * 64 + 64, 2):
                a(f"v_accvgpr_read_b32 v{t}, a{a0}"); a(f"v_accvgpr_read_b32 v{t2}, a{a0+1}")
                a(f"v_mul_f32 v{t}, v{t}, v{f}"); a(f"v_mul_f32 v{t2}, v{t2}, v{f}")
                a(f"v_accvgpr_write_b32 a{a0}, v{t}"); a(f"v_accvgpr_write_b32 a{a0+1}, v{t2}")
            for k in range(8): a(f"v_exp_f32 v{x(k)}, v{x(k)}")
            a("s_nop 0")
            for k in range(8): a(f"v_add_f32 v{vL[qt]}, v{vL[qt]}, v{x(k)}")
            for j in range(4): a(f"v_cvt_pk_bf16_f32 v{x(j)}, v{x(2*j)}, v{x(2*j+1)}")
        for qt in range(4): a(f"v_mov_b32 v{vLt[qt]}, 0")
        a("s_nop 1")
        a(f"s_branch L_back{name}")
        return out

    def rare(self, name, m, kslot, pend, prog, mcopy=None):
        out = [I(f"L_rare{name}:", "l")]
        a = lambda t: out.append(I(t))
        fb = ("v", vLt[0])
        a("s_nop 7")
        for f in range(16):
            a(self.kread_t(kslot, f, fb))
            a("s_waitcnt lgkmcnt(0)")
            for qt in range(4): a(self.qk_t(m, f, qt, fb, zero=True))
            a("s_nop 7")
        a("s_nop 7")
        t, t2, f = vC, vLt[0], vLt[1]
        for qt in range(4):
            x = lambda k: X(m, qt, k)
            mreg = mcopy[qt] if mcopy else Mb(qt)
            for k in range(8): a(f"v_add_f32 v{x(k)}, v{x(k)}, v{mreg}")
            a(f"v_max3_f32 v{t}, v{x(0)}, v{x(1)}, v{x(2)}")
            a(f"v_max3_f32 v{t}, v{t}, v{x(3)}, v{x(4)}")
            a(f"v_max3_f32 v{t}, v{t}, v{x(5)}, v{x(6)}")
            a(f"v_max_f32 v{t}, v{t}, v{x(7)}")
            for sw in ("v_permlane16_swap_b32", "v_permlane32_swap_b32"):
                a(f"v_mov_b32 v{t2}, v{t}"); a("s_nop 1"); a(f"{sw} v{t}, v{t2}"); a("s_nop 1"); a(f"v_max_f32 v{t}, v{t}, v{t2}")
            a(f"v_ceil_f32 v{t}, v{t}")
            a(f"v_max_f32 v{t}, 0, v{t}")
            if mcopy: a(f"v_sub_f32 v{mreg}, v{mreg}, v{t}")
            else:
                for k in range(4): a(f"v_sub_f32 v{mreg+k}, v{mreg+k}, v{t}")
            for k in range(8): a(f"v_sub_f32 v{x(k)}, v{x(k)}, v{t}")
            if prog is not None:
                for k in range(8): a(f"v_sub_f32 v{X(prog,qt,k)}, v{X(prog,qt,k)}, v{t}")
            a(f"v_min_f32 v{t2}, 0x43480000, v{t}")
            a(f"v_cvt_i32_f32 v{t2}, v{t2}")
            a(f"v_sub_u32 v{t2}, 0, v{t2}")
            a(f"v_ldexp_f32 v{f}, 1.0, v{t2}")
            a(f"v_mul_f32 v{vL[qt]}, v{vL[qt]}, v{f}")
            for pm in pend:
                for j in range(4):
                    p = X(pm, qt, j)
                    a(f"v_lshlrev_b32 v{t}, 16, v{p}")
                    a(f"v_and_b32 v{t2}, 0xffff0000, v{p}")
                    a(f"v_mul_f32 v{t}, v{t}, v{f}")
                    a(f"v_mul_f32 v{t2}, v{t2}, v{f}")
                    a(f"v_cvt_pk_bf16_f32 v{p}, v{t}, v{t2}")
            for a0 in range(qt * 64, qt * 64 + 64, 2):
                a(f"v_accvgpr_read_b32 v{t}, a{a0}"); a(f"v_accvgpr_read_b32 v{t2}, a{a0+1}")
                a(f"v_mul_f32 v{t}, v{t}, v{f}"); a(f"v_mul_f32 v{t2}, v{t2}, v{f}")
                a(f"v_accvgpr_write_b32 a{a0}, v{t}"); a(f"v_accvgpr_write_b32 a{a0+1}, v{t2}")
        Eexp, Epl = self.E_ops()
        for op in Eexp: a(op.fn(m))
        a("s_nop 0")
        for op in Epl:
            if op.name.startswith("add"): a(op.fn(m))
        for op in Epl:
            if op.name.startswith("cvt"): a(op.fn(m))
        a("s_nop 1")
        a(f"s_branch L_back{name}")
        return out

    def stamp(self, idx):
        if not self.o.stamps: return []
        return [I(f"s_memtime s[{40+2*idx}:{41+2*idx}]", "sm"), I(f"s_memrealtime s[{68+2*idx}:{69+2*idx}]", "sm")]

    def frag_stream(self, specs, j0, users_prev=None):
        fr = []
        for j, (kind, slot, idx, tag, deps, *bb) in enumerate(specs):
            buf = bb[0] if bb else j0 + j
            if kind == "done": nodes = []
            elif kind == "K": nodes = [Nd(self.kread_t(slot, idx, buf), "ds", deps=list(deps), tag=tag)]
            else: nodes = [Nd(self.vread_t(slot, idx, s, buf), "ds", deps=list(deps), tag=tag) for s in range(2)]
            fr.append(dict(nodes=nodes, buf=buf, tag=tag, users=[]))
        prev = None
        for f in fr:
            for n in f["nodes"]:
                if prev: n.deps.append((prev, 0))
                prev = n
        return fr
    def link_users(self, fr, depth):
        for j, f in enumerate(fr):
            if j - depth >= 0 and fr[j - depth]["users"]:
                for n in f["nodes"]: n.deps.append((fr[j - depth]["users"][-1], 0))
    def mf(self, f, text, deps=(), cap=None):
        first = not f["users"]
        m = Nd(text, "m", deps=list(deps) + [(n, 0) for n in f["nodes"]], need=f["tag"] if first else None, cap=cap)
        f["users"].append(m)
        return m

    def prologue(self):
        o = self.o
        S = Sched()
        a = lambda t, k="o", **kw: S.raw([I(t, k, **kw)])
        lane, w, t0, t1, t2, vQr = vT + 8, vT + 9, vT + 10, vT + 11, vT + 12, vT + 14
        a("s_cmpk_ge_u32 s2, 0x100")
        a("s_cbranch_scc1 L_end")
        a("s_load_dwordx8 s[28:35], s[0:1], 0", "sm")
        if o.stamps:
            a(f"s_load_dwordx2 s[36:37], s[0:1], {32 if o.dbg else 40}", "sm")
            a("s_memrealtime s[38:39]", "sm")
            S.raw(self.stamp(0))
        if o.codepf:
            a("s_getpc_b64 s[96:97]")
            a(f"v_lshlrev_b32 v{t0}, 7, v0")
            a(f"v_add_co_u32 v{t0}, vcc, s96, v{t0}")
            a(f"v_mov_b32 v{t1}, s97")
        a(f"v_lshrrev_b32 v{w}, 6, v0")
        if o.codepf: a(f"v_addc_co_u32 v{t1}, vcc, 0, v{t1}, vcc")
        a(f"v_and_b32 v{lane}, 63, v0")
        if o.codepf: a(f"global_load_dword v{vT+15}, v[{t0}:{t1}], off", "vm")
        a(f"v_and_b32 v{t1}, 32, v0")
        a(f"v_readfirstlane_b32 s{sWb}, v{w}")
        a(f"v_lshlrev_b32 v{vD}, 4, v{lane}")
        a(f"v_xor_b32 v{vD}, v{vD}, v{t1}")
        a("s_lshr_b32 s3, s2, 4")
        a("s_and_b32 s87, s2, 7")
        a("s_lshl3_add_u32 s3, s3, s87")
        a("s_and_b32 s87, s2, 8")
        a(f"s_lshl1_add_u32 s{sRow}, s{sWb}, s87")
        a(f"s_lshl_b32 s{sQoff}, s{sRow}, 14")
        a(f"s_lshl_b32 s{sKoff}, s{sWb}, 12")
        a(f"s_mulk_i32 s{sWb}, {4*PIECE}")
        a("s_mul_i32 s87, s3, 253952")
        a(f"s_mov_b32 s{sQ+2}, 253952")
        a(f"s_mov_b32 s{sQ+3}, 0x20000")
        a(f"s_add_u32 m0, s{sWb}, {8*TILE}")
        a(f"s_movk_i32 s{sCnt}, 2")
        a("s_waitcnt lgkmcnt(0)", "w0")
        a(f"s_add_u32 s{sQ}, s28, s87")
        a(f"s_addc_u32 s{sQ+1}, s29, 0")
        if o.exp_delay:
            a(f"s_bitcmp1_b32 s2, {o.exp_bit}")
            a("s_cbranch_scc0 L_q")
            a(f"s_sleep {o.exp_delay}")
        a("L_q:", "l")
        for j in range(4):
            S.raw([self.dma_ld("Q", j)])
            if j < 3:
                a(f"s_addk_i32 m0, {PIECE-1024}", "s")
                a(f"s_sub_u32 s{sCnt}, s{sCnt}, 1" if j == 0 else "s_nop 0")
        a(f"s_addk_i32 m0, {-(TILE + 3*(PIECE-1024))}", "s")
        S.raw([self.dma_adv("Q")])
        a(f"s_cmp_lg_u32 s{sCnt}, 0")
        a("s_cbranch_scc1 L_q")
        a("s_lshl_b32 s3, s3, 19")
        for (s, p) in ((sK, 30), (sV, 32)):
            a(f"s_add_u32 s{s}, s{p}, s3")
            a(f"s_addc_u32 s{s+1}, s{p+1}, 0")
            a(f"s_mov_b32 s{s+2}, 524288")
            a(f"s_mov_b32 s{s+3}, 0x20000")
        a(f"s_mov_b32 s{sVoff}, s{sKoff}")
        S.raw(self.dma_tile("K", 0) + self.dma_tile("K", 1) + self.dma_tile("V", 0))
        a(f"s_add_u32 s{sO}, s34, s87")
        a(f"s_addc_u32 s{sO+1}, s35, 0")
        a(f"s_mov_b32 s{sO+2}, 253952")
        a(f"s_mov_b32 s{sO+3}, 0x20000")
        a(f"s_lshl_b32 s{sRow}, s{sRow}, 14")
        for k in range(1, 8): a(f"s_add_u32 s{sRG[k]}, s{sRow}, {k*4096}")
        a(f"v_and_b32 v{t2}, 1, v{lane}")
        a(f"v_lshlrev_b32 v{t0}, 9, v{t2}")
        a(f"v_lshlrev_b32 v{t2}, 5, v{t2}")
        a(f"v_lshrrev_b32 v{t1}, 4, v{lane}")
        a(f"v_lshlrev_b32 v{t1}, 4, v{t1}")
        a(f"v_xor_b32 v{t1}, v{t1}, v{t2}")
        a(f"v_add_u32 v{t0}, v{t0}, v{t1}")
        a(f"v_bfe_u32 v{t1}, v{lane}, 1, 2")
        a(f"v_mul_u32_u24 v{t1}, {PIECE}, v{t1}")
        a(f"v_add_u32 v{t0}, v{t0}, v{t1}")
        a(f"v_bfe_u32 v{t1}, v{lane}, 3, 1")
        a(f"v_mul_u32_u24 v{vK}, {4*PIECE}, v{t1}")
        a(f"v_add_u32 v{vK}, v{vK}, v{t0}")
        a(f"v_xor_b32 v{t1}, 1, v{t1}")
        a(f"v_mul_u32_u24 v{vQr}, {TILE}, v{t1}")
        a(f"v_add_u32 v{vQr}, v{vQr}, v{t0}")
        a(f"s_add_u32 s87, s{sWb}, {5*TILE}")
        a(f"v_add_u32 v{vQr}, s87, v{vQr}")
        a(f"v_subrev_u32 v{vQr-1}, {3*TILE}, v{vQr}")
        a(f"v_lshrrev_b32 v{t0}, 3, v{lane}")
        a(f"v_mul_u32_u24 v{t0}, {PIECE}, v{t0}")
        a(f"v_bfe_u32 v{t2}, v{lane}, 2, 1")
        a(f"v_lshl_add_u32 v{t0}, v{t2}, 9, v{t0}")
        a(f"v_and_b32 v{t1}, 3, v{lane}")
        a(f"v_lshl_add_u32 v{t0}, v{t1}, 3, v{t0}")
        a(f"v_add_u32 v{t0}, {VBASE}, v{t0}")
        a(f"v_lshl_add_u32 v{vVe}, v{t2}, 5, v{t0}")
        a(f"v_xor_b32 v{vVo}, 32, v{vVe}")
        c = 1.4426950408889634 / 16.0
        a(f"s_mov_b32 s{sC}, {hex(f32bits(c))}")
        a(f"s_mov_b32 s{sNC}, {hex(f32bits(-c))}")
        a(f"s_mov_b32 s{sThr}, {hex(f32bits(o.thr))}")
        a(f"s_movk_i32 s{sCnt}, 7")
        a(f"s_mov_b32 s{sMask}, 0xffff0000")
        def qchunks(hi_slot):
            return self.dma_tile("Q", hi_slot) + self.dma_tile("Q", hi_slot - 1)
        def qread(qt):
            base, off = {0: (vQr, 2 * TILE), 1: (vQr, 0), 2: (vQr - 1, 0), 3: (vQr, 2 * TILE)}[(3 - qt) if (o.deep and qt in (1, 2)) else qt]
            return [I(f"ds_read_b128 {Qr(qt,d8)}, v{base} offset:{off + 64*d8}", "ds", tag=("q", qt, d8)) for d8 in range(8)]
        def prescale(qt, tb, nt, pk, deps=()):
            out, lastcv = [], {}
            for g in range(0, 32, nt):
                rs = [(32 * qt + g + i, tb + 2 * i) for i in range(nt)]
                w = lambda t: [lastcv[t]] if t in lastcv else []
                lo = [Nd(f"v_lshlrev_b32 v{t}, 16, v{r}", "v", deps=list(deps) + w(t)) for r, t in rs]
                hi = [Nd(f"v_and_b32 v{t+1}, s{sMask}, v{r}", "v", deps=list(deps) + w(t)) for r, t in rs]
                if pk: mu = [[Nd(f"v_pk_mul_f32 v[{t}:{t+1}], v[{t}:{t+1}], s[{sC}:{sC+1}] op_sel_hi:[1,0]", "v", deps=[lo[i], hi[i]])] for i, (r, t) in enumerate(rs)]
                else: mu = [[Nd(f"v_mul_f32 v{t}, s{sC}, v{t}", "v", deps=[lo[i]]), Nd(f"v_mul_f32 v{t+1}, s{sC}, v{t+1}", "v", deps=[hi[i]])] for i, (r, t) in enumerate(rs)]
                cv = [Nd(f"v_cvt_pk_bf16_f32 v{r}, v{t}, v{t+1}", "v", deps=mu[i]) for i, (r, t) in enumerate(rs)]
                for i, (r, t) in enumerate(rs): lastcv[t] = cv[i]
                out += lo + hi + sum(mu, []) + cv
            return out
        S.raw(qchunks(3 if o.deep else 6))
        a("s_waitcnt vmcnt(20)")
        S.raw(qread(0))
        a("s_waitcnt lgkmcnt(0)", "w0")
        S.run([], prescale(0, 128, 4, True))
        if o.deep:
            S.raw(qchunks(6))
            a("s_waitcnt vmcnt(16)")
        else:
            S.raw(self.dma_tile("Q", 3))
            a("s_waitcnt vmcnt(12)")
        a("s_barrier")
        if o.stamps: S.raw(self.stamp(1))
        groups = [[0], [1], [2], [3]]
        bar = Nd([I("s_waitcnt vmcnt(12) lgkmcnt(0)", "w0"), I("s_barrier")], "s")
        one = lambda kind, slot, idx, tag, buf, deps=(): self.frag_stream([(kind, slot, idx, tag, list(deps), buf)], 0)[0]
        K0p = [one("K", 0, f, ("k0", f), ("a", 192 + 4 * f)) for f in range(16)]
        K1p = [one("K", 1, f, ("k1", f), ("v", 96 + 4 * f) if f < 8 else f) for f in range(16)]
        assert {"cvt03", "cvt13", "add07", "add17"} <= self.part1
        K1q = [one("K", 1, f, ("k1b", f), ("v", b)) for f, b in enumerate([128, 132, 136, 140, X(1, 0, 4), X(1, 1, 4), 144, 148])]
        lastq = [("a", 64), ("a", 128), ("v", 152), ("v", 128)]
        Vp = [[one("V", 0, d, ("vp", r, d), ("a", 64 * r + 4 + 4 * d) if d < 15 else lastq[r]) for d in range(16)] for r in range(4)]
        K2p = self.frag_stream([("K", 2, f, (0, f), [bar], f) for f in range(self.npre)], 0)
        again = lambda F: [dict(nodes=f["nodes"], buf=f["buf"], tag=f["tag"], users=[]) for f in F]
        fr_all = []
        for r in range(4): fr_all += again(K0p) + (again(K1p) if r < 3 else K1q + again(K1p[8:])) + Vp[r]
        regions = []
        for gi, qts in enumerate(groups):
            F = fr_all[48 * gi:48 * gi + 48]
            mfs, pool = [], []
            lastm = {}
            neg, pos = ("-1.0", "1.0") if gi < 3 else (f"s{sNC}", f"s{sC}")
            for tl in range(2):
                for f in range(16):
                    for qt in qts:
                        m = self.mf(F[16 * tl + f], self.qk_t(tl, f, qt, F[16 * tl + f]["buf"], zero=True)); mfs.append(m); lastm[(tl, qt, dk(f)[1])] = m
            pdone = {}
            for qi, qt in enumerate(qts):
                t, t2 = vC + 2 * qi, vC + 2 * qi + 1
                vals = [(tl, k) for tl in range(2) for k in range(8)]
                src = lambda v: (lastm[(v[0], qt, v[1] >> 2)], 8)
                rg = lambda v: f"v{X(v[0], qt, v[1])}"
                ch = [Nd(f"v_max3_f32 v{t}, {rg(vals[0])}, {rg(vals[1])}, {rg(vals[2])}", "v", deps=[src(v) for v in vals[:3]])]
                for j in range(3, 15, 2):
                    ch.append(Nd(f"v_max3_f32 v{t}, v{t}, {rg(vals[j])}, {rg(vals[j+1])}", "v", deps=[ch[-1], src(vals[j]), src(vals[j + 1])]))
                ch.append(Nd(f"v_max_f32 v{t}, v{t}, {rg(vals[15])}", "v", deps=[ch[-1], src(vals[15])]))
                for sw in ("v_permlane16_swap_b32", "v_permlane32_swap_b32"):
                    ch.append(Nd(f"v_mov_b32 v{t2}, v{t}", "v", deps=[ch[-1]]))
                    ch.append(Nd(f"{sw} v{t}, v{t2}", "v", deps=[(ch[-1], 2)]))
                    ch.append(Nd(f"v_max_f32 v{t}, v{t}, v{t2}", "v", deps=[(ch[-1], 1)]))
                mm = Nd(f"v_mul_f32 v{Mb(qt)}, {neg}, v{t}", "v", deps=[ch[-1]]); ch.append(mm)
                cp = [Nd(f"v_mov_b32 v{Mb(qt)+k}, v{Mb(qt)}", "v", deps=[mm]) for k in range(1, 4)]
                fma = {v: Nd(f"v_fma_f32 {rg(v)}, {rg(v)}, {pos}, v{Mb(qt)}", "v", deps=[mm]) for v in vals}
                E0 = self.to_nodes(self.E_order(*self.E_ops([qt], vL)), 0, extra=lambda op: [(fma[(0, int(op.name[4]))], 0)] if op.name.startswith("exp") else [])
                E1 = self.to_nodes(self.E_order(*self.E_ops([qt])), 1, only=self.part1,
                                   extra=lambda op: [(fma[(1, int(op.name[4]))], 0)] if op.name.startswith("exp") else [])
                pdone[qt] = [n for n in E0 if n.name.startswith("cvt")]
                crit = [n for n in E0 if not n.name.startswith("add") or int(n.name[4]) < 4]
                rest = [n for n in E0 if n not in crit]
                pool.append((ch + [fma[v] for v in vals[:8]] + crit, rest + cp + [fma[v] for v in vals[8:]] + E1))
            for d in range(16):
                for qt in qts:
                    mfs.append(self.mf(F[32 + d], self.pv_t(0, d, qt, F[32 + d]["buf"], zero=True), deps=[(n, 2) for n in pdone[qt]], cap=o.pro_cap3 if gi == 3 else None))
            hi = [n for tup in zip(*[p[0] for p in pool]) for n in tup]
            lo = sum((p[1] for p in pool), [])
            regions.append((mfs, hi + lo))
        assert not any(n.startswith(("chk", "cmp")) for n in self.part1)
        dsn = lambda F: [n for f in F for n in f["nodes"]]
        def after(F, m):
            for n in dsn(F): n.deps.append((m, 0))
        def spread(dm, ms, g0, step):
            k = 0
            for n in dm:
                if n.k == "vm":
                    n.soft.append((ms[min(len(ms) - 1, g0 + step * k)], 0)); k += 1
        m0, m1, m2, mfs = [r[0] for r in regions]
        V3p = Vp[3]
        for n in dsn(Vp[1] + Vp[2] + K1q): n.low = True
        for n in regions[2][1] + [m2[-1]]: after(K1q[6:], n)
        for d in range(16): after([V3p[d]], mfs[d + 1])
        plan = [("Q", 8), ("Q", 7), ("K", 2), ("V", 1), ("K", 3)] if o.deep else [("Q", 2), ("Q", 8), ("Q", 7), ("K", 2), ("K", 3)]
        vw = 12 if o.deep else 8
        qb, e = self.dma_nodes(*plan[0], [], None)
        spread(qb, m0, 4, 6)
        S.run([], dsn(K0p[:6]))
        S.run(m0, qb + dsn(K0p[6:] + K1p + Vp[0]) + regions[0][1] + dsn(Vp[1]), cap=4, dsmax=2)
        a(f"s_waitcnt vmcnt({vw})")
        S.raw(qread(1))
        a("s_waitcnt lgkmcnt(0)", "w0")
        qa, e = self.dma_nodes(*plan[1], [], None)
        qb, e = self.dma_nodes(*plan[2], [], e)
        S.run([], qa + prescale(1, 128, 4, True))
        spread(qb, m1, 0, 8)
        a("s_nop 1")
        S.run(m1, qb + regions[1][1] + dsn(Vp[2]), cap=o.pro_cap)
        a(f"s_waitcnt vmcnt({vw})")
        S.raw(qread(2))
        a("s_waitcnt lgkmcnt(0)", "w0")
        v1, e = self.dma_nodes(*plan[3], [], None)
        k2, e = self.dma_nodes(*plan[4], [], e)
        S.run([], v1 + prescale(2, 128, 4, True))
        spread(k2, m2, 0, 8)
        a("s_nop 1")
        S.run(m2, k2 + regions[2][1] + dsn(K1q), cap=o.pro_cap)
        a(f"s_waitcnt vmcnt({vw})")
        if o.stamps: S.raw(self.stamp(2))
        S.raw(qread(3))
        for f in range(16):
            if dk(f)[1] == 0: mfs[f].need = ("q", 3, dk(f)[0])
        d1, e1 = self.dma_nodes("V", 1, [(mfs[o.pro_dma], 0)], None)
        d2, e2 = self.dma_nodes("V", 2, [], e1)
        d3 = []
        for j in range(1, 16): V3p[j]["nodes"][0].deps.append((V3p[j - 1]["nodes"][-1], 0))
        bar.deps = [(V3p[15]["nodes"][-1], o.pro_bar), (mfs[o.pro_barm], 0), (e2, 0)]
        ps3 = prescale(3, 132, 4, False, deps=[(mfs[31], 0)])
        S.run(mfs, dsn(V3p) + regions[3][1] + d1 + d2 + d3 + [bar] + dsn(K2p) + ps3, cap=o.pro_cap, dsmax=1)
        a("s_nop 1")
        S.raw([I(None, "wl", need=(0, 1))])
        if o.stamps: S.raw(self.stamp(3) + self.stamp(4))
        return S.out

    def tail(self):
        o = self.o
        S = Sched()
        a = lambda t, k="o", **kw: S.raw([I(t, k, **kw)])
        M29, M30, M31 = 1, 0, 2
        bar = Nd([I("s_waitcnt vmcnt(12)"), I("s_barrier")], "s")
        barV = Nd([I("s_waitcnt vmcnt(0)"), I("s_barrier")], "s")
        dv, ev = self.dma_nodes("V", 3, [], None)
        touch = []
        if o.otouch:
            tm = Nd(f"s_add_u32 m0, s{sWb}, {8*TILE}", "s", deps=[bar])
            touch = [tm, Nd(f"buffer_load_dword off, {srd(sO)}, s{sRow} lds", "vm", deps=[(tm, 1)])]
        specs = [("done" if f < self.npre else "K", 2, f, (0, f), []) for f in range(16)]
        o31 = list(range(16))
        specs += [("K", 3, f, ("t", 31, f), [bar] if f == 0 else []) for f in o31]
        pvgroups = [[(0, d), (1, d)] for d in range(4)] + ([[(2, d) for d in range(4)]] if o.cb0quad else [[(2, 0), (2, 1)], [(2, 2), (2, 3)]])
        pvgroups += [[(tl, dt) for tl in range(3)] for dt in range(4, 16)]
        nlate = 0
        if o.late29:
            pvgroups = [[(0, d), (0, d + 1)] for d in range(4, 16, 2)] + pvgroups[:5] + [[(tl, dt) for tl in (1, 2)] for dt in range(4, 16)]
            nlate = 12
        pvorder = sum(pvgroups, [])
        specs += [("V", 1 + tl, dt, ("t", "v", tl, dt), [barV]) for tl, dt in pvorder]
        fr = self.frag_stream(specs, 0)
        mfs, lastm = [], {}
        for p in range(8):
            for j, qt, e in walk(2, p):
                f = 2 * p + j
                m = self.mf(fr[f], self.qk_t(M30, f, qt, f, first=(p & 3) == 0 and e == 0)); mfs.append(m); lastm[(30, qt, dk(f)[1])] = m
        mfs[0].waited = True; mfs[1].waited = True
        mcopy = vS + [vD]
        def EC(tile, m, only, prevbr, prevmg, brdeps, rare_args):
            Eexp, Epl = self.E_ops()
            chk, mg = self.C_ops(Epl)
            def ex(op):
                d = []
                if op.name.startswith("exp"):
                    if (tile,) + op.src in lastm: d.append((lastm[(tile,) + op.src], 8))
                    if prevbr: d.append((prevbr, 0))
                if op.name.startswith("add") and op.name.endswith("1") and prevmg: d.append((prevmg[int(op.name[3])], 0))
                return d
            En = self.to_nodes(Epl + chk + Eexp, m, extra=ex, only=only)
            cn = [n for n in En if n.name == "cmp"][0]
            br = Nd([I(f"s_cbranch_vccnz L_rare{tile}", "s"), I(f"L_back{tile}:", "l")], "s", deps=[(cn, 1)] + [(n, 0) for n in En] + brdeps)
            self.rares.append(self.rare(str(tile), m, tile % R, *rare_args))
            mn = self.to_nodes(mg, m, extra=lambda op: [(br, 0)])
            return En, br, mn
        E29, br29, mg29 = EC(29, M29, self.part2, None, None, [], ([], M30))
        cpy = [Nd(f"v_mov_b32 v{mcopy[qt]}, v{Mb(qt)}", "v", deps=[br29, ev]) for qt in range(4)]
        q31 = []
        for p in range(8):
            for jj, qt, e in walk(2, p):
                j = 2 * p + jj; f = o31[j]
                deps = [(br29, 0)] if p == 0 else ([(n, 0) for n in cpy] if p == 4 else [])
                m = self.mf(fr[16 + j], self.qk_t(M31, f, qt, 16 + j, first=(p & 3) == 0 and e == 0), deps=deps, cap=o.cap31)
                mfs.append(m); q31.append(m); lastm[(31, qt, dk(f)[1])] = m
        bar.deps = [(mfs[o.tail_bar], 0), (br29, 0), (ev, 0)]
        barV.deps = [(q31[30], 0)]
        E30, br30, mg30 = EC(30, M30, None, br29, mg29, [(n, 0) for n in cpy], ([M29], M31, mcopy))
        E31, br31, mg31 = EC(31, M31, None, br30, mg30, [], ([M29, M30], None, mcopy))
        ln, t0, t1, t2 = 108, 109, 110, 111
        vW0, vR, vQ = 123, 124, 125
        ad = [f"v_mbcnt_lo_u32_b32 v{ln}, -1, 0", f"v_mbcnt_hi_u32_b32 v{ln}, -1, v{ln}",
              f"v_and_b32 v{t0}, 15, v{ln}", f"v_lshlrev_b32 v{t0}, 7, v{t0}",
              f"v_bfe_u32 v{t1}, v{ln}, 4, 1", f"v_lshl_add_u32 v{t0}, v{t1}, 3, v{t0}", f"v_add_u32 v{t0}, s{sWb}, v{t0}",
              f"v_lshrrev_b32 v{t1}, 5, v{ln}", f"v_and_b32 v{t2}, 7, v{ln}", f"v_xor_b32 v{t1}, v{t1}, v{t2}",
              f"v_lshl_add_u32 v{vW0}, v{t1}, 4, v{t0}",
              f"v_lshrrev_b32 v{t0}, 3, v{ln}", f"v_xor_b32 v{t1}, v{t0}, v{t2}", f"v_lshlrev_b32 v{t1}, 4, v{t1}",
              f"v_lshl_add_u32 v{vR}, v{t0}, 7, v{t1}", f"v_add_u32 v{vR}, s{sWb}, v{vR}",
              f"v_lshlrev_b32 v{t2}, 4, v{t2}", f"v_lshl_add_u32 v{vQ}, v{t0}, 9, v{t2}"]
        adn = []
        for x in ad: adn.append(Nd(x, "v", deps=[adn[-1]] if adn else [br31]))
        brs = [br29, br30, br31]
        Pd = {}
        for tl, E in enumerate((E29, E30, E31)):
            for qt in range(4): Pd[(tl, qt)] = [n for n in E if n.name.startswith(f"cvt{qt}")]
        lastpv = {}
        maps = [M29, M30, M31]
        j0 = 0
        for gi, grp in enumerate(pvgroups):
            for jj, qt, e in walk(len(grp), gi):
                if True:
                    tl, dt = grp[jj]
                    j = j0 + jj
                    cap = o.cap_a if j < 8 + nlate else (o.cap_b if j < 12 + nlate else (o.cap_d if j < 15 + nlate else o.cap_c))
                    if o.pkall and j >= 8: cap = o.cap_hi if len(mfs) % o.clus == o.clus - 1 else 2
                    m = self.mf(fr[32 + j], self.pv_t(maps[tl], dt, qt, 32 + j), deps=[(n, 2) for n in Pd[(tl, qt)]] + [(brs[tl], 0)], cap=cap)
                    mfs.append(m); lastpv[(qt, dt)] = m
            j0 += len(grp)
        self.link_users(fr, 8)
        inv = [112 + 2 * qt for qt in range(4)]
        vW = [vW0, 120, 121, 122]
        small = []
        chains = []
        for qt in range(4):
            t, t2 = inv[qt], inv[qt] + 1
            ch = [Nd(f"v_mov_b32 v{t2}, v{vL[qt]}", "v", deps=[mg31[qt]])]
            ch.append(Nd(f"v_permlane16_swap_b32 v{vL[qt]}, v{t2}", "v", deps=[(ch[-1], 2)]))
            ch.append(Nd(f"v_add_f32 v{t}, v{vL[qt]}, v{t2}", "v", deps=[(ch[-1], 1)]))
            ch.append(Nd(f"v_mov_b32 v{t2}, v{t}", "v", deps=[ch[-1]]))
            ch.append(Nd(f"v_permlane32_swap_b32 v{t}, v{t2}", "v", deps=[(ch[-1], 2)]))
            ch.append(Nd(f"v_add_f32 v{t}, v{t}, v{t2}", "v", deps=[(ch[-1], 1)]))
            ch.append(Nd(f"v_rcp_f32 v{t}, v{t}", "t", deps=[ch[-1]]))
            chains.append(ch)
        small = [n for tup in zip(*chains) for n in tup]
        wn = [Nd(f"v_xor_b32 v{vW[k]}, {32*k}, v{vW0}", "v", deps=[adn[-1]]) for k in range(1, 4)]
        conv = []
        opol = [pol(x) for x in (o.opol.split(",") * 4)[:4]]
        wr_prev = {}; st_prev = {}; rd_prev = {}
        lastds = None
        for i, (cb, qt) in enumerate([(cb, qt) for cb in range(4) for qt in range(4)]):
            b = 16 * (i % 4)
            pk = cb == 3 or o.pkall
            a0 = Ob(qt, 4 * cb)
            war = [(wr_prev[i % 4], 1)] if i % 4 in wr_prev else [(br31, 0)]
            rdn = [Nd(f"v_accvgpr_read_b32 v{b+k}, a{a0+k}", "v", deps=[(lastpv[(qt, 4 * cb + (k >> 2))], 8)] + war) for k in range(16)]
            iv = (chains[qt][-1], 1)
            if pk: mu = [Nd(f"v_pk_mul_f32 v[{b+2*k}:{b+2*k+1}], v[{b+2*k}:{b+2*k+1}], v[{inv[qt]}:{inv[qt]+1}] op_sel_hi:[1,0]", "v", deps=[rdn[2 * k], rdn[2 * k + 1], iv]) for k in range(8)]
            else: mu = [Nd(f"v_mul_f32 v{b+k}, v{b+k}, v{inv[qt]}", "v", deps=[rdn[k], iv]) for k in range(16)]
            if pk:
                for n in mu: n.pk = True
            cv = []
            for k in range(8):
                deps = ([mu[k]] if pk else [mu[2 * k], mu[2 * k + 1]]) + ([cv[-1]] if cv else [])
                cv.append(Nd(f"v_cvt_pk_bf16_f32 v{b+k}, v{b+2*k}, v{b+2*k+1}", "v", deps=deps))
            rb = qt >> 1
            wr = []
            for k in range(4):
                deps = [cv[2 * k + 1], adn[-1]] + ([wn[k - 1]] if k else []) + ([rd_prev[rb]] if rb in rd_prev else [(bar, 0)]) + ([wr[-1]] if wr else [])
                wr.append(Nd(f"ds_write_b64 v{vW[k]}, v[{b+2*k}:{b+2*k+1}] offset:{rb*TILE + (qt&1)*2048}", "ds", deps=deps, tag=("w", i, k)))
            for n in wr: n.cost = o.wcost
            wr_prev[i % 4] = wr[-1]
            conv += wr + rdn + mu + cv
            if qt & 1:
                rbuf = 64 + 16 * ((i >> 1) % 3)
                u2 = (i >> 1) % 3
                rds = []
                for k in range(4):
                    deps = [wr[-1], prev_wr] + ([(st_prev[u2], 2)] if u2 in st_prev else []) + ([rds[-1]] if rds else [])
                    rds.append(Nd(f"ds_read_b128 v[{rbuf+4*k}:{rbuf+4*k+3}], v{vR} offset:{rb*TILE + k*1024}", "ds", deps=deps, tag=("r", i, k)))
                rd_prev[rb] = rds[-1]
                sts = []
                for k in range(4):
                    kk = 4 * rb + k
                    so = f"s{sRow}" if kk == 0 else f"s{sRG[kk]}"
                    sts.append(Nd(f"buffer_store_dwordx4 v[{rbuf+4*k}:{rbuf+4*k+3}], v{vQ}, {srd(sO)}, {so} offen offset:{128*cb}{opol[cb]}", "vm",
                                  deps=[rds[k]] + ([sts[-1]] if sts else []), soft=[(rds[k], o.st_dist)], need=("r", i, k)))
                st_prev[u2] = sts[-1]
                conv = self._hoist(conv, rds + sts)
            prev_wr = wr[-1]
        ds = [n for f in fr for n in f["nodes"]]
        pool = ds + dv + [br29, bar, barV] + touch + E29 + mg29 + cpy + [br30] + E30 + mg30 + [br31] + E31 + mg31 + small + adn + wn + conv
        S.run(mfs, pool, dsmax=o.tail_dsmax)
        T = S.out
        if o.ab_drop:
            dr = tuple(o.ab_drop.split(","))
            for it in T:
                if it.t and it.t.startswith(dr): it.t = "s_nop 0" if o.ab_nop else None; it.k = "ds" if it.k == "ds" else "o"
        a2 = lambda t, k="o": T.append(I(t, k))
        if o.stamps:
            i1 = max(i for i, it in enumerate(T) if it.k == "m")
            T[i1 + 1:i1 + 1] = self.stamp(7)
            i0 = min(i for i, it in enumerate(T) if it.t and it.t.startswith("buffer_store"))
            T[i0:i0] = self.stamp(6)
            a2("s_waitcnt vmcnt(0)")
            T += self.stamp(8)
            a2("s_memrealtime s[58:59]", "sm")
            a2("s_getreg_b32 s60, hwreg(HW_REG_XCC_ID)")
            a2("s_getreg_b32 s61, hwreg(HW_REG_HW_ID)")
            a2("s_waitcnt lgkmcnt(0)")
            a2(f"s_mov_b32 s64, s36"); a2("s_mov_b32 s65, s37"); a2(f"s_mov_b32 s66, {256 if o.dbg else 0x1000000}"); a2("s_mov_b32 s67, 0x20000")
            if o.dbg:
                a2("s_cmp_lg_u32 s2, 37"); a2("s_cbranch_scc1 L_end")
                a2(f"s_cmp_lg_u32 s{sWb}, 0"); a2("s_cbranch_scc1 L_end")
                a2("v_mov_b32 v1, 0")
                for k in range(8):
                    a2(f"s_sub_u32 s62, s{42+2*k}, s{40+2*k}"); a2("v_mov_b32 v0, s62")
                    a2(f"buffer_store_dword v0, v1, s[64:67], 0 offen offset:{4*k}")
                    a2(f"s_sub_u32 s62, s{70+2*k}, s{68+2*k}"); a2("v_mov_b32 v0, s62")
                    a2(f"buffer_store_dword v0, v1, s[64:67], 0 offen offset:{32+4*k}")
                if o.amp:
                    i0, i1 = map(int, o.amp.split(","))
                    a2(f"s_sub_u32 s62, s{68+2*i1}, s{68+2*i0}")
                    a2("s_lshl_b32 s62, s62, 3")
                    a2("s_min_u32 s62, s62, 100000")
                    a2("L_amp:", "l")
                    a2("s_memrealtime s[58:59]")
                    a2("s_waitcnt lgkmcnt(0)")
                    a2("s_sub_u32 s63, s58, s84")
                    a2("s_cmp_lt_u32 s63, s62")
                    a2("s_cbranch_scc1 L_amp")
                return T
            a2(f"s_lshl_b32 s62, s2, 10")
            a2(f"s_mul_hi_u32 s63, s{sWb}, {(2**32)//(4*PIECE)+1}")
            a2(f"s_lshl_b32 s63, s63, 8")
            a2(f"s_add_u32 s62, s62, s63")
            a2(f"v_mov_b32 v1, 0")
            for k in range(24):
                a2(f"v_mov_b32 v0, s{38+k}")
                a2(f"buffer_store_dword v0, v1, s[64:67], s62 offen offset:{4*k}")
            for k in range(18):
                a2(f"v_mov_b32 v0, s{68+k}")
                a2(f"buffer_store_dword v0, v1, s[64:67], s62 offen offset:{128+4*k}")
        return T

    @staticmethod
    def _hoist(conv, hot):
        k = 0
        while k < len(conv) and getattr(conv[k], "hot", False): k += 1
        for n in hot: n.hot = True
        return conv[:k] + hot + conv[k:]

    def build(self):
        o = self.o
        pro = self.prologue()
        loop = [I("L_loop:", "l")] + self.body(0) + self.body(1)
        tl = self.stamp(5) + self.tail()
        trace = pro + loop + loop + tl
        self.resolve_waits(trace)
        lines = [it.t for it in trace if it.t and not it.skip and it.k != "l"]
        errs = hz.check(lines)
        for r in self.rares: errs += hz.check([it.t for it in r if it.k != "l"])
        for e in sorted(set(errs))[:20]: print(e, file=sys.stderr)
        assert not errs or o.ab_drop, "hazards"
        if o.verbose:
            cnt = lambda l: sum(1 for it in l if it.t and not it.skip and it.k != "l")
            print("instr: prologue", cnt(pro), "loop", cnt(loop), "tail", cnt(tl), file=sys.stderr)
        return pro + [I(".p2align 6" if o.align else "", "l")] + loop + tl + [I("L_end:", "l"), I("s_endpgm")] + sum(self.rares, [])

    def resolve_waits(self, trace):
        ds = []
        for it in trace:
            if it.k == "ds": ds.append(it.tag)
            elif it.k == "wl":
                idx = max(j for j, t in enumerate(ds) if t == it.need)
                n = min(14, len(ds) - 1 - idx)
                it.n = n if it.n is None else min(it.n, n)
        needed = set()
        ds = []; done = 0
        for it in trace:
            if it.k == "ds": ds.append(it.tag)
            elif it.k == "w0": done = len(ds)
            elif it.k == "wl":
                idx = max(j for j, t in enumerate(ds) if t == it.need)
                if idx >= done: needed.add(id(it))
                done = max(done, len(ds) - it.n) if id(it) in needed else done
        for it in trace:
            if it.k == "wl":
                it.skip = id(it) not in needed
                it.t = f"s_waitcnt lgkmcnt({it.n})"

    def text(self):
        body = self.build()
        hdr = open("standalone__mha_softmax__near_ridge.s.ref").read().split("\n")
        top = []
        for ln in hdr:
            if ln.startswith("; @launch"): break
            top.append(ln)
        out = top + [f"; @launch grid=(256,1,1) block=(256,1,1) lds={LDS_BYTES}",
                     "; Flash-attention forward, written with my own generator script (static scheduler + hazard checker).",
                     "; One workgroup per CU: 256 q rows of one head (4 waves x 64 rows), 32-key tiles, v_mfma_f32_16x16x32_bf16.",
                     ";  * S^T = K Q^T and O^T = V^T P^T, so P never leaves its lanes; O lives in the 256 AGPRs, Q in v0..v127.",
                     ";  * K/V/Q reach LDS by LDS-DMA (4-slot rings, padded + xor layout, no bank conflicts); V is read with ds_read_b64_tr_b16.",
                     ";  * Q is scaled once by log2(e)/sqrt(D); -(reference max) enters as the C operand of each QK chain.",
                     ";  * The reference max is the true row max of the first 64 keys.  Every tile's row sums are checked at run time; if a",
                     ";    probability leaves the safe range the tile is recomputed from K against the true running max and O, l, P are",
                     ";    rescaled exactly (L_rare*).",
                     ";  * prologue: tile 0 and QK(1) q-tile by q-tile while Q streams in; loop: cycles QK(j+1) QK(j+2) PV(j,j+1);",
                     ";    tail: PV of the last three tiles column block by column block, transposed through LDS into full-line stores.",
                     '.amdgcn_target "amdgcn-amd-amdhsa--gfx950"', ".text", f".globl {KNAME}"] + ([".p2align 12"] if self.o.al12 else []) + [".p2align 8",
                     f".type {KNAME},@function", f"{KNAME}:"]
        for it in body:
            if it.skip or not it.t: continue
            out.append(("" if it.k == "l" else "    ") + it.t)
        out += ['.section .rodata,"a"', ".p2align 6", f".amdhsa_kernel {KNAME}",
                "  .amdhsa_next_free_vgpr 512", "  .amdhsa_next_free_sgpr 100", "  .amdhsa_accum_offset 256",
                "  .amdhsa_group_segment_fixed_size 0", "  .amdhsa_kernarg_size 48", "  .amdhsa_user_sgpr_count 2",
                "  .amdhsa_user_sgpr_kernarg_segment_ptr 1", "  .amdhsa_system_sgpr_workgroup_id_x 1",
                ".end_amdhsa_kernel", ""]
        return "\n".join(out)

def parse(argv):
    p = argparse.ArgumentParser()
    p.add_argument("-o", default="standalone__mha_softmax__near_ridge.s")
    for f in ("stamps", "verbose", "dbg", "no_bar", "no_dma", "no_br"):
        p.add_argument("--" + f, action="store_true")
    for name, d in dict(align=1, look=24, bar_gap=113, bar_quiet=1, kstep=2, sgap=5, late29=0, e2start=206, dma1=106, dmastep1=8, fake_chain=0, exp_delay=0, exp_bit=3, pkall=0, wcost=1, cap_hi=10, clus=2, deep=0, cb0quad=1, cap_d=5, otouch=0, snake=1, pvchain=1, pace=0, al12=0, late_v1=0, br_delay=1, dma0=2, dmastep=4, sdelay=28, backlog=5,
                        codepf=1, pdepth=7, g0_dma0=2, g0_dmastep=6, pro_dma=2, pro_bar=10, pro_barm=43, pro_cap=3, pro_cap3=12, tail_bar=30, cap31=2, cap_a=7, cap_b=3, cap_c=5, st_dist=24, tail_dsmax=1).items():
        p.add_argument("--" + name, type=int, default=d)
    p.add_argument("--thr", type=float, default=1048576.0)
    p.add_argument("--amp", default="")
    p.add_argument("--ab_drop", default="")
    p.add_argument("--ab_nop", type=int, default=0)
    p.add_argument("--kvpol", default="nt")
    p.add_argument("--qpol", default="nt")
    p.add_argument("--opol", default="nt")
    return p.parse_args(argv)

if __name__ == "__main__":
    o = parse(sys.argv[1:])
    open(o.o, "w").write(Gen(o).text())
```

```python
import sys, struct, argparse
sys.path.insert(0, "dev")
import hz

KNAME = "standalone__mha_softmax__near_ridge_kernel"
MF = "v_mfma_f32_16x16x32_bf16"

def f32bits(x): return struct.unpack("<I", struct.pack("<f", x))[0]
def pol(x): return (" " + x.replace("+", " ")) if x else ""
def srd(s): return f"s[{s}:{s+3}]"

class I:
    __slots__ = ("t", "k", "tag", "need", "n", "skip")
    def __init__(self, t, k="o", tag=None, need=None):
        self.t = t; self.k = k; self.tag = tag; self.need = need; self.n = None; self.skip = False

def Qr(qt, d8): b = (qt * 8 + d8) * 4; return f"v[{b}:{b+3}]"
vT = 240
def X(m, qt, k):
    if m < 2: return 128 + m * 32 + qt * 8 + k
    if m == 4: return 128 + qt * 8 + k if k < 4 else 160 + qt * 8 + k
    if m == 5: return 128 + qt * 8 + 4 + k if k < 4 else 160 + qt * 8 + k
    if m >= 10: return X(m - 10, qt, k) if k < 4 else vC + k - 4
    return 128 + 32 + qt * 8 + 4 + k if k < 4 else vT + 4 * qt + k - 4
def Sr(m, qt, kt): b = X(m, qt, 4 * kt); return f"v[{b}:{b+3}]"
def Pr(m, qt): return Sr(m, qt, 0)
NF = 8
def Fx(f): return f if isinstance(f, tuple) else ("v", 192 + (f % NF) * 4)
def Fr(f): c, b = Fx(f); return f"{c}[{b}:{b+3}]"
def Ob(qt, dt): return (qt * 16 + dt) * 4
def Or(qt, dt): b = Ob(qt, dt); return f"a[{b}:{b+3}]"
vK, vVe, vVo, vD = 224, 225, 226, 227
vL = [228, 229, 230, 231]
vLt = [232, 233, 234, 235]
vC = 236
vS = [237, 238, 239]
def Mb(qt): return vT + 4 * qt
def Mr(qt): b = Mb(qt); return f"v[{b}:{b+3}]"
sQ, sK, sV, sO = 4, 8, 12, 16
sC, sKoff, sVoff, sWb, sCnt, sNC, sThr, sRow = 20, 21, 22, 23, 24, 25, 26, 27
sQoff, sMask = 86, 95
sRG = [None, 88, 89, 90, 91, 92, 93, 94]
PIECE = 1088
TILE = 16 * PIECE
R = 4
VBASE = R * TILE
LDS_BYTES = (2 * R + 1) * TILE
NG = 256
def dk(f): return (f & 7, f >> 3)
def walk(n, par):
    for qi in range(4):
        for e in range(n):
            yield (e if qi % 2 == 0 else n - 1 - e, qi if par % 2 == 0 else 3 - qi, e)

class Op:
    def __init__(self, name, fn, cost=1, deps=(), t0=0):
        self.name = name; self.fn = fn; self.cost = cost; self.deps = list(deps); self.t0 = t0; self.t = None

class Nd:
    def __init__(self, t, k, deps=(), tag=None, need=None, cap=None, soft=()):
        self.t = t if isinstance(t, list) else [t]
        self.k = k; self.deps = [d if isinstance(d, tuple) else (d, 0) for d in deps]
        self.tag = tag; self.need = need; self.idx = None; self.cap = cap; self.waited = False; self.soft = list(soft); self.low = False; self.pk = False
        self.cost = {"t": 2, "vm": 2, "s": 0}.get(k, 1)

class Sched:
    def __init__(self):
        self.out = []; self.n = 0; self.issued = set()
    def ok(self, nd, relax=False):
        if not relax and any(d.idx is None or self.n - d.idx - 1 < dist for d, dist in nd.soft): return False
        return all(d.idx is not None and self.n - d.idx - 1 >= dist for d, dist in nd.deps)
    def wait(self, nd):
        if nd.need is not None and not nd.waited:
            self.out.append(I(None, "wl", need=nd.need)); nd.waited = True
    def emit(self, nd):
        self.wait(nd)
        for t in nd.t:
            if isinstance(t, I):
                self.out.append(t)
                if t.k != "l": self.n += 1
            else:
                self.out.append(I(t, nd.k, tag=nd.tag)); self.n += 1
        nd.idx = self.n - 1
    def raw(self, lst):
        for t in lst:
            t = t if isinstance(t, I) else I(t)
            self.out.append(t)
            if t.k not in ("l", "wl"): self.n += 1
    def pick(self, pool, free, dsmax):
        got = []; nds = 0; nsc = 0
        for nd in list(pool):
            if not self.ok(nd): continue
            if nd.k == "s":
                if nsc: continue
                nsc += 1
            else:
                if nd.cost > free: continue
                if nd.k == "ds":
                    if nds >= dsmax: continue
                    nds += 1
                free -= nd.cost
            got.append(nd); pool.remove(nd)
            if free <= 0 and nsc: break
        order = {"s": 0, "ds": 1, "vm": 2}
        got.sort(key=lambda nd: order.get(nd.k, 3))
        return got
    def drain_one(self, pool, relax=False):
        for nd in pool:
            if self.ok(nd, relax):
                pool.remove(nd); self.emit(nd); return True
        return False
    def run(self, mfs, pool, cap=2, dsmax=1, keep=()):
        for i, m in enumerate(mfs):
            guard = 0
            while not self.ok(m):
                if not self.drain_one(pool):
                    self.raw(["s_nop 0"]); guard += 1
                    assert guard < 40, ("stuck", m.t, [d.t for d, _ in m.deps if d.idx is None])
            self.emit(m)
            c = m.cap or cap
            left = c
            pkok = lambda: c - left >= 5
            nx = mfs[i + 1] if i + 1 < len(mfs) else None
            if nx is not None and nx.need is not None and not nx.waited and all(d.idx is not None for d, _ in nx.deps if d.k == "ds"):
                self.wait(nx)
            def take(kinds, maxcost, low=True):
                for nd in pool:
                    if nd.k in kinds and nd.cost <= maxcost and (low or not nd.low) and self.ok(nd) and (not nd.pk or pkok()):
                        pool.remove(nd); self.emit(nd); return nd
                return None
            take(("s",), 0)
            nds = 0
            for lowok in (False, True):
                while nds < dsmax and left > 0:
                    nd = take(("ds",), left, lowok)
                    if not nd: break
                    left -= nd.cost; nds += 1
                if not lowok and left >= 2 and take(("vm",), left): left -= 2
            while left > 0:
                nd = None
                if pkok():
                    for x in pool:
                        if x.pk and self.ok(x):
                            pool.remove(x); self.emit(x); nd = x; break
                if not nd and left >= 2:
                    rdy = []
                    for x in pool:
                        if x.k in ("v", "t") and self.ok(x):
                            rdy.append(x)
                            if x.k == "t" or len(rdy) > 4: break
                    if rdy and rdy[-1].k == "t": nd = take(("t",), left)
                if not nd: nd = take(("v", "t"), left)
                if not nd: break
                left -= nd.cost
        guard = 0
        while any(nd not in keep for nd in pool):
            if not self.drain_one(pool) and not self.drain_one(pool, True):
                self.raw(["s_nop 0"]); guard += 1
                assert guard < 40, ("stuck", [nd.t for nd in pool[:3]])
            else: guard = 0

class Gen:
    def __init__(self, o):
        self.o = o
        self.rares = []
        self.plan()

    def kread_t(self, slot, f, buf):
        d8, kt = dk(f)
        return f"ds_read_b128 {Fr(buf)}, v{vK} offset:{slot*TILE + kt*8*PIECE + 64*d8}"
    def vread_t(self, slot, dt, sec, buf):
        c, b = Fx(buf); b += 2 * sec
        if slot == 4: return f"ds_read_b64_tr_b16 {c}[{b}:{b+1}], v{X(0,0,4) + (dt & 1)} offset:{sec*8*PIECE + 64*(dt>>1)}"
        return f"ds_read_b64_tr_b16 {c}[{b}:{b+1}], v{vVo if dt & 1 else vVe} offset:{slot*TILE + sec*8*PIECE + 64*(dt>>1)}"
    def fread(self, u, f, part=None):
        if f < 16: return [I(self.kread_t((u + 1) % R, f, f), "ds", tag=(u, f))]
        return [I(self.vread_t(u % R, f - 16, sec, f), "ds", tag=(u, f)) for sec in range(2) if part is None or part == sec]

    def dma_m0(self, which, slot, j):
        base = slot * TILE + (VBASE if which == "V" else 0) + (PIECE - 1024) * j
        return I(f"s_add_u32 m0, s{sWb}, {base}", "s")
    def dma_ld(self, which, j):
        s, so, p = {"K": (sK, sKoff, self.o.kvpol), "V": (sV, sVoff, self.o.kvpol), "Q": (sQ, sQoff, self.o.qpol)}[which]
        return I(f"buffer_load_dwordx4 v{vD}, {srd(s)}, s{so} offen offset:{j*1024}{pol(p)} lds", "vm")
    def dma_adv(self, which):
        so = {"K": sKoff, "V": sVoff, "Q": sQoff}[which]
        return I(f"s_addk_i32 s{so}, {4096 if which == 'Q' else 16384}", "s")
    def dma_tile(self, which, slot):
        out = [self.dma_m0(which, slot, 0)]
        for j in range(4):
            out += [I("s_nop 0"), self.dma_ld(which, j)]
            if j < 3: out.append(I(f"s_addk_i32 m0, {PIECE-1024}", "s"))
        out.append(self.dma_adv(which))
        return out
    def dma_nodes(self, which, slot, deps, prev):
        out = []
        for j in range(4):
            m = Nd(self.dma_m0(which, slot, j).t, "s", deps=list(deps) + ([prev] if prev else []))
            l = Nd(self.dma_ld(which, j).t, "vm", deps=[(m, 1)])
            out += [m, l]; prev = l
        adv = Nd(self.dma_adv(which).t, "s", deps=[prev]); out.append(adv)
        return out, adv

    def qk_t(self, m, f, qt, buf, zero=False, first=None):
        d8, kt = dk(f)
        if first is None: first = d8 == 0
        c = ("0" if zero else Mr(qt)) if first else Sr(m, qt, kt)
        return f"{MF} {Sr(m,qt,kt)}, {Fr(buf)}, {Qr(qt,d8)}, {c}"
    def pv_t(self, m, dt, qt, buf, zero=False):
        return f"{MF} {Or(qt,dt)}, {Fr(buf)}, {Pr(m,qt)}, {'0' if zero else Or(qt,dt)}"

    def E_ops(self, qts=range(4), acc=None):
        o = self.o
        acc = acc or vLt
        ex, ad, cv, Eexp, Epl = {}, {}, {}, [], []
        for qt in qts:
            for k in range(8):
                ex[(qt, k)] = Op(f"exp{qt}{k}", (lambda m, qt=qt, k=k: f"v_exp_f32 v{X(m,qt,k)}, v{X(m,qt,k)}"), cost=2, t0=(25 if k < 4 else 57) + 2 * (3 - qt) + 6)
                ex[(qt, k)].src = (qt, k >> 2)
                Eexp.append(ex[(qt, k)])
            ad[(qt, 1)] = Op(f"add{qt}1", (lambda m, qt=qt: f"v_add_f32 v{acc[qt]}, v{X(m,qt,0)}, v{X(m,qt,1)}"), deps=[ex[(qt, 0)], ex[(qt, 1)]])
            ad[(qt, 0)] = ad[(qt, 1)]
            for k in range(2, 8):
                ad[(qt, k)] = Op(f"add{qt}{k}", (lambda m, qt=qt, k=k: f"v_add_f32 v{acc[qt]}, v{acc[qt]}, v{X(m,qt,k)}"), deps=[ex[(qt, k)], ad[(qt, k - 1)]])
            for j in range(4):
                deps = [ex[(qt, 2 * j)], ex[(qt, 2 * j + 1)], ad[(qt, j)]] + ([cv[(qt, j >> 1)]] if j else [])
                cv[(qt, j)] = Op(f"cvt{qt}{j}", (lambda m, qt=qt, j=j: f"v_cvt_pk_bf16_f32 v{X(m,qt,j)}, v{X(m,qt,2*j)}, v{X(m,qt,2*j+1)}"), deps=deps)
            for k in range(1, 8):
                Epl.append(ad[(qt, k)])
                if k & 1: Epl.append(cv[(qt, k >> 1)])
        return Eexp, Epl
    def C_ops(self, Epl):
        la = [op for op in Epl if op.name.startswith("add") and op.name.endswith("7")]
        c1 = Op("chk1", (lambda m: f"v_max3_f32 v{vC}, v{vLt[0]}, v{vLt[1]}, v{vLt[2]}"), deps=la[:3])
        c2 = Op("chk2", (lambda m: f"v_max_f32 v{vC}, v{vC}, v{vLt[3]}"), deps=[c1, la[3]])
        cmp = Op("cmp", (lambda m: f"v_cmp_lt_f32 vcc, s{sThr}, v{vC}"), deps=[c2])
        mg = [Op(f"mrg{qt}", (lambda m, qt=qt: f"v_add_f32 v{vL[qt]}, v{vL[qt]}, v{vLt[qt]}")) for qt in range(4)]
        return [c1, c2, cmp], mg
    def to_nodes(self, ops, m, extra=None, only=None):
        nd = {}
        for op in ops:
            if only is not None and op.name not in only: continue
            nd[op] = Nd(op.fn(m), "t" if op.cost == 2 else "v"); nd[op].name = op.name
        for op, n in nd.items():
            for d in op.deps:
                if d in nd: n.deps.append((nd[d], 1 if d.cost == 2 else 0))
            if extra: n.deps += extra(op)
        return list(nd.values())
    @staticmethod
    def E_order(Eexp, Epl):
        return Epl + Eexp

    def mf_at(self, g):
        p = g >> 3
        j, qt, e = list(walk(2, p + (1 if 8 <= p < 16 else 0)))[g & 7]
        return 2 * p + j, qt, e

    def plan(self):
        o = self.o
        used = [0] * NG
        self.ds_at = [[] for _ in range(NG)]
        self.barE, self.barM, self.barV = o.bar_gap + 128, 64 - o.look - 2, 128 - o.look - 2
        g = self.barE + 1
        self.npre = 0
        for f in range(64):
            want = 4 * f - o.look
            if want < 0:
                pos = max(want + NG, g)
                assert pos < NG - 1
                self.ds_at[pos].append((f, None, True)); used[pos] += 1
                g = pos + o.kstep; self.npre = f + 1
                continue
            pos = want
            for p in ([None] if f < 32 else [0, 1]):
                while used[pos] > 0: pos += 1
                assert pos < self.barE - 6
                self.ds_at[pos].append((f, p, False)); used[pos] += 1
        self.dma_at = {}
        pos = o.dma0
        for k in range(16):
            if k == 4: pos = o.dma1
            while used[pos] > 0 or pos % 8 == 0: pos += 1
            assert (0 < pos < self.barM - 3) if k < 4 else (self.barV + 1 < pos < self.barE - 3)
            self.dma_at[pos] = k
            used[pos] = 2
            pos += o.dmastep if k < 4 else o.dmastep1
        used[NG - 1] += 1
        used[self.barE] = 2
        self.x_gap = max(self.dma_at) + 6
        while self.x_gap % 8 in (7, 0): self.x_gap += 1
        self.pf_at = []
        if o.tailpf:
            pos = max(self.dma_at) + 3
            while len(self.pf_at) < 3:
                if used[pos] == 0: self.pf_at.append(pos); used[pos] = 2
                pos += 1
        done, start = {}, {}
        for g in range(128):
            f, qt, e = self.mf_at(g)
            done[(f >> 4, qt, dk(f & 15)[1])] = g
            start.setdefault((f >> 4, qt, dk(f & 15)[1]), g)
        scal = set()
        for g, k in self.dma_at.items():
            scal.add(g - 1)
            if k % 4 == 3: scal.add(g + 2)
        for b in (self.barE, self.barM, self.barV): scal |= {b, b - 1}
        busy = lambda g: g % 8 == 7 or (g % NG) in scal
        self.va_at = [[[] for _ in range(2 * NG)] for _ in range(2)]
        self.t_br = [None, None]
        rdy = lambda op, t: op.t0 <= t and all(d.t is not None and d.t < t for d in op.deps)
        tnext = 0
        for w in range(2):
            Eexp, Epl = self.E_ops()
            chk, mg = self.C_ops(Epl)
            for op in Eexp: op.t0 = max(done[(w,) + op.src] + o.sgap, tnext, o.e2start if w else 0)
            if w == 1:
                chk[0].t0 = NG
                for k, op in enumerate(Eexp): op.t0 = max(op.t0, o.e2start + k * o.pace // 10)
            if w == 0:
                Eexp.sort(key=lambda op: op.t0)
                hi = lambda op: int(op.name[4]) >= (4 if op.name.startswith("add") else 2)
                Epl.sort(key=lambda op: (hi(op), done[(0, int(op.name[3]), 1)]))
            Epl = Epl + chk
            allops = Eexp + Epl
            def put(op, t): op.t = t; self.va_at[w][t].append(op); used[t % NG] += op.cost
            t = min(op.t0 for op in Eexp)
            while Eexp or Epl:
                free = 2 - used[t % NG]
                backlog = sum(1 for op in Epl if all(d.t is not None for d in op.deps if d.cost == 2) and op not in chk)
                re = [op for op in Eexp if rdy(op, t)]
                if free == 2 and re and backlog < o.backlog:
                    Eexp.remove(re[0]); put(re[0], t)
                else:
                    for op in list(Epl):
                        if free == 0: break
                        if rdy(op, t): Epl.remove(op); put(op, t); free -= 1
                    if free == 2 and re: Eexp.remove(re[0]); put(re[0], t)
                t += 1
            tb = t + o.br_delay
            if w: tb = max(tb, NG + 1)
            while busy(tb): tb += 1
            self.t_br[w] = tb
            t = tb
            while mg:
                if used[t % NG] < 2: put(mg.pop(0), t)
                else: t += 1
            tnext = t + 1
            for qt in range(4):
                last = max(op.t for op in allops if op.name[:4] in (f"add{qt}", f"cvt{qt}"))
                lim = start[(1, qt, 1)] if w == 0 else NG + start[(0, qt, 1)]
                assert last < lim, ("high quad released too late", w, qt, last, lim)
            if w == 0: assert tb < 126
            else: assert tb - NG < self.barM - 1 and tnext - NG <= min(op.t for tt in self.va_at[0] for op in tt if op.name.startswith("add")), (tb, tnext)
        assert self.t_br[1] - NG <= min(op.t for tt in self.va_at[0] for op in tt)
        self.part1 = {op.name for t in range(0, NG) for op in self.va_at[1][t]}
        self.part2 = {op.name for t in range(NG, 2 * NG) for op in self.va_at[1][t]}
        if o.verbose:
            print("br", self.t_br, "npre", self.npre, "part2", len(self.part2), file=sys.stderr)
            for h in range(2): print("".join(map(str, used[128 * h:128 * h + 128])), file=sys.stderr)

    def cread(self, c, f, part=None):
        j = 1 + 2 * c
        if f < 32: return [I(self.kread_t((j + 1 + (f >> 4)) % R, f & 15, f), "ds", tag=(c, f))]
        return [I(self.vread_t((j + (f & 1)) % R, (f - 32) >> 1, sec, f), "ds", tag=(c, f)) for sec in range(2) if part is None or part == sec]

    def body(self, c):
        o = self.o
        j = 1 + 2 * c
        mP, m1, m2 = (1, 4, 5) if c == 0 else (5, 4, 1)
        desc = lambda k: (("K", (j + 3) % R), ("K", j % R), ("V", (j + 2) % R), ("V", (j + 3) % R))[k >> 2] + (k & 3,)
        out = []
        for g in range(NG):
            f, qt, e = self.mf_at(g)
            if f < 32: t = self.qk_t(m1 if f < 16 else m2, f & 15, qt, f, first=((g >> 3) & 3) == 0 and e == 0)
            else: t = self.pv_t(m1 if f & 1 else mP, (f - 32) >> 1, qt, f)
            out.append(I(t, "m"))
            sc, ds, vm, va = [], [], [], []
            if g % 8 == 7:
                f1 = (g + 1) // 4 + 1
                sc.append(I(None, "wl", need=(c, f1) if f1 < 64 else (1 - c, 1)))
            if g == self.barE - 1: sc.append(I("s_waitcnt vmcnt(12) lgkmcnt(0)", "w0"))
            if g == self.barM - 1: sc.append(I("s_waitcnt vmcnt(12)"))
            if g == self.barV - 1: sc.append(I("s_waitcnt vmcnt(4)"))
            if g in (self.barE, self.barM, self.barV): sc.append(I("s_barrier"))
            if g + 1 in self.dma_at: sc.append(self.dma_m0(*desc(self.dma_at[g + 1])))
            if g in self.dma_at:
                wh, _, jj = desc(self.dma_at[g]); vm.append(self.dma_ld(wh, jj))
            if g - 2 in self.dma_at and self.dma_at[g - 2] % 4 == 3: sc.append(self.dma_adv(desc(self.dma_at[g - 2])[0]))
            for (ff, p, nx) in self.ds_at[g]: ds += self.cread(1 - c if nx else c, ff, p)
            if g == self.t_br[1] - NG:
                sc += [I(f"s_cbranch_vccnz L_rare{2*c}", "s"), I(f"L_back{2*c}:", "l")]
                self.rares.append(self.rare_q(str(2 * c), mP, j % R, [], m1))
            if g == self.t_br[0]:
                sc += [I(f"s_cbranch_vccnz L_rare{2*c+1}", "s"), I(f"L_back{2*c+1}:", "l")]
                self.rares.append(self.rare_q(str(2 * c + 1), m1, (j + 1) % R, [mP], m2))
            for op in self.va_at[1][g + NG]: va.append(I(op.fn(mP), "v"))
            for op in self.va_at[0][g]: va.append(I(op.fn(m1), "v"))
            for op in self.va_at[1][g]: va.append(I(op.fn(m2), "v"))
            if c == 1 and g in self.pf_at:
                k = self.pf_at.index(g)
                if k == 0: va += [I(f"v_lshlrev_b32 v{vS[1]}, 3, v{vD}", "v"), I(f"v_add_co_u32 v{vS[1]}, vcc, s96, v{vS[1]}", "v")]
                if k == 1:
                    sc.append(I(f"s_add_u32 m0, s{sWb}, {8*TILE}", "s"))
                    va += [I(f"v_mov_b32 v{vS[2]}, s97", "v"), I(f"v_addc_co_u32 v{vS[2]}, vcc, 0, v{vS[2]}, vcc", "v")]
                if k == 2: vm.append(I(f"global_load_lds_dword v[{vS[1]}:{vS[2]}], off", "vm"))
            if o.v31x == 1 and c == 0 and g == self.x_gap - 1: sc.append(I(f"s_cmp_eq_u32 s{sCnt}, {o.v31trip}", "s"))
            if o.v31x == 1 and c == 0 and g == self.x_gap:
                sc += [I("s_cbranch_scc1 L_v31", "s"), I("L_v31b:", "l")]
                blk = [I("L_v31:", "l"), I(f"s_and_b32 s87, s{sVoff}, 0x3000"), I(f"s_add_u32 s87, s87, {31*16384}"), I(f"s_add_u32 m0, s{sWb}, {8*TILE}")]
                for jj in range(4):
                    blk += [I("s_nop 0"), I(f"buffer_load_dwordx4 v{vD}, {srd(sV)}, s87 offen offset:{jj*1024}{pol(o.kvpol)} lds")]
                    if jj < 3: blk.append(I(f"s_addk_i32 m0, {PIECE-1024}"))
                blk.append(I("s_branch L_v31b"))
                self.v31blk = blk
            if c == 1 and g == NG - 3: sc.append(I(f"s_sub_u32 s{sCnt}, s{sCnt}, 1", "s"))
            if c == 1 and g == NG - 2: sc.append(I(f"s_cmp_lg_u32 s{sCnt}, 0", "s"))
            out += sc + ds + vm + va
        if c == 1: out.append(I("s_cbranch_scc1 L_loop", "s"))
        return out

    def rare_q(self, name, m, kslot, pend, prog):
        out = [I(f"L_rare{name}:", "l")]
        a = lambda t: out.append(I(t))
        fb = ("v", vLt[0])
        m += 10
        t, t2, f = vLt[0], vLt[1], vLt[2]
        a("s_nop 7")
        for qt in range(4):
            for fr in range(16):
                a(self.kread_t(kslot, fr, fb))
                a("s_waitcnt lgkmcnt(0)")
                a(self.qk_t(m, fr, qt, fb))
                a("s_nop 7")
            a("s_nop 3")
            x = lambda k: X(m, qt, k)
            a(f"v_max3_f32 v{t}, v{x(0)}, v{x(1)}, v{x(2)}")
            a(f"v_max3_f32 v{t}, v{t}, v{x(3)}, v{x(4)}")
            a(f"v_max3_f32 v{t}, v{t}, v{x(5)}, v{x(6)}")
            a(f"v_max_f32 v{t}, v{t}, v{x(7)}")
            for sw in ("v_permlane16_swap_b32", "v_permlane32_swap_b32"):
                a(f"v_mov_b32 v{t2}, v{t}"); a("s_nop 1"); a(f"{sw} v{t}, v{t2}"); a("s_nop 1"); a(f"v_max_f32 v{t}, v{t}, v{t2}")
            a(f"v_ceil_f32 v{t}, v{t}")
            a(f"v_max_f32 v{t}, 0, v{t}")
            for k in range(4): a(f"v_sub_f32 v{Mb(qt)+k}, v{Mb(qt)+k}, v{t}")
            for k in range(8): a(f"v_sub_f32 v{x(k)}, v{x(k)}, v{t}")
            for k in range(8): a(f"v_sub_f32 v{X(prog,qt,k)}, v{X(prog,qt,k)}, v{t}")
            a(f"v_min_f32 v{t2}, 0x43480000, v{t}")
            a(f"v_cvt_i32_f32 v{t2}, v{t2}")
            a(f"v_sub_u32 v{t2}, 0, v{t2}")
            a(f"v_ldexp_f32 v{f}, 1.0, v{t2}")
            a(f"v_mul_f32 v{vL[qt]}, v{vL[qt]}, v{f}")
            for pm in pend:
                for j in range(4):
                    p = X(pm, qt, j)
                    a(f"v_lshlrev_b32 v{t}, 16, v{p}")
                    a(f"v_and_b32 v{t2}, 0xffff0000, v{p}")
                    a(f"v_mul_f32 v{t}, v{t}, v{f}")
                    a(f"v_mul_f32 v{t2}, v{t2}, v{f}")
                    a(f"v_cvt_pk_bf16_f32 v{p}, v{t}, v{t2}")
            for a0 in range(qt * 64, qt * 64 + 64, 2):
                a(f"v_accvgpr_read_b32 v{t}, a{a0}"); a(f"v_accvgpr_read_b32 v{t2}, a{a0+1}")
                a(f"v_mul_f32 v{t}, v{t}, v{f}"); a(f"v_mul_f32 v{t2}, v{t2}, v{f}")
                a(f"v_accvgpr_write_b32 a{a0}, v{t}"); a(f"v_accvgpr_write_b32 a{a0+1}, v{t2}")
            for k in range(8): a(f"v_exp_f32 v{x(k)}, v{x(k)}")
            a("s_nop 0")
            for k in range(8): a(f"v_add_f32 v{vL[qt]}, v{vL[qt]}, v{x(k)}")
            for j in range(4): a(f"v_cvt_pk_bf16_f32 v{x(j)}, v{x(2*j)}, v{x(2*j+1)}")
        for qt in range(4): a(f"v_mov_b32 v{vLt[qt]}, 0")
        a("s_nop 1")
        a(f"s_branch L_back{name}")
        return out

    def rare(self, name, m, kslot, pend, prog, mcopy=None):
        out = [I(f"L_rare{name}:", "l")]
        a = lambda t: out.append(I(t))
        fb = ("v", vLt[0])
        a("s_nop 7")
        for f in range(16):
            a(self.kread_t(kslot, f, fb))
            a("s_waitcnt lgkmcnt(0)")
            for qt in range(4): a(self.qk_t(m, f, qt, fb, zero=True))
            a("s_nop 7")
        a("s_nop 7")
        t, t2, f = vC, vLt[0], vLt[1]
        for qt in range(4):
            x = lambda k: X(m, qt, k)
            mreg = mcopy[qt] if mcopy else Mb(qt)
            for k in range(8): a(f"v_add_f32 v{x(k)}, v{x(k)}, v{mreg}")
            a(f"v_max3_f32 v{t}, v{x(0)}, v{x(1)}, v{x(2)}")
            a(f"v_max3_f32 v{t}, v{t}, v{x(3)}, v{x(4)}")
            a(f"v_max3_f32 v{t}, v{t}, v{x(5)}, v{x(6)}")
            a(f"v_max_f32 v{t}, v{t}, v{x(7)}")
            for sw in ("v_permlane16_swap_b32", "v_permlane32_swap_b32"):
                a(f"v_mov_b32 v{t2}, v{t}"); a("s_nop 1"); a(f"{sw} v{t}, v{t2}"); a("s_nop 1"); a(f"v_max_f32 v{t}, v{t}, v{t2}")
            a(f"v_ceil_f32 v{t}, v{t}")
            a(f"v_max_f32 v{t}, 0, v{t}")
            if mcopy: a(f"v_sub_f32 v{mreg}, v{mreg}, v{t}")
            else:
                for k in range(4): a(f"v_sub_f32 v{mreg+k}, v{mreg+k}, v{t}")
            for k in range(8): a(f"v_sub_f32 v{x(k)}, v{x(k)}, v{t}")
            if prog is not None:
                for k in range(8): a(f"v_sub_f32 v{X(prog,qt,k)}, v{X(prog,qt,k)}, v{t}")
            a(f"v_min_f32 v{t2}, 0x43480000, v{t}")
            a(f"v_cvt_i32_f32 v{t2}, v{t2}")
            a(f"v_sub_u32 v{t2}, 0, v{t2}")
            a(f"v_ldexp_f32 v{f}, 1.0, v{t2}")
            a(f"v_mul_f32 v{vL[qt]}, v{vL[qt]}, v{f}")
            for pm in pend:
                for j in range(4):
                    p = X(pm, qt, j)
                    a(f"v_lshlrev_b32 v{t}, 16, v{p}")
                    a(f"v_and_b32 v{t2}, 0xffff0000, v{p}")
                    a(f"v_mul_f32 v{t}, v{t}, v{f}")
                    a(f"v_mul_f32 v{t2}, v{t2}, v{f}")
                    a(f"v_cvt_pk_bf16_f32 v{p}, v{t}, v{t2}")
            for a0 in range(qt * 64, qt * 64 + 64, 2):
                a(f"v_accvgpr_read_b32 v{t}, a{a0}"); a(f"v_accvgpr_read_b32 v{t2}, a{a0+1}")
                a(f"v_mul_f32 v{t}, v{t}, v{f}"); a(f"v_mul_f32 v{t2}, v{t2}, v{f}")
                a(f"v_accvgpr_write_b32 a{a0}, v{t}"); a(f"v_accvgpr_write_b32 a{a0+1}, v{t2}")
        Eexp, Epl = self.E_ops()
        for op in Eexp: a(op.fn(m))
        a("s_nop 0")
        for op in Epl:
            if op.name.startswith("add"): a(op.fn(m))
        for op in Epl:
            if op.name.startswith("cvt"): a(op.fn(m))
        a("s_nop 1")
        a(f"s_branch L_back{name}")
        return out

    def stamp(self, idx):
        if not self.o.stamps: return []
        return [I(f"s_memtime s[{40+2*idx}:{41+2*idx}]", "sm"), I(f"s_memrealtime s[{68+2*idx}:{69+2*idx}]", "sm")]

    def frag_stream(self, specs, j0, users_prev=None):
        fr = []
        for j, (kind, slot, idx, tag, deps, *bb) in enumerate(specs):
            buf = bb[0] if bb else j0 + j
            if kind == "done": nodes = []
            elif kind == "K": nodes = [Nd(self.kread_t(slot, idx, buf), "ds", deps=list(deps), tag=tag)]
            else: nodes = [Nd(self.vread_t(slot, idx, s, buf), "ds", deps=list(deps), tag=tag) for s in range(2)]
            fr.append(dict(nodes=nodes, buf=buf, tag=tag, users=[]))
        prev = None
        for f in fr:
            for n in f["nodes"]:
                if prev: n.deps.append((prev, 0))
                prev = n
        return fr
    def link_users(self, fr, depth):
        for j, f in enumerate(fr):
            if j - depth >= 0 and fr[j - depth]["users"]:
                for n in f["nodes"]: n.deps.append((fr[j - depth]["users"][-1], 0))
    def mf(self, f, text, deps=(), cap=None):
        first = not f["users"]
        m = Nd(text, "m", deps=list(deps) + [(n, 0) for n in f["nodes"]], need=f["tag"] if first else None, cap=cap)
        f["users"].append(m)
        return m

    def prologue(self):
        o = self.o
        S = Sched()
        a = lambda t, k="o", **kw: S.raw([I(t, k, **kw)])
        lane, w, t0, t1, t2, vQr = vT + 8, vT + 9, vT + 10, vT + 11, vT + 12, vT + 14
        a("s_cmpk_ge_u32 s2, 0x100")
        a("s_cbranch_scc1 L_end")
        a("s_load_dwordx8 s[28:35], s[0:1], 0", "sm")
        if o.stamps:
            a(f"s_load_dwordx2 s[36:37], s[0:1], {32 if o.dbg else 40}", "sm")
            a("s_memrealtime s[38:39]", "sm")
            S.raw(self.stamp(0))
        if o.codepf:
            a("s_getpc_b64 s[96:97]")
            a("L_pc:", "l")
            a(f"v_lshlrev_b32 v{t0}, 7, v0")
            a(f"v_add_co_u32 v{t0}, vcc, s96, v{t0}")
            a(f"v_mov_b32 v{t1}, s97")
        a(f"v_lshrrev_b32 v{w}, 6, v0")
        if o.codepf: a(f"v_addc_co_u32 v{t1}, vcc, 0, v{t1}, vcc")
        a(f"v_and_b32 v{lane}, 63, v0")
        if o.codepf: a(f"global_load_dword v{vT+15}, v[{t0}:{t1}], off", "vm")
        a(f"v_and_b32 v{t1}, 32, v0")
        a(f"v_readfirstlane_b32 s{sWb}, v{w}")
        a(f"v_lshlrev_b32 v{vD}, 4, v{lane}")
        a(f"v_xor_b32 v{vD}, v{vD}, v{t1}")
        a("s_lshr_b32 s3, s2, 4")
        a("s_and_b32 s87, s2, 7")
        a("s_lshl3_add_u32 s3, s3, s87")
        a("s_and_b32 s87, s2, 8")
        a(f"s_lshl1_add_u32 s{sRow}, s{sWb}, s87")
        a(f"s_lshl_b32 s{sQoff}, s{sRow}, 14")
        a(f"s_lshl_b32 s{sKoff}, s{sWb}, 12")
        a(f"s_mulk_i32 s{sWb}, {4*PIECE}")
        a("s_mul_i32 s87, s3, 253952")
        a(f"s_mov_b32 s{sQ+2}, 253952")
        a(f"s_mov_b32 s{sQ+3}, 0x20000")
        a(f"s_add_u32 m0, s{sWb}, {8*TILE}")
        a(f"s_movk_i32 s{sCnt}, 2")
        a("s_waitcnt lgkmcnt(0)", "w0")
        a(f"s_add_u32 s{sQ}, s28, s87")
        a(f"s_addc_u32 s{sQ+1}, s29, 0")
        if o.exp_delay:
            a(f"s_bitcmp1_b32 s2, {o.exp_bit}")
            a("s_cbranch_scc0 L_q")
            a(f"s_sleep {o.exp_delay}")
        a("L_q:", "l")
        for j in range(4):
            S.raw([self.dma_ld("Q", j)])
            if j < 3:
                a(f"s_addk_i32 m0, {PIECE-1024}", "s")
                a(f"s_sub_u32 s{sCnt}, s{sCnt}, 1" if j == 0 else "s_nop 0")
        a(f"s_addk_i32 m0, {-(TILE + 3*(PIECE-1024))}", "s")
        S.raw([self.dma_adv("Q")])
        a(f"s_cmp_lg_u32 s{sCnt}, 0")
        a("s_cbranch_scc1 L_q")
        a("s_lshl_b32 s3, s3, 19")
        for (s, p) in ((sK, 30), (sV, 32)):
            a(f"s_add_u32 s{s}, s{p}, s3")
            a(f"s_addc_u32 s{s+1}, s{p+1}, 0")
            a(f"s_mov_b32 s{s+2}, 524288")
            a(f"s_mov_b32 s{s+3}, 0x20000")
        a(f"s_mov_b32 s{sVoff}, s{sKoff}")
        S.raw(self.dma_tile("K", 0) + self.dma_tile("K", 1) + self.dma_tile("V", 0))
        a(f"s_add_u32 s{sO}, s34, s87")
        a(f"s_addc_u32 s{sO+1}, s35, 0")
        a(f"s_mov_b32 s{sO+2}, 253952")
        a(f"s_mov_b32 s{sO+3}, 0x20000")
        a(f"s_lshl_b32 s{sRow}, s{sRow}, 14")
        for k in range(1, 8): a(f"s_add_u32 s{sRG[k]}, s{sRow}, {k*4096}")
        a(f"v_and_b32 v{t2}, 1, v{lane}")
        a(f"v_lshlrev_b32 v{t0}, 9, v{t2}")
        a(f"v_lshlrev_b32 v{t2}, 5, v{t2}")
        a(f"v_lshrrev_b32 v{t1}, 4, v{lane}")
        a(f"v_lshlrev_b32 v{t1}, 4, v{t1}")
        a(f"v_xor_b32 v{t1}, v{t1}, v{t2}")
        a(f"v_add_u32 v{t0}, v{t0}, v{t1}")
        a(f"v_bfe_u32 v{t1}, v{lane}, 1, 2")
        a(f"v_mul_u32_u24 v{t1}, {PIECE}, v{t1}")
        a(f"v_add_u32 v{t0}, v{t0}, v{t1}")
        a(f"v_bfe_u32 v{t1}, v{lane}, 3, 1")
        a(f"v_mul_u32_u24 v{vK}, {4*PIECE}, v{t1}")
        a(f"v_add_u32 v{vK}, v{vK}, v{t0}")
        a(f"v_xor_b32 v{t1}, 1, v{t1}")
        a(f"v_mul_u32_u24 v{vQr}, {TILE}, v{t1}")
        a(f"v_add_u32 v{vQr}, v{vQr}, v{t0}")
        a(f"s_add_u32 s87, s{sWb}, {5*TILE}")
        a(f"v_add_u32 v{vQr}, s87, v{vQr}")
        a(f"v_subrev_u32 v{vQr-1}, {3*TILE}, v{vQr}")
        a(f"v_lshrrev_b32 v{t0}, 3, v{lane}")
        a(f"v_mul_u32_u24 v{t0}, {PIECE}, v{t0}")
        a(f"v_bfe_u32 v{t2}, v{lane}, 2, 1")
        a(f"v_lshl_add_u32 v{t0}, v{t2}, 9, v{t0}")
        a(f"v_and_b32 v{t1}, 3, v{lane}")
        a(f"v_lshl_add_u32 v{t0}, v{t1}, 3, v{t0}")
        a(f"v_add_u32 v{t0}, {VBASE}, v{t0}")
        a(f"v_lshl_add_u32 v{vVe}, v{t2}, 5, v{t0}")
        a(f"v_xor_b32 v{vVo}, 32, v{vVe}")
        c = 1.4426950408889634 / 16.0
        a(f"s_mov_b32 s{sC}, {hex(f32bits(c))}")
        a(f"s_mov_b32 s{sNC}, {hex(f32bits(-c))}")
        a(f"s_mov_b32 s{sThr}, {hex(f32bits(o.thr))}")
        a(f"s_movk_i32 s{sCnt}, 7")
        a(f"s_mov_b32 s{sMask}, 0xffff0000")
        if o.tailpf:
            a(f"s_and_b32 s87, s{sVoff}, 0x1000")
            a("s_lshl_b32 s87, s87, 1")
            a("s_add_u32 s87, s87, L_tail-L_pc")
            a("s_add_u32 s96, s96, s87")
            a("s_addc_u32 s97, s97, 0")
        def qchunks(hi_slot):
            return self.dma_tile("Q", hi_slot) + self.dma_tile("Q", hi_slot - 1)
        def qread(qt):
            base, off = {0: (vQr, 2 * TILE), 1: (vQr, 0), 2: (vQr - 1, 0), 3: (vQr, 2 * TILE)}[(3 - qt) if (o.deep and qt in (1, 2)) else qt]
            return [I(f"ds_read_b128 {Qr(qt,d8)}, v{base} offset:{off + 64*d8}", "ds", tag=("q", qt, d8)) for d8 in range(8)]
        def prescale(qt, tb, nt, pk, deps=()):
            out, lastcv = [], {}
            for g in range(0, 32, nt):
                rs = [(32 * qt + g + i, tb + 2 * i) for i in range(nt)]
                w = lambda t: [lastcv[t]] if t in lastcv else []
                lo = [Nd(f"v_lshlrev_b32 v{t}, 16, v{r}", "v", deps=list(deps) + w(t)) for r, t in rs]
                hi = [Nd(f"v_and_b32 v{t+1}, s{sMask}, v{r}", "v", deps=list(deps) + w(t)) for r, t in rs]
                if pk: mu = [[Nd(f"v_pk_mul_f32 v[{t}:{t+1}], v[{t}:{t+1}], s[{sC}:{sC+1}] op_sel_hi:[1,0]", "v", deps=[lo[i], hi[i]])] for i, (r, t) in enumerate(rs)]
                else: mu = [[Nd(f"v_mul_f32 v{t}, s{sC}, v{t}", "v", deps=[lo[i]]), Nd(f"v_mul_f32 v{t+1}, s{sC}, v{t+1}", "v", deps=[hi[i]])] for i, (r, t) in enumerate(rs)]
                cv = [Nd(f"v_cvt_pk_bf16_f32 v{r}, v{t}, v{t+1}", "v", deps=mu[i]) for i, (r, t) in enumerate(rs)]
                for i, (r, t) in enumerate(rs): lastcv[t] = cv[i]
                out += lo + hi + sum(mu, []) + cv
            return out
        S.raw(qchunks(3 if o.deep else 6))
        a("s_waitcnt vmcnt(20)")
        S.raw(qread(0))
        a("s_waitcnt lgkmcnt(0)", "w0")
        S.run([], prescale(0, 128, 4, True))
        if o.deep:
            S.raw(qchunks(6))
            a("s_waitcnt vmcnt(16)")
        else:
            S.raw(self.dma_tile("Q", 3))
            a("s_waitcnt vmcnt(12)")
        a("s_barrier")
        if o.stamps: S.raw(self.stamp(1))
        groups = [[0], [1], [2], [3]]
        bar = Nd([I("s_waitcnt vmcnt(12) lgkmcnt(0)", "w0"), I("s_barrier")], "s")
        one = lambda kind, slot, idx, tag, buf, deps=(): self.frag_stream([(kind, slot, idx, tag, list(deps), buf)], 0)[0]
        K0p = [one("K", 0, f, ("k0", f), ("a", 192 + 4 * f)) for f in range(16)]
        K1p = [one("K", 1, f, ("k1", f), ("v", 96 + 4 * f) if f < 8 else f) for f in range(16)]
        assert {"cvt03", "cvt13", "add07", "add17"} <= self.part1
        K1q = [one("K", 1, f, ("k1b", f), ("v", b)) for f, b in enumerate([128, 132, 136, 140, X(1, 0, 4), X(1, 1, 4), 144, 148])]
        lastq = [("a", 64), ("a", 128), ("v", 152), ("v", 128)]
        Vp = [[one("V", 0, d, ("vp", r, d), ("a", 64 * r + 4 + 4 * d) if d < 15 else lastq[r]) for d in range(16)] for r in range(4)]
        K2p = self.frag_stream([("K", 2, f, (0, f), [bar], f) for f in range(self.npre)], 0)
        again = lambda F: [dict(nodes=f["nodes"], buf=f["buf"], tag=f["tag"], users=[]) for f in F]
        fr_all = []
        for r in range(4): fr_all += again(K0p) + (again(K1p) if r < 3 else K1q + again(K1p[8:])) + Vp[r]
        regions = []
        for gi, qts in enumerate(groups):
            F = fr_all[48 * gi:48 * gi + 48]
            mfs, pool = [], []
            lastm = {}
            neg, pos = ("-1.0", "1.0") if gi < 3 else (f"s{sNC}", f"s{sC}")
            for tl in range(2):
                for f in range(16):
                    for qt in qts:
                        m = self.mf(F[16 * tl + f], self.qk_t(tl, f, qt, F[16 * tl + f]["buf"], zero=True)); mfs.append(m); lastm[(tl, qt, dk(f)[1])] = m
            pdone = {}
            for qi, qt in enumerate(qts):
                t, t2 = vC + 2 * qi, vC + 2 * qi + 1
                vals = [(tl, k) for tl in range(2) for k in range(8)]
                src = lambda v: (lastm[(v[0], qt, v[1] >> 2)], 8)
                rg = lambda v: f"v{X(v[0], qt, v[1])}"
                ch = [Nd(f"v_max3_f32 v{t}, {rg(vals[0])}, {rg(vals[1])}, {rg(vals[2])}", "v", deps=[src(v) for v in vals[:3]])]
                for j in range(3, 15, 2):
                    ch.append(Nd(f"v_max3_f32 v{t}, v{t}, {rg(vals[j])}, {rg(vals[j+1])}", "v", deps=[ch[-1], src(vals[j]), src(vals[j + 1])]))
                ch.append(Nd(f"v_max_f32 v{t}, v{t}, {rg(vals[15])}", "v", deps=[ch[-1], src(vals[15])]))
                for sw in ("v_permlane16_swap_b32", "v_permlane32_swap_b32"):
                    ch.append(Nd(f"v_mov_b32 v{t2}, v{t}", "v", deps=[ch[-1]]))
                    ch.append(Nd(f"{sw} v{t}, v{t2}", "v", deps=[(ch[-1], 2)]))
                    ch.append(Nd(f"v_max_f32 v{t}, v{t}, v{t2}", "v", deps=[(ch[-1], 1)]))
                mm = Nd(f"v_mul_f32 v{Mb(qt)}, {neg}, v{t}", "v", deps=[ch[-1]]); ch.append(mm)
                cp = [Nd(f"v_mov_b32 v{Mb(qt)+k}, v{Mb(qt)}", "v", deps=[mm]) for k in range(1, 4)]
                fma = {v: Nd(f"v_fma_f32 {rg(v)}, {rg(v)}, {pos}, v{Mb(qt)}", "v", deps=[mm]) for v in vals}
                E0 = self.to_nodes(self.E_order(*self.E_ops([qt], vL)), 0, extra=lambda op: [(fma[(0, int(op.name[4]))], 0)] if op.name.startswith("exp") else [])
                E1 = self.to_nodes(self.E_order(*self.E_ops([qt])), 1, only=self.part1,
                                   extra=lambda op: [(fma[(1, int(op.name[4]))], 0)] if op.name.startswith("exp") else [])
                pdone[qt] = [n for n in E0 if n.name.startswith("cvt")]
                crit = [n for n in E0 if not n.name.startswith("add") or int(n.name[4]) < 4]
                rest = [n for n in E0 if n not in crit]
                pool.append((ch + [fma[v] for v in vals[:8]] + crit, rest + cp + [fma[v] for v in vals[8:]] + E1))
            for d in range(16):
                for qt in qts:
                    mfs.append(self.mf(F[32 + d], self.pv_t(0, d, qt, F[32 + d]["buf"], zero=True), deps=[(n, 2) for n in pdone[qt]], cap=o.pro_cap3 if gi == 3 else None))
            hi = [n for tup in zip(*[p[0] for p in pool]) for n in tup]
            lo = sum((p[1] for p in pool), [])
            regions.append((mfs, hi + lo))
        assert not any(n.startswith(("chk", "cmp")) for n in self.part1)
        dsn = lambda F: [n for f in F for n in f["nodes"]]
        def after(F, m):
            for n in dsn(F): n.deps.append((m, 0))
        def spread(dm, ms, g0, step):
            k = 0
            for n in dm:
                if n.k == "vm":
                    n.soft.append((ms[min(len(ms) - 1, g0 + step * k)], 0)); k += 1
        m0, m1, m2, mfs = [r[0] for r in regions]
        V3p = Vp[3]
        for n in dsn(Vp[1] + Vp[2] + K1q): n.low = True
        for n in regions[2][1] + [m2[-1]]: after(K1q[6:], n)
        for d in range(16): after([V3p[d]], mfs[d + 1])
        plan = [("Q", 8), ("Q", 7), ("K", 2), ("V", 1), ("K", 3)] if o.deep else [("Q", 2), ("Q", 8), ("Q", 7), ("K", 2), ("K", 3)]
        vw = 12 if o.deep else 8
        qb, e = self.dma_nodes(*plan[0], [], None)
        spread(qb, m0, 4, 6)
        S.run([], dsn(K0p[:6]))
        S.run(m0, qb + dsn(K0p[6:] + K1p + Vp[0]) + regions[0][1] + dsn(Vp[1]), cap=4, dsmax=2)
        a(f"s_waitcnt vmcnt({vw})")
        S.raw(qread(1))
        a("s_waitcnt lgkmcnt(0)", "w0")
        qa, e = self.dma_nodes(*plan[1], [], None)
        qb, e = self.dma_nodes(*plan[2], [], e)
        S.run([], qa + prescale(1, 128, 4, True))
        spread(qb, m1, 0, 8)
        a("s_nop 1")
        S.run(m1, qb + regions[1][1] + dsn(Vp[2]), cap=o.pro_cap)
        a(f"s_waitcnt vmcnt({vw})")
        S.raw(qread(2))
        a("s_waitcnt lgkmcnt(0)", "w0")
        v1, e = self.dma_nodes(*plan[3], [], None)
        k2, e = self.dma_nodes(*plan[4], [], e)
        S.run([], v1 + prescale(2, 128, 4, True))
        spread(k2, m2, 0, 8)
        a("s_nop 1")
        S.run(m2, k2 + regions[2][1] + dsn(K1q), cap=o.pro_cap)
        a(f"s_waitcnt vmcnt({vw})")
        if o.stamps: S.raw(self.stamp(2))
        S.raw(qread(3))
        for f in range(16):
            if dk(f)[1] == 0: mfs[f].need = ("q", 3, dk(f)[0])
        d1, e1 = self.dma_nodes("V", 1, [(mfs[o.pro_dma], 0)], None)
        d2, e2 = self.dma_nodes("V", 2, [], e1)
        d3 = []
        if o.v31x == 2:
            p = Nd([I(f"s_and_b32 s87, s{sVoff}, 0x3000"), I(f"s_add_u32 s87, s87, {31*16384}")], "s", deps=[bar, e2]); d3.append(p)
            for jj in range(4):
                mm = Nd(f"s_add_u32 m0, s{sWb}, {8*TILE + (PIECE-1024)*jj}", "s", deps=[p])
                p = Nd(f"buffer_load_dwordx4 v{vD}, {srd(sV)}, s87 offen offset:{jj*1024}{pol(o.kvpol)} lds", "vm", deps=[(mm, 1)])
                d3 += [mm, p]
        for j in range(1, 16): V3p[j]["nodes"][0].deps.append((V3p[j - 1]["nodes"][-1], 0))
        bar.deps = [(V3p[15]["nodes"][-1], o.pro_bar), (mfs[o.pro_barm], 0), (e2, 0)]
        ps3 = prescale(3, 132, 4, False, deps=[(mfs[31], 0)])
        S.run(mfs, dsn(V3p) + regions[3][1] + d1 + d2 + d3 + [bar] + dsn(K2p) + ps3, cap=o.pro_cap, dsmax=1)
        a("s_nop 1")
        S.raw([I(None, "wl", need=(0, 1))])
        if o.stamps: S.raw(self.stamp(3) + self.stamp(4))
        return S.out

    def tail(self):
        o = self.o
        S = Sched()
        a = lambda t, k="o", **kw: S.raw([I(t, k, **kw)])
        M29, M30, M31 = 1, 0, 2
        bar = Nd([I(f"s_waitcnt vmcnt({8 if o.v31x else 12})"), I("s_barrier")], "s")
        if o.v31x: o.splitv = 0
        barV = Nd([I(f"s_waitcnt vmcnt({4 if o.splitv else 0})"), I("s_barrier")], "s")
        barW = Nd([I("s_waitcnt vmcnt(0)"), I("s_barrier")], "s")
        dv, ev = self.dma_nodes("V", 3, [], None)
        xb = []
        if o.v31x:
            ev = Nd("s_nop 0", "s"); dv = [ev]
            xb = [Nd(f"v_add_u32 v{X(0,0,4)+i}, {4*TILE}, v{(vVe, vVo)[i]}", "v") for i in range(2)]
        touch = []
        if o.otouch:
            tm = Nd(f"s_add_u32 m0, s{sWb}, {8*TILE}", "s", deps=[bar])
            touch = [tm, Nd(f"buffer_load_dword off, {srd(sO)}, s{sRow} lds", "vm", deps=[(tm, 1)])]
        specs = [("done" if f < self.npre else "K", 2, f, (0, f), []) for f in range(16)]
        o31 = list(range(16))
        specs += [("K", 3, f, ("t", 31, f), [bar] if f == 0 else []) for f in o31]
        pvgroups = [[(0, d), (1, d)] for d in range(4)] + ([[(2, d) for d in range(4)]] if o.cb0quad else [[(2, 0), (2, 1)], [(2, 2), (2, 3)]])
        pvgroups += [[(tl, dt) for tl in range(3)] for dt in range(4, 16)]
        nlate = 0
        if o.late29:
            pvgroups = [[(0, d), (0, d + 1)] for d in range(4, 16, 2)] + pvgroups[:5] + [[(tl, dt) for tl in (1, 2)] for dt in range(4, 16)]
            nlate = 12
        pvorder = sum(pvgroups, [])
        specs += [("V", 4 if (tl == 2 and o.v31x) else 1 + tl, dt, ("t", "v", tl, dt), [barV] + ([barW] if tl == 2 and o.splitv else []) + (xb if tl == 2 else [])) for tl, dt in pvorder]
        fr = self.frag_stream(specs, 0)
        mfs, lastm = [], {}
        for p in range(8):
            for j, qt, e in walk(2, p):
                f = 2 * p + j
                m = self.mf(fr[f], self.qk_t(M30, f, qt, f, first=(p & 3) == 0 and e == 0)); mfs.append(m); lastm[(30, qt, dk(f)[1])] = m
        mfs[0].waited = True; mfs[1].waited = True
        mcopy = vS + [vD]
        def EC(tile, m, only, prevbr, prevmg, brdeps, rare_args):
            Eexp, Epl = self.E_ops()
            chk, mg = self.C_ops(Epl)
            def ex(op):
                d = []
                if op.name.startswith("exp"):
                    if (tile,) + op.src in lastm: d.append((lastm[(tile,) + op.src], 8))
                    if prevbr: d.append((prevbr, 0))
                if op.name.startswith("add") and op.name.endswith("1") and prevmg: d.append((prevmg[int(op.name[3])], 0))
                return d
            En = self.to_nodes(Epl + chk + Eexp, m, extra=ex, only=only)
            cn = [n for n in En if n.name == "cmp"][0]
            br = Nd([I(f"s_cbranch_vccnz L_rare{tile}", "s"), I(f"L_back{tile}:", "l")], "s", deps=[(cn, 1)] + [(n, 0) for n in En] + brdeps)
            self.rares.append(self.rare(str(tile), m, tile % R, *rare_args))
            mn = self.to_nodes(mg, m, extra=lambda op: [(br, 0)])
            return En, br, mn
        E29, br29, mg29 = EC(29, M29, self.part2, None, None, [], ([], M30))
        cpy = [Nd(f"v_mov_b32 v{mcopy[qt]}, v{Mb(qt)}", "v", deps=[br29, ev]) for qt in range(4)]
        q31 = []
        for p in range(8):
            for jj, qt, e in walk(2, p):
                j = 2 * p + jj; f = o31[j]
                deps = [(br29, 0)] if p == 0 else ([(n, 0) for n in cpy] if p == 4 else [])
                m = self.mf(fr[16 + j], self.qk_t(M31, f, qt, 16 + j, first=(p & 3) == 0 and e == 0), deps=deps, cap=o.cap31)
                mfs.append(m); q31.append(m); lastm[(31, qt, dk(f)[1])] = m
        bar.deps = [(mfs[o.tail_bar], 0), (br29, 0), (ev, 0)]
        barV.deps = [(q31[o.barv], 0)]
        E30, br30, mg30 = EC(30, M30, None, br29, mg29, [(n, 0) for n in cpy], ([M29], M31, mcopy))
        E31, br31, mg31 = EC(31, M31, None, br30, mg30, [], ([M29, M30], None, mcopy))
        for n in xb: n.deps.append((br30, 0))
        ln, t0, t1, t2 = 108, 109, 110, 111
        vW0, vR, vQ = 123, 124, 125
        ad = [f"v_mbcnt_lo_u32_b32 v{ln}, -1, 0", f"v_mbcnt_hi_u32_b32 v{ln}, -1, v{ln}",
              f"v_and_b32 v{t0}, 15, v{ln}", f"v_lshlrev_b32 v{t0}, 7, v{t0}",
              f"v_bfe_u32 v{t1}, v{ln}, 4, 1", f"v_lshl_add_u32 v{t0}, v{t1}, 3, v{t0}", f"v_add_u32 v{t0}, s{sWb}, v{t0}",
              f"v_lshrrev_b32 v{t1}, 5, v{ln}", f"v_and_b32 v{t2}, 7, v{ln}", f"v_xor_b32 v{t1}, v{t1}, v{t2}",
              f"v_lshl_add_u32 v{vW0}, v{t1}, 4, v{t0}",
              f"v_lshrrev_b32 v{t0}, 3, v{ln}", f"v_xor_b32 v{t1}, v{t0}, v{t2}", f"v_lshlrev_b32 v{t1}, 4, v{t1}",
              f"v_lshl_add_u32 v{vR}, v{t0}, 7, v{t1}", f"v_add_u32 v{vR}, s{sWb}, v{vR}",
              f"v_lshlrev_b32 v{t2}, 4, v{t2}", f"v_lshl_add_u32 v{vQ}, v{t0}, 9, v{t2}"]
        adn = []
        for x in ad: adn.append(Nd(x, "v", deps=[adn[-1]] if adn else [br31]))
        brs = [br29, br30, br31]
        Pd = {}
        for tl, E in enumerate((E29, E30, E31)):
            for qt in range(4): Pd[(tl, qt)] = [n for n in E if n.name.startswith(f"cvt{qt}")]
        lastpv = {}
        maps = [M29, M30, M31]
        j0 = 0
        for gi, grp in enumerate(pvgroups):
            for jj, qt, e in walk(len(grp), gi):
                if True:
                    tl, dt = grp[jj]
                    j = j0 + jj
                    cap = o.cap_a if j < 8 + nlate else (o.cap_b if j < 12 + nlate else (o.cap_d if j < 15 + nlate else o.cap_c))
                    if o.pkall and j >= 8: cap = o.cap_hi if len(mfs) % o.clus == o.clus - 1 else 2
                    m = self.mf(fr[32 + j], self.pv_t(maps[tl], dt, qt, 32 + j), deps=[(n, 2) for n in Pd[(tl, qt)]] + [(brs[tl], 0)], cap=cap)
                    mfs.append(m); lastpv[(qt, dt)] = m
            j0 += len(grp)
        self.link_users(fr, 8)
        barW.deps = [(mfs[128 + o.barw], 0)]
        inv = [112 + 2 * qt for qt in range(4)]
        vW = [vW0, 120, 121, 122]
        small = []
        chains = []
        for qt in range(4):
            t, t2 = inv[qt], inv[qt] + 1
            ch = [Nd(f"v_mov_b32 v{t2}, v{vL[qt]}", "v", deps=[mg31[qt]])]
            ch.append(Nd(f"v_permlane16_swap_b32 v{vL[qt]}, v{t2}", "v", deps=[(ch[-1], 2)]))
            ch.append(Nd(f"v_add_f32 v{t}, v{vL[qt]}, v{t2}", "v", deps=[(ch[-1], 1)]))
            ch.append(Nd(f"v_mov_b32 v{t2}, v{t}", "v", deps=[ch[-1]]))
            ch.append(Nd(f"v_permlane32_swap_b32 v{t}, v{t2}", "v", deps=[(ch[-1], 2)]))
            ch.append(Nd(f"v_add_f32 v{t}, v{t}, v{t2}", "v", deps=[(ch[-1], 1)]))
            ch.append(Nd(f"v_rcp_f32 v{t}, v{t}", "t", deps=[ch[-1]]))
            chains.append(ch)
        small = [n for tup in zip(*chains) for n in tup]
        wn = [Nd(f"v_xor_b32 v{vW[k]}, {32*k}, v{vW0}", "v", deps=[adn[-1]]) for k in range(1, 4)]
        conv = []
        opol = [pol(x) for x in (o.opol.split(",") * 4)[:4]]
        wr_prev = {}; st_prev = {}; rd_prev = {}
        lastds = None
        for i, (cb, qt) in enumerate([(cb, qt) for cb in range(4) for qt in range(4)]):
            b = 16 * (i % 4)
            pk = cb == 3 or o.pkall
            a0 = Ob(qt, 4 * cb)
            war = [(wr_prev[i % 4], 1)] if i % 4 in wr_prev else [(br31, 0)]
            rdn = [Nd(f"v_accvgpr_read_b32 v{b+k}, a{a0+k}", "v", deps=[(lastpv[(qt, 4 * cb + (k >> 2))], 8)] + war) for k in range(16)]
            iv = (chains[qt][-1], 1)
            if pk: mu = [Nd(f"v_pk_mul_f32 v[{b+2*k}:{b+2*k+1}], v[{b+2*k}:{b+2*k+1}], v[{inv[qt]}:{inv[qt]+1}] op_sel_hi:[1,0]", "v", deps=[rdn[2 * k], rdn[2 * k + 1], iv]) for k in range(8)]
            else: mu = [Nd(f"v_mul_f32 v{b+k}, v{b+k}, v{inv[qt]}", "v", deps=[rdn[k], iv]) for k in range(16)]
            if pk:
                for n in mu: n.pk = True
            cv = []
            for k in range(8):
                deps = ([mu[k]] if pk else [mu[2 * k], mu[2 * k + 1]]) + ([cv[-1]] if cv else [])
                cv.append(Nd(f"v_cvt_pk_bf16_f32 v{b+k}, v{b+2*k}, v{b+2*k+1}", "v", deps=deps))
            rb = qt >> 1
            wr = []
            for k in range(4):
                deps = [cv[2 * k + 1], adn[-1]] + ([wn[k - 1]] if k else []) + ([rd_prev[rb]] if rb in rd_prev else [(bar, 0)]) + ([wr[-1]] if wr else [])
                wr.append(Nd(f"ds_write_b64 v{vW[k]}, v[{b+2*k}:{b+2*k+1}] offset:{rb*TILE + (qt&1)*2048}", "ds", deps=deps, tag=("w", i, k)))
            for n in wr: n.cost = o.wcost
            wr_prev[i % 4] = wr[-1]
            conv += wr + rdn + mu + cv
            if qt & 1:
                rbuf = 64 + 16 * ((i >> 1) % 3)
                u2 = (i >> 1) % 3
                rds = []
                for k in range(4):
                    deps = [wr[-1], prev_wr] + ([(st_prev[u2], 2)] if u2 in st_prev else []) + ([rds[-1]] if rds else [])
                    rds.append(Nd(f"ds_read_b128 v[{rbuf+4*k}:{rbuf+4*k+3}], v{vR} offset:{rb*TILE + k*1024}", "ds", deps=deps, tag=("r", i, k)))
                rd_prev[rb] = rds[-1]
                sts = []
                for k in range(4):
                    kk = 4 * rb + k
                    so = f"s{sRow}" if kk == 0 else f"s{sRG[kk]}"
                    sts.append(Nd(f"buffer_store_dwordx4 v[{rbuf+4*k}:{rbuf+4*k+3}], v{vQ}, {srd(sO)}, {so} offen offset:{128*cb}{opol[cb]}", "vm",
                                  deps=[rds[k]] + ([sts[-1]] if sts else []), soft=[(rds[k], o.st_dist)], need=("r", i, k)))
                st_prev[u2] = sts[-1]
                conv = self._hoist(conv, rds + sts)
            prev_wr = wr[-1]
        ds = [n for f in fr for n in f["nodes"]]
        pool = ds + dv + [br29, bar, barV] + ([barW] if o.splitv else []) + touch + E29 + mg29 + cpy + [br30] + xb + E30 + mg30 + [br31] + E31 + mg31 + small + adn + wn + conv
        S.run(mfs, pool, dsmax=o.tail_dsmax)
        T = S.out
        if o.ab_drop:
            dr = tuple(o.ab_drop.split(","))
            for it in T:
                if it.t and it.t.startswith(dr): it.t = "s_nop 0" if o.ab_nop else None; it.k = "ds" if it.k == "ds" else "o"
        a2 = lambda t, k="o": T.append(I(t, k))
        if o.stamps:
            i1 = max(i for i, it in enumerate(T) if it.k == "m")
            T[i1 + 1:i1 + 1] = self.stamp(7)
            i0 = min(i for i, it in enumerate(T) if it.t and it.t.startswith("buffer_store"))
            T[i0:i0] = self.stamp(6)
            a2("s_waitcnt vmcnt(0)")
            T += self.stamp(8)
            a2("s_memrealtime s[58:59]", "sm")
            a2("s_getreg_b32 s60, hwreg(HW_REG_XCC_ID)")
            a2("s_getreg_b32 s61, hwreg(HW_REG_HW_ID)")
            a2("s_waitcnt lgkmcnt(0)")
            a2(f"s_mov_b32 s64, s36"); a2("s_mov_b32 s65, s37"); a2(f"s_mov_b32 s66, {256 if o.dbg else 0x1000000}"); a2("s_mov_b32 s67, 0x20000")
            if o.dbg:
                a2("s_cmp_lg_u32 s2, 37"); a2("s_cbranch_scc1 L_end")
                a2(f"s_cmp_lg_u32 s{sWb}, 0"); a2("s_cbranch_scc1 L_end")
                a2("v_mov_b32 v1, 0")
                for k in range(8):
                    a2(f"s_sub_u32 s62, s{42+2*k}, s{40+2*k}"); a2("v_mov_b32 v0, s62")
                    a2(f"buffer_store_dword v0, v1, s[64:67], 0 offen offset:{4*k}")
                    a2(f"s_sub_u32 s62, s{70+2*k}, s{68+2*k}"); a2("v_mov_b32 v0, s62")
                    a2(f"buffer_store_dword v0, v1, s[64:67], 0 offen offset:{32+4*k}")
                if o.amp:
                    i0, i1 = map(int, o.amp.split(","))
                    a2(f"s_sub_u32 s62, s{68+2*i1}, s{68+2*i0}")
                    a2("s_lshl_b32 s62, s62, 3")
                    a2("s_min_u32 s62, s62, 100000")
                    a2("L_amp:", "l")
                    a2("s_memrealtime s[58:59]")
                    a2("s_waitcnt lgkmcnt(0)")
                    a2("s_sub_u32 s63, s58, s84")
                    a2("s_cmp_lt_u32 s63, s62")
                    a2("s_cbranch_scc1 L_amp")
                return T
            a2(f"s_lshl_b32 s62, s2, 10")
            a2(f"s_mul_hi_u32 s63, s{sWb}, {(2**32)//(4*PIECE)+1}")
            a2(f"s_lshl_b32 s63, s63, 8")
            a2(f"s_add_u32 s62, s62, s63")
            a2(f"v_mov_b32 v1, 0")
            for k in range(24):
                a2(f"v_mov_b32 v0, s{38+k}")
                a2(f"buffer_store_dword v0, v1, s[64:67], s62 offen offset:{4*k}")
            for k in range(18):
                a2(f"v_mov_b32 v0, s{68+k}")
                a2(f"buffer_store_dword v0, v1, s[64:67], s62 offen offset:{128+4*k}")
        return T

    @staticmethod
    def _hoist(conv, hot):
        k = 0
        while k < len(conv) and getattr(conv[k], "hot", False): k += 1
        for n in hot: n.hot = True
        return conv[:k] + hot + conv[k:]

    def build(self):
        o = self.o
        pro = self.prologue()
        loop = [I("L_loop:", "l")] + self.body(0) + self.body(1)
        tl = [I("L_tail:", "l")] + self.stamp(5) + self.tail()
        trace = pro + loop + loop + tl
        self.resolve_waits(trace)
        lines = [it.t for it in trace if it.t and not it.skip and it.k != "l"]
        errs = hz.check(lines)
        for r in self.rares: errs += hz.check([it.t for it in r if it.k != "l"])
        for e in sorted(set(errs))[:20]: print(e, file=sys.stderr)
        assert not errs or o.ab_drop, "hazards"
        if o.verbose:
            cnt = lambda l: sum(1 for it in l if it.t and not it.skip and it.k != "l")
            print("instr: prologue", cnt(pro), "loop", cnt(loop), "tail", cnt(tl), file=sys.stderr)
        if o.v31x == 1: pro = pro + [I("s_branch L_loop")] + self.v31blk
        return pro + [I(".p2align 6" if o.align else "", "l")] + loop + tl + [I("L_end:", "l"), I("s_endpgm")] + sum(self.rares, [])

    def resolve_waits(self, trace):
        ds = []
        for it in trace:
            if it.k == "ds": ds.append(it.tag)
            elif it.k == "wl":
                idx = max(j for j, t in enumerate(ds) if t == it.need)
                n = min(14, len(ds) - 1 - idx)
                it.n = n if it.n is None else min(it.n, n)
        needed = set()
        ds = []; done = 0
        for it in trace:
            if it.k == "ds": ds.append(it.tag)
            elif it.k == "w0": done = len(ds)
            elif it.k == "wl":
                idx = max(j for j, t in enumerate(ds) if t == it.need)
                if idx >= done: needed.add(id(it))
                done = max(done, len(ds) - it.n) if id(it) in needed else done
        for it in trace:
            if it.k == "wl":
                it.skip = id(it) not in needed
                it.t = f"s_waitcnt lgkmcnt({it.n})"

    def text(self):
        body = self.build()
        hdr = open("standalone__mha_softmax__near_ridge.s.ref").read().split("\n")
        top = []
        for ln in hdr:
            if ln.startswith("; @launch"): break
            top.append(ln)
        out = top + [f"; @launch grid=(256,1,1) block=(256,1,1) lds={LDS_BYTES}",
                     "; Flash-attention forward, written with my own generator script (static scheduler + hazard checker).",
                     "; One workgroup per CU: 256 q rows of one head (4 waves x 64 rows), 32-key tiles, v_mfma_f32_16x16x32_bf16.",
                     ";  * S^T = K Q^T and O^T = V^T P^T, so P never leaves its lanes; O lives in the 256 AGPRs, Q in v0..v127.",
                     ";  * K/V/Q reach LDS by LDS-DMA (4-slot rings, padded + xor layout, no bank conflicts); V is read with ds_read_b64_tr_b16.",
                     ";  * Q is scaled once by log2(e)/sqrt(D); -(reference max) enters as the C operand of each QK chain.",
                     ";  * The reference max is the true row max of the first 64 keys.  Every tile's row sums are checked at run time; if a",
                     ";    probability leaves the safe range the tile is recomputed from K against the true running max and O, l, P are",
                     ";    rescaled exactly (L_rare*).",
                     ";  * prologue: tile 0 and QK(1) q-tile by q-tile while Q streams in; loop: cycles QK(j+1) QK(j+2) PV(j,j+1);",
                     ";    tail: PV of the last three tiles column block by column block, transposed through LDS into full-line stores.",
                     '.amdgcn_target "amdgcn-amd-amdhsa--gfx950"', ".text", f".globl {KNAME}"] + ([".p2align 12"] if self.o.al12 else []) + [".p2align 8",
                     f".type {KNAME},@function", f"{KNAME}:"]
        for it in body:
            if it.skip or not it.t: continue
            out.append(("" if it.k == "l" else "    ") + it.t)
        out += ['.section .rodata,"a"', ".p2align 6", f".amdhsa_kernel {KNAME}",
                "  .amdhsa_next_free_vgpr 512", "  .amdhsa_next_free_sgpr 100", "  .amdhsa_accum_offset 256",
                "  .amdhsa_group_segment_fixed_size 0", "  .amdhsa_kernarg_size 48", "  .amdhsa_user_sgpr_count 2",
                "  .amdhsa_user_sgpr_kernarg_segment_ptr 1", "  .amdhsa_system_sgpr_workgroup_id_x 1",
                ".end_amdhsa_kernel", ""]
        return "\n".join(out)

def parse(argv):
    p = argparse.ArgumentParser()
    p.add_argument("-o", default="standalone__mha_softmax__near_ridge.s")
    for f in ("stamps", "verbose", "dbg", "no_bar", "no_dma", "no_br"):
        p.add_argument("--" + f, action="store_true")
    for name, d in dict(align=1, look=24, bar_gap=113, bar_quiet=1, kstep=2, sgap=5, v31trip=4, tailpf=0, v31x=2, barv=30, splitv=1, barw=8, late29=0, e2start=206, dma1=106, dmastep1=8, fake_chain=0, exp_delay=0, exp_bit=3, pkall=0, wcost=1, cap_hi=10, clus=2, deep=0, cb0quad=1, cap_d=5, otouch=0, snake=1, pvchain=1, pace=0, al12=0, late_v1=0, br_delay=1, dma0=2, dmastep=4, sdelay=28, backlog=5,
                        codepf=1, pdepth=7, g0_dma0=2, g0_dmastep=6, pro_dma=2, pro_bar=10, pro_barm=43, pro_cap=3, pro_cap3=12, tail_bar=30, cap31=2, cap_a=7, cap_b=3, cap_c=5, st_dist=24, tail_dsmax=1).items():
        p.add_argument("--" + name, type=int, default=d)
    p.add_argument("--thr", type=float, default=1048576.0)
    p.add_argument("--amp", default="")
    p.add_argument("--ab_drop", default="")
    p.add_argument("--ab_nop", type=int, default=0)
    p.add_argument("--kvpol", default="nt")
    p.add_argument("--qpol", default="nt")
    p.add_argument("--opol", default="nt")
    return p.parse_args(argv)

if __name__ == "__main__":
    o = parse(sys.argv[1:])
    open(o.o, "w").write(Gen(o).text())
```

```python
import sys, struct, argparse
sys.path.insert(0, "dev")
import hz

KNAME = "standalone__mha_softmax__near_ridge_kernel"
MF = "v_mfma_f32_16x16x32_bf16"

def f32bits(x): return struct.unpack("<I", struct.pack("<f", x))[0]
def pol(x): return (" " + x.replace("+", " ")) if x else ""
def srd(s): return f"s[{s}:{s+3}]"

class I:
    __slots__ = ("t", "k", "tag", "need", "n", "skip")
    def __init__(self, t, k="o", tag=None, need=None):
        self.t = t; self.k = k; self.tag = tag; self.need = need; self.n = None; self.skip = False

def Qr(qt, d8): b = (qt * 8 + d8) * 4; return f"v[{b}:{b+3}]"
vT = 240
def X(m, qt, k):
    if m < 2: return 128 + m * 32 + qt * 8 + k
    if m == 4: return 128 + qt * 8 + k if k < 4 else 160 + qt * 8 + k
    if m == 5: return 128 + qt * 8 + 4 + k if k < 4 else 160 + qt * 8 + k
    if m >= 10: return X(m - 10, qt, k) if k < 4 else vC + k - 4
    return 128 + 32 + qt * 8 + 4 + k if k < 4 else vT + 4 * qt + k - 4
def Sr(m, qt, kt): b = X(m, qt, 4 * kt); return f"v[{b}:{b+3}]"
def Pr(m, qt): return Sr(m, qt, 0)
NF = 8
def Fx(f): return f if isinstance(f, tuple) else ("v", 192 + (f % NF) * 4)
def Fr(f): c, b = Fx(f); return f"{c}[{b}:{b+3}]"
def Ob(qt, dt): return (qt * 16 + dt) * 4
def Or(qt, dt): b = Ob(qt, dt); return f"a[{b}:{b+3}]"
vK, vVe, vVo, vD = 224, 225, 226, 227
vL = [228, 229, 230, 231]
vLt = [232, 233, 234, 235]
vC = 236
vS = [237, 238, 239]
def Mb(qt): return vT + 4 * qt
def Mr(qt): b = Mb(qt); return f"v[{b}:{b+3}]"
sQ, sK, sV, sO = 4, 8, 12, 16
sC, sKoff, sVoff, sWb, sCnt, sNC, sThr, sRow = 20, 21, 22, 23, 24, 25, 26, 27
sQoff, sMask = 86, 95
sRG = [None, 88, 89, 90, 91, 92, 93, 94]
PIECE = 1088
TILE = 16 * PIECE
R = 4
VBASE = R * TILE
LDS_BYTES = (2 * R + 1) * TILE
NG = 256
def dk(f): return (f & 7, f >> 3)
def walk(n, par):
    for qi in range(4):
        for e in range(n):
            yield (e if qi % 2 == 0 else n - 1 - e, qi if par % 2 == 0 else 3 - qi, e)

class Op:
    def __init__(self, name, fn, cost=1, deps=(), t0=0):
        self.name = name; self.fn = fn; self.cost = cost; self.deps = list(deps); self.t0 = t0; self.t = None

class Nd:
    def __init__(self, t, k, deps=(), tag=None, need=None, cap=None, soft=()):
        self.t = t if isinstance(t, list) else [t]
        self.k = k; self.deps = [d if isinstance(d, tuple) else (d, 0) for d in deps]
        self.tag = tag; self.need = need; self.idx = None; self.cap = cap; self.waited = False; self.soft = list(soft); self.low = False; self.pk = False
        self.cost = {"t": 2, "vm": 2, "s": 0}.get(k, 1)

class Sched:
    def __init__(self):
        self.out = []; self.n = 0; self.issued = set()
    def ok(self, nd, relax=False):
        if not relax and any(d.idx is None or self.n - d.idx - 1 < dist for d, dist in nd.soft): return False
        return all(d.idx is not None and self.n - d.idx - 1 >= dist for d, dist in nd.deps)
    def wait(self, nd):
        if nd.need is not None and not nd.waited:
            self.out.append(I(None, "wl", need=nd.need)); nd.waited = True
    def emit(self, nd):
        self.wait(nd)
        for t in nd.t:
            if isinstance(t, I):
                self.out.append(t)
                if t.k != "l": self.n += 1
            else:
                self.out.append(I(t, nd.k, tag=nd.tag)); self.n += 1
        nd.idx = self.n - 1
    def raw(self, lst):
        for t in lst:
            t = t if isinstance(t, I) else I(t)
            self.out.append(t)
            if t.k not in ("l", "wl"): self.n += 1
    def pick(self, pool, free, dsmax):
        got = []; nds = 0; nsc = 0
        for nd in list(pool):
            if not self.ok(nd): continue
            if nd.k == "s":
                if nsc: continue
                nsc += 1
            else:
                if nd.cost > free: continue
                if nd.k == "ds":
                    if nds >= dsmax: continue
                    nds += 1
                free -= nd.cost
            got.append(nd); pool.remove(nd)
            if free <= 0 and nsc: break
        order = {"s": 0, "ds": 1, "vm": 2}
        got.sort(key=lambda nd: order.get(nd.k, 3))
        return got
    def drain_one(self, pool, relax=False):
        for nd in pool:
            if self.ok(nd, relax):
                pool.remove(nd); self.emit(nd); return True
        return False
    def run(self, mfs, pool, cap=2, dsmax=1, keep=()):
        for i, m in enumerate(mfs):
            guard = 0
            while not self.ok(m):
                if not self.drain_one(pool):
                    self.raw(["s_nop 0"]); guard += 1
                    assert guard < 40, ("stuck", m.t, [d.t for d, _ in m.deps if d.idx is None])
            self.emit(m)
            c = m.cap or cap
            left = c
            pkok = lambda: c - left >= 5
            nx = mfs[i + 1] if i + 1 < len(mfs) else None
            if nx is not None and nx.need is not None and not nx.waited and all(d.idx is not None for d, _ in nx.deps if d.k == "ds"):
                self.wait(nx)
            def take(kinds, maxcost, low=True):
                for nd in pool:
                    if nd.k in kinds and nd.cost <= maxcost and (low or not nd.low) and self.ok(nd) and (not nd.pk or pkok()):
                        pool.remove(nd); self.emit(nd); return nd
                return None
            take(("s",), 0)
            nds = 0
            for lowok in (False, True):
                while nds < dsmax and left > 0:
                    nd = take(("ds",), left, lowok)
                    if not nd: break
                    left -= nd.cost; nds += 1
                if not lowok and left >= 2 and take(("vm",), left): left -= 2
            while left > 0:
                nd = None
                if pkok():
                    for x in pool:
                        if x.pk and self.ok(x):
                            pool.remove(x); self.emit(x); nd = x; break
                if not nd and left >= 2:
                    rdy = []
                    for x in pool:
                        if x.k in ("v", "t") and self.ok(x):
                            rdy.append(x)
                            if x.k == "t" or len(rdy) > 4: break
                    if rdy and rdy[-1].k == "t": nd = take(("t",), left)
                if not nd: nd = take(("v", "t"), left)
                if not nd: break
                left -= nd.cost
        guard = 0
        while any(nd not in keep for nd in pool):
            if not self.drain_one(pool) and not self.drain_one(pool, True):
                self.raw(["s_nop 0"]); guard += 1
                assert guard < 40, ("stuck", [nd.t for nd in pool[:3]])
            else: guard = 0

class Gen:
    def __init__(self, o):
        self.o = o
        self.rares = []
        self.plan()

    def kread_t(self, slot, f, buf):
        d8, kt = dk(f)
        return f"ds_read_b128 {Fr(buf)}, v{vK} offset:{slot*TILE + kt*8*PIECE + 64*d8}"
    def vread_t(self, slot, dt, sec, buf):
        c, b = Fx(buf); b += 2 * sec
        if slot == 4: return f"ds_read_b64_tr_b16 {c}[{b}:{b+1}], v{X(0,0,4) + (dt & 1)} offset:{sec*8*PIECE + 64*(dt>>1)}"
        return f"ds_read_b64_tr_b16 {c}[{b}:{b+1}], v{vVo if dt & 1 else vVe} offset:{slot*TILE + sec*8*PIECE + 64*(dt>>1)}"
    def fread(self, u, f, part=None):
        if f < 16: return [I(self.kread_t((u + 1) % R, f, f), "ds", tag=(u, f))]
        return [I(self.vread_t(u % R, f - 16, sec, f), "ds", tag=(u, f)) for sec in range(2) if part is None or part == sec]

    def dma_m0(self, which, slot, j):
        base = slot * TILE + (VBASE if which == "V" else 0) + (PIECE - 1024) * j
        return I(f"s_add_u32 m0, s{sWb}, {base}", "s")
    def dma_ld(self, which, j):
        s, so, p = {"K": (sK, sKoff, self.o.kvpol), "V": (sV, sVoff, self.o.kvpol), "Q": (sQ, sQoff, self.o.qpol)}[which]
        return I(f"buffer_load_dwordx4 v{vD}, {srd(s)}, s{so} offen offset:{j*1024}{pol(p)} lds", "vm")
    def dma_adv(self, which):
        so = {"K": sKoff, "V": sVoff, "Q": sQoff}[which]
        return I(f"s_addk_i32 s{so}, {4096 if which == 'Q' else 16384}", "s")
    def dma_tile(self, which, slot):
        out = [self.dma_m0(which, slot, 0)]
        for j in range(4):
            out += [I("s_nop 0"), self.dma_ld(which, j)]
            if j < 3: out.append(I(f"s_addk_i32 m0, {PIECE-1024}", "s"))
        out.append(self.dma_adv(which))
        return out
    def dma_nodes(self, which, slot, deps, prev):
        out = []
        for j in range(4):
            m = Nd(self.dma_m0(which, slot, j).t, "s", deps=list(deps) + ([prev] if prev else []))
            l = Nd(self.dma_ld(which, j).t, "vm", deps=[(m, 1)])
            out += [m, l]; prev = l
        adv = Nd(self.dma_adv(which).t, "s", deps=[prev]); out.append(adv)
        return out, adv

    def qk_t(self, m, f, qt, buf, zero=False, first=None):
        d8, kt = dk(f)
        if first is None: first = d8 == 0
        c = ("0" if zero else Mr(qt)) if first else Sr(m, qt, kt)
        return f"{MF} {Sr(m,qt,kt)}, {Fr(buf)}, {Qr(qt,d8)}, {c}"
    def pv_t(self, m, dt, qt, buf, zero=False):
        return f"{MF} {Or(qt,dt)}, {Fr(buf)}, {Pr(m,qt)}, {'0' if zero else Or(qt,dt)}"

    def E_ops(self, qts=range(4), acc=None):
        o = self.o
        acc = acc or vLt
        ex, ad, cv, Eexp, Epl = {}, {}, {}, [], []
        for qt in qts:
            for k in range(8):
                ex[(qt, k)] = Op(f"exp{qt}{k}", (lambda m, qt=qt, k=k: f"v_exp_f32 v{X(m,qt,k)}, v{X(m,qt,k)}"), cost=2, t0=(25 if k < 4 else 57) + 2 * (3 - qt) + 6)
                ex[(qt, k)].src = (qt, k >> 2)
                Eexp.append(ex[(qt, k)])
            ad[(qt, 1)] = Op(f"add{qt}1", (lambda m, qt=qt: f"v_add_f32 v{acc[qt]}, v{X(m,qt,0)}, v{X(m,qt,1)}"), deps=[ex[(qt, 0)], ex[(qt, 1)]])
            ad[(qt, 0)] = ad[(qt, 1)]
            for k in range(2, 8):
                ad[(qt, k)] = Op(f"add{qt}{k}", (lambda m, qt=qt, k=k: f"v_add_f32 v{acc[qt]}, v{acc[qt]}, v{X(m,qt,k)}"), deps=[ex[(qt, k)], ad[(qt, k - 1)]])
            for j in range(4):
                deps = [ex[(qt, 2 * j)], ex[(qt, 2 * j + 1)], ad[(qt, j)]] + ([cv[(qt, j >> 1)]] if j else [])
                cv[(qt, j)] = Op(f"cvt{qt}{j}", (lambda m, qt=qt, j=j: f"v_cvt_pk_bf16_f32 v{X(m,qt,j)}, v{X(m,qt,2*j)}, v{X(m,qt,2*j+1)}"), deps=deps)
            for k in range(1, 8):
                Epl.append(ad[(qt, k)])
                if k & 1: Epl.append(cv[(qt, k >> 1)])
        return Eexp, Epl
    def C_ops(self, Epl):
        la = [op for op in Epl if op.name.startswith("add") and op.name.endswith("7")]
        c1 = Op("chk1", (lambda m: f"v_max3_f32 v{vC}, v{vLt[0]}, v{vLt[1]}, v{vLt[2]}"), deps=la[:3])
        c2 = Op("chk2", (lambda m: f"v_max_f32 v{vC}, v{vC}, v{vLt[3]}"), deps=[c1, la[3]])
        cmp = Op("cmp", (lambda m: f"v_cmp_lt_f32 vcc, s{sThr}, v{vC}"), deps=[c2])
        mg = [Op(f"mrg{qt}", (lambda m, qt=qt: f"v_add_f32 v{vL[qt]}, v{vL[qt]}, v{vLt[qt]}")) for qt in range(4)]
        return [c1, c2, cmp], mg
    def to_nodes(self, ops, m, extra=None, only=None):
        nd = {}
        for op in ops:
            if only is not None and op.name not in only: continue
            nd[op] = Nd(op.fn(m), "t" if op.cost == 2 else "v"); nd[op].name = op.name
        for op, n in nd.items():
            for d in op.deps:
                if d in nd: n.deps.append((nd[d], 1 if d.cost == 2 else 0))
            if extra: n.deps += extra(op)
        return list(nd.values())
    @staticmethod
    def E_order(Eexp, Epl):
        return Epl + Eexp

    def mf_at(self, g):
        p = g >> 3
        j, qt, e = list(walk(2, p + (1 if 8 <= p < 16 else 0)))[g & 7]
        return 2 * p + j, qt, e

    def plan(self):
        o = self.o
        used = [0] * NG
        self.ds_at = [[] for _ in range(NG)]
        self.barE, self.barM, self.barV = o.bar_gap + 128, 64 - o.look - 2, 128 - o.look - 2
        g = self.barE + 1
        self.npre = 0
        for f in range(64):
            want = 4 * f - o.look
            if want < 0:
                pos = max(want + NG, g)
                assert pos < NG - 1
                self.ds_at[pos].append((f, None, True)); used[pos] += 1
                g = pos + o.kstep; self.npre = f + 1
                continue
            pos = want
            for p in ([None] if f < 32 else [0, 1]):
                while used[pos] > 0: pos += 1
                assert pos < self.barE - 6
                self.ds_at[pos].append((f, p, False)); used[pos] += 1
        self.dma_at = {}
        pos = o.dma0
        for k in range(16):
            if k == o.dsplit: pos = o.dma1
            while used[pos] > 0 or pos % 8 == 0: pos += 1
            assert (0 < pos < self.barM - 3) if k < o.dsplit else (self.barV + 1 < pos < self.barE - 3)
            self.dma_at[pos] = k
            used[pos] = 2
            pos += o.dmastep if k < o.dsplit else o.dmastep1
        used[NG - 1] += 1
        used[self.barE] = 2
        self.x_gap = max(self.dma_at) + 6
        while self.x_gap % 8 in (7, 0): self.x_gap += 1
        self.pf_at = []
        if o.tailpf or o.l2pf:
            pos = max(self.dma_at) + 3
            while len(self.pf_at) < 3:
                if used[pos] == 0: self.pf_at.append(pos); used[pos] = 2
                pos += 1
        done, start = {}, {}
        for g in range(128):
            f, qt, e = self.mf_at(g)
            done[(f >> 4, qt, dk(f & 15)[1])] = g
            start.setdefault((f >> 4, qt, dk(f & 15)[1]), g)
        scal = set()
        for g, k in self.dma_at.items():
            scal.add(g - 1)
            if k % 4 == 3: scal.add(g + 2)
        for b in (self.barE, self.barM, self.barV): scal |= {b, b - 1}
        busy = lambda g: g % 8 == 7 or (g % NG) in scal
        self.va_at = [[[] for _ in range(2 * NG)] for _ in range(2)]
        self.t_br = [None, None]
        rdy = lambda op, t: op.t0 <= t and all(d.t is not None and d.t < t for d in op.deps)
        tnext = 0
        for w in range(2):
            Eexp, Epl = self.E_ops()
            chk, mg = self.C_ops(Epl)
            for op in Eexp: op.t0 = max(done[(w,) + op.src] + o.sgap, tnext, o.e2start if w else 0)
            if w == 1:
                chk[0].t0 = NG
                for k, op in enumerate(Eexp): op.t0 = max(op.t0, o.e2start + k * o.pace // 10)
            if w == 0:
                Eexp.sort(key=lambda op: op.t0)
                hi = lambda op: int(op.name[4]) >= (4 if op.name.startswith("add") else 2)
                Epl.sort(key=lambda op: (hi(op), done[(0, int(op.name[3]), 1)]))
            Epl = Epl + chk
            allops = Eexp + Epl
            def put(op, t): op.t = t; self.va_at[w][t].append(op); used[t % NG] += op.cost
            t = min(op.t0 for op in Eexp)
            while Eexp or Epl:
                free = 2 - used[t % NG]
                backlog = sum(1 for op in Epl if all(d.t is not None for d in op.deps if d.cost == 2) and op not in chk)
                re = [op for op in Eexp if rdy(op, t)]
                if free == 2 and re and backlog < o.backlog:
                    Eexp.remove(re[0]); put(re[0], t)
                else:
                    for op in list(Epl):
                        if free == 0: break
                        if rdy(op, t): Epl.remove(op); put(op, t); free -= 1
                    if free == 2 and re: Eexp.remove(re[0]); put(re[0], t)
                t += 1
            tb = t + o.br_delay
            if w: tb = max(tb, NG + 1)
            while busy(tb): tb += 1
            self.t_br[w] = tb
            t = tb
            while mg:
                if used[t % NG] < 2: put(mg.pop(0), t)
                else: t += 1
            tnext = t + 1
            for qt in range(4):
                last = max(op.t for op in allops if op.name[:4] in (f"add{qt}", f"cvt{qt}"))
                lim = start[(1, qt, 1)] if w == 0 else NG + start[(0, qt, 1)]
                assert last < lim, ("high quad released too late", w, qt, last, lim)
            if w == 0: assert tb < 126
            else: assert tb - NG < self.barM - 1 and tnext - NG <= min(op.t for tt in self.va_at[0] for op in tt if op.name.startswith("add")), (tb, tnext)
        assert self.t_br[1] - NG <= min(op.t for tt in self.va_at[0] for op in tt)
        self.part1 = {op.name for t in range(0, NG) for op in self.va_at[1][t]}
        self.part2 = {op.name for t in range(NG, 2 * NG) for op in self.va_at[1][t]}
        if o.verbose:
            print("br", self.t_br, "npre", self.npre, "part2", len(self.part2), file=sys.stderr)
            for h in range(2): print("".join(map(str, used[128 * h:128 * h + 128])), file=sys.stderr)

    def cread(self, c, f, part=None):
        j = 1 + 2 * c
        if f < 32: return [I(self.kread_t((j + 1 + (f >> 4)) % R, f & 15, f), "ds", tag=(c, f))]
        return [I(self.vread_t((j + (f & 1)) % R, (f - 32) >> 1, sec, f), "ds", tag=(c, f)) for sec in range(2) if part is None or part == sec]

    def body(self, c):
        o = self.o
        j = 1 + 2 * c
        mP, m1, m2 = (1, 4, 5) if c == 0 else (5, 4, 1)
        grp = [("K", (j + 3) % R), ("K", j % R), ("V", (j + 2) % R), ("V", (j + 3) % R)]
        if o.dsplit == 8: grp = [grp[0], grp[2], grp[1], grp[3]]
        desc = lambda k: grp[k >> 2] + (k & 3,)
        out = []
        for g in range(NG):
            f, qt, e = self.mf_at(g)
            if f < 32: t = self.qk_t(m1 if f < 16 else m2, f & 15, qt, f, first=((g >> 3) & 3) == 0 and e == 0)
            else: t = self.pv_t(m1 if f & 1 else mP, (f - 32) >> 1, qt, f)
            out.append(I(t, "m"))
            sc, ds, vm, va = [], [], [], []
            if g % 8 == 7:
                f1 = (g + 1) // 4 + 1
                sc.append(I(None, "wl", need=(c, f1) if f1 < 64 else (1 - c, 1)))
            if g == self.barE - 1: sc.append(I("s_waitcnt vmcnt(12) lgkmcnt(0)", "w0"))
            if g == self.barM - 1: sc.append(I("s_waitcnt vmcnt(12)"))
            if g == self.barV - 1: sc.append(I(f"s_waitcnt vmcnt({o.dsplit})"))
            if g in (self.barE, self.barM, self.barV): sc.append(I("s_barrier"))
            if g + 1 in self.dma_at: sc.append(self.dma_m0(*desc(self.dma_at[g + 1])))
            if g in self.dma_at:
                wh, _, jj = desc(self.dma_at[g]); vm.append(self.dma_ld(wh, jj))
            if g - 2 in self.dma_at and self.dma_at[g - 2] % 4 == 3: sc.append(self.dma_adv(desc(self.dma_at[g - 2])[0]))
            for (ff, p, nx) in self.ds_at[g]: ds += self.cread(1 - c if nx else c, ff, p)
            if g == self.t_br[1] - NG:
                sc += [I(f"s_cbranch_vccnz L_rare{2*c}", "s"), I(f"L_back{2*c}:", "l")]
                self.rares.append(self.rare_q(str(2 * c), mP, j % R, [], m1))
            if g == self.t_br[0]:
                sc += [I(f"s_cbranch_vccnz L_rare{2*c+1}", "s"), I(f"L_back{2*c+1}:", "l")]
                self.rares.append(self.rare_q(str(2 * c + 1), m1, (j + 1) % R, [mP], m2))
            for op in self.va_at[1][g + NG]: va.append(I(op.fn(mP), "v"))
            for op in self.va_at[0][g]: va.append(I(op.fn(m1), "v"))
            for op in self.va_at[1][g]: va.append(I(op.fn(m2), "v"))
            if o.l2pf and c == 0 and g in self.pf_at:
                k = self.pf_at.index(g)
                if k == 0:
                    sc.append(I(f"s_cmp_eq_u32 s{sCnt}, {o.l2trip}", "s"))
                    va += [I(f"v_lshlrev_b32 v{vS[2]}, 3, v{vD}", "v"), I("s_cselect_b32 s87, s98, s99", "s")]
                if k == 1: vm.append(I(f"buffer_load_dword v{vS[0]}, v{vS[2]}, {srd(sV)}, s87 offen{pol(o.l2pol)}", "vm"))
                if k == 2:
                    sc.append(I("s_addk_i32 s87, 16384", "s"))
                    vm.append(I(f"buffer_load_dword v{vS[1]}, v{vS[2]}, {srd(sK)}, s87 offen{pol(o.l2pol)}", "vm"))
            if o.tailpf and c == 1 and g in self.pf_at:
                k = self.pf_at.index(g)
                if k == 0: va += [I(f"v_lshlrev_b32 v{vS[1]}, 3, v{vD}", "v"), I(f"v_add_co_u32 v{vS[1]}, vcc, s96, v{vS[1]}", "v")]
                if k == 1:
                    sc.append(I(f"s_add_u32 m0, s{sWb}, {8*TILE}", "s"))
                    va += [I(f"v_mov_b32 v{vS[2]}, s97", "v"), I(f"v_addc_co_u32 v{vS[2]}, vcc, 0, v{vS[2]}, vcc", "v")]
                if k == 2: vm.append(I(f"global_load_lds_dword v[{vS[1]}:{vS[2]}], off", "vm"))
            if o.v31x == 1 and c == 0 and g == self.x_gap - 1: sc.append(I(f"s_cmp_eq_u32 s{sCnt}, {o.v31trip}", "s"))
            if o.v31x == 1 and c == 0 and g == self.x_gap:
                sc += [I("s_cbranch_scc1 L_v31", "s"), I("L_v31b:", "l")]
                blk = [I("L_v31:", "l"), I(f"s_and_b32 s87, s{sVoff}, 0x3000"), I(f"s_add_u32 s87, s87, {31*16384}"), I(f"s_add_u32 m0, s{sWb}, {8*TILE}")]
                for jj in range(4):
                    blk += [I("s_nop 0"), I(f"buffer_load_dwordx4 v{vD}, {srd(sV)}, s87 offen offset:{jj*1024}{pol(o.kvpol)} lds")]
                    if jj < 3: blk.append(I(f"s_addk_i32 m0, {PIECE-1024}"))
                blk.append(I("s_branch L_v31b"))
                self.v31blk = blk
            if c == 1 and g == NG - 3: sc.append(I(f"s_sub_u32 s{sCnt}, s{sCnt}, 1", "s"))
            if c == 1 and g == NG - 2: sc.append(I(f"s_cmp_lg_u32 s{sCnt}, 0", "s"))
            out += sc + ds + vm + va
        if c == 1: out.append(I("s_cbranch_scc1 L_loop", "s"))
        return out

    def rare_q(self, name, m, kslot, pend, prog):
        out = [I(f"L_rare{name}:", "l")]
        a = lambda t: out.append(I(t))
        fb = ("v", vLt[0])
        m += 10
        t, t2, f = vLt[0], vLt[1], vLt[2]
        a("s_waitcnt vmcnt(0)")
        a("s_nop 7")
        for qt in range(4):
            for fr in range(16):
                a(self.kread_t(kslot, fr, fb))
                a("s_waitcnt lgkmcnt(0)")
                a(self.qk_t(m, fr, qt, fb))
                a("s_nop 7")
            a("s_nop 3")
            x = lambda k: X(m, qt, k)
            a(f"v_max3_f32 v{t}, v{x(0)}, v{x(1)}, v{x(2)}")
            a(f"v_max3_f32 v{t}, v{t}, v{x(3)}, v{x(4)}")
            a(f"v_max3_f32 v{t}, v{t}, v{x(5)}, v{x(6)}")
            a(f"v_max_f32 v{t}, v{t}, v{x(7)}")
            for sw in ("v_permlane16_swap_b32", "v_permlane32_swap_b32"):
                a(f"v_mov_b32 v{t2}, v{t}"); a("s_nop 1"); a(f"{sw} v{t}, v{t2}"); a("s_nop 1"); a(f"v_max_f32 v{t}, v{t}, v{t2}")
            a(f"v_ceil_f32 v{t}, v{t}")
            a(f"v_max_f32 v{t}, 0, v{t}")
            for k in range(4): a(f"v_sub_f32 v{Mb(qt)+k}, v{Mb(qt)+k}, v{t}")
            for k in range(8): a(f"v_sub_f32 v{x(k)}, v{x(k)}, v{t}")
            for k in range(8): a(f"v_sub_f32 v{X(prog,qt,k)}, v{X(prog,qt,k)}, v{t}")
            a(f"v_min_f32 v{t2}, 0x43480000, v{t}")
            a(f"v_cvt_i32_f32 v{t2}, v{t2}")
            a(f"v_sub_u32 v{t2}, 0, v{t2}")
            a(f"v_ldexp_f32 v{f}, 1.0, v{t2}")
            a(f"v_mul_f32 v{vL[qt]}, v{vL[qt]}, v{f}")
            for pm in pend:
                for j in range(4):
                    p = X(pm, qt, j)
                    a(f"v_lshlrev_b32 v{t}, 16, v{p}")
                    a(f"v_and_b32 v{t2}, 0xffff0000, v{p}")
                    a(f"v_mul_f32 v{t}, v{t}, v{f}")
                    a(f"v_mul_f32 v{t2}, v{t2}, v{f}")
                    a(f"v_cvt_pk_bf16_f32 v{p}, v{t}, v{t2}")
            for a0 in range(qt * 64, qt * 64 + 64, 2):
                a(f"v_accvgpr_read_b32 v{t}, a{a0}"); a(f"v_accvgpr_read_b32 v{t2}, a{a0+1}")
                a(f"v_mul_f32 v{t}, v{t}, v{f}"); a(f"v_mul_f32 v{t2}, v{t2}, v{f}")
                a(f"v_accvgpr_write_b32 a{a0}, v{t}"); a(f"v_accvgpr_write_b32 a{a0+1}, v{t2}")
            for k in range(8): a(f"v_exp_f32 v{x(k)}, v{x(k)}")
            a("s_nop 0")
            for k in range(8): a(f"v_add_f32 v{vL[qt]}, v{vL[qt]}, v{x(k)}")
            for j in range(4): a(f"v_cvt_pk_bf16_f32 v{x(j)}, v{x(2*j)}, v{x(2*j+1)}")
        for qt in range(4): a(f"v_mov_b32 v{vLt[qt]}, 0")
        a("s_nop 1")
        a(f"s_branch L_back{name}")
        return out

    def rare(self, name, m, kslot, pend, prog, mcopy=None):
        out = [I(f"L_rare{name}:", "l")]
        a = lambda t: out.append(I(t))
        fb = ("v", vLt[0])
        a("s_nop 7")
        for f in range(16):
            a(self.kread_t(kslot, f, fb))
            a("s_waitcnt lgkmcnt(0)")
            for qt in range(4): a(self.qk_t(m, f, qt, fb, zero=True))
            a("s_nop 7")
        a("s_nop 7")
        t, t2, f = vC, vLt[0], vLt[1]
        for qt in range(4):
            x = lambda k: X(m, qt, k)
            mreg = mcopy[qt] if mcopy else Mb(qt)
            for k in range(8): a(f"v_add_f32 v{x(k)}, v{x(k)}, v{mreg}")
            a(f"v_max3_f32 v{t}, v{x(0)}, v{x(1)}, v{x(2)}")
            a(f"v_max3_f32 v{t}, v{t}, v{x(3)}, v{x(4)}")
            a(f"v_max3_f32 v{t}, v{t}, v{x(5)}, v{x(6)}")
            a(f"v_max_f32 v{t}, v{t}, v{x(7)}")
            for sw in ("v_permlane16_swap_b32", "v_permlane32_swap_b32"):
                a(f"v_mov_b32 v{t2}, v{t}"); a("s_nop 1"); a(f"{sw} v{t}, v{t2}"); a("s_nop 1"); a(f"v_max_f32 v{t}, v{t}, v{t2}")
            a(f"v_ceil_f32 v{t}, v{t}")
            a(f"v_max_f32 v{t}, 0, v{t}")
            if mcopy: a(f"v_sub_f32 v{mreg}, v{mreg}, v{t}")
            else:
                for k in range(4): a(f"v_sub_f32 v{mreg+k}, v{mreg+k}, v{t}")
            for k in range(8): a(f"v_sub_f32 v{x(k)}, v{x(k)}, v{t}")
            if prog is not None:
                for k in range(8): a(f"v_sub_f32 v{X(prog,qt,k)}, v{X(prog,qt,k)}, v{t}")
            a(f"v_min_f32 v{t2}, 0x43480000, v{t}")
            a(f"v_cvt_i32_f32 v{t2}, v{t2}")
            a(f"v_sub_u32 v{t2}, 0, v{t2}")
            a(f"v_ldexp_f32 v{f}, 1.0, v{t2}")
            a(f"v_mul_f32 v{vL[qt]}, v{vL[qt]}, v{f}")
            for pm in pend:
                for j in range(4):
                    p = X(pm, qt, j)
                    a(f"v_lshlrev_b32 v{t}, 16, v{p}")
                    a(f"v_and_b32 v{t2}, 0xffff0000, v{p}")
                    a(f"v_mul_f32 v{t}, v{t}, v{f}")
                    a(f"v_mul_f32 v{t2}, v{t2}, v{f}")
                    a(f"v_cvt_pk_bf16_f32 v{p}, v{t}, v{t2}")
            for a0 in range(qt * 64, qt * 64 + 64, 2):
                a(f"v_accvgpr_read_b32 v{t}, a{a0}"); a(f"v_accvgpr_read_b32 v{t2}, a{a0+1}")
                a(f"v_mul_f32 v{t}, v{t}, v{f}"); a(f"v_mul_f32 v{t2}, v{t2}, v{f}")
                a(f"v_accvgpr_write_b32 a{a0}, v{t}"); a(f"v_accvgpr_write_b32 a{a0+1}, v{t2}")
        Eexp, Epl = self.E_ops()
        for op in Eexp: a(op.fn(m))
        a("s_nop 0")
        for op in Epl:
            if op.name.startswith("add"): a(op.fn(m))
        for op in Epl:
            if op.name.startswith("cvt"): a(op.fn(m))
        a("s_nop 1")
        a(f"s_branch L_back{name}")
        return out

    def stamp(self, idx):
        if not self.o.stamps: return []
        return [I(f"s_memtime s[{40+2*idx}:{41+2*idx}]", "sm"), I(f"s_memrealtime s[{68+2*idx}:{69+2*idx}]", "sm")]

    def frag_stream(self, specs, j0, users_prev=None):
        fr = []
        for j, (kind, slot, idx, tag, deps, *bb) in enumerate(specs):
            buf = bb[0] if bb else j0 + j
            if kind == "done": nodes = []
            elif kind == "K": nodes = [Nd(self.kread_t(slot, idx, buf), "ds", deps=list(deps), tag=tag)]
            else: nodes = [Nd(self.vread_t(slot, idx, s, buf), "ds", deps=list(deps), tag=tag) for s in range(2)]
            fr.append(dict(nodes=nodes, buf=buf, tag=tag, users=[]))
        prev = None
        for f in fr:
            for n in f["nodes"]:
                if prev: n.deps.append((prev, 0))
                prev = n
        return fr
    def link_users(self, fr, depth):
        for j, f in enumerate(fr):
            if j - depth >= 0 and fr[j - depth]["users"]:
                for n in f["nodes"]: n.deps.append((fr[j - depth]["users"][-1], 0))
    def mf(self, f, text, deps=(), cap=None):
        first = not f["users"]
        m = Nd(text, "m", deps=list(deps) + [(n, 0) for n in f["nodes"]], need=f["tag"] if first else None, cap=cap)
        f["users"].append(m)
        return m

    def prologue(self):
        o = self.o
        S = Sched()
        a = lambda t, k="o", **kw: S.raw([I(t, k, **kw)])
        lane, w, t0, t1, t2, vQr = vT + 8, vT + 9, vT + 10, vT + 11, vT + 12, vT + 14
        a("s_cmpk_ge_u32 s2, 0x100")
        a("s_cbranch_scc1 L_end")
        a("s_load_dwordx8 s[28:35], s[0:1], 0", "sm")
        if o.stamps:
            a(f"s_load_dwordx2 s[36:37], s[0:1], {32 if o.dbg else 40}", "sm")
            a("s_memrealtime s[38:39]", "sm")
            S.raw(self.stamp(0))
        if o.codepf:
            a("s_getpc_b64 s[96:97]")
            a("L_pc:", "l")
            a(f"v_lshlrev_b32 v{t0}, 7, v0")
            a(f"v_add_co_u32 v{t0}, vcc, s96, v{t0}")
            a(f"v_mov_b32 v{t1}, s97")
        a(f"v_lshrrev_b32 v{w}, 6, v0")
        if o.codepf: a(f"v_addc_co_u32 v{t1}, vcc, 0, v{t1}, vcc")
        a(f"v_and_b32 v{lane}, 63, v0")
        if o.codepf: a(f"global_load_dword v{vT+15}, v[{t0}:{t1}], off", "vm")
        a(f"v_and_b32 v{t1}, 32, v0")
        a(f"v_readfirstlane_b32 s{sWb}, v{w}")
        a(f"v_lshlrev_b32 v{vD}, 4, v{lane}")
        a(f"v_xor_b32 v{vD}, v{vD}, v{t1}")
        a("s_lshr_b32 s3, s2, 4")
        a("s_and_b32 s87, s2, 7")
        a("s_lshl3_add_u32 s3, s3, s87")
        a("s_and_b32 s87, s2, 8")
        a(f"s_lshl1_add_u32 s{sRow}, s{sWb}, s87")
        a(f"s_lshl_b32 s{sQoff}, s{sRow}, 14")
        a(f"s_lshl_b32 s{sKoff}, s{sWb}, 12")
        a(f"s_mulk_i32 s{sWb}, {4*PIECE}")
        a("s_mul_i32 s87, s3, 253952")
        a(f"s_mov_b32 s{sQ+2}, 253952")
        a(f"s_mov_b32 s{sQ+3}, 0x20000")
        a(f"s_add_u32 m0, s{sWb}, {8*TILE}")
        a(f"s_movk_i32 s{sCnt}, 2")
        a("s_waitcnt lgkmcnt(0)", "w0")
        a(f"s_add_u32 s{sQ}, s28, s87")
        a(f"s_addc_u32 s{sQ+1}, s29, 0")
        if o.exp_delay:
            a(f"s_bitcmp1_b32 s2, {o.exp_bit}")
            a("s_cbranch_scc0 L_q")
            a(f"s_sleep {o.exp_delay}")
        a("L_q:", "l")
        for j in range(4):
            S.raw([self.dma_ld("Q", j)])
            if j < 3:
                a(f"s_addk_i32 m0, {PIECE-1024}", "s")
                a(f"s_sub_u32 s{sCnt}, s{sCnt}, 1" if j == 0 else "s_nop 0")
        a(f"s_addk_i32 m0, {-(TILE + 3*(PIECE-1024))}", "s")
        S.raw([self.dma_adv("Q")])
        a(f"s_cmp_lg_u32 s{sCnt}, 0")
        a("s_cbranch_scc1 L_q")
        a("s_lshl_b32 s3, s3, 19")
        for (s, p) in ((sK, 30), (sV, 32)):
            a(f"s_add_u32 s{s}, s{p}, s3")
            a(f"s_addc_u32 s{s+1}, s{p+1}, 0")
            a(f"s_mov_b32 s{s+2}, 524288")
            a(f"s_mov_b32 s{s+3}, 0x20000")
        a(f"s_mov_b32 s{sVoff}, s{sKoff}")
        S.raw(self.dma_tile("K", 0) + self.dma_tile("K", 1) + self.dma_tile("V", 0))
        a(f"s_add_u32 s{sO}, s34, s87")
        a(f"s_addc_u32 s{sO+1}, s35, 0")
        a(f"s_mov_b32 s{sO+2}, 253952")
        a(f"s_mov_b32 s{sO+3}, 0x20000")
        a(f"s_lshl_b32 s{sRow}, s{sRow}, 14")
        for k in range(1, 8): a(f"s_add_u32 s{sRG[k]}, s{sRow}, {k*4096}")
        a(f"v_and_b32 v{t2}, 1, v{lane}")
        a(f"v_lshlrev_b32 v{t0}, 9, v{t2}")
        a(f"v_lshlrev_b32 v{t2}, 5, v{t2}")
        a(f"v_lshrrev_b32 v{t1}, 4, v{lane}")
        a(f"v_lshlrev_b32 v{t1}, 4, v{t1}")
        a(f"v_xor_b32 v{t1}, v{t1}, v{t2}")
        a(f"v_add_u32 v{t0}, v{t0}, v{t1}")
        a(f"v_bfe_u32 v{t1}, v{lane}, 1, 2")
        a(f"v_mul_u32_u24 v{t1}, {PIECE}, v{t1}")
        a(f"v_add_u32 v{t0}, v{t0}, v{t1}")
        a(f"v_bfe_u32 v{t1}, v{lane}, 3, 1")
        a(f"v_mul_u32_u24 v{vK}, {4*PIECE}, v{t1}")
        a(f"v_add_u32 v{vK}, v{vK}, v{t0}")
        a(f"v_xor_b32 v{t1}, 1, v{t1}")
        a(f"v_mul_u32_u24 v{vQr}, {TILE}, v{t1}")
        a(f"v_add_u32 v{vQr}, v{vQr}, v{t0}")
        a(f"s_add_u32 s87, s{sWb}, {5*TILE}")
        a(f"v_add_u32 v{vQr}, s87, v{vQr}")
        a(f"v_subrev_u32 v{vQr-1}, {3*TILE}, v{vQr}")
        a(f"v_lshrrev_b32 v{t0}, 3, v{lane}")
        a(f"v_mul_u32_u24 v{t0}, {PIECE}, v{t0}")
        a(f"v_bfe_u32 v{t2}, v{lane}, 2, 1")
        a(f"v_lshl_add_u32 v{t0}, v{t2}, 9, v{t0}")
        a(f"v_and_b32 v{t1}, 3, v{lane}")
        a(f"v_lshl_add_u32 v{t0}, v{t1}, 3, v{t0}")
        a(f"v_add_u32 v{t0}, {VBASE}, v{t0}")
        a(f"v_lshl_add_u32 v{vVe}, v{t2}, 5, v{t0}")
        a(f"v_xor_b32 v{vVo}, 32, v{vVe}")
        c = 1.4426950408889634 / 16.0
        a(f"s_mov_b32 s{sC}, {hex(f32bits(c))}")
        a(f"s_mov_b32 s{sNC}, {hex(f32bits(-c))}")
        a(f"s_mov_b32 s{sThr}, {hex(f32bits(o.thr))}")
        a(f"s_movk_i32 s{sCnt}, 7")
        a(f"s_mov_b32 s{sMask}, 0xffff0000")
        if o.l2pf:
            a(f"s_and_b32 s98, s{sVoff}, 0x3000")
            a("s_lshl_b32 s98, s98, 1")
            a(f"s_add_u32 s98, s98, {29*16384}")
            a("s_mov_b32 s99, 0x100000")
        if o.tailpf:
            a(f"s_and_b32 s87, s{sVoff}, 0x1000")
            a("s_lshl_b32 s87, s87, 1")
            a("s_add_u32 s87, s87, L_tail-L_pc")
            a("s_add_u32 s96, s96, s87")
            a("s_addc_u32 s97, s97, 0")
        def qchunks(hi_slot):
            return self.dma_tile("Q", hi_slot) + self.dma_tile("Q", hi_slot - 1)
        def qread(qt):
            base, off = {0: (vQr, 2 * TILE), 1: (vQr, 0), 2: (vQr - 1, 0), 3: (vQr, 2 * TILE)}[(3 - qt) if (o.deep and qt in (1, 2)) else qt]
            return [I(f"ds_read_b128 {Qr(qt,d8)}, v{base} offset:{off + 64*d8}", "ds", tag=("q", qt, d8)) for d8 in range(8)]
        def prescale(qt, tb, nt, pk, deps=()):
            out, lastcv = [], {}
            for g in range(0, 32, nt):
                rs = [(32 * qt + g + i, tb + 2 * i) for i in range(nt)]
                w = lambda t: [lastcv[t]] if t in lastcv else []
                lo = [Nd(f"v_lshlrev_b32 v{t}, 16, v{r}", "v", deps=list(deps) + w(t)) for r, t in rs]
                hi = [Nd(f"v_and_b32 v{t+1}, s{sMask}, v{r}", "v", deps=list(deps) + w(t)) for r, t in rs]
                if pk: mu = [[Nd(f"v_pk_mul_f32 v[{t}:{t+1}], v[{t}:{t+1}], s[{sC}:{sC+1}] op_sel_hi:[1,0]", "v", deps=[lo[i], hi[i]])] for i, (r, t) in enumerate(rs)]
                else: mu = [[Nd(f"v_mul_f32 v{t}, s{sC}, v{t}", "v", deps=[lo[i]]), Nd(f"v_mul_f32 v{t+1}, s{sC}, v{t+1}", "v", deps=[hi[i]])] for i, (r, t) in enumerate(rs)]
                cv = [Nd(f"v_cvt_pk_bf16_f32 v{r}, v{t}, v{t+1}", "v", deps=mu[i]) for i, (r, t) in enumerate(rs)]
                for i, (r, t) in enumerate(rs): lastcv[t] = cv[i]
                out += lo + hi + sum(mu, []) + cv
            return out
        S.raw(qchunks(3 if o.deep else 6))
        a("s_waitcnt vmcnt(20)")
        S.raw(qread(0))
        a("s_waitcnt lgkmcnt(0)", "w0")
        S.run([], prescale(0, 128, 4, True))
        if o.deep:
            S.raw(qchunks(6))
            a("s_waitcnt vmcnt(16)")
        else:
            S.raw(self.dma_tile("Q", 3))
            a("s_waitcnt vmcnt(12)")
        a("s_barrier")
        if o.stamps: S.raw(self.stamp(1))
        groups = [[0], [1], [2], [3]]
        bar = Nd([I("s_waitcnt vmcnt(12) lgkmcnt(0)", "w0"), I("s_barrier")], "s")
        one = lambda kind, slot, idx, tag, buf, deps=(): self.frag_stream([(kind, slot, idx, tag, list(deps), buf)], 0)[0]
        K0p = [one("K", 0, f, ("k0", f), ("a", 192 + 4 * f)) for f in range(16)]
        K1p = [one("K", 1, f, ("k1", f), ("v", 96 + 4 * f) if f < 8 else f) for f in range(16)]
        assert {"cvt03", "cvt13", "add07", "add17"} <= self.part1
        K1q = [one("K", 1, f, ("k1b", f), ("v", b)) for f, b in enumerate([128, 132, 136, 140, X(1, 0, 4), X(1, 1, 4), 144, 148])]
        lastq = [("a", 64), ("a", 128), ("v", 152), ("v", 128)]
        Vp = [[one("V", 0, d, ("vp", r, d), ("a", 64 * r + 4 + 4 * d) if d < 15 else lastq[r]) for d in range(16)] for r in range(4)]
        K2p = self.frag_stream([("K", 2, f, (0, f), [bar], f) for f in range(self.npre)], 0)
        again = lambda F: [dict(nodes=f["nodes"], buf=f["buf"], tag=f["tag"], users=[]) for f in F]
        fr_all = []
        for r in range(4): fr_all += again(K0p) + (again(K1p) if r < 3 else K1q + again(K1p[8:])) + Vp[r]
        regions = []
        for gi, qts in enumerate(groups):
            F = fr_all[48 * gi:48 * gi + 48]
            mfs, pool = [], []
            lastm = {}
            neg, pos = ("-1.0", "1.0") if gi < 3 else (f"s{sNC}", f"s{sC}")
            for tl in range(2):
                for f in range(16):
                    for qt in qts:
                        m = self.mf(F[16 * tl + f], self.qk_t(tl, f, qt, F[16 * tl + f]["buf"], zero=True)); mfs.append(m); lastm[(tl, qt, dk(f)[1])] = m
            pdone = {}
            for qi, qt in enumerate(qts):
                t, t2 = vC + 2 * qi, vC + 2 * qi + 1
                vals = [(tl, k) for tl in range(2) for k in range(8)]
                src = lambda v: (lastm[(v[0], qt, v[1] >> 2)], 8)
                rg = lambda v: f"v{X(v[0], qt, v[1])}"
                ch = [Nd(f"v_max3_f32 v{t}, {rg(vals[0])}, {rg(vals[1])}, {rg(vals[2])}", "v", deps=[src(v) for v in vals[:3]])]
                for j in range(3, 15, 2):
                    ch.append(Nd(f"v_max3_f32 v{t}, v{t}, {rg(vals[j])}, {rg(vals[j+1])}", "v", deps=[ch[-1], src(vals[j]), src(vals[j + 1])]))
                ch.append(Nd(f"v_max_f32 v{t}, v{t}, {rg(vals[15])}", "v", deps=[ch[-1], src(vals[15])]))
                for sw in ("v_permlane16_swap_b32", "v_permlane32_swap_b32"):
                    ch.append(Nd(f"v_mov_b32 v{t2}, v{t}", "v", deps=[ch[-1]]))
                    ch.append(Nd(f"{sw} v{t}, v{t2}", "v", deps=[(ch[-1], 2)]))
                    ch.append(Nd(f"v_max_f32 v{t}, v{t}, v{t2}", "v", deps=[(ch[-1], 1)]))
                mm = Nd(f"v_mul_f32 v{Mb(qt)}, {neg}, v{t}", "v", deps=[ch[-1]]); ch.append(mm)
                cp = [Nd(f"v_mov_b32 v{Mb(qt)+k}, v{Mb(qt)}", "v", deps=[mm]) for k in range(1, 4)]
                fma = {v: Nd(f"v_fma_f32 {rg(v)}, {rg(v)}, {pos}, v{Mb(qt)}", "v", deps=[mm]) for v in vals}
                E0 = self.to_nodes(self.E_order(*self.E_ops([qt], vL)), 0, extra=lambda op: [(fma[(0, int(op.name[4]))], 0)] if op.name.startswith("exp") else [])
                E1 = self.to_nodes(self.E_order(*self.E_ops([qt])), 1, only=self.part1,
                                   extra=lambda op: [(fma[(1, int(op.name[4]))], 0)] if op.name.startswith("exp") else [])
                pdone[qt] = [n for n in E0 if n.name.startswith("cvt")]
                crit = [n for n in E0 if not n.name.startswith("add") or int(n.name[4]) < 4]
                rest = [n for n in E0 if n not in crit]
                pool.append((ch + [fma[v] for v in vals[:8]] + crit, rest + cp + [fma[v] for v in vals[8:]] + E1))
            for d in range(16):
                for qt in qts:
                    mfs.append(self.mf(F[32 + d], self.pv_t(0, d, qt, F[32 + d]["buf"], zero=True), deps=[(n, 2) for n in pdone[qt]], cap=o.pro_cap3 if gi == 3 else None))
            hi = [n for tup in zip(*[p[0] for p in pool]) for n in tup]
            lo = sum((p[1] for p in pool), [])
            regions.append((mfs, hi + lo))
        assert not any(n.startswith(("chk", "cmp")) for n in self.part1)
        dsn = lambda F: [n for f in F for n in f["nodes"]]
        def after(F, m):
            for n in dsn(F): n.deps.append((m, 0))
        def spread(dm, ms, g0, step):
            k = 0
            for n in dm:
                if n.k == "vm":
                    n.soft.append((ms[min(len(ms) - 1, g0 + step * k)], 0)); k += 1
        m0, m1, m2, mfs = [r[0] for r in regions]
        V3p = Vp[3]
        for n in dsn(Vp[1] + Vp[2] + K1q): n.low = True
        for n in regions[2][1] + [m2[-1]]: after(K1q[6:], n)
        for d in range(16): after([V3p[d]], mfs[d + 1])
        plan = [("Q", 8), ("Q", 7), ("K", 2), ("V", 1), ("K", 3)] if o.deep else [("Q", 2), ("Q", 8), ("Q", 7), ("K", 2), ("K", 3)]
        vw = 12 if o.deep else 8
        qb, e = self.dma_nodes(*plan[0], [], None)
        spread(qb, m0, 4, 6)
        S.run([], dsn(K0p[:6]))
        S.run(m0, qb + dsn(K0p[6:] + K1p + Vp[0]) + regions[0][1] + dsn(Vp[1]), cap=4, dsmax=2)
        a(f"s_waitcnt vmcnt({vw})")
        S.raw(qread(1))
        a("s_waitcnt lgkmcnt(0)", "w0")
        qa, e = self.dma_nodes(*plan[1], [], None)
        qb, e = self.dma_nodes(*plan[2], [], e)
        S.run([], qa + prescale(1, 128, 4, True))
        spread(qb, m1, 0, 8)
        a("s_nop 1")
        S.run(m1, qb + regions[1][1] + dsn(Vp[2]), cap=o.pro_cap)
        a(f"s_waitcnt vmcnt({vw})")
        S.raw(qread(2))
        a("s_waitcnt lgkmcnt(0)", "w0")
        v1, e = self.dma_nodes(*plan[3], [], None)
        k2, e = self.dma_nodes(*plan[4], [], e)
        S.run([], v1 + prescale(2, 128, 4, True))
        spread(k2, m2, 0, 8)
        a("s_nop 1")
        S.run(m2, k2 + regions[2][1] + dsn(K1q), cap=o.pro_cap)
        a(f"s_waitcnt vmcnt({vw})")
        if o.stamps: S.raw(self.stamp(2))
        S.raw(qread(3))
        for f in range(16):
            if dk(f)[1] == 0: mfs[f].need = ("q", 3, dk(f)[0])
        d1, e1 = self.dma_nodes("V", 1, [(mfs[o.pro_dma], 0)], None)
        d2, e2 = self.dma_nodes("V", 2, [], e1)
        d3 = []
        if o.v31x == 2:
            p = Nd([I(f"s_and_b32 s87, s{sVoff}, 0x3000"), I(f"s_add_u32 s87, s87, {31*16384}")], "s", deps=[bar, e2]); d3.append(p)
            for jj in range(4):
                mm = Nd(f"s_add_u32 m0, s{sWb}, {8*TILE + (PIECE-1024)*jj}", "s", deps=[p])
                p = Nd(f"buffer_load_dwordx4 v{vD}, {srd(sV)}, s87 offen offset:{jj*1024}{pol(o.kvpol)} lds", "vm", deps=[(mm, 1)])
                d3 += [mm, p]
        for j in range(1, 16): V3p[j]["nodes"][0].deps.append((V3p[j - 1]["nodes"][-1], 0))
        bar.deps = [(V3p[15]["nodes"][-1], o.pro_bar), (mfs[o.pro_barm], 0), (e2, 0)]
        ps3 = prescale(3, 132, 4, False, deps=[(mfs[31], 0)])
        S.run(mfs, dsn(V3p) + regions[3][1] + d1 + d2 + d3 + [bar] + dsn(K2p) + ps3, cap=o.pro_cap, dsmax=1)
        a("s_nop 1")
        S.raw([I(None, "wl", need=(0, 1))])
        if o.stamps: S.raw(self.stamp(3) + self.stamp(4))
        return S.out

    def tail(self):
        o = self.o
        S = Sched()
        a = lambda t, k="o", **kw: S.raw([I(t, k, **kw)])
        M29, M30, M31 = 1, 0, 2
        bar = Nd([I(f"s_waitcnt vmcnt({(8 if o.v31x else 12) - (4 if o.dsplit == 8 else 0)})"), I("s_barrier")], "s")
        if o.v31x: o.splitv = 0
        barV = Nd([I(f"s_waitcnt vmcnt({4 if o.splitv else 0})"), I("s_barrier")], "s")
        barW = Nd([I("s_waitcnt vmcnt(0)"), I("s_barrier")], "s")
        dv, ev = self.dma_nodes("V", 3, [], None)
        xb = []
        if o.v31x:
            ev = Nd("s_nop 0", "s"); dv = [ev]
            xb = [Nd(f"v_add_u32 v{X(0,0,4)+i}, {4*TILE}, v{(vVe, vVo)[i]}", "v") for i in range(2)]
        touch = []
        if o.otouch:
            tm = Nd(f"s_add_u32 m0, s{sWb}, {8*TILE}", "s", deps=[bar])
            touch = [tm, Nd(f"buffer_load_dword off, {srd(sO)}, s{sRow} lds", "vm", deps=[(tm, 1)])]
        specs = [("done" if f < self.npre else "K", 2, f, (0, f), []) for f in range(16)]
        o31 = list(range(16))
        specs += [("K", 3, f, ("t", 31, f), [bar] if f == 0 else []) for f in o31]
        pvgroups = [[(0, d), (1, d)] for d in range(4)] + ([[(2, d) for d in range(4)]] if o.cb0quad else [[(2, 0), (2, 1)], [(2, 2), (2, 3)]])
        pvgroups += [[(tl, dt) for tl in range(3)] for dt in range(4, 16)]
        nlate = 0
        if o.late29:
            pvgroups = [[(0, d), (0, d + 1)] for d in range(4, 16, 2)] + pvgroups[:5] + [[(tl, dt) for tl in (1, 2)] for dt in range(4, 16)]
            nlate = 12
        pvorder = sum(pvgroups, [])
        specs += [("V", 4 if (tl == 2 and o.v31x) else 1 + tl, dt, ("t", "v", tl, dt), [barV] + ([barW] if tl == 2 and o.splitv else []) + (xb if tl == 2 else [])) for tl, dt in pvorder]
        fr = self.frag_stream(specs, 0)
        mfs, lastm = [], {}
        for p in range(8):
            for j, qt, e in walk(2, p):
                f = 2 * p + j
                m = self.mf(fr[f], self.qk_t(M30, f, qt, f, first=(p & 3) == 0 and e == 0)); mfs.append(m); lastm[(30, qt, dk(f)[1])] = m
        mfs[0].waited = True; mfs[1].waited = True
        mcopy = vS + [vD]
        def EC(tile, m, only, prevbr, prevmg, brdeps, rare_args):
            Eexp, Epl = self.E_ops()
            chk, mg = self.C_ops(Epl)
            def ex(op):
                d = []
                if op.name.startswith("exp"):
                    if (tile,) + op.src in lastm: d.append((lastm[(tile,) + op.src], 8))
                    if prevbr: d.append((prevbr, 0))
                if op.name.startswith("add") and op.name.endswith("1") and prevmg: d.append((prevmg[int(op.name[3])], 0))
                return d
            En = self.to_nodes(Epl + chk + Eexp, m, extra=ex, only=only)
            cn = [n for n in En if n.name == "cmp"][0]
            br = Nd([I(f"s_cbranch_vccnz L_rare{tile}", "s"), I(f"L_back{tile}:", "l")], "s", deps=[(cn, 1)] + [(n, 0) for n in En] + brdeps)
            self.rares.append(self.rare(str(tile), m, tile % R, *rare_args))
            mn = self.to_nodes(mg, m, extra=lambda op: [(br, 0)])
            return En, br, mn
        E29, br29, mg29 = EC(29, M29, self.part2, None, None, [], ([], M30))
        cpy = [Nd(f"v_mov_b32 v{mcopy[qt]}, v{Mb(qt)}", "v", deps=[br29, ev]) for qt in range(4)]
        q31 = []
        for p in range(8):
            for jj, qt, e in walk(2, p):
                j = 2 * p + jj; f = o31[j]
                deps = [(br29, 0)] if p == 0 else ([(n, 0) for n in cpy] if p == 4 else [])
                m = self.mf(fr[16 + j], self.qk_t(M31, f, qt, 16 + j, first=(p & 3) == 0 and e == 0), deps=deps, cap=o.cap31)
                mfs.append(m); q31.append(m); lastm[(31, qt, dk(f)[1])] = m
        bar.deps = [(mfs[o.tail_bar], 0), (br29, 0), (ev, 0)]
        barV.deps = [(q31[o.barv], 0)]
        E30, br30, mg30 = EC(30, M30, None, br29, mg29, [(n, 0) for n in cpy], ([M29], M31, mcopy))
        E31, br31, mg31 = EC(31, M31, None, br30, mg30, [], ([M29, M30], None, mcopy))
        for n in xb: n.deps.append((br30, 0))
        ln, t0, t1, t2 = 108, 109, 110, 111
        vW0, vR, vQ = 123, 124, 125
        ad = [f"v_mbcnt_lo_u32_b32 v{ln}, -1, 0", f"v_mbcnt_hi_u32_b32 v{ln}, -1, v{ln}",
              f"v_and_b32 v{t0}, 15, v{ln}", f"v_lshlrev_b32 v{t0}, 7, v{t0}",
              f"v_bfe_u32 v{t1}, v{ln}, 4, 1", f"v_lshl_add_u32 v{t0}, v{t1}, 3, v{t0}", f"v_add_u32 v{t0}, s{sWb}, v{t0}",
              f"v_lshrrev_b32 v{t1}, 5, v{ln}", f"v_and_b32 v{t2}, 7, v{ln}", f"v_xor_b32 v{t1}, v{t1}, v{t2}",
              f"v_lshl_add_u32 v{vW0}, v{t1}, 4, v{t0}",
              f"v_lshrrev_b32 v{t0}, 3, v{ln}", f"v_xor_b32 v{t1}, v{t0}, v{t2}", f"v_lshlrev_b32 v{t1}, 4, v{t1}",
              f"v_lshl_add_u32 v{vR}, v{t0}, 7, v{t1}", f"v_add_u32 v{vR}, s{sWb}, v{vR}",
              f"v_lshlrev_b32 v{t2}, 4, v{t2}", f"v_lshl_add_u32 v{vQ}, v{t0}, 9, v{t2}"]
        adn = []
        for x in ad: adn.append(Nd(x, "v", deps=[adn[-1]] if adn else [br31]))
        brs = [br29, br30, br31]
        Pd = {}
        for tl, E in enumerate((E29, E30, E31)):
            for qt in range(4): Pd[(tl, qt)] = [n for n in E if n.name.startswith(f"cvt{qt}")]
        lastpv = {}
        maps = [M29, M30, M31]
        j0 = 0
        for gi, grp in enumerate(pvgroups):
            for jj, qt, e in walk(len(grp), gi):
                if True:
                    tl, dt = grp[jj]
                    j = j0 + jj
                    cap = o.cap_a if j < 8 + nlate else (o.cap_b if j < 12 + nlate else (o.cap_d if j < 15 + nlate else o.cap_c))
                    if o.pkall and j >= 8: cap = o.cap_hi if len(mfs) % o.clus == o.clus - 1 else 2
                    m = self.mf(fr[32 + j], self.pv_t(maps[tl], dt, qt, 32 + j), deps=[(n, 2) for n in Pd[(tl, qt)]] + [(brs[tl], 0)], cap=cap)
                    mfs.append(m); lastpv[(qt, dt)] = m
            j0 += len(grp)
        self.link_users(fr, 8)
        barW.deps = [(mfs[128 + o.barw], 0)]
        inv = [112 + 2 * qt for qt in range(4)]
        vW = [vW0, 120, 121, 122]
        small = []
        chains = []
        for qt in range(4):
            t, t2 = inv[qt], inv[qt] + 1
            ch = [Nd(f"v_mov_b32 v{t2}, v{vL[qt]}", "v", deps=[mg31[qt]])]
            ch.append(Nd(f"v_permlane16_swap_b32 v{vL[qt]}, v{t2}", "v", deps=[(ch[-1], 2)]))
            ch.append(Nd(f"v_add_f32 v{t}, v{vL[qt]}, v{t2}", "v", deps=[(ch[-1], 1)]))
            ch.append(Nd(f"v_mov_b32 v{t2}, v{t}", "v", deps=[ch[-1]]))
            ch.append(Nd(f"v_permlane32_swap_b32 v{t}, v{t2}", "v", deps=[(ch[-1], 2)]))
            ch.append(Nd(f"v_add_f32 v{t}, v{t}, v{t2}", "v", deps=[(ch[-1], 1)]))
            ch.append(Nd(f"v_rcp_f32 v{t}, v{t}", "t", deps=[ch[-1]]))
            chains.append(ch)
        small = [n for tup in zip(*chains) for n in tup]
        wn = [Nd(f"v_xor_b32 v{vW[k]}, {32*k}, v{vW0}", "v", deps=[adn[-1]]) for k in range(1, 4)]
        conv = []
        opol = [pol(x) for x in (o.opol.split(",") * 4)[:4]]
        wr_prev = {}; st_prev = {}; rd_prev = {}
        lastds = None
        for i, (cb, qt) in enumerate([(cb, qt) for cb in range(4) for qt in range(4)]):
            b = 16 * (i % 4)
            pk = cb == 3 or o.pkall
            a0 = Ob(qt, 4 * cb)
            war = [(wr_prev[i % 4], 1)] if i % 4 in wr_prev else [(br31, 0)]
            rdn = [Nd(f"v_accvgpr_read_b32 v{b+k}, a{a0+k}", "v", deps=[(lastpv[(qt, 4 * cb + (k >> 2))], 8)] + war) for k in range(16)]
            iv = (chains[qt][-1], 1)
            if pk: mu = [Nd(f"v_pk_mul_f32 v[{b+2*k}:{b+2*k+1}], v[{b+2*k}:{b+2*k+1}], v[{inv[qt]}:{inv[qt]+1}] op_sel_hi:[1,0]", "v", deps=[rdn[2 * k], rdn[2 * k + 1], iv]) for k in range(8)]
            else: mu = [Nd(f"v_mul_f32 v{b+k}, v{b+k}, v{inv[qt]}", "v", deps=[rdn[k], iv]) for k in range(16)]
            if pk:
                for n in mu: n.pk = True
            cv = []
            for k in range(8):
                deps = ([mu[k]] if pk else [mu[2 * k], mu[2 * k + 1]]) + ([cv[-1]] if cv else [])
                cv.append(Nd(f"v_cvt_pk_bf16_f32 v{b+k}, v{b+2*k}, v{b+2*k+1}", "v", deps=deps))
            rb = qt >> 1
            wr = []
            for k in range(4):
                deps = [cv[2 * k + 1], adn[-1]] + ([wn[k - 1]] if k else []) + ([rd_prev[rb]] if rb in rd_prev else [(bar, 0)]) + ([wr[-1]] if wr else [])
                wr.append(Nd(f"ds_write_b64 v{vW[k]}, v[{b+2*k}:{b+2*k+1}] offset:{rb*TILE + (qt&1)*2048}", "ds", deps=deps, tag=("w", i, k)))
            for n in wr: n.cost = o.wcost
            wr_prev[i % 4] = wr[-1]
            conv += wr + rdn + mu + cv
            if qt & 1:
                rbuf = 64 + 16 * ((i >> 1) % 3)
                u2 = (i >> 1) % 3
                rds = []
                for k in range(4):
                    deps = [wr[-1], prev_wr] + ([(st_prev[u2], 2)] if u2 in st_prev else []) + ([rds[-1]] if rds else [])
                    rds.append(Nd(f"ds_read_b128 v[{rbuf+4*k}:{rbuf+4*k+3}], v{vR} offset:{rb*TILE + k*1024}", "ds", deps=deps, tag=("r", i, k)))
                rd_prev[rb] = rds[-1]
                sts = []
                for k in range(4):
                    kk = 4 * rb + k
                    so = f"s{sRow}" if kk == 0 else f"s{sRG[kk]}"
                    sts.append(Nd(f"buffer_store_dwordx4 v[{rbuf+4*k}:{rbuf+4*k+3}], v{vQ}, {srd(sO)}, {so} offen offset:{128*cb}{opol[cb]}", "vm",
                                  deps=[rds[k]] + ([sts[-1]] if sts else []), soft=[(rds[k], o.st_dist)], need=("r", i, k)))
                st_prev[u2] = sts[-1]
                conv = self._hoist(conv, rds + sts)
            prev_wr = wr[-1]
        ds = [n for f in fr for n in f["nodes"]]
        pool = ds + dv + [br29, bar, barV] + ([barW] if o.splitv else []) + touch + E29 + mg29 + cpy + [br30] + xb + E30 + mg30 + [br31] + E31 + mg31 + small + adn + wn + conv
        S.run(mfs, pool, dsmax=o.tail_dsmax)
        T = S.out
        if o.ab_drop:
            dr = tuple(o.ab_drop.split(","))
            for it in T:
                if it.t and it.t.startswith(dr): it.t = "s_nop 0" if o.ab_nop else None; it.k = "ds" if it.k == "ds" else "o"
        a2 = lambda t, k="o": T.append(I(t, k))
        if o.stamps:
            i1 = max(i for i, it in enumerate(T) if it.k == "m")
            T[i1 + 1:i1 + 1] = self.stamp(7)
            i0 = min(i for i, it in enumerate(T) if it.t and it.t.startswith("buffer_store"))
            T[i0:i0] = self.stamp(6)
            a2("s_waitcnt vmcnt(0)")
            T += self.stamp(8)
            a2("s_memrealtime s[58:59]", "sm")
            a2("s_getreg_b32 s60, hwreg(HW_REG_XCC_ID)")
            a2("s_getreg_b32 s61, hwreg(HW_REG_HW_ID)")
            a2("s_waitcnt lgkmcnt(0)")
            a2(f"s_mov_b32 s64, s36"); a2("s_mov_b32 s65, s37"); a2(f"s_mov_b32 s66, {256 if o.dbg else 0x1000000}"); a2("s_mov_b32 s67, 0x20000")
            if o.dbg:
                a2("s_cmp_lg_u32 s2, 37"); a2("s_cbranch_scc1 L_end")
                a2(f"s_cmp_lg_u32 s{sWb}, 0"); a2("s_cbranch_scc1 L_end")
                a2("v_mov_b32 v1, 0")
                for k in range(8):
                    a2(f"s_sub_u32 s62, s{42+2*k}, s{40+2*k}"); a2("v_mov_b32 v0, s62")
                    a2(f"buffer_store_dword v0, v1, s[64:67], 0 offen offset:{4*k}")
                    a2(f"s_sub_u32 s62, s{70+2*k}, s{68+2*k}"); a2("v_mov_b32 v0, s62")
                    a2(f"buffer_store_dword v0, v1, s[64:67], 0 offen offset:{32+4*k}")
                if o.amp:
                    i0, i1 = map(int, o.amp.split(","))
                    a2(f"s_sub_u32 s62, s{68+2*i1}, s{68+2*i0}")
                    a2("s_lshl_b32 s62, s62, 3")
                    a2("s_min_u32 s62, s62, 100000")
                    a2("L_amp:", "l")
                    a2("s_memrealtime s[58:59]")
                    a2("s_waitcnt lgkmcnt(0)")
                    a2("s_sub_u32 s63, s58, s84")
                    a2("s_cmp_lt_u32 s63, s62")
                    a2("s_cbranch_scc1 L_amp")
                return T
            a2(f"s_lshl_b32 s62, s2, 10")
            a2(f"s_mul_hi_u32 s63, s{sWb}, {(2**32)//(4*PIECE)+1}")
            a2(f"s_lshl_b32 s63, s63, 8")
            a2(f"s_add_u32 s62, s62, s63")
            a2(f"v_mov_b32 v1, 0")
            for k in range(24):
                a2(f"v_mov_b32 v0, s{38+k}")
                a2(f"buffer_store_dword v0, v1, s[64:67], s62 offen offset:{4*k}")
            for k in range(8):
                a2(f"v_mov_b32 v0, s{28+k}")
                a2(f"buffer_store_dword v0, v1, s[64:67], s62 offen offset:{208+4*k}")
            for k in range(18):
                a2(f"v_mov_b32 v0, s{68+k}")
                a2(f"buffer_store_dword v0, v1, s[64:67], s62 offen offset:{128+4*k}")
        return T

    @staticmethod
    def _hoist(conv, hot):
        k = 0
        while k < len(conv) and getattr(conv[k], "hot", False): k += 1
        for n in hot: n.hot = True
        return conv[:k] + hot + conv[k:]

    def build(self):
        o = self.o
        pro = self.prologue()
        trip = []
        if o.trips:
            trip = [I("s_memtime s[62:63]"), I(f"s_mov_b32 m0, s{sCnt}"), I("s_waitcnt lgkmcnt(0)"), I("s_movreld_b32 s28, s62")]
        loop = [I("L_loop:", "l")] + trip + self.body(0) + self.body(1)
        tl = [I("L_tail:", "l")] + self.stamp(5) + self.tail()
        trace = pro + loop + loop + tl
        self.resolve_waits(trace)
        lines = [it.t for it in trace if it.t and not it.skip and it.k != "l"]
        errs = hz.check(lines)
        for r in self.rares: errs += hz.check([it.t for it in r if it.k != "l"])
        for e in sorted(set(errs))[:20]: print(e, file=sys.stderr)
        assert not errs or o.ab_drop, "hazards"
        if o.verbose:
            cnt = lambda l: sum(1 for it in l if it.t and not it.skip and it.k != "l")
            print("instr: prologue", cnt(pro), "loop", cnt(loop), "tail", cnt(tl), file=sys.stderr)
        if o.v31x == 1: pro = pro + [I("s_branch L_loop")] + self.v31blk
        return pro + [I(".p2align 6" if o.align else "", "l")] + loop + tl + [I("L_end:", "l"), I("s_endpgm")] + sum(self.rares, [])

    def resolve_waits(self, trace):
        ds = []
        for it in trace:
            if it.k == "ds": ds.append(it.tag)
            elif it.k == "wl":
                idx = max(j for j, t in enumerate(ds) if t == it.need)
                n = min(14, len(ds) - 1 - idx)
                it.n = n if it.n is None else min(it.n, n)
        needed = set()
        ds = []; done = 0
        for it in trace:
            if it.k == "ds": ds.append(it.tag)
            elif it.k == "w0": done = len(ds)
            elif it.k == "wl":
                idx = max(j for j, t in enumerate(ds) if t == it.need)
                if idx >= done: needed.add(id(it))
                done = max(done, len(ds) - it.n) if id(it) in needed else done
        for it in trace:
            if it.k == "wl":
                it.skip = id(it) not in needed
                it.t = f"s_waitcnt lgkmcnt({it.n})"

    def text(self):
        body = self.build()
        hdr = open("standalone__mha_softmax__near_ridge.s.ref").read().split("\n")
        top = []
        for ln in hdr:
            if ln.startswith("; @launch"): break
            top.append(ln)
        out = top + [f"; @launch grid=(256,1,1) block=(256,1,1) lds={LDS_BYTES}",
                     "; Flash-attention forward, written with my own generator script (static scheduler + hazard checker).",
                     "; One workgroup per CU: 256 q rows of one head (4 waves x 64 rows), 32-key tiles, v_mfma_f32_16x16x32_bf16.",
                     ";  * S^T = K Q^T and O^T = V^T P^T, so P never leaves its lanes; O lives in the 256 AGPRs, Q in v0..v127.",
                     ";  * K/V/Q reach LDS by LDS-DMA (4-slot rings, padded + xor layout, no bank conflicts); V is read with ds_read_b64_tr_b16.",
                     ";  * Q is scaled once by log2(e)/sqrt(D); -(reference max) enters as the C operand of each QK chain.",
                     ";  * The reference max is the true row max of the first 64 keys.  Every tile's row sums are checked at run time; if a",
                     ";    probability leaves the safe range the tile is recomputed from K against the true running max and O, l, P are",
                     ";    rescaled exactly (L_rare*).",
                     ";  * prologue: tile 0 and QK(1) q-tile by q-tile while Q streams in; loop: cycles QK(j+1) QK(j+2) PV(j,j+1);",
                     ";    tail: PV of the last three tiles column block by column block, transposed through LDS into full-line stores.",
                     '.amdgcn_target "amdgcn-amd-amdhsa--gfx950"', ".text", f".globl {KNAME}"] + ([".p2align 12"] if self.o.al12 else []) + [".p2align 8",
                     f".type {KNAME},@function", f"{KNAME}:"]
        run = 0
        for it in body:
            if it.skip or not it.t: continue
            if it.t == "s_nop 0" and run and run < 16:
                run += 1
                out[-1] = f"    s_nop {run-1}"
                continue
            run = 1 if it.t == "s_nop 0" else 0
            out.append(("" if it.k == "l" else "    ") + it.t)
        out = [l + "    ; wait states (hazard)" if l.startswith("    s_nop") else l for l in out]
        out += ['.section .rodata,"a"', ".p2align 6", f".amdhsa_kernel {KNAME}",
                "  .amdhsa_next_free_vgpr 512", "  .amdhsa_next_free_sgpr 100", "  .amdhsa_accum_offset 256",
                "  .amdhsa_group_segment_fixed_size 0", "  .amdhsa_kernarg_size 48", "  .amdhsa_user_sgpr_count 2",
                "  .amdhsa_user_sgpr_kernarg_segment_ptr 1", "  .amdhsa_system_sgpr_workgroup_id_x 1",
                ".end_amdhsa_kernel", ""]
        return "\n".join(out)

def parse(argv):
    p = argparse.ArgumentParser()
    p.add_argument("-o", default="standalone__mha_softmax__near_ridge.s")
    for f in ("stamps", "verbose", "dbg", "no_bar", "no_dma", "no_br"):
        p.add_argument("--" + f, action="store_true")
    for name, d in dict(align=1, look=24, bar_gap=113, bar_quiet=1, kstep=2, sgap=5, trips=0, dsplit=4, l2pf=0, l2trip=3, v31trip=4, tailpf=0, v31x=2, barv=30, splitv=1, barw=8, late29=0, e2start=206, dma1=106, dmastep1=8, fake_chain=0, exp_delay=0, exp_bit=3, pkall=0, wcost=1, cap_hi=10, clus=2, deep=0, cb0quad=1, cap_d=5, otouch=0, snake=1, pvchain=1, pace=0, al12=0, late_v1=0, br_delay=1, dma0=2, dmastep=4, sdelay=28, backlog=5,
                        codepf=1, pdepth=7, g0_dma0=2, g0_dmastep=6, pro_dma=2, pro_bar=10, pro_barm=43, pro_cap=3, pro_cap3=12, tail_bar=30, cap31=2, cap_a=7, cap_b=3, cap_c=5, st_dist=24, tail_dsmax=1).items():
        p.add_argument("--" + name, type=int, default=d)
    p.add_argument("--thr", type=float, default=1048576.0)
    p.add_argument("--amp", default="")
    p.add_argument("--l2pol", default="")
    p.add_argument("--ab_drop", default="")
    p.add_argument("--ab_nop", type=int, default=0)
    p.add_argument("--kvpol", default="nt")
    p.add_argument("--qpol", default="nt")
    p.add_argument("--opol", default="nt")
    return p.parse_args(argv)

if __name__ == "__main__":
    o = parse(sys.argv[1:])
    open(o.o, "w").write(Gen(o).text())
```
